```python
import torch

def _softmax(x, axis=-1):
    return torch.softmax(x, dim=axis)
def _gelu(x):
    return torch.nn.functional.gelu(x, approximate="tanh")
def _silu(x):
    return torch.nn.functional.silu(x)
def _sigmoid(x):
    return torch.sigmoid(x)
def _layernorm(x, axis=-1, eps=1e-5):
    m = x.mean(dim=axis, keepdim=True)
    v = x.var(dim=axis, keepdim=True, unbiased=False)
    return (x - m) / torch.sqrt(v + eps)
def _scatter_add(tgt, idx, src, axis=0):
    return tgt.clone().index_add_(axis, idx, src)
def _segment_sum(src, seg, n):
    out = torch.zeros((n,) + src.shape[1:], dtype=src.dtype)
    return out.index_add_(0, seg, src)
def _pad(x, pw):
    flat = tuple(v for pair in reversed(pw) for v in pair)
    return torch.nn.functional.pad(x, flat)

kernel_name = 'standalone__low_rank_proj_linformer__sampling'

def setup_inputs():

    _w = (lambda a: (lambda t: t.to(torch.bfloat16) if t.is_floating_point() else t)(torch.as_tensor(a)))
    B, H, Sq, Skv, Dh, R = 16, 32, 16, 4096, 128, 16
    return {
        "q": _w((lambda *s: torch.randn(*s, dtype=torch.bfloat16) * 0.8)(B, H, Sq, Dh)),
        "k": _w((lambda *s: torch.randn(*s, dtype=torch.bfloat16) * 0.8)(B, H, Skv, Dh)),
        "v": _w((lambda *s: torch.randn(*s, dtype=torch.bfloat16) * 0.05)(B, H, Skv, Dh)),
        "e_proj": _w((lambda *s: torch.randn(*s, dtype=torch.bfloat16) * 0.8)(R, Skv) * (Skv ** -0.5)),
        "f_proj": _w((lambda *s: torch.randn(*s, dtype=torch.bfloat16) * 0.05)(R, Skv) * (Skv ** -0.5)),
    }

def reference(q, k, v, e_proj, f_proj):
    B, H, Sq, Dh = q.shape
    kp = torch.einsum("rn,bhnd->bhrd", e_proj, k)
    vp = torch.einsum("rn,bhnd->bhrd", f_proj, v)
    scores = torch.einsum("bhqd,bhrd->bhqr", q, kp) * (Dh ** -0.5)
    p = _softmax(scores, axis=-1)
    o = torch.einsum("bhqr,bhrd->bhqd", p, vp)
    return o
```

```python
import sys

NAME = "standalone__low_rank_proj_linformer__sampling"
HEADER = open("cdna_kernels/%s.s.ref" % NAME).read().split("; Override launch")[0]


def gen(S=1, D=6, flags="nt", eflags="", rot=0, wpe=1, interleave=False):
    NW = 2 * S
    rows = 4096 // S
    steps = rows // 32
    assert steps % D == 0 or True
    L = []
    o = L.append
    lds = NW * 8192
    o(HEADER.rstrip())
    o("; @launch grid=(512,1,1) block=(%d,1,1) lds=%d" % (NW * 64, lds))
    o('.amdgcn_target "amdgcn-amd-amdhsa--gfx950"')
    o(".text")
    o(".globl %s_kernel" % NAME)
    o(".p2align 8")
    o(".type %s_kernel,@function" % NAME)
    o("%s_kernel:" % NAME)

    V_LANE = 0
    V_OFF = 1
    V_EOFF = 2
    V_T0 = 3
    V_T1 = 4
    T = 8
    LB = 24
    nv = LB + D * 32
    nv = max(nv, 124)
    assert nv <= 256
    ACC = 0
    EB = 32
    QB = EB + D * 4
    na = QB + 16
    accum_offset = (nv + 3) // 4 * 4

    S_SELLO, S_SELHI = 20, 21
    S_WAVE = 22
    S_OFF = 23
    S_EOFF = 24
    S_CNT = 25
    SRD_D = 28
    SRD_P = 32
    SRD_Q = 36
    SRD_O = 40
    S_TMP = 44

    o("    s_cmp_ge_u32 s2, 512")
    o("    s_cbranch_scc1 L_end")
    o("    s_load_dwordx16 s[4:19], s[0:1], 0")
    o("    v_lshrrev_b32 v%d, 6, v0" % V_T0)
    o("    v_and_b32 v%d, 63, v0" % V_LANE)
    o("    v_readfirstlane_b32 s%d, v%d" % (S_WAVE, V_T0))
    o("    s_mov_b32 s%d, 0x05040100" % S_SELLO)
    o("    s_mov_b32 s%d, 0x07060302" % S_SELHI)
    o("    v_and_b32 v%d, 15, v%d" % (V_T0, V_LANE))
    o("    v_lshrrev_b32 v%d, 4, v%d" % (V_T1, V_LANE))
    o("    v_lshlrev_b32 v%d, 4, v%d" % (V_OFF, V_T0))
    o("    v_lshl_add_u32 v%d, v%d, 11, v%d" % (V_OFF, V_T1, V_OFF))
    o("    v_lshlrev_b32 v%d, 13, v%d" % (V_EOFF, V_T0))
    o("    v_lshl_add_u32 v%d, v%d, 4, v%d" % (V_EOFF, V_T1, V_EOFF))
    o("    s_waitcnt lgkmcnt(0)")
    o("    s_lshl_b32 s%d, s2, 12" % S_TMP)
    o("    s_add_u32 s%d, s4, s%d" % (SRD_Q, S_TMP))
    o("    s_addc_u32 s%d, s5, 0" % (SRD_Q + 1))
    o("    s_mov_b32 s%d, 4096" % (SRD_Q + 2))
    o("    s_mov_b32 s%d, 0x20000" % (SRD_Q + 3))
    o("    s_add_u32 s%d, s14, s%d" % (SRD_O, S_TMP))
    o("    s_addc_u32 s%d, s15, 0" % (SRD_O + 1))
    o("    s_mov_b32 s%d, 4096" % (SRD_O + 2))
    o("    s_mov_b32 s%d, 0x20000" % (SRD_O + 3))
    o("    s_and_b32 s%d, s%d, %d" % (S_TMP + 1, S_WAVE, S - 1))
    o("    s_lshl_b32 s%d, s2, 20" % S_TMP)
    if interleave:
        o("    s_lshl_b32 s%d, s%d, 13" % (S_OFF, S_TMP + 1))
        step_bytes = 8192 * S
        wrap = (1 << 20) - 1
        nrec = 1 << 20
    else:
        o("    s_mul_i32 s%d, s%d, %d" % (S_TMP + 2, S_TMP + 1, rows * 256))
        o("    s_add_u32 s%d, s%d, s%d" % (S_TMP, S_TMP, S_TMP + 2))
        o("    s_mov_b32 s%d, 0" % S_OFF)
        step_bytes = 8192
        wrap = rows * 256 - 1
        nrec = rows * 256
    if rot:
        o("    s_mul_i32 s%d, s2, %d" % (S_TMP + 3, NW))
        o("    s_add_u32 s%d, s%d, s%d" % (S_TMP + 3, S_TMP + 3, S_WAVE))
        o("    s_mul_i32 s%d, s%d, %d" % (S_TMP + 3, S_TMP + 3, rot * step_bytes))
        o("    s_add_u32 s%d, s%d, s%d" % (S_OFF, S_OFF, S_TMP + 3))
        o("    s_and_b32 s%d, s%d, %d" % (S_OFF, S_OFF, wrap))
    if interleave:
        o("    s_mov_b32 s%d, 0" % (S_TMP + 2))
    else:
        o("    s_mul_i32 s%d, s%d, %d" % (S_TMP + 2, S_TMP + 1, rows * 2))
    o("    s_mov_b32 s%d, %d" % (SRD_D + 2, nrec))
    o("    s_mov_b32 s%d, 0x20000" % (SRD_D + 3))
    o("    s_sub_u32 s%d, 131072, s%d" % (SRD_P + 2, S_TMP + 2))
    o("    s_mov_b32 s%d, 0x20000" % (SRD_P + 3))
    o("    s_cmp_ge_u32 s%d, %d" % (S_WAVE, S))
    o("    s_cbranch_scc1 L_vsetup")
    o("    s_add_u32 s%d, s6, s%d" % (SRD_D, S_TMP))
    o("    s_addc_u32 s%d, s7, 0" % (SRD_D + 1))
    o("    s_add_u32 s%d, s10, s%d" % (SRD_P, S_TMP + 2))
    o("    s_addc_u32 s%d, s11, 0" % (SRD_P + 1))
    o("    s_branch L_setup_done")
    o("L_vsetup:")
    o("    s_add_u32 s%d, s8, s%d" % (SRD_D, S_TMP))
    o("    s_addc_u32 s%d, s9, 0" % (SRD_D + 1))
    o("    s_add_u32 s%d, s12, s%d" % (SRD_P, S_TMP + 2))
    o("    s_addc_u32 s%d, s13, 0" % (SRD_P + 1))
    o("L_setup_done:")

    def issue_data(b):
        for i in range(8):
            r = LB + b * 32 + i * 4
            o("    buffer_load_dwordx4 v[%d:%d], v%d, s[%d:%d], s%d offen offset:%d %s" %
              (r, r + 3, V_OFF, SRD_D, SRD_D + 3, S_OFF, i * 256, flags))

    def issue_proj(b):
        r = EB + b * 4
        o("    buffer_load_dwordx4 a[%d:%d], v%d, s[%d:%d], s%d offen %s" %
          (r, r + 3, V_EOFF, SRD_P, SRD_P + 3, S_EOFF, eflags))

    def advance():
        o("    s_add_u32 s%d, s%d, %d" % (S_OFF, S_OFF, step_bytes))
        o("    s_and_b32 s%d, s%d, %d" % (S_OFF, S_OFF, wrap))
        o("    s_lshr_b32 s%d, s%d, 7" % (S_EOFF, S_OFF))

    o("    v_lshlrev_b32 v%d, 8, v%d" % (V_T0, V_T0))
    o("    v_lshl_add_u32 v%d, v%d, 6, v%d" % (V_T0, V_T1, V_T0))
    o("    s_cmp_lg_u32 s%d, 0" % S_WAVE)
    o("    s_cbranch_scc1 L_noq")
    for s in range(4):
        o("    buffer_load_dwordx4 a[%d:%d], v%d, s[%d:%d], 0 offen offset:%d" %
          (QB + s * 4, QB + s * 4 + 3, V_T0, SRD_Q, SRD_Q + 3, s * 16))
    o("L_noq:")
    o("    s_lshr_b32 s%d, s%d, 7" % (S_EOFF, S_OFF))
    for b in range(D):
        issue_data(b)
        issue_proj(b)
        advance()
    for j in range(32):
        o("    v_accvgpr_write_b32 a%d, 0" % (ACC + j))

    def body(b, role, reload, vm):
        o("    s_waitcnt vmcnt(%d)" % vm)
        base = LB + b * 32
        e = EB + b * 4
        for c in range(4):
            t = T + (c & 1) * 8
            for a in range(4):
                x = base + (2 * a) * 4 + c
                y = base + (2 * a + 1) * 4 + c
                o("    v_perm_b32 v%d, v%d, v%d, s%d" % (t + a, y, x, S_SELLO))
                o("    v_perm_b32 v%d, v%d, v%d, s%d" % (t + 4 + a, y, x, S_SELHI))
            if c == 3 and reload:
                issue_data(b)
            elif c == 3:
                o("    s_nop 1")
            else:
                o("    s_nop 1")
            for h in range(2):
                dd = 2 * c + h
                acc = ACC + dd * 4
                tt = t + 4 * h
                if role == "k":
                    o("    v_mfma_f32_16x16x32_bf16 a[%d:%d], v[%d:%d], a[%d:%d], a[%d:%d]" %
                      (acc, acc + 3, tt, tt + 3, e, e + 3, acc, acc + 3))
                else:
                    o("    v_mfma_f32_16x16x32_bf16 a[%d:%d], a[%d:%d], v[%d:%d], a[%d:%d]" %
                      (acc, acc + 3, e, e + 3, tt, tt + 3, acc, acc + 3))
        if reload:
            issue_proj(b)
            advance()

    nloop = (steps - D) // D
    rem = (steps - D) - nloop * D
    o("    s_cmp_ge_u32 s%d, %d" % (S_WAVE, S))
    o("    s_cbranch_scc1 L_vmain")
    for role in ("k", "v"):
        if role == "v":
            o("L_vmain:")
        o("    s_mov_b32 s%d, %d" % (S_CNT, nloop))
        o("L_loop_%s:" % role)
        for b in range(D):
            body(b, role, True, 9 * (D - 1))
        o("    s_sub_u32 s%d, s%d, 1" % (S_CNT, S_CNT))
        o("    s_cmp_lg_u32 s%d, 0" % S_CNT)
        o("    s_cbranch_scc1 L_loop_%s" % role)
        b = 0
        for _ in range(rem):
            body(b, role, True, 9 * (D - 1))
            b = (b + 1) % D
        for k in range(D):
            body(b, role, False, 9 * (D - 1 - k))
            b = (b + 1) % D
        if role == "k":
            o("    s_branch L_epi")
    o("L_epi:")
    o("    v_lshlrev_b32 v%d, 4, v%d" % (V_T0, V_LANE))
    o("    s_lshl_b32 s%d, s%d, 13" % (S_TMP, S_WAVE))
    o("    v_add_u32 v%d, s%d, v%d" % (V_T1, S_TMP, V_T0))
    o("    s_nop 7")
    for dd in range(8):
        o("    ds_write_b128 v%d, a[%d:%d] offset:%d" % (V_T1, ACC + dd * 4, ACC + dd * 4 + 3, dd * 1024))
    o("    s_waitcnt lgkmcnt(0)")
    o("    s_barrier")
    o("    s_cmp_lg_u32 s%d, 0" % S_WAVE)
    o("    s_cbranch_scc1 L_end")

    SUM, TMP = 32, 64

    def read_sum(first_wave):
        for w in range(S):
            dst = SUM if w == 0 else TMP
            if (first_wave + w) * 8192 + 7 * 1024 < 65536:
                for dd in range(8):
                    o("    ds_read_b128 v[%d:%d], v%d offset:%d" %
                      (dst + dd * 4, dst + dd * 4 + 3, V_T0, (first_wave + w) * 8192 + dd * 1024))
            else:
                raise ValueError("lds offset too large")
            o("    s_waitcnt lgkmcnt(0)")
            if w > 0:
                for j in range(32):
                    o("    v_add_f32 v%d, v%d, v%d" % (SUM + j, SUM + j, TMP + j))

    read_sum(0)
    PA = 96
    for s in range(4):
        for j in range(4):
            o("    v_cvt_pk_bf16_f32 v%d, v%d, v%d" %
              (PA + 4 * s + j, SUM + (2 * j) * 4 + s, SUM + (2 * j + 1) * 4 + s))
    SC = 112
    o("    s_nop 1")
    for s in range(4):
        c = "0" if s == 0 else "v[%d:%d]" % (SC, SC + 3)
        o("    v_mfma_f32_16x16x32_bf16 v[%d:%d], v[%d:%d], a[%d:%d], %s" %
          (SC, SC + 3, PA + 4 * s, PA + 4 * s + 3, QB + 4 * s, QB + 4 * s + 3, c))
    read_sum(S)
    o("    s_nop 7")
    W = 116
    o("    v_cvt_pk_bf16_f32 v%d, v%d, v%d" % (W, SC, SC + 1))
    o("    v_cvt_pk_bf16_f32 v%d, v%d, v%d" % (W + 1, SC + 2, SC + 3))
    o("    s_mov_b32 s%d, 0x3db504f3" % S_TMP)
    o("    v_lshlrev_b32 v%d, 16, v%d" % (SC, W))
    o("    v_and_b32 v%d, 0xffff0000, v%d" % (SC + 1, W))
    o("    v_lshlrev_b32 v%d, 16, v%d" % (SC + 2, W + 1))
    o("    v_and_b32 v%d, 0xffff0000, v%d" % (SC + 3, W + 1))
    for i in range(4):
        o("    v_mul_f32 v%d, s%d, v%d" % (SC + i, S_TMP, SC + i))
    o("    v_cvt_pk_bf16_f32 v%d, v%d, v%d" % (W, SC, SC + 1))
    o("    v_cvt_pk_bf16_f32 v%d, v%d, v%d" % (W + 1, SC + 2, SC + 3))
    o("    v_lshlrev_b32 v%d, 16, v%d" % (SC, W))
    o("    v_and_b32 v%d, 0xffff0000, v%d" % (SC + 1, W))
    o("    v_lshlrev_b32 v%d, 16, v%d" % (SC + 2, W + 1))
    o("    v_and_b32 v%d, 0xffff0000, v%d" % (SC + 3, W + 1))
    M = 118
    o("    v_max_f32 v%d, v%d, v%d" % (M, SC, SC + 1))
    o("    v_max3_f32 v%d, v%d, v%d, v%d" % (M, SC + 2, SC + 3, M))

    def xlane(op, reg, tmp):
        for sw in ("v_permlane32_swap_b32", "v_permlane16_swap_b32"):
            o("    v_mov_b32 v%d, v%d" % (tmp, reg))
            o("    s_nop 1")
            o("    %s v%d, v%d" % (sw, reg, tmp))
            o("    s_nop 1")
            o("    %s v%d, v%d, v%d" % (op, reg, reg, tmp))

    xlane("v_max_f32", M, M + 1)
    o("    s_mov_b32 s%d, 0x3fb8aa3b" % (S_TMP + 1))
    for i in range(4):
        o("    v_sub_f32 v%d, v%d, v%d" % (SC + i, SC + i, M))
    for i in range(4):
        o("    v_mul_f32 v%d, s%d, v%d" % (SC + i, S_TMP + 1, SC + i))
    for i in range(4):
        o("    v_exp_f32 v%d, v%d" % (SC + i, SC + i))
    o("    s_nop 0")
    o("    v_add_f32 v%d, v%d, v%d" % (M, SC, SC + 1))
    o("    v_add_f32 v%d, v%d, v%d" % (M + 1, SC + 2, SC + 3))
    o("    v_add_f32 v%d, v%d, v%d" % (M, M, M + 1))
    xlane("v_add_f32", M, M + 1)
    o("    v_rcp_f32 v%d, v%d" % (M, M))
    o("    s_nop 0")
    for i in range(4):
        o("    v_mul_f32 v%d, v%d, v%d" % (SC + i, SC + i, M))
    P = 120
    o("    v_cvt_pk_bf16_f32 v%d, v%d, v%d" % (P, SC, SC + 1))
    o("    v_cvt_pk_bf16_f32 v%d, v%d, v%d" % (P + 1, SC + 2, SC + 3))
    for dd in range(8):
        o("    v_cvt_pk_bf16_f32 v%d, v%d, v%d" % (PA + 2 * dd, SUM + dd * 4, SUM + dd * 4 + 1))
        o("    v_cvt_pk_bf16_f32 v%d, v%d, v%d" % (PA + 2 * dd + 1, SUM + dd * 4 + 2, SUM + dd * 4 + 3))
    o("    s_nop 1")
    for dd in range(8):
        o("    v_mfma_f32_16x16x16_bf16 v[%d:%d], v[%d:%d], v[%d:%d], 0" %
          (TMP + dd * 4, TMP + dd * 4 + 3, P, P + 1, PA + 2 * dd, PA + 2 * dd + 1))
    o("    v_and_b32 v%d, 15, v%d" % (V_T0, V_LANE))
    o("    v_lshrrev_b32 v%d, 4, v%d" % (V_T1, V_LANE))
    o("    v_lshlrev_b32 v%d, 4, v%d" % (V_T0, V_T0))
    o("    v_lshl_add_u32 v%d, v%d, 10, v%d" % (V_T0, V_T1, V_T0))
    o("    s_nop 7")
    for i in range(4):
        for j in range(4):
            o("    v_cvt_pk_bf16_f32 v%d, v%d, v%d" %
              (SUM + 4 * i + j, TMP + (2 * j) * 4 + i, TMP + (2 * j + 1) * 4 + i))
        o("    buffer_store_dwordx4 v[%d:%d], v%d, s[%d:%d], 0 offen offset:%d" %
          (SUM + 4 * i, SUM + 4 * i + 3, V_T0, SRD_O, SRD_O + 3, i * 256))
    o("L_end:")
    o("    s_endpgm")
    nvg = accum_offset + na
    if wpe == 1:
        nvg = max(nvg, 264)
    o('.section .rodata,"a"')
    o(".p2align 6")
    o(".amdhsa_kernel %s_kernel" % NAME)
    o("  .amdhsa_next_free_vgpr %d" % nvg)
    o("  .amdhsa_next_free_sgpr 64")
    o("  .amdhsa_accum_offset %d" % accum_offset)
    o("  .amdhsa_group_segment_fixed_size 0")
    o("  .amdhsa_kernarg_size 64")
    o("  .amdhsa_user_sgpr_count 2")
    o("  .amdhsa_user_sgpr_kernarg_segment_ptr 1")
    o("  .amdhsa_system_sgpr_workgroup_id_x 1")
    o("  .amdhsa_float_denorm_mode_32 3")
    o(".end_amdhsa_kernel")
    return "\n".join(L) + "\n"


if __name__ == "__main__":
    out = sys.argv[1]
    kw = {}
    for a in sys.argv[2:]:
        k, v = a.split("=")
        try:
            v = int(v)
        except ValueError:
            pass
        kw[k] = v
    open(out, "w").write(gen(**kw))
```

```python
import sys

NAME = "standalone__low_rank_proj_linformer__sampling"
HEADER = open("cdna_kernels/%s.s.ref" % NAME).read().split("; Override launch")[0]


def gen(LA=3, flags="nt", eflags="", stamp=0, throttle=0):
    RS = 1 if LA <= 3 else (2 if LA <= 7 else 4)
    ER = 2 if LA <= 4 else 4
    assert LA <= 12
    P = max(RS, ER)
    L = []
    o = L.append
    LDS_P, LDS_KP, LDS_VP = 0, 512, 512 + 32768
    lds = 512 + 65536
    o(HEADER.rstrip())
    o("; @launch grid=(256,1,1) block=(256,1,1) lds=%d" % lds)
    o('.amdgcn_target "amdgcn-amd-amdhsa--gfx950"')
    o(".text")
    o(".globl %s_kernel" % NAME)
    o(".p2align 8")
    o(".type %s_kernel,@function" % NAME)
    o("%s_kernel:" % NAME)

    V_LANE, V_OFF, V_EOFF, V_PW, V_VR, V_OUT, V_X, V_Y = 0, 1, 2, 3, 4, 5, 6, 7
    ACC = 8
    T = 40
    MISC = 72
    RING = 96
    nv = RING + 32 * RS
    assert nv <= 256
    A_Q = 0
    A_E = 16
    na = A_E + 4 * ER
    accum_offset = (nv + 3) // 4 * 4

    S_SELLO, S_SELHI, S_WAVE, S_OFF, S_EOFF, S_CNT, S_MI, S_LM = 20, 21, 22, 23, 24, 25, 26, 27
    SRD_D, SRD_P = 28, 32
    NXT_D, NXT_P = 36, 38
    SRD_Q, SRD_O = 40, 44
    S_T = 48

    o("    s_cmp_ge_u32 s2, 256")
    o("    s_cbranch_scc1 L_end")
    o("    s_load_dwordx16 s[4:19], s[0:1], 0")
    if stamp:
        o("    s_memrealtime s[60:61]")
    o("    v_lshrrev_b32 v%d, 6, v0" % V_X)
    o("    v_and_b32 v%d, 63, v0" % V_LANE)
    o("    v_readfirstlane_b32 s%d, v%d" % (S_WAVE, V_X))
    o("    s_mov_b32 s%d, 0x05040100" % S_SELLO)
    o("    s_mov_b32 s%d, 0x07060302" % S_SELHI)
    o("    v_and_b32 v%d, 15, v%d" % (V_X, V_LANE))
    o("    v_lshrrev_b32 v%d, 4, v%d" % (V_Y, V_LANE))
    o("    v_lshlrev_b32 v%d, 4, v%d" % (V_OFF, V_X))
    o("    v_lshl_add_u32 v%d, v%d, 11, v%d" % (V_OFF, V_Y, V_OFF))
    o("    v_lshlrev_b32 v%d, 13, v%d" % (V_EOFF, V_X))
    o("    v_lshl_add_u32 v%d, v%d, 4, v%d" % (V_EOFF, V_Y, V_EOFF))
    o("    s_lshl_b32 s%d, s%d, 13" % (S_OFF, S_WAVE))
    o("    s_lshr_b32 s%d, s%d, 7" % (S_EOFF, S_OFF))
    o("    s_mov_b32 s%d, 0" % S_LM)
    o("    s_mov_b32 s%d, 0" % S_MI)
    o("    s_lshl_b32 s%d, s2, 21" % S_T)
    o("    s_lshl_b32 s%d, s2, 13" % (S_T + 1))
    o("    s_mov_b32 s%d, 0x100000" % (SRD_D + 2))
    o("    s_mov_b32 s%d, 0x20000" % (SRD_D + 3))
    o("    s_mov_b32 s%d, 0x20000" % (SRD_P + 2))
    o("    s_mov_b32 s%d, 0x20000" % (SRD_P + 3))
    o("    s_mov_b32 s%d, 8192" % (SRD_Q + 2))
    o("    s_mov_b32 s%d, 0x20000" % (SRD_Q + 3))
    o("    s_mov_b32 s%d, 8192" % (SRD_O + 2))
    o("    s_mov_b32 s%d, 0x20000" % (SRD_O + 3))
    o("    s_waitcnt lgkmcnt(0)")
    o("    s_add_u32 s%d, s6, s%d" % (SRD_D, S_T))
    o("    s_addc_u32 s%d, s7, 0" % (SRD_D + 1))
    o("    s_mov_b32 s%d, s10" % SRD_P)
    o("    s_mov_b32 s%d, s11" % (SRD_P + 1))

    def issue_E(step):
        r = A_E + (step % ER) * 4
        o("    buffer_load_dwordx4 a[%d:%d], v%d, s[%d:%d], s%d offen %s" %
          (r, r + 3, V_EOFF, SRD_P, SRD_P + 3, S_EOFF, eflags))

    def issue_pair(q):
        a = q % 4
        slot = q % (4 * RS)
        for h in range(2):
            i = 2 * a + h
            r = RING + (slot * 2 + h) * 4
            o("    buffer_load_dwordx4 v[%d:%d], v%d, s[%d:%d], s%d offen offset:%d %s" %
              (r, r + 3, V_OFF, SRD_D, SRD_D + 3, S_OFF, i * 256, flags))

    stubs = []

    def advance(tag):
        o("    s_add_u32 s%d, s%d, 0x8000" % (S_OFF, S_OFF))
        o("    s_cmp_ge_u32 s%d, 0x100000" % S_OFF)
        o("    s_cbranch_scc1 L_sw_%s" % tag)
        o("L_swr_%s:" % tag)
        o("    s_lshr_b32 s%d, s%d, 7" % (S_EOFF, S_OFF))
        stubs.append(tag)

    issue_E(0)
    for q in range(LA):
        if q > 0 and q % 4 == 0:
            o("    s_add_u32 s%d, s%d, 0x8000" % (S_OFF, S_OFF))
            o("    s_lshr_b32 s%d, s%d, 7" % (S_EOFF, S_OFF))
            issue_E(q // 4)
        issue_pair(q)
    o("    s_add_u32 s%d, s8, s%d" % (NXT_D, S_T))
    o("    s_addc_u32 s%d, s9, 0" % (NXT_D + 1))
    o("    s_mov_b32 s%d, s12" % NXT_P)
    o("    s_mov_b32 s%d, s13" % (NXT_P + 1))
    o("    s_add_u32 s%d, s4, s%d" % (SRD_Q, S_T + 1))
    o("    s_addc_u32 s%d, s5, 0" % (SRD_Q + 1))
    o("    s_add_u32 s%d, s14, s%d" % (SRD_O, S_T + 1))
    o("    s_addc_u32 s%d, s15, 0" % (SRD_O + 1))
    o("    v_lshlrev_b32 v%d, 8, v%d" % (V_PW, V_X))
    o("    v_lshl_add_u32 v%d, v%d, 6, v%d" % (V_PW, V_Y, V_PW))
    o("    s_lshr_b32 s%d, s%d, 1" % (S_T + 2, S_WAVE))
    o("    s_lshl_b32 s%d, s%d, 12" % (S_T + 2, S_T + 2))
    for s in range(4):
        o("    buffer_load_dwordx4 a[%d:%d], v%d, s[%d:%d], s%d offen offset:%d" %
          (A_Q + 4 * s, A_Q + 4 * s + 3, V_PW, SRD_Q, SRD_Q + 3, S_T + 2, 16 * s))
    o("    v_lshlrev_b32 v%d, 4, v%d" % (V_OUT, V_X))
    o("    v_lshl_add_u32 v%d, v%d, 10, v%d" % (V_OUT, V_Y, V_OUT))
    o("    s_lshl_b32 s%d, s%d, 2" % (S_T + 2, S_WAVE))
    o("    v_add_u32 v%d, s%d, v%d" % (V_OUT, S_T + 2, V_OUT))
    o("    v_lshlrev_b32 v%d, 4, v%d" % (V_X, V_LANE))
    o("    s_lshl_b32 s%d, s%d, 13" % (S_T + 2, S_WAVE))
    o("    s_add_u32 s%d, s%d, %d" % (S_T + 2, S_T + 2, LDS_KP))
    o("    v_add_u32 v%d, s%d, v%d" % (V_PW, S_T + 2, V_X))
    o("    s_lshl_b32 s%d, s%d, 11" % (S_T + 2, S_WAVE))
    o("    s_add_u32 s%d, s%d, %d" % (S_T + 2, S_T + 2, LDS_VP))
    o("    v_add_u32 v%d, s%d, v%d" % (V_VR, S_T + 2, V_X))
    for j in range(32):
        o("    v_mov_b32 v%d, 0" % (ACC + j))


    o("L_outer:")
    o("    s_mov_b32 s%d, %d" % (S_CNT, 32 // P))
    o("L_inner:")
    for p in range(4 * P):
        s, a = divmod(p, 4)
        nE = sum(1 for qq in range(p + 1, p + LA) if qq % 4 == 0)
        x = 2 * (LA - 1) + nE
        o("    s_waitcnt vmcnt(%d)" % x)
        q = p + LA
        if q % 4 == 0:
            advance("%d" % p)
            issue_E(q // 4)
        issue_pair(q)
        slot = p % (4 * RS)
        xb = RING + slot * 8
        yb = xb + 4
        for c in range(4):
            o("    v_perm_b32 v%d, v%d, v%d, s%d" % (T + (2 * c) * 4 + a, yb + c, xb + c, S_SELLO))
            o("    v_perm_b32 v%d, v%d, v%d, s%d" % (T + (2 * c + 1) * 4 + a, yb + c, xb + c, S_SELHI))
        if a == 3:
            e = A_E + (s % ER) * 4
            o("    s_nop 1")
            for dd in range(8):
                acc = ACC + dd * 4
                o("    v_mfma_f32_16x16x32_bf16 v[%d:%d], a[%d:%d], v[%d:%d], v[%d:%d]" %
                  (acc, acc + 3, e, e + 3, T + dd * 4, T + dd * 4 + 3, acc, acc + 3))
    o("    s_sub_u32 s%d, s%d, 1" % (S_CNT, S_CNT))
    o("    s_cmp_lg_u32 s%d, 0" % S_CNT)
    o("    s_cbranch_scc1 L_inner")

    o("    s_and_b32 s%d, s%d, 1" % (S_T, S_MI))
    o("    s_lshl_b32 s%d, s%d, 15" % (S_T + 1, S_T))
    o("    v_add_u32 v%d, s%d, v%d" % (V_X, S_T + 1, V_PW))
    o("    s_nop 7")
    for dd in range(8):
        o("    ds_write_b128 v%d, v[%d:%d] offset:%d" % (V_X, ACC + 4 * dd, ACC + 4 * dd + 3, dd * 1024))
    o("    s_waitcnt lgkmcnt(0)")
    o("    s_barrier")
    o("    s_cmp_eq_u32 s%d, 1" % S_T)
    o("    s_cbranch_scc1 L_vend")
    o("    s_cmp_lg_u32 s%d, s%d" % (S_WAVE, S_MI))
    o("    s_cbranch_scc1 L_mat_done")
    SUM, TMP, PA = ACC, T, MISC
    o("    v_lshlrev_b32 v%d, 4, v%d" % (V_X, V_LANE))
    for w in range(4):
        dst = SUM if w == 0 else TMP
        for dd in range(8):
            o("    ds_read_b128 v[%d:%d], v%d offset:%d" %
              (dst + 4 * dd, dst + 4 * dd + 3, V_X, LDS_KP + w * 8192 + dd * 1024))
        if w > 0:
            for dd in range(8):
                o("    s_waitcnt lgkmcnt(%d)" % (7 - dd))
                for i in range(4):
                    o("    v_add_f32 v%d, v%d, v%d" % (SUM + 4 * dd + i, SUM + 4 * dd + i, TMP + 4 * dd + i))
    for dd in range(8):
        o("    v_cvt_pk_bf16_f32 v%d, v%d, v%d" % (PA + 2 * dd, SUM + 4 * dd, SUM + 4 * dd + 1))
        o("    v_cvt_pk_bf16_f32 v%d, v%d, v%d" % (PA + 2 * dd + 1, SUM + 4 * dd + 2, SUM + 4 * dd + 3))
    ID = MISC + 16
    o("    v_and_b32 v%d, 15, v%d" % (V_X, V_LANE))
    o("    v_lshrrev_b32 v%d, 4, v%d" % (V_Y, V_LANE))
    o("    v_lshlrev_b32 v%d, 2, v%d" % (V_Y, V_Y))
    o("    v_sub_u32 v%d, v%d, v%d" % (V_X, V_X, V_Y))
    o("    v_mov_b32 v%d, 0" % ID)
    o("    v_mov_b32 v%d, 0" % (ID + 1))
    o("    v_mov_b32 v%d, 0x3f80" % (ID + 2))
    o("    v_mov_b32 v%d, 0x3f800000" % (ID + 3))
    for j, (dst, src) in enumerate(((ID, ID + 2), (ID, ID + 3), (ID + 1, ID + 2), (ID + 1, ID + 3))):
        o("    v_cmp_eq_u32 vcc, %d, v%d" % (j, V_X))
        o("    s_nop 1")
        o("    v_cndmask_b32 v%d, v%d, v%d, vcc" % (dst, dst, src))
    o("    s_nop 1")
    for dd in range(8):
        o("    v_mfma_f32_16x16x16_bf16 v[%d:%d], v[%d:%d], v[%d:%d], 0" %
          (TMP + 4 * dd, TMP + 4 * dd + 3, PA + 2 * dd, PA + 2 * dd + 1, ID, ID + 1))
    o("    s_nop 7")
    PB = SUM
    for s in range(4):
        for j in range(4):
            o("    v_cvt_pk_bf16_f32 v%d, v%d, v%d" %
              (PB + 4 * s + j, TMP + (2 * j) * 4 + s, TMP + (2 * j + 1) * 4 + s))
    SC = SUM + 16
    o("    s_waitcnt vmcnt(0)")
    for s in range(4):
        c = "0" if s == 0 else "v[%d:%d]" % (SC, SC + 3)
        o("    v_mfma_f32_16x16x32_bf16 v[%d:%d], v[%d:%d], a[%d:%d], %s" %
          (SC, SC + 3, PB + 4 * s, PB + 4 * s + 3, A_Q + 4 * s, A_Q + 4 * s + 3, c))
    o("    s_mov_b32 s%d, 0x3db504f3" % (S_T + 2))
    o("    s_mov_b32 s%d, 0x3fb8aa3b" % (S_T + 3))
    o("    s_nop 7")
    W = SUM + 20
    M = SUM + 22

    def round_bf16():
        o("    v_cvt_pk_bf16_f32 v%d, v%d, v%d" % (W, SC, SC + 1))
        o("    v_cvt_pk_bf16_f32 v%d, v%d, v%d" % (W + 1, SC + 2, SC + 3))
        o("    v_lshlrev_b32 v%d, 16, v%d" % (SC, W))
        o("    v_and_b32 v%d, 0xffff0000, v%d" % (SC + 1, W))
        o("    v_lshlrev_b32 v%d, 16, v%d" % (SC + 2, W + 1))
        o("    v_and_b32 v%d, 0xffff0000, v%d" % (SC + 3, W + 1))

    round_bf16()
    for i in range(4):
        o("    v_mul_f32 v%d, s%d, v%d" % (SC + i, S_T + 2, SC + i))
    round_bf16()
    o("    v_max_f32 v%d, v%d, v%d" % (M, SC, SC + 1))
    o("    v_max3_f32 v%d, v%d, v%d, v%d" % (M, SC + 2, SC + 3, M))

    def xlane(op, reg, tmp):
        for sw in ("v_permlane32_swap_b32", "v_permlane16_swap_b32"):
            o("    v_mov_b32 v%d, v%d" % (tmp, reg))
            o("    s_nop 1")
            o("    %s v%d, v%d" % (sw, reg, tmp))
            o("    s_nop 1")
            o("    %s v%d, v%d, v%d" % (op, reg, reg, tmp))

    xlane("v_max_f32", M, M + 1)
    for i in range(4):
        o("    v_sub_f32 v%d, v%d, v%d" % (SC + i, SC + i, M))
    for i in range(4):
        o("    v_mul_f32 v%d, s%d, v%d" % (SC + i, S_T + 3, SC + i))
    for i in range(4):
        o("    v_exp_f32 v%d, v%d" % (SC + i, SC + i))
    o("    s_nop 0")
    o("    v_add_f32 v%d, v%d, v%d" % (M, SC, SC + 1))
    o("    v_add_f32 v%d, v%d, v%d" % (M + 1, SC + 2, SC + 3))
    o("    v_add_f32 v%d, v%d, v%d" % (M, M, M + 1))
    xlane("v_add_f32", M, M + 1)
    o("    v_rcp_f32 v%d, v%d" % (M, M))
    o("    s_nop 0")
    for i in range(4):
        o("    v_mul_f32 v%d, v%d, v%d" % (SC + i, SC + i, M))
    o("    v_cvt_pk_bf16_f32 v%d, v%d, v%d" % (W, SC, SC + 1))
    o("    v_cvt_pk_bf16_f32 v%d, v%d, v%d" % (W + 1, SC + 2, SC + 3))
    o("    v_lshlrev_b32 v%d, 3, v%d" % (V_X, V_LANE))
    o("    ds_write_b64 v%d, v[%d:%d] offset:%d" % (V_X, W, W + 1, LDS_P))
    o("    s_waitcnt lgkmcnt(0)")
    o("    s_branch L_mat_done")

    o("L_vend:")
    PP = MISC
    o("    v_lshlrev_b32 v%d, 3, v%d" % (V_X, V_LANE))
    o("    ds_read_b64 v[%d:%d], v%d offset:%d" % (PP, PP + 1, V_X, LDS_P))
    for w in range(4):
        for h in range(2):
            r = T + (w * 2 + h) * 4
            o("    ds_read_b128 v[%d:%d], v%d offset:%d" % (r, r + 3, V_VR, w * 8192 + h * 1024))
    o("    s_waitcnt lgkmcnt(4)")
    for j in range(8):
        o("    v_add_f32 v%d, v%d, v%d" % (T + j, T + j, T + 8 + j))
    o("    s_waitcnt lgkmcnt(0)")
    for j in range(8):
        o("    v_add_f32 v%d, v%d, v%d" % (T + 16 + j, T + 16 + j, T + 24 + j))
    for j in range(8):
        o("    v_add_f32 v%d, v%d, v%d" % (T + j, T + j, T + 16 + j))
    VB = MISC + 4
    for h in range(2):
        o("    v_cvt_pk_bf16_f32 v%d, v%d, v%d" % (VB + 2 * h, T + 4 * h, T + 4 * h + 1))
        o("    v_cvt_pk_bf16_f32 v%d, v%d, v%d" % (VB + 2 * h + 1, T + 4 * h + 2, T + 4 * h + 3))
    OO = T + 16
    o("    s_lshr_b32 s%d, s%d, 1" % (S_T + 2, S_MI))
    o("    s_lshl_b32 s%d, s%d, 12" % (S_T + 2, S_T + 2))
    for h in range(2):
        o("    v_mfma_f32_16x16x16_bf16 v[%d:%d], v[%d:%d], v[%d:%d], 0" %
          (OO + 4 * h, OO + 4 * h + 3, PP, PP + 1, VB + 2 * h, VB + 2 * h + 1))
    o("    s_nop 7")
    for i in range(4):
        o("    v_cvt_pk_bf16_f32 v%d, v%d, v%d" % (MISC + 8 + i, OO + i, OO + 4 + i))
    for i in range(4):
        o("    buffer_store_dword v%d, v%d, s[%d:%d], s%d offen offset:%d" %
          (MISC + 8 + i, V_OUT, SRD_O, SRD_O + 3, S_T + 2, i * 256))

    o("L_mat_done:")
    o("    s_add_u32 s%d, s%d, 1" % (S_MI, S_MI))
    o("    s_cmp_eq_u32 s%d, 4" % S_MI)
    o("    s_cbranch_scc1 L_fin")
    for j in range(32):
        o("    v_mov_b32 v%d, 0" % (ACC + j))
    o("    s_branch L_outer")

    for tag in stubs:
        o("L_sw_%s:" % tag)
        o("    s_sub_u32 s%d, s%d, 0x100000" % (S_OFF, S_OFF))
        o("    s_add_u32 s%d, s%d, 0x100000" % (S_T + 4, SRD_D))
        o("    s_addc_u32 s%d, s%d, 0" % (S_T + 5, SRD_D + 1))
        o("    s_mov_b32 s%d, s%d" % (SRD_D, NXT_D))
        o("    s_mov_b32 s%d, s%d" % (SRD_D + 1, NXT_D + 1))
        o("    s_mov_b32 s%d, s%d" % (NXT_D, S_T + 4))
        o("    s_mov_b32 s%d, s%d" % (NXT_D + 1, S_T + 5))
        o("    s_mov_b32 s%d, s%d" % (S_T + 4, SRD_P))
        o("    s_mov_b32 s%d, s%d" % (S_T + 5, SRD_P + 1))
        o("    s_mov_b32 s%d, s%d" % (SRD_P, NXT_P))
        o("    s_mov_b32 s%d, s%d" % (SRD_P + 1, NXT_P + 1))
        o("    s_mov_b32 s%d, s%d" % (NXT_P, S_T + 4))
        o("    s_mov_b32 s%d, s%d" % (NXT_P + 1, S_T + 5))
        o("    s_add_u32 s%d, s%d, 1" % (S_LM, S_LM))
        o("    s_cmp_eq_u32 s%d, 4" % S_LM)
        o("    s_cselect_b32 s%d, 0, 0x100000" % (SRD_D + 2))
        o("    s_cselect_b32 s%d, 0, 0x20000" % (SRD_P + 2))
        o("    s_branch L_swr_%s" % tag)

    o("L_fin:")
    if stamp:
        o("    s_waitcnt vmcnt(0)")
        o("    s_memrealtime s[62:63]")
        o("    s_getreg_b32 s58, hwreg(HW_REG_XCC_ID)")
        o("    s_getreg_b32 s59, hwreg(HW_REG_HW_ID)")
        o("    s_waitcnt lgkmcnt(0)")
        o("    s_lshl_b32 s%d, s2, 2" % S_T)
        o("    s_add_u32 s%d, s%d, s%d" % (S_T, S_T, S_WAVE))
        o("    s_lshl_b32 s%d, s%d, 4" % (S_T, S_T))
        o("    v_mov_b32 v4, s60")
        o("    v_mov_b32 v5, s62")
        o("    v_mov_b32 v6, s58")
        o("    v_mov_b32 v7, s59")
        o("    v_mov_b32 v2, s%d" % S_T)
        o("    global_store_dwordx4 v2, v[4:7], s[18:19]")
    o("L_end:")
    o("    s_endpgm")
    nvg = max(accum_offset + na, 264)
    o('.section .rodata,"a"')
    o(".p2align 6")
    o(".amdhsa_kernel %s_kernel" % NAME)
    o("  .amdhsa_next_free_vgpr %d" % nvg)
    o("  .amdhsa_next_free_sgpr 72")
    o("  .amdhsa_accum_offset %d" % accum_offset)
    o("  .amdhsa_group_segment_fixed_size 0")
    o("  .amdhsa_kernarg_size 64")
    o("  .amdhsa_user_sgpr_count 2")
    o("  .amdhsa_user_sgpr_kernarg_segment_ptr 1")
    o("  .amdhsa_system_sgpr_workgroup_id_x 1")
    o("  .amdhsa_float_denorm_mode_32 3")
    o(".end_amdhsa_kernel")
    return "\n".join(L) + "\n"


if __name__ == "__main__":
    out = sys.argv[1]
    kw = {}
    for a in sys.argv[2:]:
        k, v = a.split("=")
        if k not in ("flags", "eflags"):
            v = int(v)
        kw[k] = v
    open(out, "w").write(gen(**kw))
```

```python
import sys

NAME = "standalone__low_rank_proj_linformer__sampling"
HEADER = open("cdna_kernels/%s.s.ref" % NAME).read().split("; Override launch")[0]


def gen(LA=3, flags="nt", eflags="", stamp=0, throttle=0, noE=0, nobar=0, nocomp=0, rot=0):
    RS = 1 if LA <= 3 else (2 if LA <= 7 else 4)
    ER = 2 if LA <= 4 else 4
    assert LA <= 12
    P = max(RS, ER)
    L = []
    o = L.append
    LDS_P, LDS_KP, LDS_VP = 0, 512, 512 + 32768
    lds = 512 + 65536
    o(HEADER.rstrip())
    o("; @launch grid=(256,1,1) block=(256,1,1) lds=%d" % lds)
    o('.amdgcn_target "amdgcn-amd-amdhsa--gfx950"')
    o(".text")
    o(".globl %s_kernel" % NAME)
    o(".p2align 8")
    o(".type %s_kernel,@function" % NAME)
    o("%s_kernel:" % NAME)

    V_LANE, V_OFF, V_EOFF, V_PW, V_VR, V_OUT, V_X, V_Y = 0, 1, 2, 3, 4, 5, 6, 7
    ACC = 8
    T = 40
    MISC = 72
    RING = 96
    nv = RING + 32 * RS
    assert nv <= 256
    A_Q = 0
    A_E = 16
    na = A_E + 4 * ER
    accum_offset = (nv + 3) // 4 * 4

    S_SELLO, S_SELHI, S_WAVE, S_OFF, S_EOFF, S_CNT, S_MI, S_LM = 20, 21, 22, 23, 24, 25, 26, 27
    S_LS = 56
    SRD_D, SRD_P = 28, 32
    NXT_D, NXT_P = 36, 38
    SRD_Q, SRD_O = 40, 44
    S_T = 48

    o("    s_cmp_ge_u32 s2, 256")
    o("    s_cbranch_scc1 L_end")
    o("    s_load_dwordx16 s[4:19], s[0:1], 0")
    if stamp:
        o("    s_memrealtime s[60:61]")
    o("    v_lshrrev_b32 v%d, 6, v0" % V_X)
    o("    v_and_b32 v%d, 63, v0" % V_LANE)
    o("    v_readfirstlane_b32 s%d, v%d" % (S_WAVE, V_X))
    o("    s_mov_b32 s%d, 0x05040100" % S_SELLO)
    o("    s_mov_b32 s%d, 0x07060302" % S_SELHI)
    o("    v_and_b32 v%d, 15, v%d" % (V_X, V_LANE))
    o("    v_lshrrev_b32 v%d, 4, v%d" % (V_Y, V_LANE))
    o("    v_lshlrev_b32 v%d, 4, v%d" % (V_OFF, V_X))
    o("    v_lshl_add_u32 v%d, v%d, 11, v%d" % (V_OFF, V_Y, V_OFF))
    o("    v_lshlrev_b32 v%d, 13, v%d" % (V_EOFF, V_X))
    o("    v_lshl_add_u32 v%d, v%d, 4, v%d" % (V_EOFF, V_Y, V_EOFF))
    o("    s_lshl_b32 s%d, s%d, 13" % (S_OFF, S_WAVE))
    if rot:
        o("    s_mul_i32 s%d, s2, %d" % (S_T, rot))
        o("    s_and_b32 s%d, s%d, 31" % (S_T, S_T))
        o("    s_lshl_b32 s%d, s%d, 15" % (S_T, S_T))
        o("    s_add_u32 s%d, s%d, s%d" % (S_OFF, S_OFF, S_T))
    o("    s_mov_b32 s%d, 32" % S_LS)
    o("    s_lshr_b32 s%d, s%d, 7" % (S_EOFF, S_OFF))
    o("    s_mov_b32 s%d, 0" % S_LM)
    o("    s_mov_b32 s%d, 0" % S_MI)
    o("    s_lshl_b32 s%d, s2, 21" % S_T)
    o("    s_lshl_b32 s%d, s2, 13" % (S_T + 1))
    o("    s_mov_b32 s%d, 0x100000" % (SRD_D + 2))
    o("    s_mov_b32 s%d, 0x20000" % (SRD_D + 3))
    o("    s_mov_b32 s%d, 0x20000" % (SRD_P + 2))
    o("    s_mov_b32 s%d, 0x20000" % (SRD_P + 3))
    o("    s_mov_b32 s%d, 8192" % (SRD_Q + 2))
    o("    s_mov_b32 s%d, 0x20000" % (SRD_Q + 3))
    o("    s_mov_b32 s%d, 8192" % (SRD_O + 2))
    o("    s_mov_b32 s%d, 0x20000" % (SRD_O + 3))
    o("    s_waitcnt lgkmcnt(0)")
    o("    s_add_u32 s%d, s6, s%d" % (SRD_D, S_T))
    o("    s_addc_u32 s%d, s7, 0" % (SRD_D + 1))
    o("    s_mov_b32 s%d, s10" % SRD_P)
    o("    s_mov_b32 s%d, s11" % (SRD_P + 1))

    def issue_E(step):
        if noE:
            return
        r = A_E + (step % ER) * 4
        o("    buffer_load_dwordx4 a[%d:%d], v%d, s[%d:%d], s%d offen %s" %
          (r, r + 3, V_EOFF, SRD_P, SRD_P + 3, S_EOFF, eflags))

    def issue_pair(q):
        a = q % 4
        slot = q % (4 * RS)
        for h in range(2):
            i = 2 * a + h
            r = RING + (slot * 2 + h) * 4
            o("    buffer_load_dwordx4 v[%d:%d], v%d, s[%d:%d], s%d offen offset:%d %s" %
              (r, r + 3, V_OFF, SRD_D, SRD_D + 3, S_OFF, i * 256, flags))

    stubs = []

    def advance(tag):
        o("    s_add_u32 s%d, s%d, 0x8000" % (S_OFF, S_OFF))
        o("    s_and_b32 s%d, s%d, 0xfffff" % (S_OFF, S_OFF))
        o("    s_sub_u32 s%d, s%d, 1" % (S_LS, S_LS))
        o("    s_cmp_eq_u32 s%d, 0" % S_LS)
        o("    s_cbranch_scc1 L_sw_%s" % tag)
        o("L_swr_%s:" % tag)
        o("    s_lshr_b32 s%d, s%d, 7" % (S_EOFF, S_OFF))
        stubs.append(tag)

    issue_E(0)
    for q in range(LA):
        if q > 0 and q % 4 == 0:
            o("    s_add_u32 s%d, s%d, 0x8000" % (S_OFF, S_OFF))
            o("    s_and_b32 s%d, s%d, 0xfffff" % (S_OFF, S_OFF))
            o("    s_sub_u32 s%d, s%d, 1" % (S_LS, S_LS))
            o("    s_lshr_b32 s%d, s%d, 7" % (S_EOFF, S_OFF))
            issue_E(q // 4)
        issue_pair(q)
    o("    s_add_u32 s%d, s8, s%d" % (NXT_D, S_T))
    o("    s_addc_u32 s%d, s9, 0" % (NXT_D + 1))
    o("    s_mov_b32 s%d, s12" % NXT_P)
    o("    s_mov_b32 s%d, s13" % (NXT_P + 1))
    o("    s_add_u32 s%d, s4, s%d" % (SRD_Q, S_T + 1))
    o("    s_addc_u32 s%d, s5, 0" % (SRD_Q + 1))
    o("    s_add_u32 s%d, s14, s%d" % (SRD_O, S_T + 1))
    o("    s_addc_u32 s%d, s15, 0" % (SRD_O + 1))
    o("    v_lshlrev_b32 v%d, 8, v%d" % (V_PW, V_X))
    o("    v_lshl_add_u32 v%d, v%d, 6, v%d" % (V_PW, V_Y, V_PW))
    o("    s_lshr_b32 s%d, s%d, 1" % (S_T + 2, S_WAVE))
    o("    s_lshl_b32 s%d, s%d, 12" % (S_T + 2, S_T + 2))
    for s in range(4):
        o("    buffer_load_dwordx4 a[%d:%d], v%d, s[%d:%d], s%d offen offset:%d" %
          (A_Q + 4 * s, A_Q + 4 * s + 3, V_PW, SRD_Q, SRD_Q + 3, S_T + 2, 16 * s))
    o("    v_lshlrev_b32 v%d, 4, v%d" % (V_OUT, V_X))
    o("    v_lshl_add_u32 v%d, v%d, 10, v%d" % (V_OUT, V_Y, V_OUT))
    o("    s_lshl_b32 s%d, s%d, 2" % (S_T + 2, S_WAVE))
    o("    v_add_u32 v%d, s%d, v%d" % (V_OUT, S_T + 2, V_OUT))
    o("    v_lshlrev_b32 v%d, 4, v%d" % (V_X, V_LANE))
    o("    s_lshl_b32 s%d, s%d, 13" % (S_T + 2, S_WAVE))
    o("    s_add_u32 s%d, s%d, %d" % (S_T + 2, S_T + 2, LDS_KP))
    o("    v_add_u32 v%d, s%d, v%d" % (V_PW, S_T + 2, V_X))
    o("    s_lshl_b32 s%d, s%d, 11" % (S_T + 2, S_WAVE))
    o("    s_add_u32 s%d, s%d, %d" % (S_T + 2, S_T + 2, LDS_VP))
    o("    v_add_u32 v%d, s%d, v%d" % (V_VR, S_T + 2, V_X))
    for j in range(32):
        o("    v_mov_b32 v%d, 0" % (ACC + j))


    o("L_outer:")
    o("    s_mov_b32 s%d, %d" % (S_CNT, 32 // P))
    o("L_inner:")
    for p in range(4 * P):
        s, a = divmod(p, 4)
        nE = 0 if noE else sum(1 for qq in range(p + 1, p + LA) if qq % 4 == 0)
        x = 2 * (LA - 1) + nE
        o("    s_waitcnt vmcnt(%d)" % x)
        q = p + LA
        if q % 4 == 0:
            advance("%d" % p)
            issue_E(q // 4)
        issue_pair(q)
        slot = p % (4 * RS)
        xb = RING + slot * 8
        yb = xb + 4
        for c in range(4):
            if nocomp:
                break
            o("    v_perm_b32 v%d, v%d, v%d, s%d" % (T + (2 * c) * 4 + a, yb + c, xb + c, S_SELLO))
            o("    v_perm_b32 v%d, v%d, v%d, s%d" % (T + (2 * c + 1) * 4 + a, yb + c, xb + c, S_SELHI))
        if a == 3 and not nocomp:
            e = A_E + (s % ER) * 4
            o("    s_nop 1")
            for dd in range(8):
                acc = ACC + dd * 4
                o("    v_mfma_f32_16x16x32_bf16 v[%d:%d], a[%d:%d], v[%d:%d], v[%d:%d]" %
                  (acc, acc + 3, e, e + 3, T + dd * 4, T + dd * 4 + 3, acc, acc + 3))
    o("    s_sub_u32 s%d, s%d, 1" % (S_CNT, S_CNT))
    o("    s_cmp_lg_u32 s%d, 0" % S_CNT)
    o("    s_cbranch_scc1 L_inner")

    o("    s_and_b32 s%d, s%d, 1" % (S_T, S_MI))
    o("    s_lshl_b32 s%d, s%d, 15" % (S_T + 1, S_T))
    o("    v_add_u32 v%d, s%d, v%d" % (V_X, S_T + 1, V_PW))
    o("    s_nop 7")
    for dd in range(8):
        o("    ds_write_b128 v%d, v[%d:%d] offset:%d" % (V_X, ACC + 4 * dd, ACC + 4 * dd + 3, dd * 1024))
    o("    s_waitcnt lgkmcnt(0)")
    if nobar:
        o("    s_branch L_mat_done")
    o("    s_barrier")
    o("    s_cmp_eq_u32 s%d, 1" % S_T)
    o("    s_cbranch_scc1 L_vend")
    o("    s_cmp_lg_u32 s%d, s%d" % (S_WAVE, S_MI))
    o("    s_cbranch_scc1 L_mat_done")
    SUM, TMP, PA = ACC, T, MISC
    o("    v_lshlrev_b32 v%d, 4, v%d" % (V_X, V_LANE))
    for w in range(4):
        dst = SUM if w == 0 else TMP
        for dd in range(8):
            o("    ds_read_b128 v[%d:%d], v%d offset:%d" %
              (dst + 4 * dd, dst + 4 * dd + 3, V_X, LDS_KP + w * 8192 + dd * 1024))
        if w > 0:
            for dd in range(8):
                o("    s_waitcnt lgkmcnt(%d)" % (7 - dd))
                for i in range(4):
                    o("    v_add_f32 v%d, v%d, v%d" % (SUM + 4 * dd + i, SUM + 4 * dd + i, TMP + 4 * dd + i))
    for dd in range(8):
        o("    v_cvt_pk_bf16_f32 v%d, v%d, v%d" % (PA + 2 * dd, SUM + 4 * dd, SUM + 4 * dd + 1))
        o("    v_cvt_pk_bf16_f32 v%d, v%d, v%d" % (PA + 2 * dd + 1, SUM + 4 * dd + 2, SUM + 4 * dd + 3))
    ID = MISC + 16
    o("    v_and_b32 v%d, 15, v%d" % (V_X, V_LANE))
    o("    v_lshrrev_b32 v%d, 4, v%d" % (V_Y, V_LANE))
    o("    v_lshlrev_b32 v%d, 2, v%d" % (V_Y, V_Y))
    o("    v_sub_u32 v%d, v%d, v%d" % (V_X, V_X, V_Y))
    o("    v_mov_b32 v%d, 0" % ID)
    o("    v_mov_b32 v%d, 0" % (ID + 1))
    o("    v_mov_b32 v%d, 0x3f80" % (ID + 2))
    o("    v_mov_b32 v%d, 0x3f800000" % (ID + 3))
    for j, (dst, src) in enumerate(((ID, ID + 2), (ID, ID + 3), (ID + 1, ID + 2), (ID + 1, ID + 3))):
        o("    v_cmp_eq_u32 vcc, %d, v%d" % (j, V_X))
        o("    s_nop 1")
        o("    v_cndmask_b32 v%d, v%d, v%d, vcc" % (dst, dst, src))
    o("    s_nop 1")
    for dd in range(8):
        o("    v_mfma_f32_16x16x16_bf16 v[%d:%d], v[%d:%d], v[%d:%d], 0" %
          (TMP + 4 * dd, TMP + 4 * dd + 3, PA + 2 * dd, PA + 2 * dd + 1, ID, ID + 1))
    o("    s_nop 7")
    PB = SUM
    for s in range(4):
        for j in range(4):
            o("    v_cvt_pk_bf16_f32 v%d, v%d, v%d" %
              (PB + 4 * s + j, TMP + (2 * j) * 4 + s, TMP + (2 * j + 1) * 4 + s))
    SC = SUM + 16
    o("    s_waitcnt vmcnt(0)")
    for s in range(4):
        c = "0" if s == 0 else "v[%d:%d]" % (SC, SC + 3)
        o("    v_mfma_f32_16x16x32_bf16 v[%d:%d], v[%d:%d], a[%d:%d], %s" %
          (SC, SC + 3, PB + 4 * s, PB + 4 * s + 3, A_Q + 4 * s, A_Q + 4 * s + 3, c))
    o("    s_mov_b32 s%d, 0x3db504f3" % (S_T + 2))
    o("    s_mov_b32 s%d, 0x3fb8aa3b" % (S_T + 3))
    o("    s_nop 7")
    W = SUM + 20
    M = SUM + 22

    def round_bf16():
        o("    v_cvt_pk_bf16_f32 v%d, v%d, v%d" % (W, SC, SC + 1))
        o("    v_cvt_pk_bf16_f32 v%d, v%d, v%d" % (W + 1, SC + 2, SC + 3))
        o("    v_lshlrev_b32 v%d, 16, v%d" % (SC, W))
        o("    v_and_b32 v%d, 0xffff0000, v%d" % (SC + 1, W))
        o("    v_lshlrev_b32 v%d, 16, v%d" % (SC + 2, W + 1))
        o("    v_and_b32 v%d, 0xffff0000, v%d" % (SC + 3, W + 1))

    round_bf16()
    for i in range(4):
        o("    v_mul_f32 v%d, s%d, v%d" % (SC + i, S_T + 2, SC + i))
    round_bf16()
    o("    v_max_f32 v%d, v%d, v%d" % (M, SC, SC + 1))
    o("    v_max3_f32 v%d, v%d, v%d, v%d" % (M, SC + 2, SC + 3, M))

    def xlane(op, reg, tmp):
        for sw in ("v_permlane32_swap_b32", "v_permlane16_swap_b32"):
            o("    v_mov_b32 v%d, v%d" % (tmp, reg))
            o("    s_nop 1")
            o("    %s v%d, v%d" % (sw, reg, tmp))
            o("    s_nop 1")
            o("    %s v%d, v%d, v%d" % (op, reg, reg, tmp))

    xlane("v_max_f32", M, M + 1)
    for i in range(4):
        o("    v_sub_f32 v%d, v%d, v%d" % (SC + i, SC + i, M))
    for i in range(4):
        o("    v_mul_f32 v%d, s%d, v%d" % (SC + i, S_T + 3, SC + i))
    for i in range(4):
        o("    v_exp_f32 v%d, v%d" % (SC + i, SC + i))
    o("    s_nop 0")
    o("    v_add_f32 v%d, v%d, v%d" % (M, SC, SC + 1))
    o("    v_add_f32 v%d, v%d, v%d" % (M + 1, SC + 2, SC + 3))
    o("    v_add_f32 v%d, v%d, v%d" % (M, M, M + 1))
    xlane("v_add_f32", M, M + 1)
    o("    v_rcp_f32 v%d, v%d" % (M, M))
    o("    s_nop 0")
    for i in range(4):
        o("    v_mul_f32 v%d, v%d, v%d" % (SC + i, SC + i, M))
    o("    v_cvt_pk_bf16_f32 v%d, v%d, v%d" % (W, SC, SC + 1))
    o("    v_cvt_pk_bf16_f32 v%d, v%d, v%d" % (W + 1, SC + 2, SC + 3))
    o("    v_lshlrev_b32 v%d, 3, v%d" % (V_X, V_LANE))
    o("    ds_write_b64 v%d, v[%d:%d] offset:%d" % (V_X, W, W + 1, LDS_P))
    o("    s_waitcnt lgkmcnt(0)")
    o("    s_branch L_mat_done")

    o("L_vend:")
    PP = MISC
    o("    v_lshlrev_b32 v%d, 3, v%d" % (V_X, V_LANE))
    o("    ds_read_b64 v[%d:%d], v%d offset:%d" % (PP, PP + 1, V_X, LDS_P))
    for w in range(4):
        for h in range(2):
            r = T + (w * 2 + h) * 4
            o("    ds_read_b128 v[%d:%d], v%d offset:%d" % (r, r + 3, V_VR, w * 8192 + h * 1024))
    o("    s_waitcnt lgkmcnt(4)")
    for j in range(8):
        o("    v_add_f32 v%d, v%d, v%d" % (T + j, T + j, T + 8 + j))
    o("    s_waitcnt lgkmcnt(0)")
    for j in range(8):
        o("    v_add_f32 v%d, v%d, v%d" % (T + 16 + j, T + 16 + j, T + 24 + j))
    for j in range(8):
        o("    v_add_f32 v%d, v%d, v%d" % (T + j, T + j, T + 16 + j))
    VB = MISC + 4
    for h in range(2):
        o("    v_cvt_pk_bf16_f32 v%d, v%d, v%d" % (VB + 2 * h, T + 4 * h, T + 4 * h + 1))
        o("    v_cvt_pk_bf16_f32 v%d, v%d, v%d" % (VB + 2 * h + 1, T + 4 * h + 2, T + 4 * h + 3))
    OO = T + 16
    o("    s_lshr_b32 s%d, s%d, 1" % (S_T + 2, S_MI))
    o("    s_lshl_b32 s%d, s%d, 12" % (S_T + 2, S_T + 2))
    for h in range(2):
        o("    v_mfma_f32_16x16x16_bf16 v[%d:%d], v[%d:%d], v[%d:%d], 0" %
          (OO + 4 * h, OO + 4 * h + 3, PP, PP + 1, VB + 2 * h, VB + 2 * h + 1))
    o("    s_nop 7")
    for i in range(4):
        o("    v_cvt_pk_bf16_f32 v%d, v%d, v%d" % (MISC + 8 + i, OO + i, OO + 4 + i))
    for i in range(4):
        o("    buffer_store_dword v%d, v%d, s[%d:%d], s%d offen offset:%d" %
          (MISC + 8 + i, V_OUT, SRD_O, SRD_O + 3, S_T + 2, i * 256))

    o("L_mat_done:")
    o("    s_add_u32 s%d, s%d, 1" % (S_MI, S_MI))
    o("    s_cmp_eq_u32 s%d, 4" % S_MI)
    o("    s_cbranch_scc1 L_fin")
    for j in range(32):
        o("    v_mov_b32 v%d, 0" % (ACC + j))
    o("    s_branch L_outer")

    for tag in stubs:
        o("L_sw_%s:" % tag)
        o("    s_mov_b32 s%d, 32" % S_LS)
        o("    s_add_u32 s%d, s%d, 0x100000" % (S_T + 4, SRD_D))
        o("    s_addc_u32 s%d, s%d, 0" % (S_T + 5, SRD_D + 1))
        o("    s_mov_b32 s%d, s%d" % (SRD_D, NXT_D))
        o("    s_mov_b32 s%d, s%d" % (SRD_D + 1, NXT_D + 1))
        o("    s_mov_b32 s%d, s%d" % (NXT_D, S_T + 4))
        o("    s_mov_b32 s%d, s%d" % (NXT_D + 1, S_T + 5))
        o("    s_mov_b32 s%d, s%d" % (S_T + 4, SRD_P))
        o("    s_mov_b32 s%d, s%d" % (S_T + 5, SRD_P + 1))
        o("    s_mov_b32 s%d, s%d" % (SRD_P, NXT_P))
        o("    s_mov_b32 s%d, s%d" % (SRD_P + 1, NXT_P + 1))
        o("    s_mov_b32 s%d, s%d" % (NXT_P, S_T + 4))
        o("    s_mov_b32 s%d, s%d" % (NXT_P + 1, S_T + 5))
        o("    s_add_u32 s%d, s%d, 1" % (S_LM, S_LM))
        o("    s_cmp_eq_u32 s%d, 4" % S_LM)
        o("    s_cselect_b32 s%d, 0, 0x100000" % (SRD_D + 2))
        o("    s_cselect_b32 s%d, 0, 0x20000" % (SRD_P + 2))
        o("    s_branch L_swr_%s" % tag)

    o("L_fin:")
    if stamp:
        o("    s_waitcnt vmcnt(0)")
        o("    s_memrealtime s[62:63]")
        o("    s_getreg_b32 s58, hwreg(HW_REG_XCC_ID)")
        o("    s_getreg_b32 s59, hwreg(HW_REG_HW_ID)")
        o("    s_waitcnt lgkmcnt(0)")
        o("    s_lshl_b32 s%d, s2, 2" % S_T)
        o("    s_add_u32 s%d, s%d, s%d" % (S_T, S_T, S_WAVE))
        o("    s_lshl_b32 s%d, s%d, 4" % (S_T, S_T))
        o("    v_mov_b32 v4, s60")
        o("    v_mov_b32 v5, s62")
        o("    v_mov_b32 v6, s58")
        o("    v_mov_b32 v7, s59")
        o("    v_mov_b32 v2, s%d" % S_T)
        o("    global_store_dwordx4 v2, v[4:7], s[18:19]")
    o("L_end:")
    o("    s_endpgm")
    nvg = max(accum_offset + na, 264)
    o('.section .rodata,"a"')
    o(".p2align 6")
    o(".amdhsa_kernel %s_kernel" % NAME)
    o("  .amdhsa_next_free_vgpr %d" % nvg)
    o("  .amdhsa_next_free_sgpr 72")
    o("  .amdhsa_accum_offset %d" % accum_offset)
    o("  .amdhsa_group_segment_fixed_size 0")
    o("  .amdhsa_kernarg_size 64")
    o("  .amdhsa_user_sgpr_count 2")
    o("  .amdhsa_user_sgpr_kernarg_segment_ptr 1")
    o("  .amdhsa_system_sgpr_workgroup_id_x 1")
    o("  .amdhsa_float_denorm_mode_32 3")
    o(".end_amdhsa_kernel")
    return "\n".join(L) + "\n"


if __name__ == "__main__":
    out = sys.argv[1]
    kw = {}
    for a in sys.argv[2:]:
        k, v = a.split("=")
        if k not in ("flags", "eflags"):
            v = int(v)
        kw[k] = v
    open(out, "w").write(gen(**kw))
```

```python
import sys

NAME = "standalone__low_rank_proj_linformer__sampling"
HEADER = open("cdna_kernels/%s.s.ref" % NAME).read().split("; Override launch")[0]


def gen(flags="nt", eflags="sc1", oflags="", stamp=0, force=-1, ctl=1,
        mlo="5s", mmid="6p", mhi="8p", dhi=1, dlo=1, cal="9,25", lag=8, delta=0, eps=0, ps=0, pc=6,
        tail=0, notime=0, pre=0, noev=0, trace=0,
        doat=1, dold=1, aflags="sc1", akind="atomic", abase=16, wmap=0, amask=0, aval=0,
        ns=256, stag=4, noout=0, defer=0, bp=0, noE=0, mpost="", qwait=0, pstamp=0, fin=0, tsh=0):
    LA, RS, ER, P = 4, 2, 2, 2
    cal = [int(x) for x in str(cal).split(",")]
    assert 2 <= len(cal) <= 4
    SLOT = [0, 128, 64, 192]
    nsh = ns.bit_length() - 1
    assert ns == 1 << nsh and ns >= 8 * stag
    st2 = stag - 1
    nobar = nocomp = rot = 0
    L = []
    o = L.append
    DS = 1088
    WS = 8 * DS
    LDS_P, LDS_KP, LDS_VP = 0, 512, 512 + 4 * WS
    lds = 512 + 8 * WS
    o(HEADER.rstrip())
    o("; @launch grid=(256,1,1) block=(256,1,1) lds=%d" % lds)
    o('.amdgcn_target "amdgcn-amd-amdhsa--gfx950"')
    o(".text")
    o(".globl %s_kernel" % NAME)
    o(".p2align 8")
    o(".type %s_kernel,@function" % NAME)
    o("%s_kernel:" % NAME)

    V_LANE, V_OFF, V_EOFF, V_PW, V_VR, V_OUT, V_X, V_Y = 0, 1, 2, 3, 4, 5, 6, 7
    ACC = 8
    T = 40
    MISC = 72
    V_BO, V_BV = MISC + 22, MISC + 23
    RING = 96
    V_DEF = RING + 32 * RS
    nv = V_DEF + 4
    assert nv <= 256
    A_Q = 0
    A_E = 16
    na = A_E + 4 * ER
    accum_offset = (nv + 3) // 4 * 4

    S_SELLO, S_SELHI, S_WAVE, S_OFF, S_EOFF, S_CNT, S_MI, S_LM = 20, 21, 22, 23, 24, 25, 26, 27
    S_PROG = 57
    SRD_D, SRD_P = 28, 32
    NXT_D, NXT_P = 36, 38
    SRD_Q, SRD_O = 40, 44
    S_T = 48

    o("    s_cmp_ge_u32 s2, 256")
    o("    s_cbranch_scc1 L_end")
    o("    s_load_dwordx16 s[4:19], s[0:1], 0")
    if stamp:
        o("    s_memrealtime s[60:61]")
    o("    v_lshrrev_b32 v%d, 6, v0" % V_X)
    o("    v_and_b32 v%d, 63, v0" % V_LANE)
    o("    v_readfirstlane_b32 s%d, v%d" % (S_WAVE, V_X))
    o("    s_mov_b32 s%d, 0x05040100" % S_SELLO)
    o("    s_mov_b32 s%d, 0x07060302" % S_SELHI)
    o("    v_and_b32 v%d, 15, v%d" % (V_X, V_LANE))
    o("    v_lshrrev_b32 v%d, 4, v%d" % (V_Y, V_LANE))
    o("    v_lshlrev_b32 v%d, 4, v%d" % (V_OFF, V_X))
    o("    v_lshl_add_u32 v%d, v%d, 11, v%d" % (V_OFF, V_Y, V_OFF))
    o("    v_lshlrev_b32 v%d, 13, v%d" % (V_EOFF, V_X))
    o("    v_lshl_add_u32 v%d, v%d, 4, v%d" % (V_EOFF, V_Y, V_EOFF))
    o("    s_lshl_b32 s%d, s%d, 13" % (S_OFF, S_WAVE))
    S_EV, S_MODE, S_ACC, S_INC, S_TM, S_NOW, S_THI, S_TLO = 64, 65, 66, 67, 72, 74, 76, 77
    S_C1, S_C2, S_HI, S_OFF0, S_RP, S_OK = 68, 70, 78, 79, 80, 81
    o("    s_mov_b32 s%d, s%d" % (S_OFF0, S_OFF))
    o("    s_mov_b32 s%d, %d" % (S_MODE, {-1: 0, 0: 0, 1: 1, 2: 2}[force]))
    if ctl:
        o("    s_mov_b32 s%d, 0" % S_PROG)
        o("    s_mov_b32 s%d, 0" % S_HI)
        o("    s_mov_b32 s%d, 0" % S_ACC)
        o("    s_mov_b32 s%d, 0" % S_INC)
        o("    s_mov_b32 s%d, 0" % S_TM)
        o("    s_mov_b32 s%d, 0" % S_NOW)
        o("    s_mov_b32 s%d, 0x7fffffff" % S_THI)
        o("    s_mov_b32 s%d, 0x80000000" % S_TLO)
        o("    s_lshr_b32 s%d, s2, 3" % S_T)
        o("    s_and_b32 s%d, s%d, %d" % (S_T, S_T, stag - 1))
        o("    s_mov_b32 s%d, 0x7fffffff" % S_RP)
        o("    s_mov_b32 s%d, 0" % (S_T + 1))
        for k, c in enumerate(cal):
            o("    s_cmp_eq_u32 s%d, %d" % (S_WAVE, (k + 1) & 3))
            o("    s_cselect_b32 s%d, %d, s%d" % (S_RP, c, S_RP))
            o("    s_cselect_b32 s%d, %d, s%d" % (S_T + 1, SLOT[k], S_T + 1))
        o("    v_mov_b32 v%d, s%d" % (V_BO, S_T + 1))
        o("    s_cmp_lg_u32 s%d, 0x7fffffff" % S_RP)
        o("    s_cselect_b32 s%d, s%d, 0" % (S_T, S_T))
        o("    s_add_u32 s%d, s%d, s%d" % (S_RP, S_RP, S_T))
        if ns < 256:
            o("    s_cmp_lt_u32 s2, %d" % ns)
            o("    s_cselect_b32 s%d, s%d, 0x7fffffff" % (S_RP, S_RP))
        if amask:
            o("    s_and_b32 s%d, s2, %d" % (S_T, amask))
            o("    s_cmp_eq_u32 s%d, %d" % (S_T, aval))
            o("    s_cselect_b32 s%d, s%d, 0x7fffffff" % (S_RP, S_RP))
        o("    s_mov_b32 s%d, %d" % (S_EV, cal[1] + lag))
        o("    s_mov_b32 s%d, 0" % S_OK)
        for r in range(S_C1, S_C1 + 4):
            o("    s_mov_b32 s%d, 0" % r)
    o("    s_lshr_b32 s%d, s%d, 7" % (S_EOFF, S_OFF))
    o("    s_mov_b32 s%d, 0" % S_LM)
    o("    s_mov_b32 s%d, 0" % S_MI)
    S_PAIR = S_T + 2
    if wmap == 0:
        o("    s_mov_b32 s%d, s2" % S_PAIR)
    elif wmap == 1:
        o("    s_and_b32 s%d, s2, 7" % S_PAIR)
        o("    s_lshl_b32 s%d, s%d, 5" % (S_PAIR, S_PAIR))
        o("    s_lshr_b32 s%d, s2, 3" % (S_T + 3))
        o("    s_or_b32 s%d, s%d, s%d" % (S_PAIR, S_PAIR, S_T + 3))
    elif wmap == 2:
        o("    s_lshr_b32 s%d, s2, 3" % (S_T + 3))
        o("    s_and_b32 s%d, s%d, 7" % (S_T + 3, S_T + 3))
        o("    s_xor_b32 s%d, s2, s%d" % (S_PAIR, S_T + 3))
    elif wmap == 3:
        o("    s_and_b32 s%d, s2, 7" % S_PAIR)
        o("    s_lshl_b32 s%d, s%d, 5" % (S_PAIR, S_PAIR))
        o("    s_lshr_b32 s%d, s2, 3" % (S_T + 3))
        o("    s_or_b32 s%d, s%d, s%d" % (S_PAIR, S_PAIR, S_T + 3))
        o("    s_and_b32 s%d, s%d, 7" % (S_T + 3, S_T + 3))
        o("    s_lshl_b32 s%d, s%d, 5" % (S_T + 3, S_T + 3))
        o("    s_xor_b32 s%d, s%d, s%d" % (S_PAIR, S_PAIR, S_T + 3))
    elif wmap == 4:
        o("    s_and_b32 s%d, s2, 7" % S_PAIR)
        o("    s_lshr_b32 s%d, s2, 3" % (S_T + 3))
        o("    s_lshl_b32 s%d, s%d, 2" % (S_T + 4, S_PAIR))
        o("    s_add_u32 s%d, s%d, s%d" % (S_T + 3, S_T + 3, S_T + 4))
        o("    s_and_b32 s%d, s%d, 31" % (S_T + 3, S_T + 3))
        o("    s_lshl_b32 s%d, s%d, 5" % (S_PAIR, S_PAIR))
        o("    s_or_b32 s%d, s%d, s%d" % (S_PAIR, S_PAIR, S_T + 3))
    elif wmap == 5:
        o("    s_brev_b32 s%d, s2" % S_PAIR)
        o("    s_lshr_b32 s%d, s%d, 24" % (S_PAIR, S_PAIR))
    elif wmap == 6:
        o("    s_bfe_u32 s%d, s2, 0x20001" % S_PAIR)
        o("    s_lshl_b32 s%d, s%d, 6" % (S_PAIR, S_PAIR))
        o("    s_lshr_b32 s%d, s2, 3" % (S_T + 3))
        o("    s_lshl_b32 s%d, s%d, 1" % (S_T + 3, S_T + 3))
        o("    s_or_b32 s%d, s%d, s%d" % (S_PAIR, S_PAIR, S_T + 3))
        o("    s_and_b32 s%d, s2, 1" % (S_T + 3))
        o("    s_or_b32 s%d, s%d, s%d" % (S_PAIR, S_PAIR, S_T + 3))
    elif wmap == 7:
        o("    s_and_b32 s%d, s2, 7" % S_PAIR)
        o("    s_lshl_b32 s%d, s%d, 3" % (S_PAIR, S_PAIR))
        o("    s_bfe_u32 s%d, s2, 0x30003" % (S_T + 3))
        o("    s_or_b32 s%d, s%d, s%d" % (S_PAIR, S_PAIR, S_T + 3))
        o("    s_lshr_b32 s%d, s2, 6" % (S_T + 3))
        o("    s_lshl_b32 s%d, s%d, 6" % (S_T + 3, S_T + 3))
        o("    s_or_b32 s%d, s%d, s%d" % (S_PAIR, S_PAIR, S_T + 3))
    o("    s_lshl_b32 s%d, s%d, 21" % (S_T, S_PAIR))
    o("    s_lshl_b32 s%d, s%d, 13" % (S_T + 1, S_PAIR))
    o("    s_mov_b32 s%d, 0x100000" % (SRD_D + 2))
    o("    s_mov_b32 s%d, 0x20000" % (SRD_D + 3))
    o("    s_mov_b32 s%d, 0x20000" % (SRD_P + 2))
    o("    s_mov_b32 s%d, 0x20000" % (SRD_P + 3))
    o("    s_mov_b32 s%d, 8192" % (SRD_Q + 2))
    o("    s_mov_b32 s%d, 0x20000" % (SRD_Q + 3))
    o("    s_mov_b32 s%d, 8192" % (SRD_O + 2))
    o("    s_mov_b32 s%d, 0x20000" % (SRD_O + 3))
    o("    s_waitcnt lgkmcnt(0)")
    if pstamp:
        o("    s_memrealtime s[82:83]")
    o("    s_add_u32 s%d, s6, s%d" % (SRD_D, S_T))
    o("    s_addc_u32 s%d, s7, 0" % (SRD_D + 1))
    o("    s_mov_b32 s%d, s10" % SRD_P)
    o("    s_mov_b32 s%d, s11" % (SRD_P + 1))

    def issue_E(step):
        if noE:
            return
        r = A_E + (step % ER) * 4
        o("    buffer_load_dwordx4 a[%d:%d], v%d, s[%d:%d], s%d offen %s" %
          (r, r + 3, V_EOFF, SRD_P, SRD_P + 3, S_EOFF, eflags))

    def issue_one(n):
        q, h = divmod(n, 2)
        a = q % 4
        slot = q % (4 * RS)
        i = 2 * a + h
        r = RING + (slot * 2 + h) * 4
        o("    buffer_load_dwordx4 v[%d:%d], v%d, s[%d:%d], s%d offen offset:%d %s" %
          (r, r + 3, V_OFF, SRD_D, SRD_D + 3, S_OFF, i * 256, flags))

    def issue_pair(q):
        issue_one(2 * q)
        issue_one(2 * q + 1)

    stubs = []
    events = []

    issue_E(0)
    for q in range(LA):
        issue_pair(q)
    if bp:
        o("    s_add_u32 s%d, s%d, 0x8000" % (S_OFF, S_OFF))
        o("    s_lshr_b32 s%d, s%d, 7" % (S_EOFF, S_OFF))
        issue_one(8)
        issue_E(1)
        for n in range(9, 16):
            issue_one(n)
    o("    s_add_u32 s%d, s8, s%d" % (NXT_D, S_T))
    o("    s_addc_u32 s%d, s9, 0" % (NXT_D + 1))
    o("    s_mov_b32 s%d, s12" % NXT_P)
    o("    s_mov_b32 s%d, s13" % (NXT_P + 1))
    o("    s_add_u32 s%d, s4, s%d" % (SRD_Q, S_T + 1))
    o("    s_addc_u32 s%d, s5, 0" % (SRD_Q + 1))
    o("    s_add_u32 s%d, s14, s%d" % (SRD_O, S_T + 1))
    o("    s_addc_u32 s%d, s15, 0" % (SRD_O + 1))
    o("    v_lshlrev_b32 v%d, 8, v%d" % (V_PW, V_X))
    o("    v_lshl_add_u32 v%d, v%d, 6, v%d" % (V_PW, V_Y, V_PW))
    o("    s_lshr_b32 s%d, s%d, 1" % (S_T + 2, S_WAVE))
    o("    s_lshl_b32 s%d, s%d, 12" % (S_T + 2, S_T + 2))
    for s in range(4):
        o("    buffer_load_dwordx4 a[%d:%d], v%d, s[%d:%d], s%d offen offset:%d" %
          (A_Q + 4 * s, A_Q + 4 * s + 3, V_PW, SRD_Q, SRD_Q + 3, S_T + 2, 16 * s))
    o("    v_lshlrev_b32 v%d, 8, v%d" % (V_OUT, V_X))
    o("    v_lshl_add_u32 v%d, v%d, 4, v%d" % (V_OUT, V_Y, V_OUT))
    o("    s_lshl_b32 s%d, s%d, 6" % (S_T + 2, S_WAVE))
    o("    v_add_u32 v%d, s%d, v%d" % (V_OUT, S_T + 2, V_OUT))
    o("    v_and_b32 v%d, 3, v%d" % (V_VR, V_X))
    o("    v_mul_u32_u24 v%d, %d, v%d" % (V_VR, DS, V_VR))
    o("    v_lshrrev_b32 v%d, 2, v%d" % (V_X, V_X))
    o("    v_lshl_add_u32 v%d, v%d, 4, v%d" % (V_X, V_Y, V_X))
    o("    v_lshl_add_u32 v%d, v%d, 4, v%d" % (V_VR, V_X, V_VR))
    o("    s_lshl_b32 s%d, s%d, 6" % (S_T + 2, S_WAVE))
    o("    s_add_u32 s%d, s%d, %d" % (S_T + 2, S_T + 2, LDS_VP))
    o("    v_add_u32 v%d, s%d, v%d" % (V_VR, S_T + 2, V_VR))
    o("    v_lshlrev_b32 v%d, 4, v%d" % (V_X, V_LANE))
    o("    s_mul_i32 s%d, s%d, %d" % (S_T + 2, S_WAVE, WS))
    o("    s_add_u32 s%d, s%d, %d" % (S_T + 2, S_T + 2, LDS_KP))
    o("    v_add_u32 v%d, s%d, v%d" % (V_PW, S_T + 2, V_X))
    for j in range(32):
        o("    v_mov_b32 v%d, 0" % (ACC + j))


    def allowed(n, req, e_done):
        cnt = n - 1 - req
        for qq in range(0, n // 2 + 1):
            if qq % 4 == 0 and 2 * qq >= req and (qq < n // 2 or e_done) and not noE:
                cnt += 1
        return cnt

    def wait_of(m, p, h):
        q = p + LA
        n = 2 * q + h
        N, gr = int(m[:-1]), m[-1]
        if gr == "p":
            if h == 1:
                return None
            req = n - N + 1
        else:
            req = n - N
        if h == 0:
            req = max(req, 2 * p + 1)
        elif req <= 2 * p + 1:
            return None
        big = 8000
        return allowed(n + big, req + big, h == 1)

    def decide(tag):
        T0 = S_T + 6
        o("    s_waitcnt lgkmcnt(0)")
        if not noev:
            o("    s_cmp_eq_u32 s%d, s%d" % (S_PROG, S_RP))
            o("    s_cbranch_scc1 L_rp_%s" % tag)
            o("L_rpr_%s:" % tag)
            o("    s_cmp_eq_u32 s%d, s%d" % (S_PROG, S_EV))
            o("    s_cbranch_scc1 L_ev_%s" % tag)
        o("L_evr_%s:" % tag)
        if trace:
            o("    s_mov_b32 m0, s%d" % S_PROG)
            o("    s_nop 0")
            o("    v_writelane_b32 v%d, s%d, m0" % (V_BV, S_NOW))
        o("    s_sub_u32 s%d, s%d, s%d" % (T0, S_NOW, S_TM))
        o("    s_lshl_b32 s%d, s%d, 6" % (T0, T0))
        o("    s_sub_u32 s%d, s%d, s%d" % (T0, T0, S_ACC))
        o("    s_add_u32 s%d, s%d, s%d" % (S_ACC, S_ACC, S_INC))
        o("    s_add_u32 s%d, s%d, 1" % (S_PROG, S_PROG))
        if force < 0:
            o("    s_cmp_gt_i32 s%d, s%d" % (T0, S_THI))
            o("    s_cselect_b32 s%d, 1, 0" % S_MODE)
            o("    s_cmp_lt_i32 s%d, s%d" % (T0, S_TLO))
            o("    s_cselect_b32 s%d, 2, s%d" % (S_MODE, S_MODE))
        if tail:
            o("    s_cmp_ge_u32 s%d, %d" % (S_PROG, 64 - tail))
            o("    s_cselect_b32 s%d, 1, s%d" % (S_MODE, S_MODE))
        if fin:
            o("    s_cmp_eq_u32 s%d, %d" % (S_PROG, 64 - fin))
            o("    s_cselect_b32 s%d, 3, s%d" % (S_MODE, S_MODE))
        if stamp:
            o("    s_and_b32 s%d, s%d, 1" % (T0, S_MODE))
            o("    s_add_u32 s%d, s%d, s%d" % (S_HI, S_HI, T0))
            o("    s_and_b32 s%d, s%d, 2" % (T0, S_MODE))
            o("    s_lshl_b32 s%d, s%d, 7" % (T0, T0))
            o("    s_add_u32 s%d, s%d, s%d" % (S_HI, S_HI, T0))
        events.append(tag)

    def emit_events():
        T0, T1 = S_T + 6, S_T + 7
        for tag in events:
            if noev:
                continue
            o("L_rp_%s:" % tag)
            o("    v_mov_b32 v%d, s%d" % (V_BV - 3, S_NOW))
            o("    v_mov_b32 v%d, 0x100" % (V_BV - 2))
            o("    s_mov_b64 exec, 1")
            if doat and akind == "atomic":
                o("    global_atomic_add_x2 v%d, v[%d:%d], s[%d:%d] %s" % (V_BO, V_BV - 3, V_BV - 2, abase, abase + 1, aflags))
            elif doat and akind == "store":
                o("    global_store_dwordx2 v%d, v[%d:%d], s[%d:%d] %s" % (V_BO, V_BV - 3, V_BV - 2, abase, abase + 1, aflags))
            elif doat and akind == "load":
                o("    global_load_dwordx2 v[%d:%d], v%d, s[%d:%d] %s" % (V_BV - 3, V_BV - 2, V_BO, abase, abase + 1, aflags))
            o("    s_mov_b64 exec, -1")
            o("    s_branch L_rpr_%s" % tag)
            o("L_ev_%s:" % tag)
            for k in range(1, len(cal)):
                o("    s_cmp_eq_u32 s%d, %d" % (S_EV, cal[k] + lag))
                o("    s_cbranch_scc1 L_evl%d_%s" % (k, tag))
                o("    s_cmp_eq_u32 s%d, %d" % (S_EV, cal[k] + lag + 1))
                o("    s_cbranch_scc1 L_evc%d_%s" % (k, tag))
            o("    s_branch L_evr_%s" % tag)
            for k in range(1, len(cal)):
                jr = cal[k] + lag
                span = cal[k] - cal[k - 1]
                assert span in (8, 16)
                o("L_evl%d_%s:" % (k, tag))
                if k == 1 and dold:
                    o("    s_load_dwordx2 s[%d:%d], s[16:17], %d" % (S_C1, S_C1 + 1, SLOT[0]))
                if dold:
                    o("    s_load_dwordx2 s[%d:%d], s[16:17], %d" % (S_C2, S_C2 + 1, SLOT[k]))
                o("    s_mov_b32 s%d, %d" % (S_EV, jr + 1))
                o("    s_branch L_evr_%s" % tag)
                o("L_evc%d_%s:" % (k, tag))
                o("    s_mov_b32 s%d, %s" % (S_EV, "0x7fffffff" if k == len(cal) - 1 else str(cal[k + 1] + lag)))
                if k == 1:
                    o("    s_lshr_b64 s[%d:%d], s[%d:%d], %d" % (S_C1, S_C1 + 1, S_C1, S_C1 + 1, nsh))
                o("    s_lshr_b64 s[%d:%d], s[%d:%d], %d" % (S_C2, S_C2 + 1, S_C2, S_C2 + 1, nsh))
                o("    s_and_b32 s%d, s%d, s%d" % (T0, S_C1 + 1, S_C2 + 1))
                o("    s_sub_u32 s%d, s%d, s%d" % (T1, S_C2, S_C1))
                o("    s_mov_b32 s%d, s%d" % (S_C1, S_C2))
                o("    s_mov_b32 s%d, s%d" % (S_C1 + 1, S_C2 + 1))
                o("    s_cmp_lg_u32 s%d, 256" % T0)
                o("    s_cbranch_scc1 L_evr_%s" % tag)
                if stamp:
                    o("    s_add_u32 s%d, s%d, 0x10000" % (S_HI, S_HI))
                if span == 8:
                    o("    s_lshl_b32 s%d, s%d, 1" % (T1, T1))
                o("    s_mov_b32 s%d, s%d" % (S_TM, S_C1))
                o("    s_lshl_b32 s%d, s%d, 2" % (S_INC, T1))
                o("    s_mul_i32 s%d, s%d, %d" % (S_ACC, T1, 4 * (jr + 1) - (4 * cal[k] + 2 * st2) + delta))
                o("    s_mul_i32 s%d, s%d, %d" % (S_THI, T1, dhi))
                o("    s_mul_i32 s%d, s%d, %d" % (S_TLO, T1, -dlo))
                if tsh:
                    o("    s_ashr_i32 s%d, s%d, %d" % (S_THI, S_THI, tsh))
                    o("    s_ashr_i32 s%d, s%d, %d" % (S_TLO, S_TLO, tsh))
                if eps:
                    o("    s_mul_i32 s%d, s%d, %d" % (T0, T1, eps))
                    o("    s_ashr_i32 s%d, s%d, 6" % (T0, T0))
                    o("    s_sub_u32 s%d, s%d, s%d" % (S_INC, S_INC, T0))
                o("    s_branch L_evr_%s" % tag)

    def body(mode, m, post=False):
        o("L_body_%s:" % mode)
        for p in range(8):
            s, a = divmod(p, 4)
            q = p + LA
            if p == 0 and not post:
                o("    s_add_u32 s%d, s%d, 0x8000" % (S_OFF, S_OFF))
                o("    s_lshr_b32 s%d, s%d, 7" % (S_EOFF, S_OFF))
            if p == 4:
                o("    s_add_u32 s%d, s%d, 0x8000" % (S_OFF, S_OFF))
                if not post:
                    o("    s_cmp_eq_u32 s%d, 1" % S_CNT)
                    o("    s_cbranch_scc1 L_sw_%s" % mode)
                    o("L_swr_%s:" % mode)
                    stubs.append(mode)
                o("    s_lshr_b32 s%d, s%d, 7" % (S_EOFF, S_OFF))
            if ctl and p == pc and pre:
                decide(mode)
                if ps == pc and not notime:
                    o("    s_memrealtime s[%d:%d]" % (S_NOW, S_NOW + 1))
            if post and p < 4:
                younger = 15 - (2 * p + 1) + (0 if noE else 1)
                o("    s_waitcnt vmcnt(%d)" % younger)
            else:
                for h in range(2):
                    w = wait_of(m, p, h)
                    if w is not None:
                        o("    s_waitcnt vmcnt(%d)" % w)
                    if h == 0 and q % 4 == 0:
                        issue_one(2 * q)
                        issue_E(q // 4)
                    else:
                        issue_one(2 * q + h)
            if ctl and p == ps and ps != pc and not notime:
                o("    s_memrealtime s[%d:%d]" % (S_NOW, S_NOW + 1))
            if ctl and p == pc and not pre:
                decide(mode)
                if ps == pc and not notime:
                    o("    s_memrealtime s[%d:%d]" % (S_NOW, S_NOW + 1))
            slot = p % (4 * RS)
            xb = RING + slot * 8
            yb = xb + 4
            for c in range(4):
                o("    v_perm_b32 v%d, v%d, v%d, s%d" % (T + (2 * c) * 4 + a, yb + c, xb + c, S_SELLO))
                o("    v_perm_b32 v%d, v%d, v%d, s%d" % (T + (2 * c + 1) * 4 + a, yb + c, xb + c, S_SELHI))
            if a == 3:
                e = A_E + (s % ER) * 4
                o("    s_nop 1")
                for dd in range(8):
                    acc = ACC + dd * 4
                    o("    v_mfma_f32_16x16x32_bf16 v[%d:%d], a[%d:%d], v[%d:%d], v[%d:%d]" %
                      (acc, acc + 3, e, e + 3, T + dd * 4, T + dd * 4 + 3, acc, acc + 3))
        o("    s_sub_u32 s%d, s%d, 1" % (S_CNT, S_CNT))
        if not post:
            o("    s_cmp_eq_u32 s%d, 0" % S_CNT)
            o("    s_cbranch_scc1 L_matend")

    def body_fin():
        o("L_body_fin:")
        o("    s_add_u32 s%d, s%d, 0x8000" % (S_OFF, S_OFF))
        o("    s_lshr_b32 s%d, s%d, 7" % (S_EOFF, S_OFF))
        issue_one(8)
        issue_E(1)
        for n in range(9, 16):
            issue_one(n)
        for p in range(8):
            s, a = divmod(p, 4)
            younger = 15 - (2 * p + 1) + (1 if (p < 4 and not noE) else 0)
            o("    s_waitcnt vmcnt(%d)" % younger)
            xb = RING + p * 8
            yb = xb + 4
            for c in range(4):
                o("    v_perm_b32 v%d, v%d, v%d, s%d" % (T + (2 * c) * 4 + a, yb + c, xb + c, S_SELLO))
                o("    v_perm_b32 v%d, v%d, v%d, s%d" % (T + (2 * c + 1) * 4 + a, yb + c, xb + c, S_SELHI))
            if a == 3:
                e = A_E + (s % ER) * 4
                o("    s_nop 1")
                for dd in range(8):
                    acc = ACC + dd * 4
                    o("    v_mfma_f32_16x16x32_bf16 v[%d:%d], a[%d:%d], v[%d:%d], v[%d:%d]" %
                      (acc, acc + 3, e, e + 3, T + dd * 4, T + dd * 4 + 3, acc, acc + 3))
        o("    s_branch L_matend")

    o("L_outer:")
    o("    s_mov_b32 s%d, 16" % S_CNT)
    if bp:
        body("post", mpost or mmid, post=True)
    o("L_dispatch:")
    modes = [("mid", mmid)]
    if (ctl and force < 0) or force == 1 or tail:
        modes.append(("hi", mhi))
        o("    s_cmp_eq_u32 s%d, 1" % S_MODE)
        o("    s_cbranch_scc1 L_body_hi")
    if (ctl and force < 0) or force == 2:
        modes.append(("lo", mlo))
        o("    s_cmp_eq_u32 s%d, 2" % S_MODE)
        o("    s_cbranch_scc1 L_body_lo")
    if fin:
        assert ctl
        o("    s_cmp_eq_u32 s%d, 3" % S_MODE)
        o("    s_cbranch_scc1 L_body_fin")
    for mode, m in modes:
        body(mode, m)
        o("    s_branch L_dispatch")
    if fin:
        body_fin()
    o("L_matend:")
    if bp:
        o("    s_cmp_eq_u32 s%d, 3" % S_MI)
        o("    s_cbranch_scc1 L_nopf")
        o("    s_add_u32 s%d, s%d, 0x8000" % (S_OFF, S_OFF))
        o("    s_lshr_b32 s%d, s%d, 7" % (S_EOFF, S_OFF))
        issue_one(8)
        issue_E(1)
        for n in range(9, 16):
            issue_one(n)
        o("L_nopf:")
    o("    s_and_b32 s%d, s%d, 1" % (S_T, S_MI))
    o("    s_mul_i32 s%d, s%d, %d" % (S_T + 1, S_T, 4 * WS))
    o("    v_add_u32 v%d, s%d, v%d" % (V_X, S_T + 1, V_PW))
    o("    s_nop 7")
    if ctl:
        o("    s_waitcnt lgkmcnt(0)")
    for dd in range(8):
        o("    ds_write_b128 v%d, v[%d:%d] offset:%d" % (V_X, ACC + 4 * dd, ACC + 4 * dd + 3, dd * DS))
    o("    s_waitcnt lgkmcnt(0)")
    o("    s_barrier")
    o("    s_cmp_eq_u32 s%d, 1" % S_T)
    o("    s_cbranch_scc1 L_vend")
    o("    s_cmp_lg_u32 s%d, s%d" % (S_WAVE, S_MI))
    o("    s_cbranch_scc1 L_mat_done")
    SUM, TMP, PA = ACC, T, MISC
    o("    v_lshlrev_b32 v%d, 4, v%d" % (V_X, V_LANE))
    for w in range(4):
        dst = SUM if w == 0 else TMP
        for dd in range(8):
            o("    ds_read_b128 v[%d:%d], v%d offset:%d" %
              (dst + 4 * dd, dst + 4 * dd + 3, V_X, LDS_KP + w * WS + dd * DS))
        if w > 0:
            for dd in range(8):
                o("    s_waitcnt lgkmcnt(%d)" % (7 - dd))
                for i in range(4):
                    o("    v_add_f32 v%d, v%d, v%d" % (SUM + 4 * dd + i, SUM + 4 * dd + i, TMP + 4 * dd + i))
    for dd in range(8):
        o("    v_cvt_pk_bf16_f32 v%d, v%d, v%d" % (PA + 2 * dd, SUM + 4 * dd, SUM + 4 * dd + 1))
        o("    v_cvt_pk_bf16_f32 v%d, v%d, v%d" % (PA + 2 * dd + 1, SUM + 4 * dd + 2, SUM + 4 * dd + 3))
    ID = MISC + 16
    o("    v_and_b32 v%d, 15, v%d" % (V_X, V_LANE))
    o("    v_lshrrev_b32 v%d, 4, v%d" % (V_Y, V_LANE))
    o("    v_lshlrev_b32 v%d, 2, v%d" % (V_Y, V_Y))
    o("    v_sub_u32 v%d, v%d, v%d" % (V_X, V_X, V_Y))
    o("    v_mov_b32 v%d, 0" % ID)
    o("    v_mov_b32 v%d, 0" % (ID + 1))
    o("    v_mov_b32 v%d, 0x3f80" % (ID + 2))
    o("    v_mov_b32 v%d, 0x3f800000" % (ID + 3))
    for j, (dst, src) in enumerate(((ID, ID + 2), (ID, ID + 3), (ID + 1, ID + 2), (ID + 1, ID + 3))):
        o("    v_cmp_eq_u32 vcc, %d, v%d" % (j, V_X))
        o("    s_nop 1")
        o("    v_cndmask_b32 v%d, v%d, v%d, vcc" % (dst, dst, src))
    o("    s_nop 1")
    for dd in range(8):
        o("    v_mfma_f32_16x16x16_bf16 v[%d:%d], v[%d:%d], v[%d:%d], 0" %
          (TMP + 4 * dd, TMP + 4 * dd + 3, PA + 2 * dd, PA + 2 * dd + 1, ID, ID + 1))
    o("    s_nop 7")
    PB = SUM
    for s in range(4):
        for j in range(4):
            o("    v_cvt_pk_bf16_f32 v%d, v%d, v%d" %
              (PB + 4 * s + j, TMP + (2 * j) * 4 + s, TMP + (2 * j + 1) * 4 + s))
    SC = SUM + 16
    if qwait:
        o("    s_waitcnt vmcnt(0)")
    for s in range(4):
        c = "0" if s == 0 else "v[%d:%d]" % (SC, SC + 3)
        o("    v_mfma_f32_16x16x32_bf16 v[%d:%d], v[%d:%d], a[%d:%d], %s" %
          (SC, SC + 3, PB + 4 * s, PB + 4 * s + 3, A_Q + 4 * s, A_Q + 4 * s + 3, c))
    o("    s_mov_b32 s%d, 0x3db504f3" % (S_T + 2))
    o("    s_mov_b32 s%d, 0x3fb8aa3b" % (S_T + 3))
    o("    s_nop 7")
    W = SUM + 20
    M = SUM + 22

    def round_bf16():
        o("    v_cvt_pk_bf16_f32 v%d, v%d, v%d" % (W, SC, SC + 1))
        o("    v_cvt_pk_bf16_f32 v%d, v%d, v%d" % (W + 1, SC + 2, SC + 3))
        o("    v_lshlrev_b32 v%d, 16, v%d" % (SC, W))
        o("    v_and_b32 v%d, 0xffff0000, v%d" % (SC + 1, W))
        o("    v_lshlrev_b32 v%d, 16, v%d" % (SC + 2, W + 1))
        o("    v_and_b32 v%d, 0xffff0000, v%d" % (SC + 3, W + 1))

    round_bf16()
    for i in range(4):
        o("    v_mul_f32 v%d, s%d, v%d" % (SC + i, S_T + 2, SC + i))
    round_bf16()
    o("    v_max_f32 v%d, v%d, v%d" % (M, SC, SC + 1))
    o("    v_max3_f32 v%d, v%d, v%d, v%d" % (M, SC + 2, SC + 3, M))

    def xlane(op, reg, tmp):
        for sw in ("v_permlane32_swap_b32", "v_permlane16_swap_b32"):
            o("    v_mov_b32 v%d, v%d" % (tmp, reg))
            o("    s_nop 1")
            o("    %s v%d, v%d" % (sw, reg, tmp))
            o("    s_nop 1")
            o("    %s v%d, v%d, v%d" % (op, reg, reg, tmp))

    xlane("v_max_f32", M, M + 1)
    for i in range(4):
        o("    v_sub_f32 v%d, v%d, v%d" % (SC + i, SC + i, M))
    for i in range(4):
        o("    v_mul_f32 v%d, s%d, v%d" % (SC + i, S_T + 3, SC + i))
    for i in range(4):
        o("    v_exp_f32 v%d, v%d" % (SC + i, SC + i))
    o("    s_nop 0")
    o("    v_add_f32 v%d, v%d, v%d" % (M, SC, SC + 1))
    o("    v_add_f32 v%d, v%d, v%d" % (M + 1, SC + 2, SC + 3))
    o("    v_add_f32 v%d, v%d, v%d" % (M, M, M + 1))
    xlane("v_add_f32", M, M + 1)
    o("    v_rcp_f32 v%d, v%d" % (M, M))
    o("    s_nop 0")
    for i in range(4):
        o("    v_mul_f32 v%d, v%d, v%d" % (SC + i, SC + i, M))
    o("    v_cvt_pk_bf16_f32 v%d, v%d, v%d" % (W, SC, SC + 1))
    o("    v_cvt_pk_bf16_f32 v%d, v%d, v%d" % (W + 1, SC + 2, SC + 3))
    o("    v_lshlrev_b32 v%d, 3, v%d" % (V_X, V_LANE))
    o("    ds_write_b64 v%d, v[%d:%d] offset:%d" % (V_X, W, W + 1, LDS_P))
    o("    s_waitcnt lgkmcnt(0)")
    o("    s_branch L_mat_done")

    o("L_vend:")
    PP = MISC
    o("    v_lshlrev_b32 v%d, 3, v%d" % (V_X, V_LANE))
    o("    ds_read_b64 v[%d:%d], v%d offset:%d" % (PP, PP + 1, V_X, LDS_P))
    for w in range(4):
        for h in range(2):
            r = T + (w * 2 + h) * 4
            o("    ds_read_b128 v[%d:%d], v%d offset:%d" % (r, r + 3, V_VR, w * WS + h * 4 * DS))
    o("    s_waitcnt lgkmcnt(4)")
    for j in range(8):
        o("    v_add_f32 v%d, v%d, v%d" % (T + j, T + j, T + 8 + j))
    o("    s_waitcnt lgkmcnt(0)")
    for j in range(8):
        o("    v_add_f32 v%d, v%d, v%d" % (T + 16 + j, T + 16 + j, T + 24 + j))
    for j in range(8):
        o("    v_add_f32 v%d, v%d, v%d" % (T + j, T + j, T + 16 + j))
    VB = MISC + 4
    for h in range(2):
        o("    v_cvt_pk_bf16_f32 v%d, v%d, v%d" % (VB + 2 * h, T + 4 * h, T + 4 * h + 1))
        o("    v_cvt_pk_bf16_f32 v%d, v%d, v%d" % (VB + 2 * h + 1, T + 4 * h + 2, T + 4 * h + 3))
    OO = T + 16
    o("    s_lshr_b32 s%d, s%d, 1" % (S_T + 2, S_MI))
    o("    s_lshl_b32 s%d, s%d, 12" % (S_T + 2, S_T + 2))
    for h in range(2):
        o("    v_mfma_f32_16x16x16_bf16 v[%d:%d], v[%d:%d], v[%d:%d], 0" %
          (OO + 4 * h, OO + 4 * h + 3, VB + 2 * h, VB + 2 * h + 1, PP, PP + 1))
    o("    s_nop 7")
    for i in range(4):
        o("    v_cvt_pk_bf16_f32 v%d, v%d, v%d" % (MISC + 8 + i, OO + 2 * i, OO + 2 * i + 1))
    if noout or defer:
        o("    s_cmp_eq_u32 s%d, 1" % S_MI)
        o("    s_cbranch_scc0 L_store")
        if defer:
            for i in range(4):
                o("    v_mov_b32 v%d, v%d" % (V_DEF + i, MISC + 8 + i))
        o("    s_branch L_mat_done")
        o("L_store:")
        if defer:
            o("    buffer_store_dwordx4 v[%d:%d], v%d, s[%d:%d], 0 offen %s" %
              (V_DEF, V_DEF + 3, V_OUT, SRD_O, SRD_O + 3, oflags))
    o("    buffer_store_dwordx4 v[%d:%d], v%d, s[%d:%d], s%d offen %s" %
      (MISC + 8, MISC + 11, V_OUT, SRD_O, SRD_O + 3, S_T + 2, oflags))

    o("L_mat_done:")
    o("    s_add_u32 s%d, s%d, 1" % (S_MI, S_MI))
    o("    s_cmp_eq_u32 s%d, 4" % S_MI)
    o("    s_cbranch_scc1 L_fin")
    for j in range(32):
        o("    v_mov_b32 v%d, 0" % (ACC + j))
    o("    s_branch L_outer")

    if ctl:
        emit_events()
    for tag in stubs:
        o("L_sw_%s:" % tag)
        o("    s_mov_b32 s%d, s%d" % (S_OFF, S_OFF0))
        o("    s_add_u32 s%d, s%d, 0x100000" % (S_T + 4, SRD_D))
        o("    s_addc_u32 s%d, s%d, 0" % (S_T + 5, SRD_D + 1))
        o("    s_mov_b32 s%d, s%d" % (SRD_D, NXT_D))
        o("    s_mov_b32 s%d, s%d" % (SRD_D + 1, NXT_D + 1))
        o("    s_mov_b32 s%d, s%d" % (NXT_D, S_T + 4))
        o("    s_mov_b32 s%d, s%d" % (NXT_D + 1, S_T + 5))
        o("    s_mov_b32 s%d, s%d" % (S_T + 4, SRD_P))
        o("    s_mov_b32 s%d, s%d" % (S_T + 5, SRD_P + 1))
        o("    s_mov_b32 s%d, s%d" % (SRD_P, NXT_P))
        o("    s_mov_b32 s%d, s%d" % (SRD_P + 1, NXT_P + 1))
        o("    s_mov_b32 s%d, s%d" % (NXT_P, S_T + 4))
        o("    s_mov_b32 s%d, s%d" % (NXT_P + 1, S_T + 5))
        o("    s_add_u32 s%d, s%d, 1" % (S_LM, S_LM))
        o("    s_cmp_eq_u32 s%d, 4" % S_LM)
        o("    s_cselect_b32 s%d, 0, 0x100000" % (SRD_D + 2))
        o("    s_cselect_b32 s%d, 0, 0x20000" % (SRD_P + 2))
        o("    s_branch L_swr_%s" % tag)

    o("L_fin:")
    if stamp:
        o("    s_waitcnt vmcnt(0)")
        o("    s_memrealtime s[62:63]")
        o("    s_getreg_b32 s58, hwreg(HW_REG_XCC_ID)")
        o("    s_getreg_b32 s59, hwreg(HW_REG_HW_ID)")
        o("    s_waitcnt lgkmcnt(0)")
        o("    s_lshl_b32 s%d, s2, 2" % S_T)
        o("    s_add_u32 s%d, s%d, s%d" % (S_T, S_T, S_WAVE))
        o("    s_lshl_b32 s%d, s%d, 4" % (S_T, S_T))
        o("    v_mov_b32 v4, s60")
        o("    v_mov_b32 v5, s62")
        o("    v_mov_b32 v6, s58")
        if pstamp:
            o("    s_sub_u32 s82, s82, s60")
        o("    v_mov_b32 v7, s%d" % (82 if pstamp else (S_HI if ctl else 59)))
        o("    v_mov_b32 v2, s%d" % S_T)
        o("    global_store_dwordx4 v2, v[4:7], s[18:19]")
        if trace:
            o("    s_lshl_b32 s%d, s%d, 4" % (S_T, S_T))
            o("    s_add_u32 s%d, s%d, 0x10000" % (S_T, S_T))
            o("    v_lshlrev_b32 v2, 2, v0")
            o("    v_add_u32 v2, s%d, v2" % S_T)
            o("    global_store_dword v2, v%d, s[18:19]" % V_BV)
    o("L_end:")
    o("    s_endpgm")
    nvg = max(accum_offset + na, 264)
    o('.section .rodata,"a"')
    o(".p2align 6")
    o(".amdhsa_kernel %s_kernel" % NAME)
    o("  .amdhsa_next_free_vgpr %d" % nvg)
    o("  .amdhsa_next_free_sgpr 88")
    o("  .amdhsa_accum_offset %d" % accum_offset)
    o("  .amdhsa_group_segment_fixed_size 0")
    o("  .amdhsa_kernarg_size 64")
    o("  .amdhsa_user_sgpr_count 2")
    o("  .amdhsa_user_sgpr_kernarg_segment_ptr 1")
    o("  .amdhsa_system_sgpr_workgroup_id_x 1")
    o("  .amdhsa_float_denorm_mode_32 3")
    o(".end_amdhsa_kernel")
    return "\n".join(L) + "\n"


if __name__ == "__main__":
    out = sys.argv[1]
    kw = {}
    for a in sys.argv[2:]:
        k, v = a.split("=")
        if k not in ("flags", "eflags", "oflags", "mlo", "mmid", "mhi", "cal", "aflags", "akind", "mpost"):
            v = int(v)
        kw[k] = v
    open(out, "w").write(gen(**kw))
```

```python
import sys

NAME = "standalone__low_rank_proj_linformer__sampling"
HEADER = open("cdna_kernels/%s.s.ref" % NAME).read().split("; Override launch")[0]


def gen(flags="nt", eflags="sc1", oflags="", stamp=0, force=-1, ctl=1,
        mlo="5s", mmid="6p", mhi="8p", dhi=1, dlo=1, cal="9,25", lag=8, delta=0, eps=0, ps=0, pc=6,
        tail=0, notime=0, pre=0, noev=0, trace=0,
        doat=1, dold=1, aflags="sc1", akind="atomic", abase=16, wmap=0, amask=0, aval=0,
        ns=256, stag=4, noout=0, defer=0, bp=0, noE=0, mpost="", qwait=0, pstamp=0, fin=0, tsh=0, pst=0, early=0, pf=0, pfw=256, pro8=0, qm=0, m0=0, mfirst="", tw=0):
    LA, RS, ER, P = 4, 2, 2, 2
    cal = [int(x) for x in str(cal).split(",")]
    assert 2 <= len(cal) <= 4
    SLOT = [0, 128, 64, 192]
    nsh = ns.bit_length() - 1
    assert ns == 1 << nsh and ns >= 8 * stag
    st2 = stag - 1
    nobar = nocomp = rot = 0
    L = []
    o = L.append
    DS = 1088
    WS = 8 * DS
    LDS_P, LDS_KP, LDS_VP = 0, 512, 512 + 4 * WS
    lds = 512 + 8 * WS
    o(HEADER.rstrip())
    o("; @launch grid=(256,1,1) block=(256,1,1) lds=%d" % lds)
    o('.amdgcn_target "amdgcn-amd-amdhsa--gfx950"')
    o(".text")
    o(".globl %s_kernel" % NAME)
    o(".p2align 8")
    o(".type %s_kernel,@function" % NAME)
    o("%s_kernel:" % NAME)

    V_LANE, V_OFF, V_EOFF, V_PW, V_VR, V_OUT, V_X, V_Y = 0, 1, 2, 3, 4, 5, 6, 7
    ACC = 8
    T = 40
    MISC = 72
    V_BO, V_BV = MISC + 22, MISC + 23
    RING = 96
    V_DEF = RING + 32 * RS
    nv = V_DEF + 4
    assert nv <= 256
    A_Q = 0
    A_E = 16
    na = A_E + 4 * ER
    accum_offset = (nv + 3) // 4 * 4

    S_SELLO, S_SELHI, S_WAVE, S_OFF, S_EOFF, S_CNT, S_MI, S_LM = 20, 21, 22, 23, 24, 25, 26, 27
    S_PROG = 57
    SRD_D, SRD_P = 28, 32
    NXT_D, NXT_P = 36, 38
    SRD_Q, SRD_O = 40, 44
    S_T = 48

    o("    s_cmp_ge_u32 s2, 256")
    o("    s_cbranch_scc1 L_end")
    o("    s_load_dwordx16 s[4:19], s[0:1], 0")
    if stamp:
        o("    s_memrealtime s[60:61]")
    PST = [84, 86, 88, 90, 92, 94]

    def pstp(k):
        if pst:
            o("    s_memrealtime s[%d:%d]" % (PST[k], PST[k] + 1))

    def code_prefetch():
        if pfw < 256:
            o("    s_cmp_ge_u32 s2, %d" % pfw)
            o("    s_cbranch_scc1 L_nopfc")
        o("    s_getpc_b64 s[%d:%d]" % (S_T + 4, S_T + 5))
        o("L_pc:")
        o("    v_lshlrev_b32 v%d, 6, v%d" % (V_PW, V_TID))
        o("    v_min_u32 v%d, L_end-L_pc, v%d" % (V_PW, V_PW))
        o("    global_load_dword v%d, v%d, s[%d:%d]" % (V_DEF + 3, V_PW, S_T + 4, S_T + 5))
        if pfw < 256:
            o("L_nopfc:")

    V_TID = 0
    if pf:
        code_prefetch()
    o("    v_lshrrev_b32 v%d, 6, v0" % V_X)
    o("    v_and_b32 v%d, 63, v0" % V_LANE)
    o("    v_readfirstlane_b32 s%d, v%d" % (S_WAVE, V_X))
    if not early:
        o("    s_mov_b32 s%d, 0x05040100" % S_SELLO)
        o("    s_mov_b32 s%d, 0x07060302" % S_SELHI)
    o("    v_and_b32 v%d, 15, v%d" % (V_X, V_LANE))
    o("    v_lshrrev_b32 v%d, 4, v%d" % (V_Y, V_LANE))
    o("    v_lshlrev_b32 v%d, 4, v%d" % (V_OFF, V_X))
    o("    v_lshl_add_u32 v%d, v%d, 11, v%d" % (V_OFF, V_Y, V_OFF))
    if not early:
        o("    v_lshlrev_b32 v%d, 13, v%d" % (V_EOFF, V_X))
        o("    v_lshl_add_u32 v%d, v%d, 4, v%d" % (V_EOFF, V_Y, V_EOFF))
    o("    s_lshl_b32 s%d, s%d, 13" % (S_OFF, S_WAVE))
    S_EV, S_MODE, S_ACC, S_INC, S_TM, S_NOW, S_THI, S_TLO = 64, 65, 66, 67, 72, 74, 76, 77
    S_C1, S_C2, S_HI, S_OFF0, S_RP, S_OK = 68, 70, 78, 79, 80, 81

    def ctl_setup():
        U = S_T + 6 if early else S_T
        o("    s_mov_b32 s%d, %d" % (S_MODE, {-1: 0, 0: 0, 1: 1, 2: 2}[force]))
        if ctl:
            o("    s_mov_b32 s%d, 0" % S_PROG)
            o("    s_mov_b32 s%d, 0" % S_HI)
            o("    s_mov_b32 s%d, 0" % S_ACC)
            o("    s_mov_b32 s%d, 0" % S_INC)
            o("    s_mov_b32 s%d, 0" % S_TM)
            o("    s_mov_b32 s%d, 0" % S_NOW)
            o("    s_mov_b32 s%d, 0x7fffffff" % S_THI)
            o("    s_mov_b32 s%d, 0x80000000" % S_TLO)
            o("    s_lshr_b32 s%d, s2, 3" % U)
            o("    s_and_b32 s%d, s%d, %d" % (U, U, stag - 1))
            o("    s_mov_b32 s%d, 0x7fffffff" % S_RP)
            o("    s_mov_b32 s%d, 0" % (U + 1))
            for k, c in enumerate(cal):
                o("    s_cmp_eq_u32 s%d, %d" % (S_WAVE, (k + 1) & 3))
                o("    s_cselect_b32 s%d, %d, s%d" % (S_RP, c, S_RP))
                o("    s_cselect_b32 s%d, %d, s%d" % (U + 1, SLOT[k], U + 1))
            o("    v_mov_b32 v%d, s%d" % (V_BO, U + 1))
            o("    s_cmp_lg_u32 s%d, 0x7fffffff" % S_RP)
            o("    s_cselect_b32 s%d, s%d, 0" % (U, U))
            o("    s_add_u32 s%d, s%d, s%d" % (S_RP, S_RP, U))
            if ns < 256:
                o("    s_cmp_lt_u32 s2, %d" % ns)
                o("    s_cselect_b32 s%d, s%d, 0x7fffffff" % (S_RP, S_RP))
            if amask:
                o("    s_and_b32 s%d, s2, %d" % (U, amask))
                o("    s_cmp_eq_u32 s%d, %d" % (U, aval))
                o("    s_cselect_b32 s%d, s%d, 0x7fffffff" % (S_RP, S_RP))
            o("    s_mov_b32 s%d, %d" % (S_EV, cal[1] + lag))
            o("    s_mov_b32 s%d, 0" % S_OK)
            for r in range(S_C1, S_C1 + 4):
                o("    s_mov_b32 s%d, 0" % r)
        o("    s_mov_b32 s%d, 0" % S_LM)
        o("    s_mov_b32 s%d, 0" % S_MI)

    def srd_rest():
        o("    s_mov_b32 s%d, 8192" % (SRD_Q + 2))
        o("    s_mov_b32 s%d, 0x20000" % (SRD_Q + 3))
        o("    s_mov_b32 s%d, 8192" % (SRD_O + 2))
        o("    s_mov_b32 s%d, 0x20000" % (SRD_O + 3))

    if not early:
        o("    s_mov_b32 s%d, s%d" % (S_OFF0, S_OFF))
        ctl_setup()
        o("    s_lshr_b32 s%d, s%d, 7" % (S_EOFF, S_OFF))
    S_PAIR = S_T + 2
    if wmap == 0:
        o("    s_mov_b32 s%d, s2" % S_PAIR)
    elif wmap == 1:
        o("    s_and_b32 s%d, s2, 7" % S_PAIR)
        o("    s_lshl_b32 s%d, s%d, 5" % (S_PAIR, S_PAIR))
        o("    s_lshr_b32 s%d, s2, 3" % (S_T + 3))
        o("    s_or_b32 s%d, s%d, s%d" % (S_PAIR, S_PAIR, S_T + 3))
    elif wmap == 2:
        o("    s_lshr_b32 s%d, s2, 3" % (S_T + 3))
        o("    s_and_b32 s%d, s%d, 7" % (S_T + 3, S_T + 3))
        o("    s_xor_b32 s%d, s2, s%d" % (S_PAIR, S_T + 3))
    elif wmap == 3:
        o("    s_and_b32 s%d, s2, 7" % S_PAIR)
        o("    s_lshl_b32 s%d, s%d, 5" % (S_PAIR, S_PAIR))
        o("    s_lshr_b32 s%d, s2, 3" % (S_T + 3))
        o("    s_or_b32 s%d, s%d, s%d" % (S_PAIR, S_PAIR, S_T + 3))
        o("    s_and_b32 s%d, s%d, 7" % (S_T + 3, S_T + 3))
        o("    s_lshl_b32 s%d, s%d, 5" % (S_T + 3, S_T + 3))
        o("    s_xor_b32 s%d, s%d, s%d" % (S_PAIR, S_PAIR, S_T + 3))
    elif wmap == 4:
        o("    s_and_b32 s%d, s2, 7" % S_PAIR)
        o("    s_lshr_b32 s%d, s2, 3" % (S_T + 3))
        o("    s_lshl_b32 s%d, s%d, 2" % (S_T + 4, S_PAIR))
        o("    s_add_u32 s%d, s%d, s%d" % (S_T + 3, S_T + 3, S_T + 4))
        o("    s_and_b32 s%d, s%d, 31" % (S_T + 3, S_T + 3))
        o("    s_lshl_b32 s%d, s%d, 5" % (S_PAIR, S_PAIR))
        o("    s_or_b32 s%d, s%d, s%d" % (S_PAIR, S_PAIR, S_T + 3))
    elif wmap == 5:
        o("    s_brev_b32 s%d, s2" % S_PAIR)
        o("    s_lshr_b32 s%d, s%d, 24" % (S_PAIR, S_PAIR))
    elif wmap == 6:
        o("    s_bfe_u32 s%d, s2, 0x20001" % S_PAIR)
        o("    s_lshl_b32 s%d, s%d, 6" % (S_PAIR, S_PAIR))
        o("    s_lshr_b32 s%d, s2, 3" % (S_T + 3))
        o("    s_lshl_b32 s%d, s%d, 1" % (S_T + 3, S_T + 3))
        o("    s_or_b32 s%d, s%d, s%d" % (S_PAIR, S_PAIR, S_T + 3))
        o("    s_and_b32 s%d, s2, 1" % (S_T + 3))
        o("    s_or_b32 s%d, s%d, s%d" % (S_PAIR, S_PAIR, S_T + 3))
    elif wmap == 7:
        o("    s_and_b32 s%d, s2, 7" % S_PAIR)
        o("    s_lshl_b32 s%d, s%d, 3" % (S_PAIR, S_PAIR))
        o("    s_bfe_u32 s%d, s2, 0x30003" % (S_T + 3))
        o("    s_or_b32 s%d, s%d, s%d" % (S_PAIR, S_PAIR, S_T + 3))
        o("    s_lshr_b32 s%d, s2, 6" % (S_T + 3))
        o("    s_lshl_b32 s%d, s%d, 6" % (S_T + 3, S_T + 3))
        o("    s_or_b32 s%d, s%d, s%d" % (S_PAIR, S_PAIR, S_T + 3))
    o("    s_lshl_b32 s%d, s%d, 21" % (S_T, S_PAIR))
    o("    s_mov_b32 s%d, 0x100000" % (SRD_D + 2))
    o("    s_mov_b32 s%d, 0x20000" % (SRD_D + 3))
    if not early:
        o("    s_lshl_b32 s%d, s%d, 13" % (S_T + 1, S_PAIR))
        o("    s_mov_b32 s%d, 0x20000" % (SRD_P + 2))
        o("    s_mov_b32 s%d, 0x20000" % (SRD_P + 3))
        srd_rest()
    pstp(0)
    o("    s_waitcnt lgkmcnt(0)")
    if pstamp:
        o("    s_memrealtime s[82:83]")
    pstp(1)
    o("    s_add_u32 s%d, s6, s%d" % (SRD_D, S_T))
    o("    s_addc_u32 s%d, s7, 0" % (SRD_D + 1))
    if not early:
        o("    s_mov_b32 s%d, s10" % SRD_P)
        o("    s_mov_b32 s%d, s11" % (SRD_P + 1))

    def issue_E(step):
        if noE:
            return
        r = A_E + (step % ER) * 4
        o("    buffer_load_dwordx4 a[%d:%d], v%d, s[%d:%d], s%d offen %s" %
          (r, r + 3, V_EOFF, SRD_P, SRD_P + 3, S_EOFF, eflags))

    def issue_one(n):
        q, h = divmod(n, 2)
        a = q % 4
        slot = q % (4 * RS)
        i = 2 * a + h
        r = RING + (slot * 2 + h) * 4
        o("    buffer_load_dwordx4 v[%d:%d], v%d, s[%d:%d], s%d offen offset:%d %s" %
          (r, r + 3, V_OFF, SRD_D, SRD_D + 3, S_OFF, i * 256, flags))

    def issue_pair(q):
        issue_one(2 * q)
        issue_one(2 * q + 1)

    stubs = []
    events = []

    if not early:
        issue_E(0)
    for q in range(LA):
        issue_pair(q)
    if early:
        o("    v_lshlrev_b32 v%d, 13, v%d" % (V_EOFF, V_X))
        o("    v_lshl_add_u32 v%d, v%d, 4, v%d" % (V_EOFF, V_Y, V_EOFF))
        o("    s_lshr_b32 s%d, s%d, 7" % (S_EOFF, S_OFF))
        o("    s_mov_b32 s%d, s10" % SRD_P)
        o("    s_mov_b32 s%d, s11" % (SRD_P + 1))
        o("    s_mov_b32 s%d, 0x20000" % (SRD_P + 2))
        o("    s_mov_b32 s%d, 0x20000" % (SRD_P + 3))
        issue_E(0)
        o("    s_mov_b32 s%d, s%d" % (S_OFF0, S_OFF))
    if bp and not pro8:
        o("    s_add_u32 s%d, s%d, 0x8000" % (S_OFF, S_OFF))
        o("    s_lshr_b32 s%d, s%d, 7" % (S_EOFF, S_OFF))
        issue_one(8)
        issue_E(1)
        for n in range(9, 16):
            issue_one(n)
    pstp(2)
    if early:
        o("    s_mov_b32 s%d, 0x05040100" % S_SELLO)
        o("    s_mov_b32 s%d, 0x07060302" % S_SELHI)
        o("    s_lshl_b32 s%d, s%d, 13" % (S_T + 1, S_PAIR))
        srd_rest()
        ctl_setup()
    o("    s_add_u32 s%d, s8, s%d" % (NXT_D, S_T))
    o("    s_addc_u32 s%d, s9, 0" % (NXT_D + 1))
    o("    s_mov_b32 s%d, s12" % NXT_P)
    o("    s_mov_b32 s%d, s13" % (NXT_P + 1))
    o("    s_add_u32 s%d, s4, s%d" % (SRD_Q, S_T + 1))
    o("    s_addc_u32 s%d, s5, 0" % (SRD_Q + 1))
    o("    s_add_u32 s%d, s14, s%d" % (SRD_O, S_T + 1))
    o("    s_addc_u32 s%d, s15, 0" % (SRD_O + 1))
    def load_q(vx, vy, va, st):
        o("    v_lshlrev_b32 v%d, 8, v%d" % (va, vx))
        o("    v_lshl_add_u32 v%d, v%d, 6, v%d" % (va, vy, va))
        o("    s_lshr_b32 s%d, s%d, 1" % (st, S_WAVE))
        o("    s_lshl_b32 s%d, s%d, 12" % (st, st))
        for s in range(4):
            o("    buffer_load_dwordx4 a[%d:%d], v%d, s[%d:%d], s%d offen offset:%d" %
              (A_Q + 4 * s, A_Q + 4 * s + 3, va, SRD_Q, SRD_Q + 3, st, 16 * s))

    if qm == 0:
        load_q(V_X, V_Y, V_PW, S_T + 2)
    elif qm == 1:
        o("    s_bitcmp1_b32 s%d, 0" % S_WAVE)
        o("    s_cbranch_scc1 L_noq")
        load_q(V_X, V_Y, V_PW, S_T + 2)
        o("L_noq:")
    if tw:
        assert defer
        o("    v_and_b32 v%d, 3, v%d" % (V_PW, V_LANE))
        o("    v_lshlrev_b32 v%d, 19, v%d" % (V_PW, V_PW))
        o("    s_cmp_eq_u32 s%d, 1" % S_WAVE)
        o("    s_cbranch_scc0 L_tw1")
        o("    global_load_dword v%d, v%d, s[%d:%d]" % (V_DEF, V_PW, NXT_D, NXT_D + 1))
        o("L_tw1:")
        o("    s_cmp_eq_u32 s%d, 3" % S_WAVE)
        o("    s_cbranch_scc0 L_tw3")
        o("    v_mov_b32 v%d, 0" % V_PW)
        o("    buffer_load_dword v%d, v%d, s[%d:%d], 0 offen" % (V_DEF, V_PW, SRD_O, SRD_O + 3))
        o("    global_load_dword v%d, v%d, s[12:13]" % (V_DEF + 1, V_PW))
        o("L_tw3:")
    o("    v_lshlrev_b32 v%d, 8, v%d" % (V_OUT, V_X))
    o("    v_lshl_add_u32 v%d, v%d, 4, v%d" % (V_OUT, V_Y, V_OUT))
    o("    s_lshl_b32 s%d, s%d, 6" % (S_T + 2, S_WAVE))
    o("    v_add_u32 v%d, s%d, v%d" % (V_OUT, S_T + 2, V_OUT))
    o("    v_and_b32 v%d, 3, v%d" % (V_VR, V_X))
    o("    v_mul_u32_u24 v%d, %d, v%d" % (V_VR, DS, V_VR))
    o("    v_lshrrev_b32 v%d, 2, v%d" % (V_X, V_X))
    o("    v_lshl_add_u32 v%d, v%d, 4, v%d" % (V_X, V_Y, V_X))
    o("    v_lshl_add_u32 v%d, v%d, 4, v%d" % (V_VR, V_X, V_VR))
    o("    s_lshl_b32 s%d, s%d, 6" % (S_T + 2, S_WAVE))
    o("    s_add_u32 s%d, s%d, %d" % (S_T + 2, S_T + 2, LDS_VP))
    o("    v_add_u32 v%d, s%d, v%d" % (V_VR, S_T + 2, V_VR))
    o("    v_lshlrev_b32 v%d, 4, v%d" % (V_X, V_LANE))
    o("    s_mul_i32 s%d, s%d, %d" % (S_T + 2, S_WAVE, WS))
    o("    s_add_u32 s%d, s%d, %d" % (S_T + 2, S_T + 2, LDS_KP))
    o("    v_add_u32 v%d, s%d, v%d" % (V_PW, S_T + 2, V_X))
    for j in range(32):
        o("    v_mov_b32 v%d, 0" % (ACC + j))


    def allowed(n, req, e_done):
        cnt = n - 1 - req
        for qq in range(0, n // 2 + 1):
            if qq % 4 == 0 and 2 * qq >= req and (qq < n // 2 or e_done) and not noE:
                cnt += 1
        return cnt

    def wait_of(m, p, h, extra=0):
        q = p + LA
        n = 2 * q + h
        N, gr = int(m[:-1]), m[-1]
        if gr == "p":
            if h == 1:
                return None
            req = n - N + 1
        else:
            req = n - N
        if h == 0:
            req = max(req, 2 * p + 1)
        elif req <= 2 * p + 1:
            return None
        big = 8000
        return allowed(n + big, req + big, h == 1) + (extra if req <= 7 else 0)

    def decide(tag):
        T0 = S_T + 6
        o("    s_waitcnt lgkmcnt(0)")
        if not noev:
            o("    s_cmp_eq_u32 s%d, s%d" % (S_PROG, S_RP))
            o("    s_cbranch_scc1 L_rp_%s" % tag)
            o("L_rpr_%s:" % tag)
            o("    s_cmp_eq_u32 s%d, s%d" % (S_PROG, S_EV))
            o("    s_cbranch_scc1 L_ev_%s" % tag)
        o("L_evr_%s:" % tag)
        if trace:
            o("    s_mov_b32 m0, s%d" % S_PROG)
            o("    s_nop 0")
            o("    v_writelane_b32 v%d, s%d, m0" % (V_BV, S_NOW))
        o("    s_sub_u32 s%d, s%d, s%d" % (T0, S_NOW, S_TM))
        o("    s_lshl_b32 s%d, s%d, 6" % (T0, T0))
        o("    s_sub_u32 s%d, s%d, s%d" % (T0, T0, S_ACC))
        o("    s_add_u32 s%d, s%d, s%d" % (S_ACC, S_ACC, S_INC))
        o("    s_add_u32 s%d, s%d, 1" % (S_PROG, S_PROG))
        if force < 0:
            o("    s_cmp_gt_i32 s%d, s%d" % (T0, S_THI))
            o("    s_cselect_b32 s%d, 1, 0" % S_MODE)
            o("    s_cmp_lt_i32 s%d, s%d" % (T0, S_TLO))
            o("    s_cselect_b32 s%d, 2, s%d" % (S_MODE, S_MODE))
        if tail:
            o("    s_cmp_ge_u32 s%d, %d" % (S_PROG, 64 - tail))
            o("    s_cselect_b32 s%d, 1, s%d" % (S_MODE, S_MODE))
        if fin:
            o("    s_cmp_eq_u32 s%d, %d" % (S_PROG, 64 - fin))
            o("    s_cselect_b32 s%d, 3, s%d" % (S_MODE, S_MODE))
        if stamp:
            o("    s_and_b32 s%d, s%d, 1" % (T0, S_MODE))
            o("    s_add_u32 s%d, s%d, s%d" % (S_HI, S_HI, T0))
            o("    s_and_b32 s%d, s%d, 2" % (T0, S_MODE))
            o("    s_lshl_b32 s%d, s%d, 7" % (T0, T0))
            o("    s_add_u32 s%d, s%d, s%d" % (S_HI, S_HI, T0))
        events.append(tag)

    def emit_events():
        T0, T1 = S_T + 6, S_T + 7
        for tag in events:
            if noev:
                continue
            o("L_rp_%s:" % tag)
            o("    v_mov_b32 v%d, s%d" % (V_BV - 3, S_NOW))
            o("    v_mov_b32 v%d, 0x100" % (V_BV - 2))
            o("    s_mov_b64 exec, 1")
            if doat and akind == "atomic":
                o("    global_atomic_add_x2 v%d, v[%d:%d], s[%d:%d] %s" % (V_BO, V_BV - 3, V_BV - 2, abase, abase + 1, aflags))
            elif doat and akind == "store":
                o("    global_store_dwordx2 v%d, v[%d:%d], s[%d:%d] %s" % (V_BO, V_BV - 3, V_BV - 2, abase, abase + 1, aflags))
            elif doat and akind == "load":
                o("    global_load_dwordx2 v[%d:%d], v%d, s[%d:%d] %s" % (V_BV - 3, V_BV - 2, V_BO, abase, abase + 1, aflags))
            o("    s_mov_b64 exec, -1")
            o("    s_branch L_rpr_%s" % tag)
            o("L_ev_%s:" % tag)
            for k in range(1, len(cal)):
                o("    s_cmp_eq_u32 s%d, %d" % (S_EV, cal[k] + lag))
                o("    s_cbranch_scc1 L_evl%d_%s" % (k, tag))
                o("    s_cmp_eq_u32 s%d, %d" % (S_EV, cal[k] + lag + 1))
                o("    s_cbranch_scc1 L_evc%d_%s" % (k, tag))
            o("    s_branch L_evr_%s" % tag)
            for k in range(1, len(cal)):
                jr = cal[k] + lag
                span = cal[k] - cal[k - 1]
                assert span in (8, 16)
                o("L_evl%d_%s:" % (k, tag))
                if k == 1 and dold:
                    o("    s_load_dwordx2 s[%d:%d], s[16:17], %d" % (S_C1, S_C1 + 1, SLOT[0]))
                if dold:
                    o("    s_load_dwordx2 s[%d:%d], s[16:17], %d" % (S_C2, S_C2 + 1, SLOT[k]))
                o("    s_mov_b32 s%d, %d" % (S_EV, jr + 1))
                o("    s_branch L_evr_%s" % tag)
                o("L_evc%d_%s:" % (k, tag))
                o("    s_mov_b32 s%d, %s" % (S_EV, "0x7fffffff" if k == len(cal) - 1 else str(cal[k + 1] + lag)))
                if k == 1:
                    o("    s_lshr_b64 s[%d:%d], s[%d:%d], %d" % (S_C1, S_C1 + 1, S_C1, S_C1 + 1, nsh))
                o("    s_lshr_b64 s[%d:%d], s[%d:%d], %d" % (S_C2, S_C2 + 1, S_C2, S_C2 + 1, nsh))
                o("    s_and_b32 s%d, s%d, s%d" % (T0, S_C1 + 1, S_C2 + 1))
                o("    s_sub_u32 s%d, s%d, s%d" % (T1, S_C2, S_C1))
                o("    s_mov_b32 s%d, s%d" % (S_C1, S_C2))
                o("    s_mov_b32 s%d, s%d" % (S_C1 + 1, S_C2 + 1))
                o("    s_cmp_lg_u32 s%d, 256" % T0)
                o("    s_cbranch_scc1 L_evr_%s" % tag)
                if stamp:
                    o("    s_add_u32 s%d, s%d, 0x10000" % (S_HI, S_HI))
                if span == 8:
                    o("    s_lshl_b32 s%d, s%d, 1" % (T1, T1))
                o("    s_mov_b32 s%d, s%d" % (S_TM, S_C1))
                o("    s_lshl_b32 s%d, s%d, 2" % (S_INC, T1))
                o("    s_mul_i32 s%d, s%d, %d" % (S_ACC, T1, 4 * (jr + 1) - (4 * cal[k] + 2 * st2) + delta))
                o("    s_mul_i32 s%d, s%d, %d" % (S_THI, T1, dhi))
                o("    s_mul_i32 s%d, s%d, %d" % (S_TLO, T1, -dlo))
                if tsh:
                    o("    s_ashr_i32 s%d, s%d, %d" % (S_THI, S_THI, tsh))
                    o("    s_ashr_i32 s%d, s%d, %d" % (S_TLO, S_TLO, tsh))
                if eps:
                    o("    s_mul_i32 s%d, s%d, %d" % (T0, T1, eps))
                    o("    s_ashr_i32 s%d, s%d, 6" % (T0, T0))
                    o("    s_sub_u32 s%d, s%d, s%d" % (S_INC, S_INC, T0))
                o("    s_branch L_evr_%s" % tag)

    def body(mode, m, post=False, extra=0):
        o("L_body_%s:" % mode)
        for p in range(8):
            s, a = divmod(p, 4)
            q = p + LA
            if p == 0 and not post:
                o("    s_add_u32 s%d, s%d, 0x8000" % (S_OFF, S_OFF))
                o("    s_lshr_b32 s%d, s%d, 7" % (S_EOFF, S_OFF))
            if p == 4:
                o("    s_add_u32 s%d, s%d, 0x8000" % (S_OFF, S_OFF))
                if not post:
                    o("    s_cmp_eq_u32 s%d, 1" % S_CNT)
                    o("    s_cbranch_scc1 L_sw_%s" % mode)
                    o("L_swr_%s:" % mode)
                    stubs.append(mode)
                o("    s_lshr_b32 s%d, s%d, 7" % (S_EOFF, S_OFF))
            if ctl and p == pc and pre:
                decide(mode)
                if ps == pc and not notime:
                    o("    s_memrealtime s[%d:%d]" % (S_NOW, S_NOW + 1))
            if post and p < 4:
                younger = 15 - (2 * p + 1) + (0 if noE else 1)
                o("    s_waitcnt vmcnt(%d)" % younger)
                if pst and not pro8 and p in (0, 3):
                    o("    s_cmp_eq_u32 s%d, 0" % S_MI)
                    o("    s_cbranch_scc0 L_nopst%d" % p)
                    pstp(4 if p == 0 else 5)
                    o("L_nopst%d:" % p)
            else:
                for h in range(2):
                    w = wait_of(m, p, h, extra)
                    if w is not None:
                        o("    s_waitcnt vmcnt(%d)" % w)
                    if h == 0 and q % 4 == 0:
                        issue_one(2 * q)
                        issue_E(q // 4)
                    else:
                        issue_one(2 * q + h)
                if pst and pro8 and p in (0, 3):
                    o("    s_cmp_eq_u32 s%d, 0" % S_PROG)
                    o("    s_cbranch_scc0 L_nopst%d_%s" % (p, mode))
                    pstp(4 if p == 0 else 5)
                    o("L_nopst%d_%s:" % (p, mode))
            if ctl and p == ps and ps != pc and not notime:
                o("    s_memrealtime s[%d:%d]" % (S_NOW, S_NOW + 1))
            if ctl and p == pc and not pre:
                decide(mode)
                if ps == pc and not notime:
                    o("    s_memrealtime s[%d:%d]" % (S_NOW, S_NOW + 1))
            slot = p % (4 * RS)
            xb = RING + slot * 8
            yb = xb + 4
            for c in range(4):
                o("    v_perm_b32 v%d, v%d, v%d, s%d" % (T + (2 * c) * 4 + a, yb + c, xb + c, S_SELLO))
                o("    v_perm_b32 v%d, v%d, v%d, s%d" % (T + (2 * c + 1) * 4 + a, yb + c, xb + c, S_SELHI))
            if a == 3:
                e = A_E + (s % ER) * 4
                o("    s_nop 1")
                for dd in range(8):
                    acc = ACC + dd * 4
                    o("    v_mfma_f32_16x16x32_bf16 v[%d:%d], a[%d:%d], v[%d:%d], v[%d:%d]" %
                      (acc, acc + 3, e, e + 3, T + dd * 4, T + dd * 4 + 3, acc, acc + 3))
        o("    s_sub_u32 s%d, s%d, 1" % (S_CNT, S_CNT))
        if not post:
            o("    s_cmp_eq_u32 s%d, 0" % S_CNT)
            o("    s_cbranch_scc1 L_matend")

    def body_fin():
        o("L_body_fin:")
        o("    s_add_u32 s%d, s%d, 0x8000" % (S_OFF, S_OFF))
        o("    s_lshr_b32 s%d, s%d, 7" % (S_EOFF, S_OFF))
        issue_one(8)
        issue_E(1)
        for n in range(9, 16):
            issue_one(n)
        for p in range(8):
            s, a = divmod(p, 4)
            younger = 15 - (2 * p + 1) + (1 if (p < 4 and not noE) else 0)
            o("    s_waitcnt vmcnt(%d)" % younger)
            xb = RING + p * 8
            yb = xb + 4
            for c in range(4):
                o("    v_perm_b32 v%d, v%d, v%d, s%d" % (T + (2 * c) * 4 + a, yb + c, xb + c, S_SELLO))
                o("    v_perm_b32 v%d, v%d, v%d, s%d" % (T + (2 * c + 1) * 4 + a, yb + c, xb + c, S_SELHI))
            if a == 3:
                e = A_E + (s % ER) * 4
                o("    s_nop 1")
                for dd in range(8):
                    acc = ACC + dd * 4
                    o("    v_mfma_f32_16x16x32_bf16 v[%d:%d], a[%d:%d], v[%d:%d], v[%d:%d]" %
                      (acc, acc + 3, e, e + 3, T + dd * 4, T + dd * 4 + 3, acc, acc + 3))
        o("    s_branch L_matend")

    pstp(3)
    if pro8 and bp:
        o("    s_mov_b32 s%d, 16" % S_CNT)
        if m0:
            o("    s_mov_b32 s%d, %d" % (S_MODE, m0))
        if mfirst:
            assert qm in (0, 1)
            if qm == 1:
                o("    s_bitcmp1_b32 s%d, 0" % S_WAVE)
                o("    s_cbranch_scc1 L_dispatch")
            o("    s_branch L_body_first")
        else:
            o("    s_branch L_dispatch")
    o("L_outer:")
    o("    s_mov_b32 s%d, 16" % S_CNT)
    if bp:
        body("post", mpost or mmid, post=True)
    o("L_dispatch:")
    modes = [("mid", mmid)]
    if (ctl and force < 0) or force == 1 or tail:
        modes.append(("hi", mhi))
        o("    s_cmp_eq_u32 s%d, 1" % S_MODE)
        o("    s_cbranch_scc1 L_body_hi")
    if (ctl and force < 0) or force == 2:
        modes.append(("lo", mlo))
        o("    s_cmp_eq_u32 s%d, 2" % S_MODE)
        o("    s_cbranch_scc1 L_body_lo")
    if fin:
        assert ctl
        o("    s_cmp_eq_u32 s%d, 3" % S_MODE)
        o("    s_cbranch_scc1 L_body_fin")
    for mode, m in modes:
        body(mode, m)
        o("    s_branch L_dispatch")
    if mfirst:
        body("first", mfirst, extra=4)
        o("    s_branch L_dispatch")
    if fin:
        body_fin()
    o("L_matend:")
    if bp:
        o("    s_cmp_eq_u32 s%d, 3" % S_MI)
        o("    s_cbranch_scc1 L_nopf")
        o("    s_add_u32 s%d, s%d, 0x8000" % (S_OFF, S_OFF))
        o("    s_lshr_b32 s%d, s%d, 7" % (S_EOFF, S_OFF))
        issue_one(8)
        issue_E(1)
        for n in range(9, 16):
            issue_one(n)
        o("L_nopf:")
    o("    s_and_b32 s%d, s%d, 1" % (S_T, S_MI))
    o("    s_mul_i32 s%d, s%d, %d" % (S_T + 1, S_T, 4 * WS))
    o("    v_add_u32 v%d, s%d, v%d" % (V_X, S_T + 1, V_PW))
    o("    s_nop 7")
    if ctl:
        o("    s_waitcnt lgkmcnt(0)")
    for dd in range(8):
        o("    ds_write_b128 v%d, v[%d:%d] offset:%d" % (V_X, ACC + 4 * dd, ACC + 4 * dd + 3, dd * DS))
    o("    s_waitcnt lgkmcnt(0)")
    o("    s_barrier")
    o("    s_cmp_eq_u32 s%d, 1" % S_T)
    o("    s_cbranch_scc1 L_vend")
    o("    s_cmp_lg_u32 s%d, s%d" % (S_WAVE, S_MI))
    o("    s_cbranch_scc1 L_mat_done")
    SUM, TMP, PA = ACC, T, MISC
    o("    v_lshlrev_b32 v%d, 4, v%d" % (V_X, V_LANE))
    for w in range(4):
        dst = SUM if w == 0 else TMP
        for dd in range(8):
            o("    ds_read_b128 v[%d:%d], v%d offset:%d" %
              (dst + 4 * dd, dst + 4 * dd + 3, V_X, LDS_KP + w * WS + dd * DS))
        if w > 0:
            for dd in range(8):
                o("    s_waitcnt lgkmcnt(%d)" % (7 - dd))
                for i in range(4):
                    o("    v_add_f32 v%d, v%d, v%d" % (SUM + 4 * dd + i, SUM + 4 * dd + i, TMP + 4 * dd + i))
    for dd in range(8):
        o("    v_cvt_pk_bf16_f32 v%d, v%d, v%d" % (PA + 2 * dd, SUM + 4 * dd, SUM + 4 * dd + 1))
        o("    v_cvt_pk_bf16_f32 v%d, v%d, v%d" % (PA + 2 * dd + 1, SUM + 4 * dd + 2, SUM + 4 * dd + 3))
    ID = MISC + 16
    o("    v_and_b32 v%d, 15, v%d" % (V_X, V_LANE))
    o("    v_lshrrev_b32 v%d, 4, v%d" % (V_Y, V_LANE))
    o("    v_lshlrev_b32 v%d, 2, v%d" % (V_Y, V_Y))
    o("    v_sub_u32 v%d, v%d, v%d" % (V_X, V_X, V_Y))
    o("    v_mov_b32 v%d, 0" % ID)
    o("    v_mov_b32 v%d, 0" % (ID + 1))
    o("    v_mov_b32 v%d, 0x3f80" % (ID + 2))
    o("    v_mov_b32 v%d, 0x3f800000" % (ID + 3))
    for j, (dst, src) in enumerate(((ID, ID + 2), (ID, ID + 3), (ID + 1, ID + 2), (ID + 1, ID + 3))):
        o("    v_cmp_eq_u32 vcc, %d, v%d" % (j, V_X))
        o("    s_nop 1")
        o("    v_cndmask_b32 v%d, v%d, v%d, vcc" % (dst, dst, src))
    o("    s_nop 1")
    for dd in range(8):
        o("    v_mfma_f32_16x16x16_bf16 v[%d:%d], v[%d:%d], v[%d:%d], 0" %
          (TMP + 4 * dd, TMP + 4 * dd + 3, PA + 2 * dd, PA + 2 * dd + 1, ID, ID + 1))
    o("    s_nop 7")
    PB = SUM
    for s in range(4):
        for j in range(4):
            o("    v_cvt_pk_bf16_f32 v%d, v%d, v%d" %
              (PB + 4 * s + j, TMP + (2 * j) * 4 + s, TMP + (2 * j + 1) * 4 + s))
    SC = SUM + 16
    if qwait:
        o("    s_waitcnt vmcnt(0)")
    if qm == 2:
        assert bp and not noE
        o("    s_waitcnt vmcnt(18)")
    for s in range(4):
        c = "0" if s == 0 else "v[%d:%d]" % (SC, SC + 3)
        o("    v_mfma_f32_16x16x32_bf16 v[%d:%d], v[%d:%d], a[%d:%d], %s" %
          (SC, SC + 3, PB + 4 * s, PB + 4 * s + 3, A_Q + 4 * s, A_Q + 4 * s + 3, c))
    o("    s_mov_b32 s%d, 0x3db504f3" % (S_T + 2))
    o("    s_mov_b32 s%d, 0x3fb8aa3b" % (S_T + 3))
    o("    s_nop 7")
    W = SUM + 20
    M = SUM + 22

    def round_bf16():
        o("    v_cvt_pk_bf16_f32 v%d, v%d, v%d" % (W, SC, SC + 1))
        o("    v_cvt_pk_bf16_f32 v%d, v%d, v%d" % (W + 1, SC + 2, SC + 3))
        o("    v_lshlrev_b32 v%d, 16, v%d" % (SC, W))
        o("    v_and_b32 v%d, 0xffff0000, v%d" % (SC + 1, W))
        o("    v_lshlrev_b32 v%d, 16, v%d" % (SC + 2, W + 1))
        o("    v_and_b32 v%d, 0xffff0000, v%d" % (SC + 3, W + 1))

    round_bf16()
    for i in range(4):
        o("    v_mul_f32 v%d, s%d, v%d" % (SC + i, S_T + 2, SC + i))
    round_bf16()
    o("    v_max_f32 v%d, v%d, v%d" % (M, SC, SC + 1))
    o("    v_max3_f32 v%d, v%d, v%d, v%d" % (M, SC + 2, SC + 3, M))

    def xlane(op, reg, tmp):
        for sw in ("v_permlane32_swap_b32", "v_permlane16_swap_b32"):
            o("    v_mov_b32 v%d, v%d" % (tmp, reg))
            o("    s_nop 1")
            o("    %s v%d, v%d" % (sw, reg, tmp))
            o("    s_nop 1")
            o("    %s v%d, v%d, v%d" % (op, reg, reg, tmp))

    xlane("v_max_f32", M, M + 1)
    for i in range(4):
        o("    v_sub_f32 v%d, v%d, v%d" % (SC + i, SC + i, M))
    for i in range(4):
        o("    v_mul_f32 v%d, s%d, v%d" % (SC + i, S_T + 3, SC + i))
    for i in range(4):
        o("    v_exp_f32 v%d, v%d" % (SC + i, SC + i))
    o("    s_nop 0")
    o("    v_add_f32 v%d, v%d, v%d" % (M, SC, SC + 1))
    o("    v_add_f32 v%d, v%d, v%d" % (M + 1, SC + 2, SC + 3))
    o("    v_add_f32 v%d, v%d, v%d" % (M, M, M + 1))
    xlane("v_add_f32", M, M + 1)
    o("    v_rcp_f32 v%d, v%d" % (M, M))
    o("    s_nop 0")
    for i in range(4):
        o("    v_mul_f32 v%d, v%d, v%d" % (SC + i, SC + i, M))
    o("    v_cvt_pk_bf16_f32 v%d, v%d, v%d" % (W, SC, SC + 1))
    o("    v_cvt_pk_bf16_f32 v%d, v%d, v%d" % (W + 1, SC + 2, SC + 3))
    o("    v_lshlrev_b32 v%d, 3, v%d" % (V_X, V_LANE))
    o("    ds_write_b64 v%d, v[%d:%d] offset:%d" % (V_X, W, W + 1, LDS_P))
    o("    s_waitcnt lgkmcnt(0)")
    o("    s_branch L_mat_done")

    o("L_vend:")
    PP = MISC
    o("    v_lshlrev_b32 v%d, 3, v%d" % (V_X, V_LANE))
    o("    ds_read_b64 v[%d:%d], v%d offset:%d" % (PP, PP + 1, V_X, LDS_P))
    for w in range(4):
        for h in range(2):
            r = T + (w * 2 + h) * 4
            o("    ds_read_b128 v[%d:%d], v%d offset:%d" % (r, r + 3, V_VR, w * WS + h * 4 * DS))
    o("    s_waitcnt lgkmcnt(4)")
    for j in range(8):
        o("    v_add_f32 v%d, v%d, v%d" % (T + j, T + j, T + 8 + j))
    o("    s_waitcnt lgkmcnt(0)")
    for j in range(8):
        o("    v_add_f32 v%d, v%d, v%d" % (T + 16 + j, T + 16 + j, T + 24 + j))
    for j in range(8):
        o("    v_add_f32 v%d, v%d, v%d" % (T + j, T + j, T + 16 + j))
    VB = MISC + 4
    for h in range(2):
        o("    v_cvt_pk_bf16_f32 v%d, v%d, v%d" % (VB + 2 * h, T + 4 * h, T + 4 * h + 1))
        o("    v_cvt_pk_bf16_f32 v%d, v%d, v%d" % (VB + 2 * h + 1, T + 4 * h + 2, T + 4 * h + 3))
    OO = T + 16
    o("    s_lshr_b32 s%d, s%d, 1" % (S_T + 2, S_MI))
    o("    s_lshl_b32 s%d, s%d, 12" % (S_T + 2, S_T + 2))
    for h in range(2):
        o("    v_mfma_f32_16x16x16_bf16 v[%d:%d], v[%d:%d], v[%d:%d], 0" %
          (OO + 4 * h, OO + 4 * h + 3, VB + 2 * h, VB + 2 * h + 1, PP, PP + 1))
    o("    s_nop 7")
    for i in range(4):
        o("    v_cvt_pk_bf16_f32 v%d, v%d, v%d" % (MISC + 8 + i, OO + 2 * i, OO + 2 * i + 1))
    if noout or defer:
        o("    s_cmp_eq_u32 s%d, 1" % S_MI)
        o("    s_cbranch_scc0 L_store")
        if defer:
            for i in range(4):
                o("    v_mov_b32 v%d, v%d" % (V_DEF + i, MISC + 8 + i))
        o("    s_branch L_mat_done")
        o("L_store:")
        if defer:
            o("    buffer_store_dwordx4 v[%d:%d], v%d, s[%d:%d], 0 offen %s" %
              (V_DEF, V_DEF + 3, V_OUT, SRD_O, SRD_O + 3, oflags))
    o("    buffer_store_dwordx4 v[%d:%d], v%d, s[%d:%d], s%d offen %s" %
      (MISC + 8, MISC + 11, V_OUT, SRD_O, SRD_O + 3, S_T + 2, oflags))

    o("L_mat_done:")
    o("    s_add_u32 s%d, s%d, 1" % (S_MI, S_MI))
    o("    s_cmp_eq_u32 s%d, 4" % S_MI)
    o("    s_cbranch_scc1 L_fin")
    for j in range(32):
        o("    v_mov_b32 v%d, 0" % (ACC + j))
    o("    s_branch L_outer")

    if ctl:
        emit_events()
    for tag in stubs:
        o("L_sw_%s:" % tag)
        if qm == 2:
            o("    s_cmp_lg_u32 s%d, s%d" % (S_LM, S_WAVE))
            o("    s_cbranch_scc1 L_swq_%s" % tag)
            o("    s_bitcmp1_b32 s%d, 0" % S_WAVE)
            o("    s_cbranch_scc1 L_swq_%s" % tag)
            o("    v_and_b32 v%d, 15, v%d" % (V_X, V_LANE))
            o("    v_lshrrev_b32 v%d, 4, v%d" % (V_Y, V_LANE))
            load_q(V_X, V_Y, V_X, S_T + 6)
            o("L_swq_%s:" % tag)
        o("    s_mov_b32 s%d, s%d" % (S_OFF, S_OFF0))
        o("    s_add_u32 s%d, s%d, 0x100000" % (S_T + 4, SRD_D))
        o("    s_addc_u32 s%d, s%d, 0" % (S_T + 5, SRD_D + 1))
        o("    s_mov_b32 s%d, s%d" % (SRD_D, NXT_D))
        o("    s_mov_b32 s%d, s%d" % (SRD_D + 1, NXT_D + 1))
        o("    s_mov_b32 s%d, s%d" % (NXT_D, S_T + 4))
        o("    s_mov_b32 s%d, s%d" % (NXT_D + 1, S_T + 5))
        o("    s_mov_b32 s%d, s%d" % (S_T + 4, SRD_P))
        o("    s_mov_b32 s%d, s%d" % (S_T + 5, SRD_P + 1))
        o("    s_mov_b32 s%d, s%d" % (SRD_P, NXT_P))
        o("    s_mov_b32 s%d, s%d" % (SRD_P + 1, NXT_P + 1))
        o("    s_mov_b32 s%d, s%d" % (NXT_P, S_T + 4))
        o("    s_mov_b32 s%d, s%d" % (NXT_P + 1, S_T + 5))
        o("    s_add_u32 s%d, s%d, 1" % (S_LM, S_LM))
        o("    s_cmp_eq_u32 s%d, 4" % S_LM)
        o("    s_cselect_b32 s%d, 0, 0x100000" % (SRD_D + 2))
        o("    s_cselect_b32 s%d, 0, 0x20000" % (SRD_P + 2))
        o("    s_branch L_swr_%s" % tag)

    o("L_fin:")
    if stamp:
        o("    s_waitcnt vmcnt(0)")
        o("    s_memrealtime s[62:63]")
        o("    s_getreg_b32 s58, hwreg(HW_REG_XCC_ID)")
        o("    s_getreg_b32 s59, hwreg(HW_REG_HW_ID)")
        o("    s_waitcnt lgkmcnt(0)")
        o("    s_lshl_b32 s%d, s2, 2" % S_T)
        o("    s_add_u32 s%d, s%d, s%d" % (S_T, S_T, S_WAVE))
        o("    s_lshl_b32 s%d, s%d, 4" % (S_T, S_T))
        o("    v_mov_b32 v4, s60")
        o("    v_mov_b32 v5, s62")
        o("    v_mov_b32 v6, s58")
        if pstamp:
            o("    s_sub_u32 s82, s82, s60")
        o("    v_mov_b32 v7, s%d" % (82 if pstamp else (S_HI if ctl else 59)))
        o("    v_mov_b32 v2, s%d" % S_T)
        o("    global_store_dwordx4 v2, v[4:7], s[18:19]")
        if pst:
            o("    s_lshl_b32 s%d, s%d, 1" % (S_T + 1, S_T))
            o("    s_add_u32 s%d, s%d, 0x60000" % (S_T + 1, S_T + 1))
            o("    v_mov_b32 v2, s%d" % (S_T + 1))
            for k in range(6):
                o("    s_sub_u32 s%d, s%d, s60" % (PST[k], PST[k]))
                o("    v_mov_b32 v%d, s%d" % (8 + k, PST[k]))
            o("    global_store_dwordx4 v2, v[8:11], s[18:19]")
            o("    global_store_dwordx2 v2, v[12:13], s[18:19] offset:16")
        if trace:
            o("    s_lshl_b32 s%d, s%d, 4" % (S_T, S_T))
            o("    s_add_u32 s%d, s%d, 0x10000" % (S_T, S_T))
            o("    v_lshlrev_b32 v2, 2, v0")
            o("    v_add_u32 v2, s%d, v2" % S_T)
            o("    global_store_dword v2, v%d, s[18:19]" % V_BV)
    o("L_end:")
    o("    s_endpgm")
    nvg = max(accum_offset + na, 264)
    o('.section .rodata,"a"')
    o(".p2align 6")
    o(".amdhsa_kernel %s_kernel" % NAME)
    o("  .amdhsa_next_free_vgpr %d" % nvg)
    o("  .amdhsa_next_free_sgpr %d" % (96 if pst else 88))
    o("  .amdhsa_accum_offset %d" % accum_offset)
    o("  .amdhsa_group_segment_fixed_size 0")
    o("  .amdhsa_kernarg_size 64")
    o("  .amdhsa_user_sgpr_count 2")
    o("  .amdhsa_user_sgpr_kernarg_segment_ptr 1")
    o("  .amdhsa_system_sgpr_workgroup_id_x 1")
    o("  .amdhsa_float_denorm_mode_32 3")
    o(".end_amdhsa_kernel")
    return "\n".join(L) + "\n"


if __name__ == "__main__":
    out = sys.argv[1]
    kw = {}
    for a in sys.argv[2:]:
        k, v = a.split("=")
        if k not in ("flags", "eflags", "oflags", "mlo", "mmid", "mhi", "cal", "aflags", "akind", "mpost", "mfirst"):
            v = int(v)
        kw[k] = v
    open(out, "w").write(gen(**kw))
```

```python
import sys

NAME = "standalone__low_rank_proj_linformer__sampling"
HEADER = open("cdna_kernels/%s.s.ref" % NAME).read().split("; Override launch")[0]


def gen(flags="nt", eflags="sc1", oflags="", stamp=0, force=-1, ctl=1,
        mlo="5s", mmid="6p", mhi="8p", dhi=1, dlo=1, cal="9,25", lag=8, delta=0, eps=0, ps=0, pc=6,
        tail=0, notime=0, pre=0, noev=0, trace=0,
        doat=1, dold=1, aflags="sc1", akind="atomic", abase=16, wmap=0, amask=0, aval=0,
        ns=256, stag=4, noout=0, defer=0, bp=0, noE=0, mpost="", qwait=0, pstamp=0, fin=0, tsh=0, pst=0, early=0, pf=0, pfw=256, pro8=0, qm=0, m0=0, mfirst="", tw=0, pdec=1):
    LA, RS, ER, P = 4, 2, 2, 2
    cal = [int(x) for x in str(cal).split(",")]
    assert 2 <= len(cal) <= 4
    SLOT = [0, 128, 64, 192]
    nsh = ns.bit_length() - 1
    assert ns == 1 << nsh and ns >= 8 * stag
    st2 = stag - 1
    nobar = nocomp = rot = 0
    L = []
    o = L.append
    DS = 1088
    WS = 8 * DS
    LDS_P, LDS_KP, LDS_VP = 0, 512, 512 + 4 * WS
    lds = 512 + 8 * WS
    o(HEADER.rstrip())
    o("; @launch grid=(256,1,1) block=(256,1,1) lds=%d" % lds)
    o('.amdgcn_target "amdgcn-amd-amdhsa--gfx950"')
    o(".text")
    o(".globl %s_kernel" % NAME)
    o(".p2align 8")
    o(".type %s_kernel,@function" % NAME)
    o("%s_kernel:" % NAME)

    V_LANE, V_OFF, V_EOFF, V_PW, V_VR, V_OUT, V_X, V_Y = 0, 1, 2, 3, 4, 5, 6, 7
    ACC = 8
    T = 40
    MISC = 72
    V_BO, V_BV = MISC + 22, MISC + 23
    RING = 96
    V_DEF = RING + 32 * RS
    nv = V_DEF + 4
    assert nv <= 256
    A_Q = 0
    A_E = 16
    na = A_E + 4 * ER
    accum_offset = (nv + 3) // 4 * 4

    S_SELLO, S_SELHI, S_WAVE, S_OFF, S_EOFF, S_CNT, S_MI, S_LM = 20, 21, 22, 23, 24, 25, 26, 27
    S_PROG = 57
    SRD_D, SRD_P = 28, 32
    NXT_D, NXT_P = 36, 38
    SRD_Q, SRD_O = 40, 44
    S_T = 48

    o("    s_cmp_ge_u32 s2, 256")
    o("    s_cbranch_scc1 L_end")
    o("    s_load_dwordx16 s[4:19], s[0:1], 0")
    if stamp:
        o("    s_memrealtime s[60:61]")
    PST = [84, 86, 88, 90, 92, 94]

    def pstp(k):
        if pst:
            o("    s_memrealtime s[%d:%d]" % (PST[k], PST[k] + 1))

    def code_prefetch():
        if pfw < 256:
            o("    s_cmp_ge_u32 s2, %d" % pfw)
            o("    s_cbranch_scc1 L_nopfc")
        o("    s_getpc_b64 s[%d:%d]" % (S_T + 4, S_T + 5))
        o("L_pc:")
        o("    v_lshlrev_b32 v%d, 6, v%d" % (V_PW, V_TID))
        o("    v_min_u32 v%d, L_end-L_pc, v%d" % (V_PW, V_PW))
        o("    global_load_dword v%d, v%d, s[%d:%d]" % (V_DEF + 3, V_PW, S_T + 4, S_T + 5))
        if pfw < 256:
            o("L_nopfc:")

    V_TID = 0
    if pf:
        code_prefetch()
    o("    v_lshrrev_b32 v%d, 6, v0" % V_X)
    o("    v_and_b32 v%d, 63, v0" % V_LANE)
    o("    v_readfirstlane_b32 s%d, v%d" % (S_WAVE, V_X))
    if not early:
        o("    s_mov_b32 s%d, 0x05040100" % S_SELLO)
        o("    s_mov_b32 s%d, 0x07060302" % S_SELHI)
    o("    v_and_b32 v%d, 15, v%d" % (V_X, V_LANE))
    o("    v_lshrrev_b32 v%d, 4, v%d" % (V_Y, V_LANE))
    o("    v_lshlrev_b32 v%d, 4, v%d" % (V_OFF, V_X))
    o("    v_lshl_add_u32 v%d, v%d, 11, v%d" % (V_OFF, V_Y, V_OFF))
    if not early:
        o("    v_lshlrev_b32 v%d, 13, v%d" % (V_EOFF, V_X))
        o("    v_lshl_add_u32 v%d, v%d, 4, v%d" % (V_EOFF, V_Y, V_EOFF))
    o("    s_lshl_b32 s%d, s%d, 13" % (S_OFF, S_WAVE))
    S_EV, S_MODE, S_ACC, S_INC, S_TM, S_NOW, S_THI, S_TLO = 64, 65, 66, 67, 72, 74, 76, 77
    S_C1, S_C2, S_HI, S_OFF0, S_RP, S_OK = 68, 70, 78, 79, 80, 81

    def ctl_setup():
        U = S_T + 6 if early else S_T
        o("    s_mov_b32 s%d, %d" % (S_MODE, {-1: 0, 0: 0, 1: 1, 2: 2}[force]))
        if ctl:
            o("    s_mov_b32 s%d, 0" % S_PROG)
            o("    s_mov_b32 s%d, 0" % S_HI)
            o("    s_mov_b32 s%d, 0" % S_ACC)
            o("    s_mov_b32 s%d, 0" % S_INC)
            o("    s_mov_b32 s%d, 0" % S_TM)
            o("    s_mov_b32 s%d, 0" % S_NOW)
            o("    s_mov_b32 s%d, 0x7fffffff" % S_THI)
            o("    s_mov_b32 s%d, 0x80000000" % S_TLO)
            o("    s_lshr_b32 s%d, s2, 3" % U)
            o("    s_and_b32 s%d, s%d, %d" % (U, U, stag - 1))
            o("    s_mov_b32 s%d, 0x7fffffff" % S_RP)
            o("    s_mov_b32 s%d, 0" % (U + 1))
            for k, c in enumerate(cal):
                o("    s_cmp_eq_u32 s%d, %d" % (S_WAVE, (k + 1) & 3))
                o("    s_cselect_b32 s%d, %d, s%d" % (S_RP, c, S_RP))
                o("    s_cselect_b32 s%d, %d, s%d" % (U + 1, SLOT[k], U + 1))
            o("    v_mov_b32 v%d, s%d" % (V_BO, U + 1))
            o("    s_cmp_lg_u32 s%d, 0x7fffffff" % S_RP)
            o("    s_cselect_b32 s%d, s%d, 0" % (U, U))
            o("    s_add_u32 s%d, s%d, s%d" % (S_RP, S_RP, U))
            if ns < 256:
                o("    s_cmp_lt_u32 s2, %d" % ns)
                o("    s_cselect_b32 s%d, s%d, 0x7fffffff" % (S_RP, S_RP))
            if amask:
                o("    s_and_b32 s%d, s2, %d" % (U, amask))
                o("    s_cmp_eq_u32 s%d, %d" % (U, aval))
                o("    s_cselect_b32 s%d, s%d, 0x7fffffff" % (S_RP, S_RP))
            o("    s_mov_b32 s%d, %d" % (S_EV, cal[1] + lag))
            o("    s_mov_b32 s%d, 0" % S_OK)
            for r in range(S_C1, S_C1 + 4):
                o("    s_mov_b32 s%d, 0" % r)
        o("    s_mov_b32 s%d, 0" % S_LM)
        o("    s_mov_b32 s%d, 0" % S_MI)

    def srd_rest():
        o("    s_mov_b32 s%d, 8192" % (SRD_Q + 2))
        o("    s_mov_b32 s%d, 0x20000" % (SRD_Q + 3))
        o("    s_mov_b32 s%d, 8192" % (SRD_O + 2))
        o("    s_mov_b32 s%d, 0x20000" % (SRD_O + 3))

    if not early:
        o("    s_mov_b32 s%d, s%d" % (S_OFF0, S_OFF))
        ctl_setup()
        o("    s_lshr_b32 s%d, s%d, 7" % (S_EOFF, S_OFF))
    S_PAIR = S_T + 2
    if wmap == 0:
        o("    s_mov_b32 s%d, s2" % S_PAIR)
    elif wmap == 1:
        o("    s_and_b32 s%d, s2, 7" % S_PAIR)
        o("    s_lshl_b32 s%d, s%d, 5" % (S_PAIR, S_PAIR))
        o("    s_lshr_b32 s%d, s2, 3" % (S_T + 3))
        o("    s_or_b32 s%d, s%d, s%d" % (S_PAIR, S_PAIR, S_T + 3))
    elif wmap == 2:
        o("    s_lshr_b32 s%d, s2, 3" % (S_T + 3))
        o("    s_and_b32 s%d, s%d, 7" % (S_T + 3, S_T + 3))
        o("    s_xor_b32 s%d, s2, s%d" % (S_PAIR, S_T + 3))
    elif wmap == 3:
        o("    s_and_b32 s%d, s2, 7" % S_PAIR)
        o("    s_lshl_b32 s%d, s%d, 5" % (S_PAIR, S_PAIR))
        o("    s_lshr_b32 s%d, s2, 3" % (S_T + 3))
        o("    s_or_b32 s%d, s%d, s%d" % (S_PAIR, S_PAIR, S_T + 3))
        o("    s_and_b32 s%d, s%d, 7" % (S_T + 3, S_T + 3))
        o("    s_lshl_b32 s%d, s%d, 5" % (S_T + 3, S_T + 3))
        o("    s_xor_b32 s%d, s%d, s%d" % (S_PAIR, S_PAIR, S_T + 3))
    elif wmap == 4:
        o("    s_and_b32 s%d, s2, 7" % S_PAIR)
        o("    s_lshr_b32 s%d, s2, 3" % (S_T + 3))
        o("    s_lshl_b32 s%d, s%d, 2" % (S_T + 4, S_PAIR))
        o("    s_add_u32 s%d, s%d, s%d" % (S_T + 3, S_T + 3, S_T + 4))
        o("    s_and_b32 s%d, s%d, 31" % (S_T + 3, S_T + 3))
        o("    s_lshl_b32 s%d, s%d, 5" % (S_PAIR, S_PAIR))
        o("    s_or_b32 s%d, s%d, s%d" % (S_PAIR, S_PAIR, S_T + 3))
    elif wmap == 5:
        o("    s_brev_b32 s%d, s2" % S_PAIR)
        o("    s_lshr_b32 s%d, s%d, 24" % (S_PAIR, S_PAIR))
    elif wmap == 6:
        o("    s_bfe_u32 s%d, s2, 0x20001" % S_PAIR)
        o("    s_lshl_b32 s%d, s%d, 6" % (S_PAIR, S_PAIR))
        o("    s_lshr_b32 s%d, s2, 3" % (S_T + 3))
        o("    s_lshl_b32 s%d, s%d, 1" % (S_T + 3, S_T + 3))
        o("    s_or_b32 s%d, s%d, s%d" % (S_PAIR, S_PAIR, S_T + 3))
        o("    s_and_b32 s%d, s2, 1" % (S_T + 3))
        o("    s_or_b32 s%d, s%d, s%d" % (S_PAIR, S_PAIR, S_T + 3))
    elif wmap == 7:
        o("    s_and_b32 s%d, s2, 7" % S_PAIR)
        o("    s_lshl_b32 s%d, s%d, 3" % (S_PAIR, S_PAIR))
        o("    s_bfe_u32 s%d, s2, 0x30003" % (S_T + 3))
        o("    s_or_b32 s%d, s%d, s%d" % (S_PAIR, S_PAIR, S_T + 3))
        o("    s_lshr_b32 s%d, s2, 6" % (S_T + 3))
        o("    s_lshl_b32 s%d, s%d, 6" % (S_T + 3, S_T + 3))
        o("    s_or_b32 s%d, s%d, s%d" % (S_PAIR, S_PAIR, S_T + 3))
    o("    s_lshl_b32 s%d, s%d, 21" % (S_T, S_PAIR))
    o("    s_mov_b32 s%d, 0x100000" % (SRD_D + 2))
    o("    s_mov_b32 s%d, 0x20000" % (SRD_D + 3))
    if not early:
        o("    s_lshl_b32 s%d, s%d, 13" % (S_T + 1, S_PAIR))
        o("    s_mov_b32 s%d, 0x20000" % (SRD_P + 2))
        o("    s_mov_b32 s%d, 0x20000" % (SRD_P + 3))
        srd_rest()
    pstp(0)
    o("    s_waitcnt lgkmcnt(0)")
    if pstamp:
        o("    s_memrealtime s[82:83]")
    pstp(1)
    o("    s_add_u32 s%d, s6, s%d" % (SRD_D, S_T))
    o("    s_addc_u32 s%d, s7, 0" % (SRD_D + 1))
    if not early:
        o("    s_mov_b32 s%d, s10" % SRD_P)
        o("    s_mov_b32 s%d, s11" % (SRD_P + 1))

    def issue_E(step):
        if noE:
            return
        r = A_E + (step % ER) * 4
        o("    buffer_load_dwordx4 a[%d:%d], v%d, s[%d:%d], s%d offen %s" %
          (r, r + 3, V_EOFF, SRD_P, SRD_P + 3, S_EOFF, eflags))

    def issue_one(n):
        q, h = divmod(n, 2)
        a = q % 4
        slot = q % (4 * RS)
        i = 2 * a + h
        r = RING + (slot * 2 + h) * 4
        o("    buffer_load_dwordx4 v[%d:%d], v%d, s[%d:%d], s%d offen offset:%d %s" %
          (r, r + 3, V_OFF, SRD_D, SRD_D + 3, S_OFF, i * 256, flags))

    def issue_pair(q):
        issue_one(2 * q)
        issue_one(2 * q + 1)

    stubs = []
    events = []

    if not early:
        issue_E(0)
    for q in range(LA):
        issue_pair(q)
    if early:
        o("    v_lshlrev_b32 v%d, 13, v%d" % (V_EOFF, V_X))
        o("    v_lshl_add_u32 v%d, v%d, 4, v%d" % (V_EOFF, V_Y, V_EOFF))
        o("    s_lshr_b32 s%d, s%d, 7" % (S_EOFF, S_OFF))
        o("    s_mov_b32 s%d, s10" % SRD_P)
        o("    s_mov_b32 s%d, s11" % (SRD_P + 1))
        o("    s_mov_b32 s%d, 0x20000" % (SRD_P + 2))
        o("    s_mov_b32 s%d, 0x20000" % (SRD_P + 3))
        issue_E(0)
        o("    s_mov_b32 s%d, s%d" % (S_OFF0, S_OFF))
    if bp and not pro8:
        o("    s_add_u32 s%d, s%d, 0x8000" % (S_OFF, S_OFF))
        o("    s_lshr_b32 s%d, s%d, 7" % (S_EOFF, S_OFF))
        issue_one(8)
        issue_E(1)
        for n in range(9, 16):
            issue_one(n)
    pstp(2)
    if early:
        o("    s_mov_b32 s%d, 0x05040100" % S_SELLO)
        o("    s_mov_b32 s%d, 0x07060302" % S_SELHI)
        o("    s_lshl_b32 s%d, s%d, 13" % (S_T + 1, S_PAIR))
        srd_rest()
        ctl_setup()
    o("    s_add_u32 s%d, s8, s%d" % (NXT_D, S_T))
    o("    s_addc_u32 s%d, s9, 0" % (NXT_D + 1))
    o("    s_mov_b32 s%d, s12" % NXT_P)
    o("    s_mov_b32 s%d, s13" % (NXT_P + 1))
    o("    s_add_u32 s%d, s4, s%d" % (SRD_Q, S_T + 1))
    o("    s_addc_u32 s%d, s5, 0" % (SRD_Q + 1))
    o("    s_add_u32 s%d, s14, s%d" % (SRD_O, S_T + 1))
    o("    s_addc_u32 s%d, s15, 0" % (SRD_O + 1))
    def load_q(vx, vy, va, st):
        o("    v_lshlrev_b32 v%d, 8, v%d" % (va, vx))
        o("    v_lshl_add_u32 v%d, v%d, 6, v%d" % (va, vy, va))
        o("    s_lshr_b32 s%d, s%d, 1" % (st, S_WAVE))
        o("    s_lshl_b32 s%d, s%d, 12" % (st, st))
        for s in range(4):
            o("    buffer_load_dwordx4 a[%d:%d], v%d, s[%d:%d], s%d offen offset:%d" %
              (A_Q + 4 * s, A_Q + 4 * s + 3, va, SRD_Q, SRD_Q + 3, st, 16 * s))

    if qm == 0:
        load_q(V_X, V_Y, V_PW, S_T + 2)
    elif qm == 1:
        o("    s_bitcmp1_b32 s%d, 0" % S_WAVE)
        o("    s_cbranch_scc1 L_noq")
        load_q(V_X, V_Y, V_PW, S_T + 2)
        o("L_noq:")
    if tw:
        assert defer
        o("    v_and_b32 v%d, 3, v%d" % (V_PW, V_LANE))
        o("    v_lshlrev_b32 v%d, 19, v%d" % (V_PW, V_PW))
        o("    s_cmp_eq_u32 s%d, 1" % S_WAVE)
        o("    s_cbranch_scc0 L_tw1")
        o("    global_load_dword v%d, v%d, s[%d:%d]" % (V_DEF, V_PW, NXT_D, NXT_D + 1))
        o("L_tw1:")
        o("    s_cmp_eq_u32 s%d, 3" % S_WAVE)
        o("    s_cbranch_scc0 L_tw3")
        o("    v_mov_b32 v%d, 0" % V_PW)
        o("    buffer_load_dword v%d, v%d, s[%d:%d], 0 offen" % (V_DEF, V_PW, SRD_O, SRD_O + 3))
        o("    global_load_dword v%d, v%d, s[12:13]" % (V_DEF + 1, V_PW))
        o("L_tw3:")
    o("    v_lshlrev_b32 v%d, 8, v%d" % (V_OUT, V_X))
    o("    v_lshl_add_u32 v%d, v%d, 4, v%d" % (V_OUT, V_Y, V_OUT))
    o("    s_lshl_b32 s%d, s%d, 6" % (S_T + 2, S_WAVE))
    o("    v_add_u32 v%d, s%d, v%d" % (V_OUT, S_T + 2, V_OUT))
    o("    v_and_b32 v%d, 3, v%d" % (V_VR, V_X))
    o("    v_mul_u32_u24 v%d, %d, v%d" % (V_VR, DS, V_VR))
    o("    v_lshrrev_b32 v%d, 2, v%d" % (V_X, V_X))
    o("    v_lshl_add_u32 v%d, v%d, 4, v%d" % (V_X, V_Y, V_X))
    o("    v_lshl_add_u32 v%d, v%d, 4, v%d" % (V_VR, V_X, V_VR))
    o("    s_lshl_b32 s%d, s%d, 6" % (S_T + 2, S_WAVE))
    o("    s_add_u32 s%d, s%d, %d" % (S_T + 2, S_T + 2, LDS_VP))
    o("    v_add_u32 v%d, s%d, v%d" % (V_VR, S_T + 2, V_VR))
    o("    v_lshlrev_b32 v%d, 4, v%d" % (V_X, V_LANE))
    o("    s_mul_i32 s%d, s%d, %d" % (S_T + 2, S_WAVE, WS))
    o("    s_add_u32 s%d, s%d, %d" % (S_T + 2, S_T + 2, LDS_KP))
    o("    v_add_u32 v%d, s%d, v%d" % (V_PW, S_T + 2, V_X))
    for j in range(32):
        o("    v_mov_b32 v%d, 0" % (ACC + j))


    def allowed(n, req, e_done):
        cnt = n - 1 - req
        for qq in range(0, n // 2 + 1):
            if qq % 4 == 0 and 2 * qq >= req and (qq < n // 2 or e_done) and not noE:
                cnt += 1
        return cnt

    def wait_of(m, p, h, extra=0):
        q = p + LA
        n = 2 * q + h
        N, gr = int(m[:-1]), m[-1]
        if gr == "p":
            if h == 1:
                return None
            req = n - N + 1
        else:
            req = n - N
        if h == 0:
            req = max(req, 2 * p + 1)
        elif req <= 2 * p + 1:
            return None
        big = 8000
        return allowed(n + big, req + big, h == 1) + (extra if req <= 7 else 0)

    def decide(tag):
        T0 = S_T + 6
        o("    s_waitcnt lgkmcnt(0)")
        if not noev:
            o("    s_cmp_eq_u32 s%d, s%d" % (S_PROG, S_RP))
            o("    s_cbranch_scc1 L_rp_%s" % tag)
            o("L_rpr_%s:" % tag)
            o("    s_cmp_eq_u32 s%d, s%d" % (S_PROG, S_EV))
            o("    s_cbranch_scc1 L_ev_%s" % tag)
        o("L_evr_%s:" % tag)
        if trace:
            o("    s_mov_b32 m0, s%d" % S_PROG)
            o("    s_nop 0")
            o("    v_writelane_b32 v%d, s%d, m0" % (V_BV, S_NOW))
        o("    s_sub_u32 s%d, s%d, s%d" % (T0, S_NOW, S_TM))
        o("    s_lshl_b32 s%d, s%d, 6" % (T0, T0))
        o("    s_sub_u32 s%d, s%d, s%d" % (T0, T0, S_ACC))
        o("    s_add_u32 s%d, s%d, s%d" % (S_ACC, S_ACC, S_INC))
        o("    s_add_u32 s%d, s%d, 1" % (S_PROG, S_PROG))
        if force < 0 and tag == "post" and pdec != 1:
            if pdec == 0:
                o("    s_mov_b32 s%d, 0" % S_MODE)
        elif force < 0:
            o("    s_cmp_gt_i32 s%d, s%d" % (T0, S_THI))
            o("    s_cselect_b32 s%d, 1, 0" % S_MODE)
            o("    s_cmp_lt_i32 s%d, s%d" % (T0, S_TLO))
            o("    s_cselect_b32 s%d, 2, s%d" % (S_MODE, S_MODE))
        if tail:
            o("    s_cmp_ge_u32 s%d, %d" % (S_PROG, 64 - tail))
            o("    s_cselect_b32 s%d, 1, s%d" % (S_MODE, S_MODE))
        if fin:
            o("    s_cmp_eq_u32 s%d, %d" % (S_PROG, 64 - fin))
            o("    s_cselect_b32 s%d, 3, s%d" % (S_MODE, S_MODE))
        if stamp:
            o("    s_and_b32 s%d, s%d, 1" % (T0, S_MODE))
            o("    s_add_u32 s%d, s%d, s%d" % (S_HI, S_HI, T0))
            o("    s_and_b32 s%d, s%d, 2" % (T0, S_MODE))
            o("    s_lshl_b32 s%d, s%d, 7" % (T0, T0))
            o("    s_add_u32 s%d, s%d, s%d" % (S_HI, S_HI, T0))
        events.append(tag)

    def emit_events():
        T0, T1 = S_T + 6, S_T + 7
        for tag in events:
            if noev:
                continue
            o("L_rp_%s:" % tag)
            o("    v_mov_b32 v%d, s%d" % (V_BV - 3, S_NOW))
            o("    v_mov_b32 v%d, 0x100" % (V_BV - 2))
            o("    s_mov_b64 exec, 1")
            if doat and akind == "atomic":
                o("    global_atomic_add_x2 v%d, v[%d:%d], s[%d:%d] %s" % (V_BO, V_BV - 3, V_BV - 2, abase, abase + 1, aflags))
            elif doat and akind == "store":
                o("    global_store_dwordx2 v%d, v[%d:%d], s[%d:%d] %s" % (V_BO, V_BV - 3, V_BV - 2, abase, abase + 1, aflags))
            elif doat and akind == "load":
                o("    global_load_dwordx2 v[%d:%d], v%d, s[%d:%d] %s" % (V_BV - 3, V_BV - 2, V_BO, abase, abase + 1, aflags))
            o("    s_mov_b64 exec, -1")
            o("    s_branch L_rpr_%s" % tag)
            o("L_ev_%s:" % tag)
            for k in range(1, len(cal)):
                o("    s_cmp_eq_u32 s%d, %d" % (S_EV, cal[k] + lag))
                o("    s_cbranch_scc1 L_evl%d_%s" % (k, tag))
                o("    s_cmp_eq_u32 s%d, %d" % (S_EV, cal[k] + lag + 1))
                o("    s_cbranch_scc1 L_evc%d_%s" % (k, tag))
            o("    s_branch L_evr_%s" % tag)
            for k in range(1, len(cal)):
                jr = cal[k] + lag
                span = cal[k] - cal[k - 1]
                assert span in (8, 16)
                o("L_evl%d_%s:" % (k, tag))
                if k == 1 and dold:
                    o("    s_load_dwordx2 s[%d:%d], s[16:17], %d" % (S_C1, S_C1 + 1, SLOT[0]))
                if dold:
                    o("    s_load_dwordx2 s[%d:%d], s[16:17], %d" % (S_C2, S_C2 + 1, SLOT[k]))
                o("    s_mov_b32 s%d, %d" % (S_EV, jr + 1))
                o("    s_branch L_evr_%s" % tag)
                o("L_evc%d_%s:" % (k, tag))
                o("    s_mov_b32 s%d, %s" % (S_EV, "0x7fffffff" if k == len(cal) - 1 else str(cal[k + 1] + lag)))
                if k == 1:
                    o("    s_lshr_b64 s[%d:%d], s[%d:%d], %d" % (S_C1, S_C1 + 1, S_C1, S_C1 + 1, nsh))
                o("    s_lshr_b64 s[%d:%d], s[%d:%d], %d" % (S_C2, S_C2 + 1, S_C2, S_C2 + 1, nsh))
                o("    s_and_b32 s%d, s%d, s%d" % (T0, S_C1 + 1, S_C2 + 1))
                o("    s_sub_u32 s%d, s%d, s%d" % (T1, S_C2, S_C1))
                o("    s_mov_b32 s%d, s%d" % (S_C1, S_C2))
                o("    s_mov_b32 s%d, s%d" % (S_C1 + 1, S_C2 + 1))
                o("    s_cmp_lg_u32 s%d, 256" % T0)
                o("    s_cbranch_scc1 L_evr_%s" % tag)
                if stamp:
                    o("    s_add_u32 s%d, s%d, 0x10000" % (S_HI, S_HI))
                if span == 8:
                    o("    s_lshl_b32 s%d, s%d, 1" % (T1, T1))
                o("    s_mov_b32 s%d, s%d" % (S_TM, S_C1))
                o("    s_lshl_b32 s%d, s%d, 2" % (S_INC, T1))
                o("    s_mul_i32 s%d, s%d, %d" % (S_ACC, T1, 4 * (jr + 1) - (4 * cal[k] + 2 * st2) + delta))
                o("    s_mul_i32 s%d, s%d, %d" % (S_THI, T1, dhi))
                o("    s_mul_i32 s%d, s%d, %d" % (S_TLO, T1, -dlo))
                if tsh:
                    o("    s_ashr_i32 s%d, s%d, %d" % (S_THI, S_THI, tsh))
                    o("    s_ashr_i32 s%d, s%d, %d" % (S_TLO, S_TLO, tsh))
                if eps:
                    o("    s_mul_i32 s%d, s%d, %d" % (T0, T1, eps))
                    o("    s_ashr_i32 s%d, s%d, 6" % (T0, T0))
                    o("    s_sub_u32 s%d, s%d, s%d" % (S_INC, S_INC, T0))
                o("    s_branch L_evr_%s" % tag)

    def body(mode, m, post=False, extra=0):
        o("L_body_%s:" % mode)
        for p in range(8):
            s, a = divmod(p, 4)
            q = p + LA
            if p == 0 and not post:
                o("    s_add_u32 s%d, s%d, 0x8000" % (S_OFF, S_OFF))
                o("    s_lshr_b32 s%d, s%d, 7" % (S_EOFF, S_OFF))
            if p == 4:
                o("    s_add_u32 s%d, s%d, 0x8000" % (S_OFF, S_OFF))
                if not post:
                    o("    s_cmp_eq_u32 s%d, 1" % S_CNT)
                    o("    s_cbranch_scc1 L_sw_%s" % mode)
                    o("L_swr_%s:" % mode)
                    stubs.append(mode)
                o("    s_lshr_b32 s%d, s%d, 7" % (S_EOFF, S_OFF))
            if ctl and p == pc and pre:
                decide(mode)
                if ps == pc and not notime:
                    o("    s_memrealtime s[%d:%d]" % (S_NOW, S_NOW + 1))
            if post and p < 4:
                younger = 15 - (2 * p + 1) + (0 if noE else 1)
                o("    s_waitcnt vmcnt(%d)" % younger)
                if pst and not pro8 and p in (0, 3):
                    o("    s_cmp_eq_u32 s%d, 0" % S_MI)
                    o("    s_cbranch_scc0 L_nopst%d" % p)
                    pstp(4 if p == 0 else 5)
                    o("L_nopst%d:" % p)
            else:
                for h in range(2):
                    w = wait_of(m, p, h, extra)
                    if w is not None:
                        o("    s_waitcnt vmcnt(%d)" % w)
                    if h == 0 and q % 4 == 0:
                        issue_one(2 * q)
                        issue_E(q // 4)
                    else:
                        issue_one(2 * q + h)
                if pst and pro8 and p in (0, 3):
                    o("    s_cmp_eq_u32 s%d, 0" % S_PROG)
                    o("    s_cbranch_scc0 L_nopst%d_%s" % (p, mode))
                    pstp(4 if p == 0 else 5)
                    o("L_nopst%d_%s:" % (p, mode))
            if ctl and p == ps and ps != pc and not notime:
                o("    s_memrealtime s[%d:%d]" % (S_NOW, S_NOW + 1))
            if ctl and p == pc and not pre:
                decide(mode)
                if ps == pc and not notime:
                    o("    s_memrealtime s[%d:%d]" % (S_NOW, S_NOW + 1))
            slot = p % (4 * RS)
            xb = RING + slot * 8
            yb = xb + 4
            for c in range(4):
                o("    v_perm_b32 v%d, v%d, v%d, s%d" % (T + (2 * c) * 4 + a, yb + c, xb + c, S_SELLO))
                o("    v_perm_b32 v%d, v%d, v%d, s%d" % (T + (2 * c + 1) * 4 + a, yb + c, xb + c, S_SELHI))
            if a == 3:
                e = A_E + (s % ER) * 4
                o("    s_nop 1")
                for dd in range(8):
                    acc = ACC + dd * 4
                    o("    v_mfma_f32_16x16x32_bf16 v[%d:%d], a[%d:%d], v[%d:%d], v[%d:%d]" %
                      (acc, acc + 3, e, e + 3, T + dd * 4, T + dd * 4 + 3, acc, acc + 3))
        o("    s_sub_u32 s%d, s%d, 1" % (S_CNT, S_CNT))
        if not post:
            o("    s_cmp_eq_u32 s%d, 0" % S_CNT)
            o("    s_cbranch_scc1 L_matend")

    def body_fin():
        o("L_body_fin:")
        o("    s_add_u32 s%d, s%d, 0x8000" % (S_OFF, S_OFF))
        o("    s_lshr_b32 s%d, s%d, 7" % (S_EOFF, S_OFF))
        issue_one(8)
        issue_E(1)
        for n in range(9, 16):
            issue_one(n)
        for p in range(8):
            s, a = divmod(p, 4)
            younger = 15 - (2 * p + 1) + (1 if (p < 4 and not noE) else 0)
            o("    s_waitcnt vmcnt(%d)" % younger)
            xb = RING + p * 8
            yb = xb + 4
            for c in range(4):
                o("    v_perm_b32 v%d, v%d, v%d, s%d" % (T + (2 * c) * 4 + a, yb + c, xb + c, S_SELLO))
                o("    v_perm_b32 v%d, v%d, v%d, s%d" % (T + (2 * c + 1) * 4 + a, yb + c, xb + c, S_SELHI))
            if a == 3:
                e = A_E + (s % ER) * 4
                o("    s_nop 1")
                for dd in range(8):
                    acc = ACC + dd * 4
                    o("    v_mfma_f32_16x16x32_bf16 v[%d:%d], a[%d:%d], v[%d:%d], v[%d:%d]" %
                      (acc, acc + 3, e, e + 3, T + dd * 4, T + dd * 4 + 3, acc, acc + 3))
        o("    s_branch L_matend")

    pstp(3)
    if pro8 and bp:
        o("    s_mov_b32 s%d, 16" % S_CNT)
        if m0:
            o("    s_mov_b32 s%d, %d" % (S_MODE, m0))
        if mfirst:
            assert qm in (0, 1)
            if qm == 1:
                o("    s_bitcmp1_b32 s%d, 0" % S_WAVE)
                o("    s_cbranch_scc1 L_dispatch")
            o("    s_branch L_body_first")
        else:
            o("    s_branch L_dispatch")
    o("L_outer:")
    o("    s_mov_b32 s%d, 16" % S_CNT)
    if bp:
        body("post", mpost or mmid, post=True)
    o("L_dispatch:")
    modes = [("mid", mmid)]
    if (ctl and force < 0) or force == 1 or tail:
        modes.append(("hi", mhi))
        o("    s_cmp_eq_u32 s%d, 1" % S_MODE)
        o("    s_cbranch_scc1 L_body_hi")
    if (ctl and force < 0) or force == 2:
        modes.append(("lo", mlo))
        o("    s_cmp_eq_u32 s%d, 2" % S_MODE)
        o("    s_cbranch_scc1 L_body_lo")
    if fin:
        assert ctl
        o("    s_cmp_eq_u32 s%d, 3" % S_MODE)
        o("    s_cbranch_scc1 L_body_fin")
    for mode, m in modes:
        body(mode, m)
        o("    s_branch L_dispatch")
    if mfirst:
        body("first", mfirst, extra=4)
        o("    s_branch L_dispatch")
    if fin:
        body_fin()
    o("L_matend:")
    if bp:
        o("    s_cmp_eq_u32 s%d, 3" % S_MI)
        o("    s_cbranch_scc1 L_nopf")
        o("    s_add_u32 s%d, s%d, 0x8000" % (S_OFF, S_OFF))
        o("    s_lshr_b32 s%d, s%d, 7" % (S_EOFF, S_OFF))
        issue_one(8)
        issue_E(1)
        for n in range(9, 16):
            issue_one(n)
        o("L_nopf:")
    o("    s_and_b32 s%d, s%d, 1" % (S_T, S_MI))
    o("    s_mul_i32 s%d, s%d, %d" % (S_T + 1, S_T, 4 * WS))
    o("    v_add_u32 v%d, s%d, v%d" % (V_X, S_T + 1, V_PW))
    o("    s_nop 7")
    if ctl:
        o("    s_waitcnt lgkmcnt(0)")
    for dd in range(8):
        o("    ds_write_b128 v%d, v[%d:%d] offset:%d" % (V_X, ACC + 4 * dd, ACC + 4 * dd + 3, dd * DS))
    o("    s_waitcnt lgkmcnt(0)")
    o("    s_barrier")
    o("    s_cmp_eq_u32 s%d, 1" % S_T)
    o("    s_cbranch_scc1 L_vend")
    o("    s_cmp_lg_u32 s%d, s%d" % (S_WAVE, S_MI))
    o("    s_cbranch_scc1 L_mat_done")
    SUM, TMP, PA = ACC, T, MISC
    o("    v_lshlrev_b32 v%d, 4, v%d" % (V_X, V_LANE))
    for w in range(4):
        dst = SUM if w == 0 else TMP
        for dd in range(8):
            o("    ds_read_b128 v[%d:%d], v%d offset:%d" %
              (dst + 4 * dd, dst + 4 * dd + 3, V_X, LDS_KP + w * WS + dd * DS))
        if w > 0:
            for dd in range(8):
                o("    s_waitcnt lgkmcnt(%d)" % (7 - dd))
                for i in range(4):
                    o("    v_add_f32 v%d, v%d, v%d" % (SUM + 4 * dd + i, SUM + 4 * dd + i, TMP + 4 * dd + i))
    for dd in range(8):
        o("    v_cvt_pk_bf16_f32 v%d, v%d, v%d" % (PA + 2 * dd, SUM + 4 * dd, SUM + 4 * dd + 1))
        o("    v_cvt_pk_bf16_f32 v%d, v%d, v%d" % (PA + 2 * dd + 1, SUM + 4 * dd + 2, SUM + 4 * dd + 3))
    ID = MISC + 16
    o("    v_and_b32 v%d, 15, v%d" % (V_X, V_LANE))
    o("    v_lshrrev_b32 v%d, 4, v%d" % (V_Y, V_LANE))
    o("    v_lshlrev_b32 v%d, 2, v%d" % (V_Y, V_Y))
    o("    v_sub_u32 v%d, v%d, v%d" % (V_X, V_X, V_Y))
    o("    v_mov_b32 v%d, 0" % ID)
    o("    v_mov_b32 v%d, 0" % (ID + 1))
    o("    v_mov_b32 v%d, 0x3f80" % (ID + 2))
    o("    v_mov_b32 v%d, 0x3f800000" % (ID + 3))
    for j, (dst, src) in enumerate(((ID, ID + 2), (ID, ID + 3), (ID + 1, ID + 2), (ID + 1, ID + 3))):
        o("    v_cmp_eq_u32 vcc, %d, v%d" % (j, V_X))
        o("    s_nop 1")
        o("    v_cndmask_b32 v%d, v%d, v%d, vcc" % (dst, dst, src))
    o("    s_nop 1")
    for dd in range(8):
        o("    v_mfma_f32_16x16x16_bf16 v[%d:%d], v[%d:%d], v[%d:%d], 0" %
          (TMP + 4 * dd, TMP + 4 * dd + 3, PA + 2 * dd, PA + 2 * dd + 1, ID, ID + 1))
    o("    s_nop 7")
    PB = SUM
    for s in range(4):
        for j in range(4):
            o("    v_cvt_pk_bf16_f32 v%d, v%d, v%d" %
              (PB + 4 * s + j, TMP + (2 * j) * 4 + s, TMP + (2 * j + 1) * 4 + s))
    SC = SUM + 16
    if qwait:
        o("    s_waitcnt vmcnt(0)")
    if qm == 2:
        assert bp and not noE
        o("    s_waitcnt vmcnt(18)")
    for s in range(4):
        c = "0" if s == 0 else "v[%d:%d]" % (SC, SC + 3)
        o("    v_mfma_f32_16x16x32_bf16 v[%d:%d], v[%d:%d], a[%d:%d], %s" %
          (SC, SC + 3, PB + 4 * s, PB + 4 * s + 3, A_Q + 4 * s, A_Q + 4 * s + 3, c))
    o("    s_mov_b32 s%d, 0x3db504f3" % (S_T + 2))
    o("    s_mov_b32 s%d, 0x3fb8aa3b" % (S_T + 3))
    o("    s_nop 7")
    W = SUM + 20
    M = SUM + 22

    def round_bf16():
        o("    v_cvt_pk_bf16_f32 v%d, v%d, v%d" % (W, SC, SC + 1))
        o("    v_cvt_pk_bf16_f32 v%d, v%d, v%d" % (W + 1, SC + 2, SC + 3))
        o("    v_lshlrev_b32 v%d, 16, v%d" % (SC, W))
        o("    v_and_b32 v%d, 0xffff0000, v%d" % (SC + 1, W))
        o("    v_lshlrev_b32 v%d, 16, v%d" % (SC + 2, W + 1))
        o("    v_and_b32 v%d, 0xffff0000, v%d" % (SC + 3, W + 1))

    round_bf16()
    for i in range(4):
        o("    v_mul_f32 v%d, s%d, v%d" % (SC + i, S_T + 2, SC + i))
    round_bf16()
    o("    v_max_f32 v%d, v%d, v%d" % (M, SC, SC + 1))
    o("    v_max3_f32 v%d, v%d, v%d, v%d" % (M, SC + 2, SC + 3, M))

    def xlane(op, reg, tmp):
        for sw in ("v_permlane32_swap_b32", "v_permlane16_swap_b32"):
            o("    v_mov_b32 v%d, v%d" % (tmp, reg))
            o("    s_nop 1")
            o("    %s v%d, v%d" % (sw, reg, tmp))
            o("    s_nop 1")
            o("    %s v%d, v%d, v%d" % (op, reg, reg, tmp))

    xlane("v_max_f32", M, M + 1)
    for i in range(4):
        o("    v_sub_f32 v%d, v%d, v%d" % (SC + i, SC + i, M))
    for i in range(4):
        o("    v_mul_f32 v%d, s%d, v%d" % (SC + i, S_T + 3, SC + i))
    for i in range(4):
        o("    v_exp_f32 v%d, v%d" % (SC + i, SC + i))
    o("    s_nop 0")
    o("    v_add_f32 v%d, v%d, v%d" % (M, SC, SC + 1))
    o("    v_add_f32 v%d, v%d, v%d" % (M + 1, SC + 2, SC + 3))
    o("    v_add_f32 v%d, v%d, v%d" % (M, M, M + 1))
    xlane("v_add_f32", M, M + 1)
    o("    v_rcp_f32 v%d, v%d" % (M, M))
    o("    s_nop 0")
    for i in range(4):
        o("    v_mul_f32 v%d, v%d, v%d" % (SC + i, SC + i, M))
    o("    v_cvt_pk_bf16_f32 v%d, v%d, v%d" % (W, SC, SC + 1))
    o("    v_cvt_pk_bf16_f32 v%d, v%d, v%d" % (W + 1, SC + 2, SC + 3))
    o("    v_lshlrev_b32 v%d, 3, v%d" % (V_X, V_LANE))
    o("    ds_write_b64 v%d, v[%d:%d] offset:%d" % (V_X, W, W + 1, LDS_P))
    o("    s_waitcnt lgkmcnt(0)")
    o("    s_branch L_mat_done")

    o("L_vend:")
    PP = MISC
    o("    v_lshlrev_b32 v%d, 3, v%d" % (V_X, V_LANE))
    o("    ds_read_b64 v[%d:%d], v%d offset:%d" % (PP, PP + 1, V_X, LDS_P))
    for w in range(4):
        for h in range(2):
            r = T + (w * 2 + h) * 4
            o("    ds_read_b128 v[%d:%d], v%d offset:%d" % (r, r + 3, V_VR, w * WS + h * 4 * DS))
    o("    s_waitcnt lgkmcnt(4)")
    for j in range(8):
        o("    v_add_f32 v%d, v%d, v%d" % (T + j, T + j, T + 8 + j))
    o("    s_waitcnt lgkmcnt(0)")
    for j in range(8):
        o("    v_add_f32 v%d, v%d, v%d" % (T + 16 + j, T + 16 + j, T + 24 + j))
    for j in range(8):
        o("    v_add_f32 v%d, v%d, v%d" % (T + j, T + j, T + 16 + j))
    VB = MISC + 4
    for h in range(2):
        o("    v_cvt_pk_bf16_f32 v%d, v%d, v%d" % (VB + 2 * h, T + 4 * h, T + 4 * h + 1))
        o("    v_cvt_pk_bf16_f32 v%d, v%d, v%d" % (VB + 2 * h + 1, T + 4 * h + 2, T + 4 * h + 3))
    OO = T + 16
    o("    s_lshr_b32 s%d, s%d, 1" % (S_T + 2, S_MI))
    o("    s_lshl_b32 s%d, s%d, 12" % (S_T + 2, S_T + 2))
    for h in range(2):
        o("    v_mfma_f32_16x16x16_bf16 v[%d:%d], v[%d:%d], v[%d:%d], 0" %
          (OO + 4 * h, OO + 4 * h + 3, VB + 2 * h, VB + 2 * h + 1, PP, PP + 1))
    o("    s_nop 7")
    for i in range(4):
        o("    v_cvt_pk_bf16_f32 v%d, v%d, v%d" % (MISC + 8 + i, OO + 2 * i, OO + 2 * i + 1))
    if noout or defer:
        o("    s_cmp_eq_u32 s%d, 1" % S_MI)
        o("    s_cbranch_scc0 L_store")
        if defer:
            for i in range(4):
                o("    v_mov_b32 v%d, v%d" % (V_DEF + i, MISC + 8 + i))
        o("    s_branch L_mat_done")
        o("L_store:")
        if defer:
            o("    buffer_store_dwordx4 v[%d:%d], v%d, s[%d:%d], 0 offen %s" %
              (V_DEF, V_DEF + 3, V_OUT, SRD_O, SRD_O + 3, oflags))
    o("    buffer_store_dwordx4 v[%d:%d], v%d, s[%d:%d], s%d offen %s" %
      (MISC + 8, MISC + 11, V_OUT, SRD_O, SRD_O + 3, S_T + 2, oflags))

    o("L_mat_done:")
    o("    s_add_u32 s%d, s%d, 1" % (S_MI, S_MI))
    o("    s_cmp_eq_u32 s%d, 4" % S_MI)
    o("    s_cbranch_scc1 L_fin")
    for j in range(32):
        o("    v_mov_b32 v%d, 0" % (ACC + j))
    o("    s_branch L_outer")

    if ctl:
        emit_events()
    for tag in stubs:
        o("L_sw_%s:" % tag)
        if qm == 2:
            o("    s_cmp_lg_u32 s%d, s%d" % (S_LM, S_WAVE))
            o("    s_cbranch_scc1 L_swq_%s" % tag)
            o("    s_bitcmp1_b32 s%d, 0" % S_WAVE)
            o("    s_cbranch_scc1 L_swq_%s" % tag)
            o("    v_and_b32 v%d, 15, v%d" % (V_X, V_LANE))
            o("    v_lshrrev_b32 v%d, 4, v%d" % (V_Y, V_LANE))
            load_q(V_X, V_Y, V_X, S_T + 6)
            o("L_swq_%s:" % tag)
        o("    s_mov_b32 s%d, s%d" % (S_OFF, S_OFF0))
        o("    s_add_u32 s%d, s%d, 0x100000" % (S_T + 4, SRD_D))
        o("    s_addc_u32 s%d, s%d, 0" % (S_T + 5, SRD_D + 1))
        o("    s_mov_b32 s%d, s%d" % (SRD_D, NXT_D))
        o("    s_mov_b32 s%d, s%d" % (SRD_D + 1, NXT_D + 1))
        o("    s_mov_b32 s%d, s%d" % (NXT_D, S_T + 4))
        o("    s_mov_b32 s%d, s%d" % (NXT_D + 1, S_T + 5))
        o("    s_mov_b32 s%d, s%d" % (S_T + 4, SRD_P))
        o("    s_mov_b32 s%d, s%d" % (S_T + 5, SRD_P + 1))
        o("    s_mov_b32 s%d, s%d" % (SRD_P, NXT_P))
        o("    s_mov_b32 s%d, s%d" % (SRD_P + 1, NXT_P + 1))
        o("    s_mov_b32 s%d, s%d" % (NXT_P, S_T + 4))
        o("    s_mov_b32 s%d, s%d" % (NXT_P + 1, S_T + 5))
        o("    s_add_u32 s%d, s%d, 1" % (S_LM, S_LM))
        o("    s_cmp_eq_u32 s%d, 4" % S_LM)
        o("    s_cselect_b32 s%d, 0, 0x100000" % (SRD_D + 2))
        o("    s_cselect_b32 s%d, 0, 0x20000" % (SRD_P + 2))
        o("    s_branch L_swr_%s" % tag)

    o("L_fin:")
    if stamp:
        o("    s_waitcnt vmcnt(0)")
        o("    s_memrealtime s[62:63]")
        o("    s_getreg_b32 s58, hwreg(HW_REG_XCC_ID)")
        o("    s_getreg_b32 s59, hwreg(HW_REG_HW_ID)")
        o("    s_waitcnt lgkmcnt(0)")
        o("    s_lshl_b32 s%d, s2, 2" % S_T)
        o("    s_add_u32 s%d, s%d, s%d" % (S_T, S_T, S_WAVE))
        o("    s_lshl_b32 s%d, s%d, 4" % (S_T, S_T))
        o("    v_mov_b32 v4, s60")
        o("    v_mov_b32 v5, s62")
        o("    v_mov_b32 v6, s58")
        if pstamp:
            o("    s_sub_u32 s82, s82, s60")
        o("    v_mov_b32 v7, s%d" % (82 if pstamp else (S_HI if ctl else 59)))
        o("    v_mov_b32 v2, s%d" % S_T)
        o("    global_store_dwordx4 v2, v[4:7], s[18:19]")
        if pst:
            o("    s_lshl_b32 s%d, s%d, 1" % (S_T + 1, S_T))
            o("    s_add_u32 s%d, s%d, 0x60000" % (S_T + 1, S_T + 1))
            o("    v_mov_b32 v2, s%d" % (S_T + 1))
            for k in range(6):
                o("    s_sub_u32 s%d, s%d, s60" % (PST[k], PST[k]))
                o("    v_mov_b32 v%d, s%d" % (8 + k, PST[k]))
            o("    global_store_dwordx4 v2, v[8:11], s[18:19]")
            o("    global_store_dwordx2 v2, v[12:13], s[18:19] offset:16")
        if trace:
            o("    s_lshl_b32 s%d, s%d, 4" % (S_T, S_T))
            o("    s_add_u32 s%d, s%d, 0x10000" % (S_T, S_T))
            o("    v_lshlrev_b32 v2, 2, v0")
            o("    v_add_u32 v2, s%d, v2" % S_T)
            o("    global_store_dword v2, v%d, s[18:19]" % V_BV)
    o("L_end:")
    o("    s_endpgm")
    nvg = max(accum_offset + na, 264)
    o('.section .rodata,"a"')
    o(".p2align 6")
    o(".amdhsa_kernel %s_kernel" % NAME)
    o("  .amdhsa_next_free_vgpr %d" % nvg)
    o("  .amdhsa_next_free_sgpr %d" % (96 if pst else 88))
    o("  .amdhsa_accum_offset %d" % accum_offset)
    o("  .amdhsa_group_segment_fixed_size 0")
    o("  .amdhsa_kernarg_size 64")
    o("  .amdhsa_user_sgpr_count 2")
    o("  .amdhsa_user_sgpr_kernarg_segment_ptr 1")
    o("  .amdhsa_system_sgpr_workgroup_id_x 1")
    o("  .amdhsa_float_denorm_mode_32 3")
    o(".end_amdhsa_kernel")
    return "\n".join(L) + "\n"


if __name__ == "__main__":
    out = sys.argv[1]
    kw = {}
    for a in sys.argv[2:]:
        k, v = a.split("=")
        if k not in ("flags", "eflags", "oflags", "mlo", "mmid", "mhi", "cal", "aflags", "akind", "mpost", "mfirst"):
            v = int(v)
        kw[k] = v
    open(out, "w").write(gen(**kw))
```

```python
import sys

NAME = "standalone__low_rank_proj_linformer__sampling"
HEADER = open("cdna_kernels/%s.s.ref" % NAME).read().split("; Override launch")[0]

DOC = """
Linformer attention: kp = E.K, vp = F.V (rank 16), p = softmax(bf16(q.kp^T) * 128^-0.5), out = p.vp.
The kernel is bound by the 1 GiB read of K and V.

Work split: 256 workgroups x 4 waves, one workgroup per CU, two heads per workgroup.
A workgroup streams K(h0), V(h0), K(h1), V(h1); a round covers 128 rows (32 KiB), wave w takes
rows [32w, 32w+32).  Per round a wave issues 8 dwordx4 loads into a register ring (two rounds deep),
transposes 8x8 blocks with v_perm and accumulates E^T-fragment x data with 8 MFMA 16x16x32.
At the end of a matrix the four partial sums are added through LDS; one wave does the scores and the
softmax, all four waves do p.vp.  The first head's output stays in registers until the end.

Load-window balancing: the dies get unequal shares of the memory bandwidth, and the slowest die sets the
run time.  The loop body exists three times and differs only in how many loads it keeps in flight
(lo / mid / hi).  A few waves add their clock value to counters in d_debug at fixed iterations; the mean of
these reports gives the grid-wide progress line.  Once per iteration each wave compares its clock with
the line and picks the body: hi when it lags, lo when it leads.  The choice changes timing only, never
the result, and no wave ever waits on the clock or on another workgroup.
"""


def gen(flags="nt", eflags="sc1", oflags="", stamp=0, force=-1, ctl=1,
        mlo="5s", mmid="6p", mhi="8p", dhi=1, dlo=1, cal="9,25", lag=8, delta=0, eps=0, ps=0, pc=6,
        tail=0, notime=0, pre=0, noev=0, trace=0,
        doat=1, dold=1, aflags="sc1", akind="atomic", abase=16, wmap=0, amask=0, aval=0,
        ns=256, stag=4, noout=0, defer=0, bp=0, noE=0, mpost="", qwait=0, pstamp=0, fin=0, tsh=0, pst=0, early=0, pf=0, pfw=256, pro8=0, qm=0, m0=0, mfirst="", tw=0, pdec=1):
    LA, RS, ER, P = 4, 2, 2, 2
    cal = [int(x) for x in str(cal).split(",")]
    assert 2 <= len(cal) <= 4
    SLOT = [0, 128, 64, 192]
    nsh = ns.bit_length() - 1
    assert ns == 1 << nsh and ns >= 8 * stag
    st2 = stag - 1
    nobar = nocomp = rot = 0
    L = []
    o = L.append
    DS = 1088
    WS = 8 * DS
    LDS_P, LDS_KP, LDS_VP = 0, 512, 512 + 4 * WS
    lds = 512 + 8 * WS
    o(HEADER.rstrip())
    o("; @launch grid=(256,1,1) block=(256,1,1) lds=%d" % lds)
    for line in DOC.strip("\n").split("\n"):
        o(("; " + line).rstrip())
    o('.amdgcn_target "amdgcn-amd-amdhsa--gfx950"')
    o(".text")
    o(".globl %s_kernel" % NAME)
    o(".p2align 8")
    o(".type %s_kernel,@function" % NAME)
    o("%s_kernel:" % NAME)

    V_LANE, V_OFF, V_EOFF, V_PW, V_VR, V_OUT, V_X, V_Y = 0, 1, 2, 3, 4, 5, 6, 7
    ACC = 8
    T = 40
    MISC = 72
    V_BO, V_BV = MISC + 22, MISC + 23
    RING = 96
    V_DEF = RING + 32 * RS
    nv = V_DEF + 4
    assert nv <= 256
    A_Q = 0
    A_E = 16
    na = A_E + 4 * ER
    accum_offset = (nv + 3) // 4 * 4

    S_SELLO, S_SELHI, S_WAVE, S_OFF, S_EOFF, S_CNT, S_MI, S_LM = 20, 21, 22, 23, 24, 25, 26, 27
    S_PROG = 57
    SRD_D, SRD_P = 28, 32
    NXT_D, NXT_P = 36, 38
    SRD_Q, SRD_O = 40, 44
    S_T = 48

    o("    s_cmp_ge_u32 s2, 256")
    o("    s_cbranch_scc1 L_end")
    o("    s_load_dwordx16 s[4:19], s[0:1], 0")
    if stamp:
        o("    s_memrealtime s[60:61]")
    PST = [84, 86, 88, 90, 92, 94]

    def pstp(k):
        if pst:
            o("    s_memrealtime s[%d:%d]" % (PST[k], PST[k] + 1))

    def code_prefetch():
        if pfw < 256:
            o("    s_cmp_ge_u32 s2, %d" % pfw)
            o("    s_cbranch_scc1 L_nopfc")
        o("    s_getpc_b64 s[%d:%d]" % (S_T + 4, S_T + 5))
        o("L_pc:")
        o("    v_lshlrev_b32 v%d, 6, v%d" % (V_PW, V_TID))
        o("    v_min_u32 v%d, L_end-L_pc, v%d" % (V_PW, V_PW))
        o("    global_load_dword v%d, v%d, s[%d:%d]" % (V_DEF + 3, V_PW, S_T + 4, S_T + 5))
        if pfw < 256:
            o("L_nopfc:")

    V_TID = 0
    if pf:
        code_prefetch()
    o("    v_lshrrev_b32 v%d, 6, v0" % V_X)
    o("    v_and_b32 v%d, 63, v0" % V_LANE)
    o("    v_readfirstlane_b32 s%d, v%d" % (S_WAVE, V_X))
    if not early:
        o("    s_mov_b32 s%d, 0x05040100" % S_SELLO)
        o("    s_mov_b32 s%d, 0x07060302" % S_SELHI)
    o("    v_and_b32 v%d, 15, v%d" % (V_X, V_LANE))
    o("    v_lshrrev_b32 v%d, 4, v%d" % (V_Y, V_LANE))
    o("    v_lshlrev_b32 v%d, 4, v%d" % (V_OFF, V_X))
    o("    v_lshl_add_u32 v%d, v%d, 11, v%d" % (V_OFF, V_Y, V_OFF))
    if not early:
        o("    v_lshlrev_b32 v%d, 13, v%d" % (V_EOFF, V_X))
        o("    v_lshl_add_u32 v%d, v%d, 4, v%d" % (V_EOFF, V_Y, V_EOFF))
    o("    s_lshl_b32 s%d, s%d, 13" % (S_OFF, S_WAVE))
    S_EV, S_MODE, S_ACC, S_INC, S_TM, S_NOW, S_THI, S_TLO = 64, 65, 66, 67, 72, 74, 76, 77
    S_C1, S_C2, S_HI, S_OFF0, S_RP, S_OK = 68, 70, 78, 79, 80, 81

    def ctl_setup():
        U = S_T + 6 if early else S_T
        o("    s_mov_b32 s%d, %d" % (S_MODE, {-1: 0, 0: 0, 1: 1, 2: 2}[force]))
        if ctl:
            o("    s_mov_b32 s%d, 0" % S_PROG)
            o("    s_mov_b32 s%d, 0" % S_HI)
            o("    s_mov_b32 s%d, 0" % S_ACC)
            o("    s_mov_b32 s%d, 0" % S_INC)
            o("    s_mov_b32 s%d, 0" % S_TM)
            o("    s_mov_b32 s%d, 0" % S_NOW)
            o("    s_mov_b32 s%d, 0x7fffffff" % S_THI)
            o("    s_mov_b32 s%d, 0x80000000" % S_TLO)
            o("    s_lshr_b32 s%d, s2, 3" % U)
            o("    s_and_b32 s%d, s%d, %d" % (U, U, stag - 1))
            o("    s_mov_b32 s%d, 0x7fffffff" % S_RP)
            o("    s_mov_b32 s%d, 0" % (U + 1))
            for k, c in enumerate(cal):
                o("    s_cmp_eq_u32 s%d, %d" % (S_WAVE, (k + 1) & 3))
                o("    s_cselect_b32 s%d, %d, s%d" % (S_RP, c, S_RP))
                o("    s_cselect_b32 s%d, %d, s%d" % (U + 1, SLOT[k], U + 1))
            o("    v_mov_b32 v%d, s%d" % (V_BO, U + 1))
            o("    s_cmp_lg_u32 s%d, 0x7fffffff" % S_RP)
            o("    s_cselect_b32 s%d, s%d, 0" % (U, U))
            o("    s_add_u32 s%d, s%d, s%d" % (S_RP, S_RP, U))
            if ns < 256:
                o("    s_cmp_lt_u32 s2, %d" % ns)
                o("    s_cselect_b32 s%d, s%d, 0x7fffffff" % (S_RP, S_RP))
            if amask:
                o("    s_and_b32 s%d, s2, %d" % (U, amask))
                o("    s_cmp_eq_u32 s%d, %d" % (U, aval))
                o("    s_cselect_b32 s%d, s%d, 0x7fffffff" % (S_RP, S_RP))
            o("    s_mov_b32 s%d, %d" % (S_EV, cal[1] + lag))
            o("    s_mov_b32 s%d, 0" % S_OK)
            for r in range(S_C1, S_C1 + 4):
                o("    s_mov_b32 s%d, 0" % r)
        o("    s_mov_b32 s%d, 0" % S_LM)
        o("    s_mov_b32 s%d, 0" % S_MI)

    def srd_rest():
        o("    s_mov_b32 s%d, 8192" % (SRD_Q + 2))
        o("    s_mov_b32 s%d, 0x20000" % (SRD_Q + 3))
        o("    s_mov_b32 s%d, 8192" % (SRD_O + 2))
        o("    s_mov_b32 s%d, 0x20000" % (SRD_O + 3))

    if not early:
        o("    s_mov_b32 s%d, s%d" % (S_OFF0, S_OFF))
        ctl_setup()
        o("    s_lshr_b32 s%d, s%d, 7" % (S_EOFF, S_OFF))
    S_PAIR = S_T + 2
    if wmap == 0:
        o("    s_mov_b32 s%d, s2" % S_PAIR)
    elif wmap == 1:
        o("    s_and_b32 s%d, s2, 7" % S_PAIR)
        o("    s_lshl_b32 s%d, s%d, 5" % (S_PAIR, S_PAIR))
        o("    s_lshr_b32 s%d, s2, 3" % (S_T + 3))
        o("    s_or_b32 s%d, s%d, s%d" % (S_PAIR, S_PAIR, S_T + 3))
    elif wmap == 2:
        o("    s_lshr_b32 s%d, s2, 3" % (S_T + 3))
        o("    s_and_b32 s%d, s%d, 7" % (S_T + 3, S_T + 3))
        o("    s_xor_b32 s%d, s2, s%d" % (S_PAIR, S_T + 3))
    elif wmap == 3:
        o("    s_and_b32 s%d, s2, 7" % S_PAIR)
        o("    s_lshl_b32 s%d, s%d, 5" % (S_PAIR, S_PAIR))
        o("    s_lshr_b32 s%d, s2, 3" % (S_T + 3))
        o("    s_or_b32 s%d, s%d, s%d" % (S_PAIR, S_PAIR, S_T + 3))
        o("    s_and_b32 s%d, s%d, 7" % (S_T + 3, S_T + 3))
        o("    s_lshl_b32 s%d, s%d, 5" % (S_T + 3, S_T + 3))
        o("    s_xor_b32 s%d, s%d, s%d" % (S_PAIR, S_PAIR, S_T + 3))
    elif wmap == 4:
        o("    s_and_b32 s%d, s2, 7" % S_PAIR)
        o("    s_lshr_b32 s%d, s2, 3" % (S_T + 3))
        o("    s_lshl_b32 s%d, s%d, 2" % (S_T + 4, S_PAIR))
        o("    s_add_u32 s%d, s%d, s%d" % (S_T + 3, S_T + 3, S_T + 4))
        o("    s_and_b32 s%d, s%d, 31" % (S_T + 3, S_T + 3))
        o("    s_lshl_b32 s%d, s%d, 5" % (S_PAIR, S_PAIR))
        o("    s_or_b32 s%d, s%d, s%d" % (S_PAIR, S_PAIR, S_T + 3))
    elif wmap == 5:
        o("    s_brev_b32 s%d, s2" % S_PAIR)
        o("    s_lshr_b32 s%d, s%d, 24" % (S_PAIR, S_PAIR))
    elif wmap == 6:
        o("    s_bfe_u32 s%d, s2, 0x20001" % S_PAIR)
        o("    s_lshl_b32 s%d, s%d, 6" % (S_PAIR, S_PAIR))
        o("    s_lshr_b32 s%d, s2, 3" % (S_T + 3))
        o("    s_lshl_b32 s%d, s%d, 1" % (S_T + 3, S_T + 3))
        o("    s_or_b32 s%d, s%d, s%d" % (S_PAIR, S_PAIR, S_T + 3))
        o("    s_and_b32 s%d, s2, 1" % (S_T + 3))
        o("    s_or_b32 s%d, s%d, s%d" % (S_PAIR, S_PAIR, S_T + 3))
    elif wmap == 7:
        o("    s_and_b32 s%d, s2, 7" % S_PAIR)
        o("    s_lshl_b32 s%d, s%d, 3" % (S_PAIR, S_PAIR))
        o("    s_bfe_u32 s%d, s2, 0x30003" % (S_T + 3))
        o("    s_or_b32 s%d, s%d, s%d" % (S_PAIR, S_PAIR, S_T + 3))
        o("    s_lshr_b32 s%d, s2, 6" % (S_T + 3))
        o("    s_lshl_b32 s%d, s%d, 6" % (S_T + 3, S_T + 3))
        o("    s_or_b32 s%d, s%d, s%d" % (S_PAIR, S_PAIR, S_T + 3))
    o("    s_lshl_b32 s%d, s%d, 21" % (S_T, S_PAIR))
    o("    s_mov_b32 s%d, 0x100000" % (SRD_D + 2))
    o("    s_mov_b32 s%d, 0x20000" % (SRD_D + 3))
    if not early:
        o("    s_lshl_b32 s%d, s%d, 13" % (S_T + 1, S_PAIR))
        o("    s_mov_b32 s%d, 0x20000" % (SRD_P + 2))
        o("    s_mov_b32 s%d, 0x20000" % (SRD_P + 3))
        srd_rest()
    pstp(0)
    o("    s_waitcnt lgkmcnt(0)")
    if pstamp:
        o("    s_memrealtime s[82:83]")
    pstp(1)
    o("    s_add_u32 s%d, s6, s%d" % (SRD_D, S_T))
    o("    s_addc_u32 s%d, s7, 0" % (SRD_D + 1))
    if not early:
        o("    s_mov_b32 s%d, s10" % SRD_P)
        o("    s_mov_b32 s%d, s11" % (SRD_P + 1))

    def issue_E(step):
        if noE:
            return
        r = A_E + (step % ER) * 4
        o("    buffer_load_dwordx4 a[%d:%d], v%d, s[%d:%d], s%d offen %s" %
          (r, r + 3, V_EOFF, SRD_P, SRD_P + 3, S_EOFF, eflags))

    def issue_one(n):
        q, h = divmod(n, 2)
        a = q % 4
        slot = q % (4 * RS)
        i = 2 * a + h
        r = RING + (slot * 2 + h) * 4
        o("    buffer_load_dwordx4 v[%d:%d], v%d, s[%d:%d], s%d offen offset:%d %s" %
          (r, r + 3, V_OFF, SRD_D, SRD_D + 3, S_OFF, i * 256, flags))

    def issue_pair(q):
        issue_one(2 * q)
        issue_one(2 * q + 1)

    stubs = []
    events = []

    if not early:
        issue_E(0)
    for q in range(LA):
        issue_pair(q)
    if early:
        o("    v_lshlrev_b32 v%d, 13, v%d" % (V_EOFF, V_X))
        o("    v_lshl_add_u32 v%d, v%d, 4, v%d" % (V_EOFF, V_Y, V_EOFF))
        o("    s_lshr_b32 s%d, s%d, 7" % (S_EOFF, S_OFF))
        o("    s_mov_b32 s%d, s10" % SRD_P)
        o("    s_mov_b32 s%d, s11" % (SRD_P + 1))
        o("    s_mov_b32 s%d, 0x20000" % (SRD_P + 2))
        o("    s_mov_b32 s%d, 0x20000" % (SRD_P + 3))
        issue_E(0)
        o("    s_mov_b32 s%d, s%d" % (S_OFF0, S_OFF))
    if bp and not pro8:
        o("    s_add_u32 s%d, s%d, 0x8000" % (S_OFF, S_OFF))
        o("    s_lshr_b32 s%d, s%d, 7" % (S_EOFF, S_OFF))
        issue_one(8)
        issue_E(1)
        for n in range(9, 16):
            issue_one(n)
    pstp(2)
    if early:
        o("    s_mov_b32 s%d, 0x05040100" % S_SELLO)
        o("    s_mov_b32 s%d, 0x07060302" % S_SELHI)
        o("    s_lshl_b32 s%d, s%d, 13" % (S_T + 1, S_PAIR))
        srd_rest()
        ctl_setup()
    o("    s_add_u32 s%d, s8, s%d" % (NXT_D, S_T))
    o("    s_addc_u32 s%d, s9, 0" % (NXT_D + 1))
    o("    s_mov_b32 s%d, s12" % NXT_P)
    o("    s_mov_b32 s%d, s13" % (NXT_P + 1))
    o("    s_add_u32 s%d, s4, s%d" % (SRD_Q, S_T + 1))
    o("    s_addc_u32 s%d, s5, 0" % (SRD_Q + 1))
    o("    s_add_u32 s%d, s14, s%d" % (SRD_O, S_T + 1))
    o("    s_addc_u32 s%d, s15, 0" % (SRD_O + 1))
    def load_q(vx, vy, va, st):
        o("    v_lshlrev_b32 v%d, 8, v%d" % (va, vx))
        o("    v_lshl_add_u32 v%d, v%d, 6, v%d" % (va, vy, va))
        o("    s_lshr_b32 s%d, s%d, 1" % (st, S_WAVE))
        o("    s_lshl_b32 s%d, s%d, 12" % (st, st))
        for s in range(4):
            o("    buffer_load_dwordx4 a[%d:%d], v%d, s[%d:%d], s%d offen offset:%d" %
              (A_Q + 4 * s, A_Q + 4 * s + 3, va, SRD_Q, SRD_Q + 3, st, 16 * s))

    if qm == 0:
        load_q(V_X, V_Y, V_PW, S_T + 2)
    elif qm == 1:
        o("    s_bitcmp1_b32 s%d, 0" % S_WAVE)
        o("    s_cbranch_scc1 L_noq")
        load_q(V_X, V_Y, V_PW, S_T + 2)
        o("L_noq:")
    if tw:
        assert defer
        o("    v_and_b32 v%d, 3, v%d" % (V_PW, V_LANE))
        o("    v_lshlrev_b32 v%d, 19, v%d" % (V_PW, V_PW))
        o("    s_cmp_eq_u32 s%d, 1" % S_WAVE)
        o("    s_cbranch_scc0 L_tw1")
        o("    global_load_dword v%d, v%d, s[%d:%d]" % (V_DEF, V_PW, NXT_D, NXT_D + 1))
        o("L_tw1:")
        o("    s_cmp_eq_u32 s%d, 3" % S_WAVE)
        o("    s_cbranch_scc0 L_tw3")
        o("    v_mov_b32 v%d, 0" % V_PW)
        o("    buffer_load_dword v%d, v%d, s[%d:%d], 0 offen" % (V_DEF, V_PW, SRD_O, SRD_O + 3))
        o("    global_load_dword v%d, v%d, s[12:13]" % (V_DEF + 1, V_PW))
        o("L_tw3:")
    o("    v_lshlrev_b32 v%d, 8, v%d" % (V_OUT, V_X))
    o("    v_lshl_add_u32 v%d, v%d, 4, v%d" % (V_OUT, V_Y, V_OUT))
    o("    s_lshl_b32 s%d, s%d, 6" % (S_T + 2, S_WAVE))
    o("    v_add_u32 v%d, s%d, v%d" % (V_OUT, S_T + 2, V_OUT))
    o("    v_and_b32 v%d, 3, v%d" % (V_VR, V_X))
    o("    v_mul_u32_u24 v%d, %d, v%d" % (V_VR, DS, V_VR))
    o("    v_lshrrev_b32 v%d, 2, v%d" % (V_X, V_X))
    o("    v_lshl_add_u32 v%d, v%d, 4, v%d" % (V_X, V_Y, V_X))
    o("    v_lshl_add_u32 v%d, v%d, 4, v%d" % (V_VR, V_X, V_VR))
    o("    s_lshl_b32 s%d, s%d, 6" % (S_T + 2, S_WAVE))
    o("    s_add_u32 s%d, s%d, %d" % (S_T + 2, S_T + 2, LDS_VP))
    o("    v_add_u32 v%d, s%d, v%d" % (V_VR, S_T + 2, V_VR))
    o("    v_lshlrev_b32 v%d, 4, v%d" % (V_X, V_LANE))
    o("    s_mul_i32 s%d, s%d, %d" % (S_T + 2, S_WAVE, WS))
    o("    s_add_u32 s%d, s%d, %d" % (S_T + 2, S_T + 2, LDS_KP))
    o("    v_add_u32 v%d, s%d, v%d" % (V_PW, S_T + 2, V_X))
    for j in range(32):
        o("    v_mov_b32 v%d, 0" % (ACC + j))


    def allowed(n, req, e_done):
        cnt = n - 1 - req
        for qq in range(0, n // 2 + 1):
            if qq % 4 == 0 and 2 * qq >= req and (qq < n // 2 or e_done) and not noE:
                cnt += 1
        return cnt

    def wait_of(m, p, h, extra=0):
        q = p + LA
        n = 2 * q + h
        N, gr = int(m[:-1]), m[-1]
        if gr == "p":
            if h == 1:
                return None
            req = n - N + 1
        else:
            req = n - N
        if h == 0:
            req = max(req, 2 * p + 1)
        elif req <= 2 * p + 1:
            return None
        big = 8000
        return allowed(n + big, req + big, h == 1) + (extra if req <= 7 else 0)

    def decide(tag):
        T0 = S_T + 6
        o("    s_waitcnt lgkmcnt(0)")
        if not noev:
            o("    s_cmp_eq_u32 s%d, s%d" % (S_PROG, S_RP))
            o("    s_cbranch_scc1 L_rp_%s" % tag)
            o("L_rpr_%s:" % tag)
            o("    s_cmp_eq_u32 s%d, s%d" % (S_PROG, S_EV))
            o("    s_cbranch_scc1 L_ev_%s" % tag)
        o("L_evr_%s:" % tag)
        if trace:
            o("    s_mov_b32 m0, s%d" % S_PROG)
            o("    s_nop 0")
            o("    v_writelane_b32 v%d, s%d, m0" % (V_BV, S_NOW))
        o("    s_sub_u32 s%d, s%d, s%d" % (T0, S_NOW, S_TM))
        o("    s_lshl_b32 s%d, s%d, 6" % (T0, T0))
        o("    s_sub_u32 s%d, s%d, s%d" % (T0, T0, S_ACC))
        o("    s_add_u32 s%d, s%d, s%d" % (S_ACC, S_ACC, S_INC))
        o("    s_add_u32 s%d, s%d, 1" % (S_PROG, S_PROG))
        if force < 0 and tag == "post" and pdec != 1:
            if pdec == 0:
                o("    s_mov_b32 s%d, 0" % S_MODE)
        elif force < 0:
            o("    s_cmp_gt_i32 s%d, s%d" % (T0, S_THI))
            o("    s_cselect_b32 s%d, 1, 0" % S_MODE)
            o("    s_cmp_lt_i32 s%d, s%d" % (T0, S_TLO))
            o("    s_cselect_b32 s%d, 2, s%d" % (S_MODE, S_MODE))
        if tail:
            o("    s_cmp_ge_u32 s%d, %d" % (S_PROG, 64 - tail))
            o("    s_cselect_b32 s%d, 1, s%d" % (S_MODE, S_MODE))
        if fin:
            o("    s_cmp_eq_u32 s%d, %d" % (S_PROG, 64 - fin))
            o("    s_cselect_b32 s%d, 3, s%d" % (S_MODE, S_MODE))
        if stamp:
            o("    s_and_b32 s%d, s%d, 1" % (T0, S_MODE))
            o("    s_add_u32 s%d, s%d, s%d" % (S_HI, S_HI, T0))
            o("    s_and_b32 s%d, s%d, 2" % (T0, S_MODE))
            o("    s_lshl_b32 s%d, s%d, 7" % (T0, T0))
            o("    s_add_u32 s%d, s%d, s%d" % (S_HI, S_HI, T0))
        events.append(tag)

    def emit_events():
        T0, T1 = S_T + 6, S_T + 7
        for tag in events:
            if noev:
                continue
            o("L_rp_%s:" % tag)
            o("    v_mov_b32 v%d, s%d" % (V_BV - 3, S_NOW))
            o("    v_mov_b32 v%d, 0x100" % (V_BV - 2))
            o("    s_mov_b64 exec, 1")
            if doat and akind == "atomic":
                o("    global_atomic_add_x2 v%d, v[%d:%d], s[%d:%d] %s" % (V_BO, V_BV - 3, V_BV - 2, abase, abase + 1, aflags))
            elif doat and akind == "store":
                o("    global_store_dwordx2 v%d, v[%d:%d], s[%d:%d] %s" % (V_BO, V_BV - 3, V_BV - 2, abase, abase + 1, aflags))
            elif doat and akind == "load":
                o("    global_load_dwordx2 v[%d:%d], v%d, s[%d:%d] %s" % (V_BV - 3, V_BV - 2, V_BO, abase, abase + 1, aflags))
            o("    s_mov_b64 exec, -1")
            o("    s_branch L_rpr_%s" % tag)
            o("L_ev_%s:" % tag)
            for k in range(1, len(cal)):
                o("    s_cmp_eq_u32 s%d, %d" % (S_EV, cal[k] + lag))
                o("    s_cbranch_scc1 L_evl%d_%s" % (k, tag))
                o("    s_cmp_eq_u32 s%d, %d" % (S_EV, cal[k] + lag + 1))
                o("    s_cbranch_scc1 L_evc%d_%s" % (k, tag))
            o("    s_branch L_evr_%s" % tag)
            for k in range(1, len(cal)):
                jr = cal[k] + lag
                span = cal[k] - cal[k - 1]
                assert span in (8, 16)
                o("L_evl%d_%s:" % (k, tag))
                if k == 1 and dold:
                    o("    s_load_dwordx2 s[%d:%d], s[16:17], %d" % (S_C1, S_C1 + 1, SLOT[0]))
                if dold:
                    o("    s_load_dwordx2 s[%d:%d], s[16:17], %d" % (S_C2, S_C2 + 1, SLOT[k]))
                o("    s_mov_b32 s%d, %d" % (S_EV, jr + 1))
                o("    s_branch L_evr_%s" % tag)
                o("L_evc%d_%s:" % (k, tag))
                o("    s_mov_b32 s%d, %s" % (S_EV, "0x7fffffff" if k == len(cal) - 1 else str(cal[k + 1] + lag)))
                if k == 1:
                    o("    s_lshr_b64 s[%d:%d], s[%d:%d], %d" % (S_C1, S_C1 + 1, S_C1, S_C1 + 1, nsh))
                o("    s_lshr_b64 s[%d:%d], s[%d:%d], %d" % (S_C2, S_C2 + 1, S_C2, S_C2 + 1, nsh))
                o("    s_and_b32 s%d, s%d, s%d" % (T0, S_C1 + 1, S_C2 + 1))
                o("    s_sub_u32 s%d, s%d, s%d" % (T1, S_C2, S_C1))
                o("    s_mov_b32 s%d, s%d" % (S_C1, S_C2))
                o("    s_mov_b32 s%d, s%d" % (S_C1 + 1, S_C2 + 1))
                o("    s_cmp_lg_u32 s%d, 256" % T0)
                o("    s_cbranch_scc1 L_evr_%s" % tag)
                if stamp:
                    o("    s_add_u32 s%d, s%d, 0x10000" % (S_HI, S_HI))
                if span == 8:
                    o("    s_lshl_b32 s%d, s%d, 1" % (T1, T1))
                o("    s_mov_b32 s%d, s%d" % (S_TM, S_C1))
                o("    s_lshl_b32 s%d, s%d, 2" % (S_INC, T1))
                o("    s_mul_i32 s%d, s%d, %d" % (S_ACC, T1, 4 * (jr + 1) - (4 * cal[k] + 2 * st2) + delta))
                o("    s_mul_i32 s%d, s%d, %d" % (S_THI, T1, dhi))
                o("    s_mul_i32 s%d, s%d, %d" % (S_TLO, T1, -dlo))
                if tsh:
                    o("    s_ashr_i32 s%d, s%d, %d" % (S_THI, S_THI, tsh))
                    o("    s_ashr_i32 s%d, s%d, %d" % (S_TLO, S_TLO, tsh))
                if eps:
                    o("    s_mul_i32 s%d, s%d, %d" % (T0, T1, eps))
                    o("    s_ashr_i32 s%d, s%d, 6" % (T0, T0))
                    o("    s_sub_u32 s%d, s%d, s%d" % (S_INC, S_INC, T0))
                o("    s_branch L_evr_%s" % tag)

    def body(mode, m, post=False, extra=0):
        o("L_body_%s:" % mode)
        for p in range(8):
            s, a = divmod(p, 4)
            q = p + LA
            if p == 0 and not post:
                o("    s_add_u32 s%d, s%d, 0x8000" % (S_OFF, S_OFF))
                o("    s_lshr_b32 s%d, s%d, 7" % (S_EOFF, S_OFF))
            if p == 4:
                o("    s_add_u32 s%d, s%d, 0x8000" % (S_OFF, S_OFF))
                if not post:
                    o("    s_cmp_eq_u32 s%d, 1" % S_CNT)
                    o("    s_cbranch_scc1 L_sw_%s" % mode)
                    o("L_swr_%s:" % mode)
                    stubs.append(mode)
                o("    s_lshr_b32 s%d, s%d, 7" % (S_EOFF, S_OFF))
            if ctl and p == pc and pre:
                decide(mode)
                if ps == pc and not notime:
                    o("    s_memrealtime s[%d:%d]" % (S_NOW, S_NOW + 1))
            if post and p < 4:
                younger = 15 - (2 * p + 1) + (0 if noE else 1)
                o("    s_waitcnt vmcnt(%d)" % younger)
                if pst and not pro8 and p in (0, 3):
                    o("    s_cmp_eq_u32 s%d, 0" % S_MI)
                    o("    s_cbranch_scc0 L_nopst%d" % p)
                    pstp(4 if p == 0 else 5)
                    o("L_nopst%d:" % p)
            else:
                for h in range(2):
                    w = wait_of(m, p, h, extra)
                    if w is not None:
                        o("    s_waitcnt vmcnt(%d)" % w)
                    if h == 0 and q % 4 == 0:
                        issue_one(2 * q)
                        issue_E(q // 4)
                    else:
                        issue_one(2 * q + h)
                if pst and pro8 and p in (0, 3):
                    o("    s_cmp_eq_u32 s%d, 0" % S_PROG)
                    o("    s_cbranch_scc0 L_nopst%d_%s" % (p, mode))
                    pstp(4 if p == 0 else 5)
                    o("L_nopst%d_%s:" % (p, mode))
            if ctl and p == ps and ps != pc and not notime:
                o("    s_memrealtime s[%d:%d]" % (S_NOW, S_NOW + 1))
            if ctl and p == pc and not pre:
                decide(mode)
                if ps == pc and not notime:
                    o("    s_memrealtime s[%d:%d]" % (S_NOW, S_NOW + 1))
            slot = p % (4 * RS)
            xb = RING + slot * 8
            yb = xb + 4
            for c in range(4):
                o("    v_perm_b32 v%d, v%d, v%d, s%d" % (T + (2 * c) * 4 + a, yb + c, xb + c, S_SELLO))
                o("    v_perm_b32 v%d, v%d, v%d, s%d" % (T + (2 * c + 1) * 4 + a, yb + c, xb + c, S_SELHI))
            if a == 3:
                e = A_E + (s % ER) * 4
                o("    s_nop 1")
                for dd in range(8):
                    acc = ACC + dd * 4
                    o("    v_mfma_f32_16x16x32_bf16 v[%d:%d], a[%d:%d], v[%d:%d], v[%d:%d]" %
                      (acc, acc + 3, e, e + 3, T + dd * 4, T + dd * 4 + 3, acc, acc + 3))
        o("    s_sub_u32 s%d, s%d, 1" % (S_CNT, S_CNT))
        if not post:
            o("    s_cmp_eq_u32 s%d, 0" % S_CNT)
            o("    s_cbranch_scc1 L_matend")

    def body_fin():
        o("L_body_fin:")
        o("    s_add_u32 s%d, s%d, 0x8000" % (S_OFF, S_OFF))
        o("    s_lshr_b32 s%d, s%d, 7" % (S_EOFF, S_OFF))
        issue_one(8)
        issue_E(1)
        for n in range(9, 16):
            issue_one(n)
        for p in range(8):
            s, a = divmod(p, 4)
            younger = 15 - (2 * p + 1) + (1 if (p < 4 and not noE) else 0)
            o("    s_waitcnt vmcnt(%d)" % younger)
            xb = RING + p * 8
            yb = xb + 4
            for c in range(4):
                o("    v_perm_b32 v%d, v%d, v%d, s%d" % (T + (2 * c) * 4 + a, yb + c, xb + c, S_SELLO))
                o("    v_perm_b32 v%d, v%d, v%d, s%d" % (T + (2 * c + 1) * 4 + a, yb + c, xb + c, S_SELHI))
            if a == 3:
                e = A_E + (s % ER) * 4
                o("    s_nop 1")
                for dd in range(8):
                    acc = ACC + dd * 4
                    o("    v_mfma_f32_16x16x32_bf16 v[%d:%d], a[%d:%d], v[%d:%d], v[%d:%d]" %
                      (acc, acc + 3, e, e + 3, T + dd * 4, T + dd * 4 + 3, acc, acc + 3))
        o("    s_branch L_matend")

    pstp(3)
    if pro8 and bp:
        o("    s_mov_b32 s%d, 16" % S_CNT)
        if m0:
            o("    s_mov_b32 s%d, %d" % (S_MODE, m0))
        if mfirst:
            assert qm in (0, 1)
            if qm == 1:
                o("    s_bitcmp1_b32 s%d, 0" % S_WAVE)
                o("    s_cbranch_scc1 L_dispatch")
            o("    s_branch L_body_first")
        else:
            o("    s_branch L_dispatch")
    o("L_outer:")
    o("    s_mov_b32 s%d, 16" % S_CNT)
    if bp:
        o("; first iteration of a matrix: both rounds were issued ahead of the previous handler")
        body("post", mpost or mmid, post=True)
    o("L_dispatch:")
    modes = [("mid", mmid)]
    if (ctl and force < 0) or force == 1 or tail:
        modes.append(("hi", mhi))
        o("    s_cmp_eq_u32 s%d, 1" % S_MODE)
        o("    s_cbranch_scc1 L_body_hi")
    if (ctl and force < 0) or force == 2:
        modes.append(("lo", mlo))
        o("    s_cmp_eq_u32 s%d, 2" % S_MODE)
        o("    s_cbranch_scc1 L_body_lo")
    if fin:
        assert ctl
        o("    s_cmp_eq_u32 s%d, 3" % S_MODE)
        o("    s_cbranch_scc1 L_body_fin")
    for mode, m in modes:
        body(mode, m)
        o("    s_branch L_dispatch")
    if mfirst:
        body("first", mfirst, extra=4)
        o("    s_branch L_dispatch")
    if fin:
        body_fin()
    o("L_matend:")
    if bp:
        o("    s_cmp_eq_u32 s%d, 3" % S_MI)
        o("    s_cbranch_scc1 L_nopf")
        o("    s_add_u32 s%d, s%d, 0x8000" % (S_OFF, S_OFF))
        o("    s_lshr_b32 s%d, s%d, 7" % (S_EOFF, S_OFF))
        issue_one(8)
        issue_E(1)
        for n in range(9, 16):
            issue_one(n)
        o("L_nopf:")
    o("    s_and_b32 s%d, s%d, 1" % (S_T, S_MI))
    o("    s_mul_i32 s%d, s%d, %d" % (S_T + 1, S_T, 4 * WS))
    o("    v_add_u32 v%d, s%d, v%d" % (V_X, S_T + 1, V_PW))
    o("    s_nop 7")
    if ctl:
        o("    s_waitcnt lgkmcnt(0)")
    for dd in range(8):
        o("    ds_write_b128 v%d, v[%d:%d] offset:%d" % (V_X, ACC + 4 * dd, ACC + 4 * dd + 3, dd * DS))
    o("    s_waitcnt lgkmcnt(0)")
    o("    s_barrier")
    o("    s_cmp_eq_u32 s%d, 1" % S_T)
    o("    s_cbranch_scc1 L_vend")
    o("    s_cmp_lg_u32 s%d, s%d" % (S_WAVE, S_MI))
    o("    s_cbranch_scc1 L_mat_done")
    SUM, TMP, PA = ACC, T, MISC
    o("    v_lshlrev_b32 v%d, 4, v%d" % (V_X, V_LANE))
    for w in range(4):
        dst = SUM if w == 0 else TMP
        for dd in range(8):
            o("    ds_read_b128 v[%d:%d], v%d offset:%d" %
              (dst + 4 * dd, dst + 4 * dd + 3, V_X, LDS_KP + w * WS + dd * DS))
        if w > 0:
            for dd in range(8):
                o("    s_waitcnt lgkmcnt(%d)" % (7 - dd))
                for i in range(4):
                    o("    v_add_f32 v%d, v%d, v%d" % (SUM + 4 * dd + i, SUM + 4 * dd + i, TMP + 4 * dd + i))
    for dd in range(8):
        o("    v_cvt_pk_bf16_f32 v%d, v%d, v%d" % (PA + 2 * dd, SUM + 4 * dd, SUM + 4 * dd + 1))
        o("    v_cvt_pk_bf16_f32 v%d, v%d, v%d" % (PA + 2 * dd + 1, SUM + 4 * dd + 2, SUM + 4 * dd + 3))
    ID = MISC + 16
    o("    v_and_b32 v%d, 15, v%d" % (V_X, V_LANE))
    o("    v_lshrrev_b32 v%d, 4, v%d" % (V_Y, V_LANE))
    o("    v_lshlrev_b32 v%d, 2, v%d" % (V_Y, V_Y))
    o("    v_sub_u32 v%d, v%d, v%d" % (V_X, V_X, V_Y))
    o("    v_mov_b32 v%d, 0" % ID)
    o("    v_mov_b32 v%d, 0" % (ID + 1))
    o("    v_mov_b32 v%d, 0x3f80" % (ID + 2))
    o("    v_mov_b32 v%d, 0x3f800000" % (ID + 3))
    for j, (dst, src) in enumerate(((ID, ID + 2), (ID, ID + 3), (ID + 1, ID + 2), (ID + 1, ID + 3))):
        o("    v_cmp_eq_u32 vcc, %d, v%d" % (j, V_X))
        o("    s_nop 1")
        o("    v_cndmask_b32 v%d, v%d, v%d, vcc" % (dst, dst, src))
    o("    s_nop 1")
    for dd in range(8):
        o("    v_mfma_f32_16x16x16_bf16 v[%d:%d], v[%d:%d], v[%d:%d], 0" %
          (TMP + 4 * dd, TMP + 4 * dd + 3, PA + 2 * dd, PA + 2 * dd + 1, ID, ID + 1))
    o("    s_nop 7")
    PB = SUM
    for s in range(4):
        for j in range(4):
            o("    v_cvt_pk_bf16_f32 v%d, v%d, v%d" %
              (PB + 4 * s + j, TMP + (2 * j) * 4 + s, TMP + (2 * j + 1) * 4 + s))
    SC = SUM + 16
    if qwait:
        o("    s_waitcnt vmcnt(0)")
    if qm == 2:
        assert bp and not noE
        o("    s_waitcnt vmcnt(18)")
    for s in range(4):
        c = "0" if s == 0 else "v[%d:%d]" % (SC, SC + 3)
        o("    v_mfma_f32_16x16x32_bf16 v[%d:%d], v[%d:%d], a[%d:%d], %s" %
          (SC, SC + 3, PB + 4 * s, PB + 4 * s + 3, A_Q + 4 * s, A_Q + 4 * s + 3, c))
    o("    s_mov_b32 s%d, 0x3db504f3" % (S_T + 2))
    o("    s_mov_b32 s%d, 0x3fb8aa3b" % (S_T + 3))
    o("    s_nop 7")
    W = SUM + 20
    M = SUM + 22

    def round_bf16():
        o("    v_cvt_pk_bf16_f32 v%d, v%d, v%d" % (W, SC, SC + 1))
        o("    v_cvt_pk_bf16_f32 v%d, v%d, v%d" % (W + 1, SC + 2, SC + 3))
        o("    v_lshlrev_b32 v%d, 16, v%d" % (SC, W))
        o("    v_and_b32 v%d, 0xffff0000, v%d" % (SC + 1, W))
        o("    v_lshlrev_b32 v%d, 16, v%d" % (SC + 2, W + 1))
        o("    v_and_b32 v%d, 0xffff0000, v%d" % (SC + 3, W + 1))

    round_bf16()
    for i in range(4):
        o("    v_mul_f32 v%d, s%d, v%d" % (SC + i, S_T + 2, SC + i))
    round_bf16()
    o("    v_max_f32 v%d, v%d, v%d" % (M, SC, SC + 1))
    o("    v_max3_f32 v%d, v%d, v%d, v%d" % (M, SC + 2, SC + 3, M))

    def xlane(op, reg, tmp):
        for sw in ("v_permlane32_swap_b32", "v_permlane16_swap_b32"):
            o("    v_mov_b32 v%d, v%d" % (tmp, reg))
            o("    s_nop 1")
            o("    %s v%d, v%d" % (sw, reg, tmp))
            o("    s_nop 1")
            o("    %s v%d, v%d, v%d" % (op, reg, reg, tmp))

    xlane("v_max_f32", M, M + 1)
    for i in range(4):
        o("    v_sub_f32 v%d, v%d, v%d" % (SC + i, SC + i, M))
    for i in range(4):
        o("    v_mul_f32 v%d, s%d, v%d" % (SC + i, S_T + 3, SC + i))
    for i in range(4):
        o("    v_exp_f32 v%d, v%d" % (SC + i, SC + i))
    o("    s_nop 0")
    o("    v_add_f32 v%d, v%d, v%d" % (M, SC, SC + 1))
    o("    v_add_f32 v%d, v%d, v%d" % (M + 1, SC + 2, SC + 3))
    o("    v_add_f32 v%d, v%d, v%d" % (M, M, M + 1))
    xlane("v_add_f32", M, M + 1)
    o("    v_rcp_f32 v%d, v%d" % (M, M))
    o("    s_nop 0")
    for i in range(4):
        o("    v_mul_f32 v%d, v%d, v%d" % (SC + i, SC + i, M))
    o("    v_cvt_pk_bf16_f32 v%d, v%d, v%d" % (W, SC, SC + 1))
    o("    v_cvt_pk_bf16_f32 v%d, v%d, v%d" % (W + 1, SC + 2, SC + 3))
    o("    v_lshlrev_b32 v%d, 3, v%d" % (V_X, V_LANE))
    o("    ds_write_b64 v%d, v[%d:%d] offset:%d" % (V_X, W, W + 1, LDS_P))
    o("    s_waitcnt lgkmcnt(0)")
    o("    s_branch L_mat_done")

    o("L_vend:")
    PP = MISC
    o("    v_lshlrev_b32 v%d, 3, v%d" % (V_X, V_LANE))
    o("    ds_read_b64 v[%d:%d], v%d offset:%d" % (PP, PP + 1, V_X, LDS_P))
    for w in range(4):
        for h in range(2):
            r = T + (w * 2 + h) * 4
            o("    ds_read_b128 v[%d:%d], v%d offset:%d" % (r, r + 3, V_VR, w * WS + h * 4 * DS))
    o("    s_waitcnt lgkmcnt(4)")
    for j in range(8):
        o("    v_add_f32 v%d, v%d, v%d" % (T + j, T + j, T + 8 + j))
    o("    s_waitcnt lgkmcnt(0)")
    for j in range(8):
        o("    v_add_f32 v%d, v%d, v%d" % (T + 16 + j, T + 16 + j, T + 24 + j))
    for j in range(8):
        o("    v_add_f32 v%d, v%d, v%d" % (T + j, T + j, T + 16 + j))
    VB = MISC + 4
    for h in range(2):
        o("    v_cvt_pk_bf16_f32 v%d, v%d, v%d" % (VB + 2 * h, T + 4 * h, T + 4 * h + 1))
        o("    v_cvt_pk_bf16_f32 v%d, v%d, v%d" % (VB + 2 * h + 1, T + 4 * h + 2, T + 4 * h + 3))
    OO = T + 16
    o("    s_lshr_b32 s%d, s%d, 1" % (S_T + 2, S_MI))
    o("    s_lshl_b32 s%d, s%d, 12" % (S_T + 2, S_T + 2))
    for h in range(2):
        o("    v_mfma_f32_16x16x16_bf16 v[%d:%d], v[%d:%d], v[%d:%d], 0" %
          (OO + 4 * h, OO + 4 * h + 3, VB + 2 * h, VB + 2 * h + 1, PP, PP + 1))
    o("    s_nop 7")
    for i in range(4):
        o("    v_cvt_pk_bf16_f32 v%d, v%d, v%d" % (MISC + 8 + i, OO + 2 * i, OO + 2 * i + 1))
    if noout or defer:
        o("    s_cmp_eq_u32 s%d, 1" % S_MI)
        o("    s_cbranch_scc0 L_store")
        if defer:
            for i in range(4):
                o("    v_mov_b32 v%d, v%d" % (V_DEF + i, MISC + 8 + i))
        o("    s_branch L_mat_done")
        o("L_store:")
        if defer:
            o("    buffer_store_dwordx4 v[%d:%d], v%d, s[%d:%d], 0 offen %s" %
              (V_DEF, V_DEF + 3, V_OUT, SRD_O, SRD_O + 3, oflags))
    o("    buffer_store_dwordx4 v[%d:%d], v%d, s[%d:%d], s%d offen %s" %
      (MISC + 8, MISC + 11, V_OUT, SRD_O, SRD_O + 3, S_T + 2, oflags))

    o("L_mat_done:")
    o("    s_add_u32 s%d, s%d, 1" % (S_MI, S_MI))
    o("    s_cmp_eq_u32 s%d, 4" % S_MI)
    o("    s_cbranch_scc1 L_fin")
    for j in range(32):
        o("    v_mov_b32 v%d, 0" % (ACC + j))
    o("    s_branch L_outer")

    if ctl:
        o("; ---- progress reports (L_rp) and progress line updates (L_ev) ----")
        emit_events()
    o("; ---- load side moves on to the next matrix ----")
    for tag in stubs:
        o("L_sw_%s:" % tag)
        if qm == 2:
            o("    s_cmp_lg_u32 s%d, s%d" % (S_LM, S_WAVE))
            o("    s_cbranch_scc1 L_swq_%s" % tag)
            o("    s_bitcmp1_b32 s%d, 0" % S_WAVE)
            o("    s_cbranch_scc1 L_swq_%s" % tag)
            o("    v_and_b32 v%d, 15, v%d" % (V_X, V_LANE))
            o("    v_lshrrev_b32 v%d, 4, v%d" % (V_Y, V_LANE))
            load_q(V_X, V_Y, V_X, S_T + 6)
            o("L_swq_%s:" % tag)
        o("    s_mov_b32 s%d, s%d" % (S_OFF, S_OFF0))
        o("    s_add_u32 s%d, s%d, 0x100000" % (S_T + 4, SRD_D))
        o("    s_addc_u32 s%d, s%d, 0" % (S_T + 5, SRD_D + 1))
        o("    s_mov_b32 s%d, s%d" % (SRD_D, NXT_D))
        o("    s_mov_b32 s%d, s%d" % (SRD_D + 1, NXT_D + 1))
        o("    s_mov_b32 s%d, s%d" % (NXT_D, S_T + 4))
        o("    s_mov_b32 s%d, s%d" % (NXT_D + 1, S_T + 5))
        o("    s_mov_b32 s%d, s%d" % (S_T + 4, SRD_P))
        o("    s_mov_b32 s%d, s%d" % (S_T + 5, SRD_P + 1))
        o("    s_mov_b32 s%d, s%d" % (SRD_P, NXT_P))
        o("    s_mov_b32 s%d, s%d" % (SRD_P + 1, NXT_P + 1))
        o("    s_mov_b32 s%d, s%d" % (NXT_P, S_T + 4))
        o("    s_mov_b32 s%d, s%d" % (NXT_P + 1, S_T + 5))
        o("    s_add_u32 s%d, s%d, 1" % (S_LM, S_LM))
        o("    s_cmp_eq_u32 s%d, 4" % S_LM)
        o("    s_cselect_b32 s%d, 0, 0x100000" % (SRD_D + 2))
        o("    s_cselect_b32 s%d, 0, 0x20000" % (SRD_P + 2))
        o("    s_branch L_swr_%s" % tag)

    o("L_fin:")
    if stamp:
        o("    s_waitcnt vmcnt(0)")
        o("    s_memrealtime s[62:63]")
        o("    s_getreg_b32 s58, hwreg(HW_REG_XCC_ID)")
        o("    s_getreg_b32 s59, hwreg(HW_REG_HW_ID)")
        o("    s_waitcnt lgkmcnt(0)")
        o("    s_lshl_b32 s%d, s2, 2" % S_T)
        o("    s_add_u32 s%d, s%d, s%d" % (S_T, S_T, S_WAVE))
        o("    s_lshl_b32 s%d, s%d, 4" % (S_T, S_T))
        o("    v_mov_b32 v4, s60")
        o("    v_mov_b32 v5, s62")
        o("    v_mov_b32 v6, s58")
        if pstamp:
            o("    s_sub_u32 s82, s82, s60")
        o("    v_mov_b32 v7, s%d" % (82 if pstamp else (S_HI if ctl else 59)))
        o("    v_mov_b32 v2, s%d" % S_T)
        o("    global_store_dwordx4 v2, v[4:7], s[18:19]")
        if pst:
            o("    s_lshl_b32 s%d, s%d, 1" % (S_T + 1, S_T))
            o("    s_add_u32 s%d, s%d, 0x60000" % (S_T + 1, S_T + 1))
            o("    v_mov_b32 v2, s%d" % (S_T + 1))
            for k in range(6):
                o("    s_sub_u32 s%d, s%d, s60" % (PST[k], PST[k]))
                o("    v_mov_b32 v%d, s%d" % (8 + k, PST[k]))
            o("    global_store_dwordx4 v2, v[8:11], s[18:19]")
            o("    global_store_dwordx2 v2, v[12:13], s[18:19] offset:16")
        if trace:
            o("    s_lshl_b32 s%d, s%d, 4" % (S_T, S_T))
            o("    s_add_u32 s%d, s%d, 0x10000" % (S_T, S_T))
            o("    v_lshlrev_b32 v2, 2, v0")
            o("    v_add_u32 v2, s%d, v2" % S_T)
            o("    global_store_dword v2, v%d, s[18:19]" % V_BV)
    o("L_end:")
    o("    s_endpgm")
    nvg = max(accum_offset + na, 264)
    o('.section .rodata,"a"')
    o(".p2align 6")
    o(".amdhsa_kernel %s_kernel" % NAME)
    o("  .amdhsa_next_free_vgpr %d" % nvg)
    o("  .amdhsa_next_free_sgpr %d" % (96 if pst else 88))
    o("  .amdhsa_accum_offset %d" % accum_offset)
    o("  .amdhsa_group_segment_fixed_size 0")
    o("  .amdhsa_kernarg_size 64")
    o("  .amdhsa_user_sgpr_count 2")
    o("  .amdhsa_user_sgpr_kernarg_segment_ptr 1")
    o("  .amdhsa_system_sgpr_workgroup_id_x 1")
    o("  .amdhsa_float_denorm_mode_32 3")
    o(".end_amdhsa_kernel")
    return "\n".join(L) + "\n"


if __name__ == "__main__":
    out = sys.argv[1]
    kw = {}
    for a in sys.argv[2:]:
        k, v = a.split("=")
        if k not in ("flags", "eflags", "oflags", "mlo", "mmid", "mhi", "cal", "aflags", "akind", "mpost", "mfirst"):
            v = int(v)
        kw[k] = v
    open(out, "w").write(gen(**kw))
```

```python
import sys

NAME = "standalone__low_rank_proj_linformer__sampling"
HEADER = open("cdna_kernels/%s.s.ref" % NAME).read().split("; Override launch")[0]

DOC = """
Linformer attention: kp = E.K, vp = F.V (rank 16), p = softmax(bf16(q.kp^T) * 128^-0.5), out = p.vp.
The kernel is bound by the 1 GiB read of K and V.

Work split: 256 workgroups x 4 waves, one workgroup per CU, two heads per workgroup.
A workgroup streams K(h0), V(h0), K(h1), V(h1); a round covers 128 rows (32 KiB), wave w takes
rows [32w, 32w+32).  Per round a wave issues 8 dwordx4 loads into a register ring (two rounds deep),
transposes 8x8 blocks with v_perm and accumulates E^T-fragment x data with 8 MFMA 16x16x32.
At the end of a matrix the four partial sums are added through LDS; one wave does the scores and the
softmax, all four waves do p.vp.  The first head's output stays in registers until the end.

Load-window balancing: the dies get unequal shares of the memory bandwidth, and the slowest die sets the
run time.  The loop body exists three times and differs only in how many loads it keeps in flight
(lo / mid / hi).  A few waves add their clock value to counters in d_debug at fixed iterations; the mean of
these reports gives the grid-wide progress line.  Once per iteration each wave compares its clock with
the line and picks the body: hi when it lags, lo when it leads.  The choice changes timing only, never
the result, and no wave ever waits on the clock or on another workgroup.
"""


def gen(flags="nt", eflags="sc1", oflags="", stamp=0, force=-1, ctl=1,
        mlo="5s", mmid="6p", mhi="8p", dhi=1, dlo=1, cal="9,25", lag=8, delta=0, eps=0, ps=0, pc=6,
        tail=0, notime=0, pre=0, noev=0, trace=0,
        doat=1, dold=1, aflags="sc1", akind="atomic", abase=16, wmap=0, amask=0, aval=0,
        ns=256, stag=4, noout=0, defer=0, bp=0, noE=0, mpost="", qwait=0, pstamp=0, fin=0, tsh=0, pst=0, early=0, pf=0, pfw=256, pro8=0, qm=0, m0=0, mfirst="", tw=0, pdec=1, wa=0, rot=0, gp=11, wp=13, xm=""):
    LA, RS, ER, P = 4, 2, 2, 2
    cal = [int(x) for x in str(cal).split(",")]
    assert 2 <= len(cal) <= 4
    SLOT = [0, 128, 64, 192]
    nsh = ns.bit_length() - 1
    assert ns == 1 << nsh and ns >= 8 * stag
    st2 = stag - 1
    nobar = nocomp = 0
    general = (gp, wp, xm) != (11, 13, "")
    holes = (3 << gp) | (3 << wp)
    assert not ((3 << gp) & (3 << wp)) and 11 <= gp <= 18 and 11 <= wp <= 18
    sbits = [b for b in range(11, 20) if not (holes >> b) & 1]
    xml = [tuple(int(y) for y in x.split(":")) for x in xm.split(",")] if xm else []
    if general:
        assert wa == 0 and rot == 0 and not early
    L = []
    o = L.append
    DS = 1088
    WS = 8 * DS
    LDS_P, LDS_KP, LDS_VP = 0, 512, 512 + 4 * WS
    lds = 512 + 8 * WS
    o(HEADER.rstrip())
    o("; @launch grid=(256,1,1) block=(256,1,1) lds=%d" % lds)
    for line in DOC.strip("\n").split("\n"):
        o(("; " + line).rstrip())
    o('.amdgcn_target "amdgcn-amd-amdhsa--gfx950"')
    o(".text")
    o(".globl %s_kernel" % NAME)
    o(".p2align 8")
    o(".type %s_kernel,@function" % NAME)
    o("%s_kernel:" % NAME)

    V_LANE, V_OFF, V_EOFF, V_PW, V_VR, V_OUT, V_X, V_Y = 0, 1, 2, 3, 4, 5, 6, 7
    ACC = 8
    T = 40
    MISC = 72
    V_BO, V_BV = MISC + 22, MISC + 23
    RING = 96
    V_DEF = RING + 32 * RS
    nv = V_DEF + 4
    assert nv <= 256
    A_Q = 0
    A_E = 16
    na = A_E + 4 * ER
    accum_offset = (nv + 3) // 4 * 4

    S_SELLO, S_SELHI, S_WAVE, S_OFF, S_EOFF, S_CNT, S_MI, S_LM = 20, 21, 22, 23, 24, 25, 26, 27
    S_PROG = 57
    SRD_D, SRD_P = 28, 32
    NXT_D, NXT_P = 36, 38
    SRD_Q, SRD_O = 40, 44
    S_T = 48

    o("    s_cmp_ge_u32 s2, 256")
    o("    s_cbranch_scc1 L_end")
    o("    s_load_dwordx16 s[4:19], s[0:1], 0")
    if stamp:
        o("    s_memrealtime s[60:61]")
    PST = [84, 86, 88, 90, 92, 94]

    def pstp(k):
        if pst:
            o("    s_memrealtime s[%d:%d]" % (PST[k], PST[k] + 1))

    def code_prefetch():
        if pfw < 256:
            o("    s_cmp_ge_u32 s2, %d" % pfw)
            o("    s_cbranch_scc1 L_nopfc")
        o("    s_getpc_b64 s[%d:%d]" % (S_T + 4, S_T + 5))
        o("L_pc:")
        o("    v_lshlrev_b32 v%d, 6, v%d" % (V_PW, V_TID))
        o("    v_min_u32 v%d, L_end-L_pc, v%d" % (V_PW, V_PW))
        o("    global_load_dword v%d, v%d, s[%d:%d]" % (V_DEF + 3, V_PW, S_T + 4, S_T + 5))
        if pfw < 256:
            o("L_nopfc:")

    V_TID = 0
    if pf:
        code_prefetch()
    o("    v_lshrrev_b32 v%d, 6, v0" % V_X)
    o("    v_and_b32 v%d, 63, v0" % V_LANE)
    o("    v_readfirstlane_b32 s%d, v%d" % (S_WAVE, V_X))
    if not early:
        o("    s_mov_b32 s%d, 0x05040100" % S_SELLO)
        o("    s_mov_b32 s%d, 0x07060302" % S_SELHI)
    o("    v_and_b32 v%d, 15, v%d" % (V_X, V_LANE))
    o("    v_lshrrev_b32 v%d, 4, v%d" % (V_Y, V_LANE))
    o("    v_lshlrev_b32 v%d, 4, v%d" % (V_OFF, V_X))
    o("    v_lshl_add_u32 v%d, v%d, %d, v%d" % (V_OFF, V_Y, gp, V_OFF))
    if not early:
        o("    v_lshlrev_b32 v%d, 13, v%d" % (V_EOFF, V_X))
        o("    v_lshl_add_u32 v%d, v%d, %d, v%d" % (V_EOFF, V_Y, gp - 7, V_EOFF))
    S_STP = 56
    o("    s_lshl_b32 s%d, s%d, %d" % (S_OFF, S_WAVE, wp if general else 13 + wa))
    if general:
        o("    s_mov_b32 s%d, 0" % S_STP)
        for tb, sb in xml:
            o("    s_bfe_u32 s%d, s2, 0x%x" % (S_T + 4, 0x10000 | sb))
            o("    s_lshl_b32 s%d, s%d, %d" % (S_T + 4, S_T + 4, tb))
            o("    s_xor_b32 s%d, s%d, s%d" % (S_OFF, S_OFF, S_T + 4))
    if rot:
        assert wa == 0
        R = S_T + 4
        if rot == 1:
            o("    s_lshr_b32 s%d, s2, 3" % R)
        elif rot == 2:
            o("    s_mov_b32 s%d, s2" % R)
        elif rot == 3:
            o("    s_lshl_b32 s%d, s2, 2" % R)
        elif rot == 4:
            o("    s_lshr_b32 s%d, s2, 3" % R)
            o("    s_lshl_b32 s%d, s2, 2" % (R + 1))
            o("    s_add_u32 s%d, s%d, s%d" % (R, R, R + 1))
        elif rot == 5:
            o("    s_lshr_b32 s%d, s2, 3" % R)
            o("    s_and_b32 s%d, s%d, 1" % (R, R))
        elif rot == 6:
            o("    s_lshr_b32 s%d, s2, 3" % R)
            o("    s_and_b32 s%d, s%d, 3" % (R, R))
        elif rot == 7:
            o("    s_lshr_b32 s%d, s2, 3" % R)
            o("    s_lshl_b32 s%d, s%d, 3" % (R, R))
        elif rot == 8:
            o("    s_lshr_b32 s%d, s2, 3" % R)
            o("    s_lshl_b32 s%d, s%d, 4" % (R, R))
        o("    s_and_b32 s%d, s%d, 31" % (R, R))
        o("    s_lshl_b32 s%d, s%d, 15" % (R, R))
        o("    s_add_u32 s%d, s%d, s%d" % (S_OFF, S_OFF, R))
    S_EV, S_MODE, S_ACC, S_INC, S_TM, S_NOW, S_THI, S_TLO = 64, 65, 66, 67, 72, 74, 76, 77
    S_C1, S_C2, S_HI, S_OFF0, S_RP, S_OK = 68, 70, 78, 79, 80, 81

    def step_inc():
        if general:
            o("    s_or_b32 s%d, s%d, 0x%x" % (S_STP, S_STP, holes))
            o("    s_add_u32 s%d, s%d, 0x%x" % (S_STP, S_STP, 1 << sbits[0]))
            o("    s_andn2_b32 s%d, s%d, 0x%x" % (S_STP, S_STP, holes))
            o("    s_xor_b32 s%d, s%d, s%d" % (S_OFF, S_STP, S_OFF0))
        elif wa == 0:
            o("    s_add_u32 s%d, s%d, 0x8000" % (S_OFF, S_OFF))
            if rot:
                o("    s_and_b32 s%d, s%d, 0xfffff" % (S_OFF, S_OFF))
        elif wa == 5:
            o("    s_add_u32 s%d, s%d, 0x2000" % (S_OFF, S_OFF))
        else:
            hole = 3 << (13 + wa)
            o("    s_or_b32 s%d, s%d, 0x%x" % (S_OFF, S_OFF, hole))
            o("    s_add_u32 s%d, s%d, 0x2000" % (S_OFF, S_OFF))
            o("    s_andn2_b32 s%d, s%d, 0x%x" % (S_OFF, S_OFF, hole))
            o("    s_or_b32 s%d, s%d, s%d" % (S_OFF, S_OFF, S_OFF0))

    def ctl_setup():
        U = S_T + 6 if early else S_T
        o("    s_mov_b32 s%d, %d" % (S_MODE, {-1: 0, 0: 0, 1: 1, 2: 2}[force]))
        if ctl:
            o("    s_mov_b32 s%d, 0" % S_PROG)
            o("    s_mov_b32 s%d, 0" % S_HI)
            o("    s_mov_b32 s%d, 0" % S_ACC)
            o("    s_mov_b32 s%d, 0" % S_INC)
            o("    s_mov_b32 s%d, 0" % S_TM)
            o("    s_mov_b32 s%d, 0" % S_NOW)
            o("    s_mov_b32 s%d, 0x7fffffff" % S_THI)
            o("    s_mov_b32 s%d, 0x80000000" % S_TLO)
            o("    s_lshr_b32 s%d, s2, 3" % U)
            o("    s_and_b32 s%d, s%d, %d" % (U, U, stag - 1))
            o("    s_mov_b32 s%d, 0x7fffffff" % S_RP)
            o("    s_mov_b32 s%d, 0" % (U + 1))
            for k, c in enumerate(cal):
                o("    s_cmp_eq_u32 s%d, %d" % (S_WAVE, (k + 1) & 3))
                o("    s_cselect_b32 s%d, %d, s%d" % (S_RP, c, S_RP))
                o("    s_cselect_b32 s%d, %d, s%d" % (U + 1, SLOT[k], U + 1))
            o("    v_mov_b32 v%d, s%d" % (V_BO, U + 1))
            o("    s_cmp_lg_u32 s%d, 0x7fffffff" % S_RP)
            o("    s_cselect_b32 s%d, s%d, 0" % (U, U))
            o("    s_add_u32 s%d, s%d, s%d" % (S_RP, S_RP, U))
            if ns < 256:
                o("    s_cmp_lt_u32 s2, %d" % ns)
                o("    s_cselect_b32 s%d, s%d, 0x7fffffff" % (S_RP, S_RP))
            if amask:
                o("    s_and_b32 s%d, s2, %d" % (U, amask))
                o("    s_cmp_eq_u32 s%d, %d" % (U, aval))
                o("    s_cselect_b32 s%d, s%d, 0x7fffffff" % (S_RP, S_RP))
            o("    s_mov_b32 s%d, %d" % (S_EV, cal[1] + lag))
            o("    s_mov_b32 s%d, 0" % S_OK)
            for r in range(S_C1, S_C1 + 4):
                o("    s_mov_b32 s%d, 0" % r)
        o("    s_mov_b32 s%d, 0" % S_LM)
        o("    s_mov_b32 s%d, 0" % S_MI)

    def srd_rest():
        o("    s_mov_b32 s%d, 8192" % (SRD_Q + 2))
        o("    s_mov_b32 s%d, 0x20000" % (SRD_Q + 3))
        o("    s_mov_b32 s%d, 8192" % (SRD_O + 2))
        o("    s_mov_b32 s%d, 0x20000" % (SRD_O + 3))

    if not early:
        o("    s_mov_b32 s%d, s%d" % (S_OFF0, S_OFF))
        ctl_setup()
        o("    s_lshr_b32 s%d, s%d, 7" % (S_EOFF, S_OFF))
    S_PAIR = S_T + 2
    if wmap == 0:
        o("    s_mov_b32 s%d, s2" % S_PAIR)
    elif wmap == 1:
        o("    s_and_b32 s%d, s2, 7" % S_PAIR)
        o("    s_lshl_b32 s%d, s%d, 5" % (S_PAIR, S_PAIR))
        o("    s_lshr_b32 s%d, s2, 3" % (S_T + 3))
        o("    s_or_b32 s%d, s%d, s%d" % (S_PAIR, S_PAIR, S_T + 3))
    elif wmap == 2:
        o("    s_lshr_b32 s%d, s2, 3" % (S_T + 3))
        o("    s_and_b32 s%d, s%d, 7" % (S_T + 3, S_T + 3))
        o("    s_xor_b32 s%d, s2, s%d" % (S_PAIR, S_T + 3))
    elif wmap == 3:
        o("    s_and_b32 s%d, s2, 7" % S_PAIR)
        o("    s_lshl_b32 s%d, s%d, 5" % (S_PAIR, S_PAIR))
        o("    s_lshr_b32 s%d, s2, 3" % (S_T + 3))
        o("    s_or_b32 s%d, s%d, s%d" % (S_PAIR, S_PAIR, S_T + 3))
        o("    s_and_b32 s%d, s%d, 7" % (S_T + 3, S_T + 3))
        o("    s_lshl_b32 s%d, s%d, 5" % (S_T + 3, S_T + 3))
        o("    s_xor_b32 s%d, s%d, s%d" % (S_PAIR, S_PAIR, S_T + 3))
    elif wmap == 4:
        o("    s_and_b32 s%d, s2, 7" % S_PAIR)
        o("    s_lshr_b32 s%d, s2, 3" % (S_T + 3))
        o("    s_lshl_b32 s%d, s%d, 2" % (S_T + 4, S_PAIR))
        o("    s_add_u32 s%d, s%d, s%d" % (S_T + 3, S_T + 3, S_T + 4))
        o("    s_and_b32 s%d, s%d, 31" % (S_T + 3, S_T + 3))
        o("    s_lshl_b32 s%d, s%d, 5" % (S_PAIR, S_PAIR))
        o("    s_or_b32 s%d, s%d, s%d" % (S_PAIR, S_PAIR, S_T + 3))
    elif wmap == 5:
        o("    s_brev_b32 s%d, s2" % S_PAIR)
        o("    s_lshr_b32 s%d, s%d, 24" % (S_PAIR, S_PAIR))
    elif wmap == 6:
        o("    s_bfe_u32 s%d, s2, 0x20001" % S_PAIR)
        o("    s_lshl_b32 s%d, s%d, 6" % (S_PAIR, S_PAIR))
        o("    s_lshr_b32 s%d, s2, 3" % (S_T + 3))
        o("    s_lshl_b32 s%d, s%d, 1" % (S_T + 3, S_T + 3))
        o("    s_or_b32 s%d, s%d, s%d" % (S_PAIR, S_PAIR, S_T + 3))
        o("    s_and_b32 s%d, s2, 1" % (S_T + 3))
        o("    s_or_b32 s%d, s%d, s%d" % (S_PAIR, S_PAIR, S_T + 3))
    elif wmap == 7:
        o("    s_and_b32 s%d, s2, 7" % S_PAIR)
        o("    s_lshl_b32 s%d, s%d, 3" % (S_PAIR, S_PAIR))
        o("    s_bfe_u32 s%d, s2, 0x30003" % (S_T + 3))
        o("    s_or_b32 s%d, s%d, s%d" % (S_PAIR, S_PAIR, S_T + 3))
        o("    s_lshr_b32 s%d, s2, 6" % (S_T + 3))
        o("    s_lshl_b32 s%d, s%d, 6" % (S_T + 3, S_T + 3))
        o("    s_or_b32 s%d, s%d, s%d" % (S_PAIR, S_PAIR, S_T + 3))
    o("    s_lshl_b32 s%d, s%d, 21" % (S_T, S_PAIR))
    o("    s_mov_b32 s%d, 0x100000" % (SRD_D + 2))
    o("    s_mov_b32 s%d, 0x20000" % (SRD_D + 3))
    if not early:
        o("    s_lshl_b32 s%d, s%d, 13" % (S_T + 1, S_PAIR))
        o("    s_mov_b32 s%d, 0x20000" % (SRD_P + 2))
        o("    s_mov_b32 s%d, 0x20000" % (SRD_P + 3))
        srd_rest()
    pstp(0)
    o("    s_waitcnt lgkmcnt(0)")
    if pstamp:
        o("    s_memrealtime s[82:83]")
    pstp(1)
    o("    s_add_u32 s%d, s6, s%d" % (SRD_D, S_T))
    o("    s_addc_u32 s%d, s7, 0" % (SRD_D + 1))
    if not early:
        o("    s_mov_b32 s%d, s10" % SRD_P)
        o("    s_mov_b32 s%d, s11" % (SRD_P + 1))

    def issue_E(step):
        if noE:
            return
        r = A_E + (step % ER) * 4
        o("    buffer_load_dwordx4 a[%d:%d], v%d, s[%d:%d], s%d offen %s" %
          (r, r + 3, V_EOFF, SRD_P, SRD_P + 3, S_EOFF, eflags))

    def issue_one(n):
        q, h = divmod(n, 2)
        a = q % 4
        slot = q % (4 * RS)
        i = 2 * a + h
        r = RING + (slot * 2 + h) * 4
        o("    buffer_load_dwordx4 v[%d:%d], v%d, s[%d:%d], s%d offen offset:%d %s" %
          (r, r + 3, V_OFF, SRD_D, SRD_D + 3, S_OFF, i * 256, flags))

    def issue_pair(q):
        issue_one(2 * q)
        issue_one(2 * q + 1)

    stubs = []
    events = []

    if not early:
        issue_E(0)
    for q in range(LA):
        issue_pair(q)
    if early:
        o("    v_lshlrev_b32 v%d, 13, v%d" % (V_EOFF, V_X))
        o("    v_lshl_add_u32 v%d, v%d, 4, v%d" % (V_EOFF, V_Y, V_EOFF))
        o("    s_lshr_b32 s%d, s%d, 7" % (S_EOFF, S_OFF))
        o("    s_mov_b32 s%d, s10" % SRD_P)
        o("    s_mov_b32 s%d, s11" % (SRD_P + 1))
        o("    s_mov_b32 s%d, 0x20000" % (SRD_P + 2))
        o("    s_mov_b32 s%d, 0x20000" % (SRD_P + 3))
        issue_E(0)
        o("    s_mov_b32 s%d, s%d" % (S_OFF0, S_OFF))
    if bp and not pro8:
        step_inc()
        o("    s_lshr_b32 s%d, s%d, 7" % (S_EOFF, S_OFF))
        issue_one(8)
        issue_E(1)
        for n in range(9, 16):
            issue_one(n)
    pstp(2)
    if early:
        o("    s_mov_b32 s%d, 0x05040100" % S_SELLO)
        o("    s_mov_b32 s%d, 0x07060302" % S_SELHI)
        o("    s_lshl_b32 s%d, s%d, 13" % (S_T + 1, S_PAIR))
        srd_rest()
        ctl_setup()
    o("    s_add_u32 s%d, s8, s%d" % (NXT_D, S_T))
    o("    s_addc_u32 s%d, s9, 0" % (NXT_D + 1))
    o("    s_mov_b32 s%d, s12" % NXT_P)
    o("    s_mov_b32 s%d, s13" % (NXT_P + 1))
    o("    s_add_u32 s%d, s4, s%d" % (SRD_Q, S_T + 1))
    o("    s_addc_u32 s%d, s5, 0" % (SRD_Q + 1))
    o("    s_add_u32 s%d, s14, s%d" % (SRD_O, S_T + 1))
    o("    s_addc_u32 s%d, s15, 0" % (SRD_O + 1))
    def load_q(vx, vy, va, st):
        o("    v_lshlrev_b32 v%d, 8, v%d" % (va, vx))
        o("    v_lshl_add_u32 v%d, v%d, 6, v%d" % (va, vy, va))
        o("    s_lshr_b32 s%d, s%d, 1" % (st, S_WAVE))
        o("    s_lshl_b32 s%d, s%d, 12" % (st, st))
        for s in range(4):
            o("    buffer_load_dwordx4 a[%d:%d], v%d, s[%d:%d], s%d offen offset:%d" %
              (A_Q + 4 * s, A_Q + 4 * s + 3, va, SRD_Q, SRD_Q + 3, st, 16 * s))

    if qm == 0:
        load_q(V_X, V_Y, V_PW, S_T + 2)
    elif qm == 1:
        o("    s_bitcmp1_b32 s%d, 0" % S_WAVE)
        o("    s_cbranch_scc1 L_noq")
        load_q(V_X, V_Y, V_PW, S_T + 2)
        o("L_noq:")
    if tw:
        assert defer
        o("    v_and_b32 v%d, 3, v%d" % (V_PW, V_LANE))
        o("    v_lshlrev_b32 v%d, 19, v%d" % (V_PW, V_PW))
        o("    s_cmp_eq_u32 s%d, 1" % S_WAVE)
        o("    s_cbranch_scc0 L_tw1")
        o("    global_load_dword v%d, v%d, s[%d:%d]" % (V_DEF, V_PW, NXT_D, NXT_D + 1))
        o("L_tw1:")
        o("    s_cmp_eq_u32 s%d, 3" % S_WAVE)
        o("    s_cbranch_scc0 L_tw3")
        o("    v_mov_b32 v%d, 0" % V_PW)
        o("    buffer_load_dword v%d, v%d, s[%d:%d], 0 offen" % (V_DEF, V_PW, SRD_O, SRD_O + 3))
        o("    global_load_dword v%d, v%d, s[12:13]" % (V_DEF + 1, V_PW))
        o("L_tw3:")
    o("    v_lshlrev_b32 v%d, 8, v%d" % (V_OUT, V_X))
    o("    v_lshl_add_u32 v%d, v%d, 4, v%d" % (V_OUT, V_Y, V_OUT))
    o("    s_lshl_b32 s%d, s%d, 6" % (S_T + 2, S_WAVE))
    o("    v_add_u32 v%d, s%d, v%d" % (V_OUT, S_T + 2, V_OUT))
    o("    v_and_b32 v%d, 3, v%d" % (V_VR, V_X))
    o("    v_mul_u32_u24 v%d, %d, v%d" % (V_VR, DS, V_VR))
    o("    v_lshrrev_b32 v%d, 2, v%d" % (V_X, V_X))
    o("    v_lshl_add_u32 v%d, v%d, 4, v%d" % (V_X, V_Y, V_X))
    o("    v_lshl_add_u32 v%d, v%d, 4, v%d" % (V_VR, V_X, V_VR))
    o("    s_lshl_b32 s%d, s%d, 6" % (S_T + 2, S_WAVE))
    o("    s_add_u32 s%d, s%d, %d" % (S_T + 2, S_T + 2, LDS_VP))
    o("    v_add_u32 v%d, s%d, v%d" % (V_VR, S_T + 2, V_VR))
    o("    v_lshlrev_b32 v%d, 4, v%d" % (V_X, V_LANE))
    o("    s_mul_i32 s%d, s%d, %d" % (S_T + 2, S_WAVE, WS))
    o("    s_add_u32 s%d, s%d, %d" % (S_T + 2, S_T + 2, LDS_KP))
    o("    v_add_u32 v%d, s%d, v%d" % (V_PW, S_T + 2, V_X))
    for j in range(32):
        o("    v_mov_b32 v%d, 0" % (ACC + j))


    def allowed(n, req, e_done):
        cnt = n - 1 - req
        for qq in range(0, n // 2 + 1):
            if qq % 4 == 0 and 2 * qq >= req and (qq < n // 2 or e_done) and not noE:
                cnt += 1
        return cnt

    def wait_of(m, p, h, extra=0):
        q = p + LA
        n = 2 * q + h
        N, gr = int(m[:-1]), m[-1]
        if gr == "p":
            if h == 1:
                return None
            req = n - N + 1
        else:
            req = n - N
        if h == 0:
            req = max(req, 2 * p + 1)
        elif req <= 2 * p + 1:
            return None
        big = 8000
        return allowed(n + big, req + big, h == 1) + (extra if req <= 7 else 0)

    def decide(tag):
        T0 = S_T + 6
        o("    s_waitcnt lgkmcnt(0)")
        if not noev:
            o("    s_cmp_eq_u32 s%d, s%d" % (S_PROG, S_RP))
            o("    s_cbranch_scc1 L_rp_%s" % tag)
            o("L_rpr_%s:" % tag)
            o("    s_cmp_eq_u32 s%d, s%d" % (S_PROG, S_EV))
            o("    s_cbranch_scc1 L_ev_%s" % tag)
        o("L_evr_%s:" % tag)
        if trace:
            o("    s_mov_b32 m0, s%d" % S_PROG)
            o("    s_nop 0")
            o("    v_writelane_b32 v%d, s%d, m0" % (V_BV, S_NOW))
        o("    s_sub_u32 s%d, s%d, s%d" % (T0, S_NOW, S_TM))
        o("    s_lshl_b32 s%d, s%d, 6" % (T0, T0))
        o("    s_sub_u32 s%d, s%d, s%d" % (T0, T0, S_ACC))
        o("    s_add_u32 s%d, s%d, s%d" % (S_ACC, S_ACC, S_INC))
        o("    s_add_u32 s%d, s%d, 1" % (S_PROG, S_PROG))
        if force < 0 and tag == "post" and pdec != 1:
            if pdec == 0:
                o("    s_mov_b32 s%d, 0" % S_MODE)
        elif force < 0:
            o("    s_cmp_gt_i32 s%d, s%d" % (T0, S_THI))
            o("    s_cselect_b32 s%d, 1, 0" % S_MODE)
            o("    s_cmp_lt_i32 s%d, s%d" % (T0, S_TLO))
            o("    s_cselect_b32 s%d, 2, s%d" % (S_MODE, S_MODE))
        if tail:
            o("    s_cmp_ge_u32 s%d, %d" % (S_PROG, 64 - tail))
            o("    s_cselect_b32 s%d, 1, s%d" % (S_MODE, S_MODE))
        if fin:
            o("    s_cmp_eq_u32 s%d, %d" % (S_PROG, 64 - fin))
            o("    s_cselect_b32 s%d, 3, s%d" % (S_MODE, S_MODE))
        if stamp:
            o("    s_and_b32 s%d, s%d, 1" % (T0, S_MODE))
            o("    s_add_u32 s%d, s%d, s%d" % (S_HI, S_HI, T0))
            o("    s_and_b32 s%d, s%d, 2" % (T0, S_MODE))
            o("    s_lshl_b32 s%d, s%d, 7" % (T0, T0))
            o("    s_add_u32 s%d, s%d, s%d" % (S_HI, S_HI, T0))
        events.append(tag)

    def emit_events():
        T0, T1 = S_T + 6, S_T + 7
        for tag in events:
            if noev:
                continue
            o("L_rp_%s:" % tag)
            o("    v_mov_b32 v%d, s%d" % (V_BV - 3, S_NOW))
            o("    v_mov_b32 v%d, 0x100" % (V_BV - 2))
            o("    s_mov_b64 exec, 1")
            if doat and akind == "atomic":
                o("    global_atomic_add_x2 v%d, v[%d:%d], s[%d:%d] %s" % (V_BO, V_BV - 3, V_BV - 2, abase, abase + 1, aflags))
            elif doat and akind == "store":
                o("    global_store_dwordx2 v%d, v[%d:%d], s[%d:%d] %s" % (V_BO, V_BV - 3, V_BV - 2, abase, abase + 1, aflags))
            elif doat and akind == "load":
                o("    global_load_dwordx2 v[%d:%d], v%d, s[%d:%d] %s" % (V_BV - 3, V_BV - 2, V_BO, abase, abase + 1, aflags))
            o("    s_mov_b64 exec, -1")
            o("    s_branch L_rpr_%s" % tag)
            o("L_ev_%s:" % tag)
            for k in range(1, len(cal)):
                o("    s_cmp_eq_u32 s%d, %d" % (S_EV, cal[k] + lag))
                o("    s_cbranch_scc1 L_evl%d_%s" % (k, tag))
                o("    s_cmp_eq_u32 s%d, %d" % (S_EV, cal[k] + lag + 1))
                o("    s_cbranch_scc1 L_evc%d_%s" % (k, tag))
            o("    s_branch L_evr_%s" % tag)
            for k in range(1, len(cal)):
                jr = cal[k] + lag
                span = cal[k] - cal[k - 1]
                assert span in (8, 16)
                o("L_evl%d_%s:" % (k, tag))
                if k == 1 and dold:
                    o("    s_load_dwordx2 s[%d:%d], s[16:17], %d" % (S_C1, S_C1 + 1, SLOT[0]))
                if dold:
                    o("    s_load_dwordx2 s[%d:%d], s[16:17], %d" % (S_C2, S_C2 + 1, SLOT[k]))
                o("    s_mov_b32 s%d, %d" % (S_EV, jr + 1))
                o("    s_branch L_evr_%s" % tag)
                o("L_evc%d_%s:" % (k, tag))
                o("    s_mov_b32 s%d, %s" % (S_EV, "0x7fffffff" if k == len(cal) - 1 else str(cal[k + 1] + lag)))
                if k == 1:
                    o("    s_lshr_b64 s[%d:%d], s[%d:%d], %d" % (S_C1, S_C1 + 1, S_C1, S_C1 + 1, nsh))
                o("    s_lshr_b64 s[%d:%d], s[%d:%d], %d" % (S_C2, S_C2 + 1, S_C2, S_C2 + 1, nsh))
                o("    s_and_b32 s%d, s%d, s%d" % (T0, S_C1 + 1, S_C2 + 1))
                o("    s_sub_u32 s%d, s%d, s%d" % (T1, S_C2, S_C1))
                o("    s_mov_b32 s%d, s%d" % (S_C1, S_C2))
                o("    s_mov_b32 s%d, s%d" % (S_C1 + 1, S_C2 + 1))
                o("    s_cmp_lg_u32 s%d, 256" % T0)
                o("    s_cbranch_scc1 L_evr_%s" % tag)
                if stamp:
                    o("    s_add_u32 s%d, s%d, 0x10000" % (S_HI, S_HI))
                if span == 8:
                    o("    s_lshl_b32 s%d, s%d, 1" % (T1, T1))
                o("    s_mov_b32 s%d, s%d" % (S_TM, S_C1))
                o("    s_lshl_b32 s%d, s%d, 2" % (S_INC, T1))
                o("    s_mul_i32 s%d, s%d, %d" % (S_ACC, T1, 4 * (jr + 1) - (4 * cal[k] + 2 * st2) + delta))
                o("    s_mul_i32 s%d, s%d, %d" % (S_THI, T1, dhi))
                o("    s_mul_i32 s%d, s%d, %d" % (S_TLO, T1, -dlo))
                if tsh:
                    o("    s_ashr_i32 s%d, s%d, %d" % (S_THI, S_THI, tsh))
                    o("    s_ashr_i32 s%d, s%d, %d" % (S_TLO, S_TLO, tsh))
                if eps:
                    o("    s_mul_i32 s%d, s%d, %d" % (T0, T1, eps))
                    o("    s_ashr_i32 s%d, s%d, 6" % (T0, T0))
                    o("    s_sub_u32 s%d, s%d, s%d" % (S_INC, S_INC, T0))
                o("    s_branch L_evr_%s" % tag)

    def body(mode, m, post=False, extra=0):
        o("L_body_%s:" % mode)
        for p in range(8):
            s, a = divmod(p, 4)
            q = p + LA
            if p == 0 and not post:
                step_inc()
                o("    s_lshr_b32 s%d, s%d, 7" % (S_EOFF, S_OFF))
            if p == 4:
                step_inc()
                if not post:
                    o("    s_cmp_eq_u32 s%d, 1" % S_CNT)
                    o("    s_cbranch_scc1 L_sw_%s" % mode)
                    o("L_swr_%s:" % mode)
                    stubs.append(mode)
                o("    s_lshr_b32 s%d, s%d, 7" % (S_EOFF, S_OFF))
            if ctl and p == pc and pre:
                decide(mode)
                if ps == pc and not notime:
                    o("    s_memrealtime s[%d:%d]" % (S_NOW, S_NOW + 1))
            if post and p < 4:
                younger = 15 - (2 * p + 1) + (0 if noE else 1)
                o("    s_waitcnt vmcnt(%d)" % younger)
                if pst and not pro8 and p in (0, 3):
                    o("    s_cmp_eq_u32 s%d, 0" % S_MI)
                    o("    s_cbranch_scc0 L_nopst%d" % p)
                    pstp(4 if p == 0 else 5)
                    o("L_nopst%d:" % p)
            else:
                for h in range(2):
                    w = wait_of(m, p, h, extra)
                    if w is not None:
                        o("    s_waitcnt vmcnt(%d)" % w)
                    if h == 0 and q % 4 == 0:
                        issue_one(2 * q)
                        issue_E(q // 4)
                    else:
                        issue_one(2 * q + h)
                if pst and pro8 and p in (0, 3):
                    o("    s_cmp_eq_u32 s%d, 0" % S_PROG)
                    o("    s_cbranch_scc0 L_nopst%d_%s" % (p, mode))
                    pstp(4 if p == 0 else 5)
                    o("L_nopst%d_%s:" % (p, mode))
            if ctl and p == ps and ps != pc and not notime:
                o("    s_memrealtime s[%d:%d]" % (S_NOW, S_NOW + 1))
            if ctl and p == pc and not pre:
                decide(mode)
                if ps == pc and not notime:
                    o("    s_memrealtime s[%d:%d]" % (S_NOW, S_NOW + 1))
            slot = p % (4 * RS)
            xb = RING + slot * 8
            yb = xb + 4
            for c in range(4):
                o("    v_perm_b32 v%d, v%d, v%d, s%d" % (T + (2 * c) * 4 + a, yb + c, xb + c, S_SELLO))
                o("    v_perm_b32 v%d, v%d, v%d, s%d" % (T + (2 * c + 1) * 4 + a, yb + c, xb + c, S_SELHI))
            if a == 3:
                e = A_E + (s % ER) * 4
                o("    s_nop 1")
                for dd in range(8):
                    acc = ACC + dd * 4
                    o("    v_mfma_f32_16x16x32_bf16 v[%d:%d], a[%d:%d], v[%d:%d], v[%d:%d]" %
                      (acc, acc + 3, e, e + 3, T + dd * 4, T + dd * 4 + 3, acc, acc + 3))
        o("    s_sub_u32 s%d, s%d, 1" % (S_CNT, S_CNT))
        if not post:
            o("    s_cmp_eq_u32 s%d, 0" % S_CNT)
            o("    s_cbranch_scc1 L_matend")

    def body_fin():
        o("L_body_fin:")
        step_inc()
        o("    s_lshr_b32 s%d, s%d, 7" % (S_EOFF, S_OFF))
        issue_one(8)
        issue_E(1)
        for n in range(9, 16):
            issue_one(n)
        for p in range(8):
            s, a = divmod(p, 4)
            younger = 15 - (2 * p + 1) + (1 if (p < 4 and not noE) else 0)
            o("    s_waitcnt vmcnt(%d)" % younger)
            xb = RING + p * 8
            yb = xb + 4
            for c in range(4):
                o("    v_perm_b32 v%d, v%d, v%d, s%d" % (T + (2 * c) * 4 + a, yb + c, xb + c, S_SELLO))
                o("    v_perm_b32 v%d, v%d, v%d, s%d" % (T + (2 * c + 1) * 4 + a, yb + c, xb + c, S_SELHI))
            if a == 3:
                e = A_E + (s % ER) * 4
                o("    s_nop 1")
                for dd in range(8):
                    acc = ACC + dd * 4
                    o("    v_mfma_f32_16x16x32_bf16 v[%d:%d], a[%d:%d], v[%d:%d], v[%d:%d]" %
                      (acc, acc + 3, e, e + 3, T + dd * 4, T + dd * 4 + 3, acc, acc + 3))
        o("    s_branch L_matend")

    pstp(3)
    if pro8 and bp:
        o("    s_mov_b32 s%d, 16" % S_CNT)
        if m0:
            o("    s_mov_b32 s%d, %d" % (S_MODE, m0))
        if mfirst:
            assert qm in (0, 1)
            if qm == 1:
                o("    s_bitcmp1_b32 s%d, 0" % S_WAVE)
                o("    s_cbranch_scc1 L_dispatch")
            o("    s_branch L_body_first")
        else:
            o("    s_branch L_dispatch")
    o("L_outer:")
    o("    s_mov_b32 s%d, 16" % S_CNT)
    if bp:
        o("; first iteration of a matrix: both rounds were issued ahead of the previous handler")
        body("post", mpost or mmid, post=True)
    o("L_dispatch:")
    modes = [("mid", mmid)]
    if (ctl and force < 0) or force == 1 or tail:
        modes.append(("hi", mhi))
        o("    s_cmp_eq_u32 s%d, 1" % S_MODE)
        o("    s_cbranch_scc1 L_body_hi")
    if (ctl and force < 0) or force == 2:
        modes.append(("lo", mlo))
        o("    s_cmp_eq_u32 s%d, 2" % S_MODE)
        o("    s_cbranch_scc1 L_body_lo")
    if fin:
        assert ctl
        o("    s_cmp_eq_u32 s%d, 3" % S_MODE)
        o("    s_cbranch_scc1 L_body_fin")
    for mode, m in modes:
        body(mode, m)
        o("    s_branch L_dispatch")
    if mfirst:
        body("first", mfirst, extra=4)
        o("    s_branch L_dispatch")
    if fin:
        body_fin()
    o("L_matend:")
    if bp:
        o("    s_cmp_eq_u32 s%d, 3" % S_MI)
        o("    s_cbranch_scc1 L_nopf")
        step_inc()
        o("    s_lshr_b32 s%d, s%d, 7" % (S_EOFF, S_OFF))
        issue_one(8)
        issue_E(1)
        for n in range(9, 16):
            issue_one(n)
        o("L_nopf:")
    o("    s_and_b32 s%d, s%d, 1" % (S_T, S_MI))
    o("    s_mul_i32 s%d, s%d, %d" % (S_T + 1, S_T, 4 * WS))
    o("    v_add_u32 v%d, s%d, v%d" % (V_X, S_T + 1, V_PW))
    o("    s_nop 7")
    if ctl:
        o("    s_waitcnt lgkmcnt(0)")
    for dd in range(8):
        o("    ds_write_b128 v%d, v[%d:%d] offset:%d" % (V_X, ACC + 4 * dd, ACC + 4 * dd + 3, dd * DS))
    o("    s_waitcnt lgkmcnt(0)")
    o("    s_barrier")
    o("    s_cmp_eq_u32 s%d, 1" % S_T)
    o("    s_cbranch_scc1 L_vend")
    o("    s_cmp_lg_u32 s%d, s%d" % (S_WAVE, S_MI))
    o("    s_cbranch_scc1 L_mat_done")
    SUM, TMP, PA = ACC, T, MISC
    o("    v_lshlrev_b32 v%d, 4, v%d" % (V_X, V_LANE))
    for w in range(4):
        dst = SUM if w == 0 else TMP
        for dd in range(8):
            o("    ds_read_b128 v[%d:%d], v%d offset:%d" %
              (dst + 4 * dd, dst + 4 * dd + 3, V_X, LDS_KP + w * WS + dd * DS))
        if w > 0:
            for dd in range(8):
                o("    s_waitcnt lgkmcnt(%d)" % (7 - dd))
                for i in range(4):
                    o("    v_add_f32 v%d, v%d, v%d" % (SUM + 4 * dd + i, SUM + 4 * dd + i, TMP + 4 * dd + i))
    for dd in range(8):
        o("    v_cvt_pk_bf16_f32 v%d, v%d, v%d" % (PA + 2 * dd, SUM + 4 * dd, SUM + 4 * dd + 1))
        o("    v_cvt_pk_bf16_f32 v%d, v%d, v%d" % (PA + 2 * dd + 1, SUM + 4 * dd + 2, SUM + 4 * dd + 3))
    ID = MISC + 16
    o("    v_and_b32 v%d, 15, v%d" % (V_X, V_LANE))
    o("    v_lshrrev_b32 v%d, 4, v%d" % (V_Y, V_LANE))
    o("    v_lshlrev_b32 v%d, 2, v%d" % (V_Y, V_Y))
    o("    v_sub_u32 v%d, v%d, v%d" % (V_X, V_X, V_Y))
    o("    v_mov_b32 v%d, 0" % ID)
    o("    v_mov_b32 v%d, 0" % (ID + 1))
    o("    v_mov_b32 v%d, 0x3f80" % (ID + 2))
    o("    v_mov_b32 v%d, 0x3f800000" % (ID + 3))
    for j, (dst, src) in enumerate(((ID, ID + 2), (ID, ID + 3), (ID + 1, ID + 2), (ID + 1, ID + 3))):
        o("    v_cmp_eq_u32 vcc, %d, v%d" % (j, V_X))
        o("    s_nop 1")
        o("    v_cndmask_b32 v%d, v%d, v%d, vcc" % (dst, dst, src))
    o("    s_nop 1")
    for dd in range(8):
        o("    v_mfma_f32_16x16x16_bf16 v[%d:%d], v[%d:%d], v[%d:%d], 0" %
          (TMP + 4 * dd, TMP + 4 * dd + 3, PA + 2 * dd, PA + 2 * dd + 1, ID, ID + 1))
    o("    s_nop 7")
    PB = SUM
    for s in range(4):
        for j in range(4):
            o("    v_cvt_pk_bf16_f32 v%d, v%d, v%d" %
              (PB + 4 * s + j, TMP + (2 * j) * 4 + s, TMP + (2 * j + 1) * 4 + s))
    SC = SUM + 16
    if qwait:
        o("    s_waitcnt vmcnt(0)")
    if qm == 2:
        assert bp and not noE
        o("    s_waitcnt vmcnt(18)")
    for s in range(4):
        c = "0" if s == 0 else "v[%d:%d]" % (SC, SC + 3)
        o("    v_mfma_f32_16x16x32_bf16 v[%d:%d], v[%d:%d], a[%d:%d], %s" %
          (SC, SC + 3, PB + 4 * s, PB + 4 * s + 3, A_Q + 4 * s, A_Q + 4 * s + 3, c))
    o("    s_mov_b32 s%d, 0x3db504f3" % (S_T + 2))
    o("    s_mov_b32 s%d, 0x3fb8aa3b" % (S_T + 3))
    o("    s_nop 7")
    W = SUM + 20
    M = SUM + 22

    def round_bf16():
        o("    v_cvt_pk_bf16_f32 v%d, v%d, v%d" % (W, SC, SC + 1))
        o("    v_cvt_pk_bf16_f32 v%d, v%d, v%d" % (W + 1, SC + 2, SC + 3))
        o("    v_lshlrev_b32 v%d, 16, v%d" % (SC, W))
        o("    v_and_b32 v%d, 0xffff0000, v%d" % (SC + 1, W))
        o("    v_lshlrev_b32 v%d, 16, v%d" % (SC + 2, W + 1))
        o("    v_and_b32 v%d, 0xffff0000, v%d" % (SC + 3, W + 1))

    round_bf16()
    for i in range(4):
        o("    v_mul_f32 v%d, s%d, v%d" % (SC + i, S_T + 2, SC + i))
    round_bf16()
    o("    v_max_f32 v%d, v%d, v%d" % (M, SC, SC + 1))
    o("    v_max3_f32 v%d, v%d, v%d, v%d" % (M, SC + 2, SC + 3, M))

    def xlane(op, reg, tmp):
        for sw in ("v_permlane32_swap_b32", "v_permlane16_swap_b32"):
            o("    v_mov_b32 v%d, v%d" % (tmp, reg))
            o("    s_nop 1")
            o("    %s v%d, v%d" % (sw, reg, tmp))
            o("    s_nop 1")
            o("    %s v%d, v%d, v%d" % (op, reg, reg, tmp))

    xlane("v_max_f32", M, M + 1)
    for i in range(4):
        o("    v_sub_f32 v%d, v%d, v%d" % (SC + i, SC + i, M))
    for i in range(4):
        o("    v_mul_f32 v%d, s%d, v%d" % (SC + i, S_T + 3, SC + i))
    for i in range(4):
        o("    v_exp_f32 v%d, v%d" % (SC + i, SC + i))
    o("    s_nop 0")
    o("    v_add_f32 v%d, v%d, v%d" % (M, SC, SC + 1))
    o("    v_add_f32 v%d, v%d, v%d" % (M + 1, SC + 2, SC + 3))
    o("    v_add_f32 v%d, v%d, v%d" % (M, M, M + 1))
    xlane("v_add_f32", M, M + 1)
    o("    v_rcp_f32 v%d, v%d" % (M, M))
    o("    s_nop 0")
    for i in range(4):
        o("    v_mul_f32 v%d, v%d, v%d" % (SC + i, SC + i, M))
    o("    v_cvt_pk_bf16_f32 v%d, v%d, v%d" % (W, SC, SC + 1))
    o("    v_cvt_pk_bf16_f32 v%d, v%d, v%d" % (W + 1, SC + 2, SC + 3))
    o("    v_lshlrev_b32 v%d, 3, v%d" % (V_X, V_LANE))
    o("    ds_write_b64 v%d, v[%d:%d] offset:%d" % (V_X, W, W + 1, LDS_P))
    o("    s_waitcnt lgkmcnt(0)")
    o("    s_branch L_mat_done")

    o("L_vend:")
    PP = MISC
    o("    v_lshlrev_b32 v%d, 3, v%d" % (V_X, V_LANE))
    o("    ds_read_b64 v[%d:%d], v%d offset:%d" % (PP, PP + 1, V_X, LDS_P))
    for w in range(4):
        for h in range(2):
            r = T + (w * 2 + h) * 4
            o("    ds_read_b128 v[%d:%d], v%d offset:%d" % (r, r + 3, V_VR, w * WS + h * 4 * DS))
    o("    s_waitcnt lgkmcnt(4)")
    for j in range(8):
        o("    v_add_f32 v%d, v%d, v%d" % (T + j, T + j, T + 8 + j))
    o("    s_waitcnt lgkmcnt(0)")
    for j in range(8):
        o("    v_add_f32 v%d, v%d, v%d" % (T + 16 + j, T + 16 + j, T + 24 + j))
    for j in range(8):
        o("    v_add_f32 v%d, v%d, v%d" % (T + j, T + j, T + 16 + j))
    VB = MISC + 4
    for h in range(2):
        o("    v_cvt_pk_bf16_f32 v%d, v%d, v%d" % (VB + 2 * h, T + 4 * h, T + 4 * h + 1))
        o("    v_cvt_pk_bf16_f32 v%d, v%d, v%d" % (VB + 2 * h + 1, T + 4 * h + 2, T + 4 * h + 3))
    OO = T + 16
    o("    s_lshr_b32 s%d, s%d, 1" % (S_T + 2, S_MI))
    o("    s_lshl_b32 s%d, s%d, 12" % (S_T + 2, S_T + 2))
    for h in range(2):
        o("    v_mfma_f32_16x16x16_bf16 v[%d:%d], v[%d:%d], v[%d:%d], 0" %
          (OO + 4 * h, OO + 4 * h + 3, VB + 2 * h, VB + 2 * h + 1, PP, PP + 1))
    o("    s_nop 7")
    for i in range(4):
        o("    v_cvt_pk_bf16_f32 v%d, v%d, v%d" % (MISC + 8 + i, OO + 2 * i, OO + 2 * i + 1))
    if noout or defer:
        o("    s_cmp_eq_u32 s%d, 1" % S_MI)
        o("    s_cbranch_scc0 L_store")
        if defer:
            for i in range(4):
                o("    v_mov_b32 v%d, v%d" % (V_DEF + i, MISC + 8 + i))
        o("    s_branch L_mat_done")
        o("L_store:")
        if defer:
            o("    buffer_store_dwordx4 v[%d:%d], v%d, s[%d:%d], 0 offen %s" %
              (V_DEF, V_DEF + 3, V_OUT, SRD_O, SRD_O + 3, oflags))
    o("    buffer_store_dwordx4 v[%d:%d], v%d, s[%d:%d], s%d offen %s" %
      (MISC + 8, MISC + 11, V_OUT, SRD_O, SRD_O + 3, S_T + 2, oflags))

    o("L_mat_done:")
    o("    s_add_u32 s%d, s%d, 1" % (S_MI, S_MI))
    o("    s_cmp_eq_u32 s%d, 4" % S_MI)
    o("    s_cbranch_scc1 L_fin")
    for j in range(32):
        o("    v_mov_b32 v%d, 0" % (ACC + j))
    o("    s_branch L_outer")

    if ctl:
        o("; ---- progress reports (L_rp) and progress line updates (L_ev) ----")
        emit_events()
    o("; ---- load side moves on to the next matrix ----")
    for tag in stubs:
        o("L_sw_%s:" % tag)
        if qm == 2:
            o("    s_cmp_lg_u32 s%d, s%d" % (S_LM, S_WAVE))
            o("    s_cbranch_scc1 L_swq_%s" % tag)
            o("    s_bitcmp1_b32 s%d, 0" % S_WAVE)
            o("    s_cbranch_scc1 L_swq_%s" % tag)
            o("    v_and_b32 v%d, 15, v%d" % (V_X, V_LANE))
            o("    v_lshrrev_b32 v%d, 4, v%d" % (V_Y, V_LANE))
            load_q(V_X, V_Y, V_X, S_T + 6)
            o("L_swq_%s:" % tag)
        o("    s_mov_b32 s%d, s%d" % (S_OFF, S_OFF0))
        if general:
            o("    s_mov_b32 s%d, 0" % S_STP)
        o("    s_add_u32 s%d, s%d, 0x100000" % (S_T + 4, SRD_D))
        o("    s_addc_u32 s%d, s%d, 0" % (S_T + 5, SRD_D + 1))
        o("    s_mov_b32 s%d, s%d" % (SRD_D, NXT_D))
        o("    s_mov_b32 s%d, s%d" % (SRD_D + 1, NXT_D + 1))
        o("    s_mov_b32 s%d, s%d" % (NXT_D, S_T + 4))
        o("    s_mov_b32 s%d, s%d" % (NXT_D + 1, S_T + 5))
        o("    s_mov_b32 s%d, s%d" % (S_T + 4, SRD_P))
        o("    s_mov_b32 s%d, s%d" % (S_T + 5, SRD_P + 1))
        o("    s_mov_b32 s%d, s%d" % (SRD_P, NXT_P))
        o("    s_mov_b32 s%d, s%d" % (SRD_P + 1, NXT_P + 1))
        o("    s_mov_b32 s%d, s%d" % (NXT_P, S_T + 4))
        o("    s_mov_b32 s%d, s%d" % (NXT_P + 1, S_T + 5))
        o("    s_add_u32 s%d, s%d, 1" % (S_LM, S_LM))
        o("    s_cmp_eq_u32 s%d, 4" % S_LM)
        o("    s_cselect_b32 s%d, 0, 0x100000" % (SRD_D + 2))
        o("    s_cselect_b32 s%d, 0, 0x20000" % (SRD_P + 2))
        o("    s_branch L_swr_%s" % tag)

    o("L_fin:")
    if stamp:
        o("    s_waitcnt vmcnt(0)")
        o("    s_memrealtime s[62:63]")
        o("    s_getreg_b32 s58, hwreg(HW_REG_XCC_ID)")
        o("    s_getreg_b32 s59, hwreg(HW_REG_HW_ID)")
        o("    s_waitcnt lgkmcnt(0)")
        o("    s_lshl_b32 s%d, s2, 2" % S_T)
        o("    s_add_u32 s%d, s%d, s%d" % (S_T, S_T, S_WAVE))
        o("    s_lshl_b32 s%d, s%d, 4" % (S_T, S_T))
        o("    v_mov_b32 v4, s60")
        o("    v_mov_b32 v5, s62")
        o("    v_mov_b32 v6, s58")
        if pstamp:
            o("    s_sub_u32 s82, s82, s60")
        o("    v_mov_b32 v7, s%d" % (82 if pstamp else (S_HI if ctl else 59)))
        o("    v_mov_b32 v2, s%d" % S_T)
        o("    global_store_dwordx4 v2, v[4:7], s[18:19]")
        if pst:
            o("    s_lshl_b32 s%d, s%d, 1" % (S_T + 1, S_T))
            o("    s_add_u32 s%d, s%d, 0x60000" % (S_T + 1, S_T + 1))
            o("    v_mov_b32 v2, s%d" % (S_T + 1))
            for k in range(6):
                o("    s_sub_u32 s%d, s%d, s60" % (PST[k], PST[k]))
                o("    v_mov_b32 v%d, s%d" % (8 + k, PST[k]))
            o("    global_store_dwordx4 v2, v[8:11], s[18:19]")
            o("    global_store_dwordx2 v2, v[12:13], s[18:19] offset:16")
        if trace:
            o("    s_lshl_b32 s%d, s%d, 4" % (S_T, S_T))
            o("    s_add_u32 s%d, s%d, 0x10000" % (S_T, S_T))
            o("    v_lshlrev_b32 v2, 2, v0")
            o("    v_add_u32 v2, s%d, v2" % S_T)
            o("    global_store_dword v2, v%d, s[18:19]" % V_BV)
    o("L_end:")
    o("    s_endpgm")
    nvg = max(accum_offset + na, 264)
    o('.section .rodata,"a"')
    o(".p2align 6")
    o(".amdhsa_kernel %s_kernel" % NAME)
    o("  .amdhsa_next_free_vgpr %d" % nvg)
    o("  .amdhsa_next_free_sgpr %d" % (96 if pst else 88))
    o("  .amdhsa_accum_offset %d" % accum_offset)
    o("  .amdhsa_group_segment_fixed_size 0")
    o("  .amdhsa_kernarg_size 64")
    o("  .amdhsa_user_sgpr_count 2")
    o("  .amdhsa_user_sgpr_kernarg_segment_ptr 1")
    o("  .amdhsa_system_sgpr_workgroup_id_x 1")
    o("  .amdhsa_float_denorm_mode_32 3")
    o(".end_amdhsa_kernel")
    return "\n".join(L) + "\n"


if __name__ == "__main__":
    out = sys.argv[1]
    kw = {}
    for a in sys.argv[2:]:
        k, v = a.split("=")
        if k not in ("flags", "eflags", "oflags", "mlo", "mmid", "mhi", "cal", "aflags", "akind", "mpost", "mfirst", "xm"):
            v = int(v)
        kw[k] = v
    open(out, "w").write(gen(**kw))
```

```python
import sys

NAME = "standalone__low_rank_proj_linformer__sampling"
HEADER = open("cdna_kernels/%s.s.ref" % NAME).read().split("; Override launch")[0]

DOC = """
Linformer attention: kp = E.K, vp = F.V (rank 16), p = softmax(bf16(q.kp^T) * 128^-0.5), out = p.vp.
The kernel is bound by the 1 GiB read of K and V.

Work split: 256 workgroups x 4 waves, one workgroup per CU, two heads per workgroup.
A workgroup streams K(h0), V(h0), K(h1), V(h1); a round covers 128 rows (32 KiB), wave w takes
rows [32w, 32w+32).  Per round a wave issues 8 dwordx4 loads into a register ring (two rounds deep),
transposes 8x8 blocks with v_perm and accumulates E^T-fragment x data with 8 MFMA 16x16x32.
At the end of a matrix the four partial sums are added through LDS; one wave does the scores and the
softmax, all four waves do p.vp.  The first head's output stays in registers until the end.

Load-window balancing: the dies get unequal shares of the memory bandwidth, and the slowest die sets the
run time.  The loop body exists three times and differs only in how many loads it keeps in flight
(lo / mid / hi).  A few waves add their clock value to counters in d_debug at fixed iterations; the mean of
these reports gives the grid-wide progress line.  Once per iteration each wave compares its clock with
the line and picks the body: hi when it lags, lo when it leads.  The choice changes timing only, never
the result, and no wave ever waits on the clock or on another workgroup.
"""


def gen(flags="nt", eflags="sc1", oflags="", stamp=0, force=-1, ctl=1,
        mlo="5s", mmid="6p", mhi="8p", dhi=1, dlo=1, cal="9,25", lag=8, delta=0, eps=0, ps=0, pc=6,
        tail=0, notime=0, pre=0, noev=0, trace=0,
        doat=1, dold=1, aflags="sc1", akind="atomic", abase=16, wmap=0, amask=0, aval=0,
        ns=256, stag=4, noout=0, defer=0, bp=0, noE=0, mpost="", qwait=0, pstamp=0, fin=0, tsh=0, pst=0, early=0, pf=0, pfw=256, pro8=0, qm=0, m0=0, mfirst="", tw=0, pdec=1, wa=0, rot=0, gp=11, wp=13, xm="", hb=8, hb2=0, jb="", gb="", wb=""):
    LA, RS, ER, P = 4, 2, 2, 2
    cal = [int(x) for x in str(cal).split(",")]
    assert 2 <= len(cal) <= 4
    SLOT = [0, 128, 64, 192]
    nsh = ns.bit_length() - 1
    assert ns == 1 << nsh and ns >= 8 * stag
    st2 = stag - 1
    nobar = nocomp = 0
    general = (gp, wp, xm, hb, jb, gb, wb) != (11, 13, "", 8, "", "", "")
    gbits = [int(x) for x in str(gb).split(",")] if gb else [gp, gp + 1]
    wbits = [int(x) for x in str(wb).split(",")] if wb else [wp, wp + 1]
    if jb:
        jbits = [int(x) for x in str(jb).split(",")]
    elif hb == 8:
        jbits = [8, 9, 10]
    elif hb2:
        jbits = [hb, hb2, 8]
    else:
        jbits = [hb, 8, 9]
    holes = sum(1 << b for b in gbits + wbits + jbits)
    assert bin(holes).count("1") == 7 and min(gbits + wbits) >= 8
    sbits = [b for b in range(8, 20) if not (holes >> b) & 1]
    big_j = [b for b in jbits if b >= 12]
    xml = [tuple(int(y) for y in x.split(":")) for x in xm.split(",")] if xm else []
    if general:
        assert wa == 0 and rot == 0 and not early
    L = []
    o = L.append
    DS = 1088
    WS = 8 * DS
    LDS_P, LDS_KP, LDS_VP = 0, 512, 512 + 4 * WS
    lds = 512 + 8 * WS
    o(HEADER.rstrip())
    o("; @launch grid=(256,1,1) block=(256,1,1) lds=%d" % lds)
    for line in DOC.strip("\n").split("\n"):
        o(("; " + line).rstrip())
    o('.amdgcn_target "amdgcn-amd-amdhsa--gfx950"')
    o(".text")
    o(".globl %s_kernel" % NAME)
    o(".p2align 8")
    o(".type %s_kernel,@function" % NAME)
    o("%s_kernel:" % NAME)

    V_LANE, V_OFF, V_EOFF, V_PW, V_VR, V_OUT, V_X, V_Y = 0, 1, 2, 3, 4, 5, 6, 7
    ACC = 8
    T = 40
    MISC = 72
    V_BO, V_BV = MISC + 22, MISC + 23
    RING = 96
    V_DEF = RING + 32 * RS
    V_OFFX = V_DEF + 4
    nv = V_DEF + 4 + ((1 << len(big_j)) - 1)
    esplit = jbits[1:] == [8, 9] and jbits[0] > 9
    NE = 0 if noE else (2 if esplit else 1)
    V_ER = V_EA = 0
    if esplit:
        nv = (nv + 1) // 2 * 2
        V_ER = nv
        V_EA = (V_ER + 4 * ER + 3) // 4 * 4
        nv = V_EA + 4
    assert nv <= 256
    A_Q = 0
    A_E = 16
    na = A_E + 4 * ER
    accum_offset = (nv + 3) // 4 * 4

    S_SELLO, S_SELHI, S_WAVE, S_OFF, S_EOFF, S_CNT, S_MI, S_LM = 20, 21, 22, 23, 24, 25, 26, 27
    S_PROG = 57
    SRD_D, SRD_P = 28, 32
    NXT_D, NXT_P = 36, 38
    SRD_Q, SRD_O = 40, 44
    S_T = 48

    o("    s_cmp_ge_u32 s2, 256")
    o("    s_cbranch_scc1 L_end")
    o("    s_load_dwordx16 s[4:19], s[0:1], 0")
    if stamp:
        o("    s_memrealtime s[60:61]")
    PST = [84, 86, 88, 90, 92, 94]

    def pstp(k):
        if pst:
            o("    s_memrealtime s[%d:%d]" % (PST[k], PST[k] + 1))

    def code_prefetch():
        if pfw < 256:
            o("    s_cmp_ge_u32 s2, %d" % pfw)
            o("    s_cbranch_scc1 L_nopfc")
        o("    s_getpc_b64 s[%d:%d]" % (S_T + 4, S_T + 5))
        o("L_pc:")
        o("    v_lshlrev_b32 v%d, 6, v%d" % (V_PW, V_TID))
        o("    v_min_u32 v%d, L_end-L_pc, v%d" % (V_PW, V_PW))
        o("    global_load_dword v%d, v%d, s[%d:%d]" % (V_DEF + 3, V_PW, S_T + 4, S_T + 5))
        if pfw < 256:
            o("L_nopfc:")

    V_TID = 0
    if pf:
        code_prefetch()
    o("    v_lshrrev_b32 v%d, 6, v0" % V_X)
    o("    v_and_b32 v%d, 63, v0" % V_LANE)
    o("    v_readfirstlane_b32 s%d, v%d" % (S_WAVE, V_X))
    if not early:
        o("    s_mov_b32 s%d, 0x05040100" % S_SELLO)
        o("    s_mov_b32 s%d, 0x07060302" % S_SELHI)
    o("    v_and_b32 v%d, 15, v%d" % (V_X, V_LANE))
    o("    v_lshrrev_b32 v%d, 4, v%d" % (V_Y, V_LANE))
    o("    v_lshlrev_b32 v%d, 4, v%d" % (V_OFF, V_X))
    if gbits[1] == gbits[0] + 1:
        o("    v_lshl_add_u32 v%d, v%d, %d, v%d" % (V_OFF, V_Y, gbits[0], V_OFF))
    else:
        o("    v_and_b32 v%d, 1, v%d" % (V_PW, V_Y))
        o("    v_lshl_add_u32 v%d, v%d, %d, v%d" % (V_OFF, V_PW, gbits[0], V_OFF))
        o("    v_lshrrev_b32 v%d, 1, v%d" % (V_PW, V_Y))
        o("    v_lshl_add_u32 v%d, v%d, %d, v%d" % (V_OFF, V_PW, gbits[1], V_OFF))
    if not early:
        o("    v_lshlrev_b32 v%d, 13, v%d" % (V_EOFF, V_X))
        if gbits[1] == gbits[0] + 1:
            o("    v_lshl_add_u32 v%d, v%d, %d, v%d" % (V_EOFF, V_Y, gbits[0] - 7, V_EOFF))
        else:
            o("    v_and_b32 v%d, 1, v%d" % (V_PW, V_Y))
            o("    v_lshl_add_u32 v%d, v%d, %d, v%d" % (V_EOFF, V_PW, gbits[0] - 7, V_EOFF))
            o("    v_lshrrev_b32 v%d, 1, v%d" % (V_PW, V_Y))
            o("    v_lshl_add_u32 v%d, v%d, %d, v%d" % (V_EOFF, V_PW, gbits[1] - 7, V_EOFF))
    for sel in range(1, 1 << len(big_j)):
        add = sum(1 << b for t, b in enumerate(big_j) if (sel >> t) & 1)
        o("    v_add_u32 v%d, 0x%x, v%d" % (V_OFFX + sel - 1, add, V_OFF))
    S_STP = 56
    if wbits[1] == wbits[0] + 1:
        o("    s_lshl_b32 s%d, s%d, %d" % (S_OFF, S_WAVE, wbits[0] if general else 13 + wa))
    else:
        o("    s_and_b32 s%d, s%d, 1" % (S_OFF, S_WAVE))
        o("    s_lshl_b32 s%d, s%d, %d" % (S_OFF, S_OFF, wbits[0]))
        o("    s_lshr_b32 s%d, s%d, 1" % (S_T + 4, S_WAVE))
        o("    s_lshl_b32 s%d, s%d, %d" % (S_T + 4, S_T + 4, wbits[1]))
        o("    s_or_b32 s%d, s%d, s%d" % (S_OFF, S_OFF, S_T + 4))
    if general:
        o("    s_mov_b32 s%d, 0" % S_STP)
        for tb, sb in xml:
            o("    s_bfe_u32 s%d, s2, 0x%x" % (S_T + 4, 0x10000 | sb))
            o("    s_lshl_b32 s%d, s%d, %d" % (S_T + 4, S_T + 4, tb))
            o("    s_xor_b32 s%d, s%d, s%d" % (S_OFF, S_OFF, S_T + 4))
    if rot:
        assert wa == 0
        R = S_T + 4
        if rot == 1:
            o("    s_lshr_b32 s%d, s2, 3" % R)
        elif rot == 2:
            o("    s_mov_b32 s%d, s2" % R)
        elif rot == 3:
            o("    s_lshl_b32 s%d, s2, 2" % R)
        elif rot == 4:
            o("    s_lshr_b32 s%d, s2, 3" % R)
            o("    s_lshl_b32 s%d, s2, 2" % (R + 1))
            o("    s_add_u32 s%d, s%d, s%d" % (R, R, R + 1))
        elif rot == 5:
            o("    s_lshr_b32 s%d, s2, 3" % R)
            o("    s_and_b32 s%d, s%d, 1" % (R, R))
        elif rot == 6:
            o("    s_lshr_b32 s%d, s2, 3" % R)
            o("    s_and_b32 s%d, s%d, 3" % (R, R))
        elif rot == 7:
            o("    s_lshr_b32 s%d, s2, 3" % R)
            o("    s_lshl_b32 s%d, s%d, 3" % (R, R))
        elif rot == 8:
            o("    s_lshr_b32 s%d, s2, 3" % R)
            o("    s_lshl_b32 s%d, s%d, 4" % (R, R))
        o("    s_and_b32 s%d, s%d, 31" % (R, R))
        o("    s_lshl_b32 s%d, s%d, 15" % (R, R))
        o("    s_add_u32 s%d, s%d, s%d" % (S_OFF, S_OFF, R))
    S_EV, S_MODE, S_ACC, S_INC, S_TM, S_NOW, S_THI, S_TLO = 64, 65, 66, 67, 72, 74, 76, 77
    S_C1, S_C2, S_HI, S_OFF0, S_RP, S_OK = 68, 70, 78, 79, 80, 81

    def step_inc():
        if general:
            o("    s_or_b32 s%d, s%d, 0x%x" % (S_STP, S_STP, holes))
            o("    s_add_u32 s%d, s%d, 0x%x" % (S_STP, S_STP, 1 << sbits[0]))
            o("    s_andn2_b32 s%d, s%d, 0x%x" % (S_STP, S_STP, holes))
            o("    s_xor_b32 s%d, s%d, s%d" % (S_OFF, S_STP, S_OFF0))
        elif wa == 0:
            o("    s_add_u32 s%d, s%d, 0x8000" % (S_OFF, S_OFF))
            if rot:
                o("    s_and_b32 s%d, s%d, 0xfffff" % (S_OFF, S_OFF))
        elif wa == 5:
            o("    s_add_u32 s%d, s%d, 0x2000" % (S_OFF, S_OFF))
        else:
            hole = 3 << (13 + wa)
            o("    s_or_b32 s%d, s%d, 0x%x" % (S_OFF, S_OFF, hole))
            o("    s_add_u32 s%d, s%d, 0x2000" % (S_OFF, S_OFF))
            o("    s_andn2_b32 s%d, s%d, 0x%x" % (S_OFF, S_OFF, hole))
            o("    s_or_b32 s%d, s%d, s%d" % (S_OFF, S_OFF, S_OFF0))

    def ctl_setup():
        U = S_T + 6 if early else S_T
        o("    s_mov_b32 s%d, %d" % (S_MODE, {-1: 0, 0: 0, 1: 1, 2: 2}[force]))
        if ctl:
            o("    s_mov_b32 s%d, 0" % S_PROG)
            o("    s_mov_b32 s%d, 0" % S_HI)
            o("    s_mov_b32 s%d, 0" % S_ACC)
            o("    s_mov_b32 s%d, 0" % S_INC)
            o("    s_mov_b32 s%d, 0" % S_TM)
            o("    s_mov_b32 s%d, 0" % S_NOW)
            o("    s_mov_b32 s%d, 0x7fffffff" % S_THI)
            o("    s_mov_b32 s%d, 0x80000000" % S_TLO)
            o("    s_lshr_b32 s%d, s2, 3" % U)
            o("    s_and_b32 s%d, s%d, %d" % (U, U, stag - 1))
            o("    s_mov_b32 s%d, 0x7fffffff" % S_RP)
            o("    s_mov_b32 s%d, 0" % (U + 1))
            for k, c in enumerate(cal):
                o("    s_cmp_eq_u32 s%d, %d" % (S_WAVE, (k + 1) & 3))
                o("    s_cselect_b32 s%d, %d, s%d" % (S_RP, c, S_RP))
                o("    s_cselect_b32 s%d, %d, s%d" % (U + 1, SLOT[k], U + 1))
            o("    v_mov_b32 v%d, s%d" % (V_BO, U + 1))
            o("    s_cmp_lg_u32 s%d, 0x7fffffff" % S_RP)
            o("    s_cselect_b32 s%d, s%d, 0" % (U, U))
            o("    s_add_u32 s%d, s%d, s%d" % (S_RP, S_RP, U))
            if ns < 256:
                o("    s_cmp_lt_u32 s2, %d" % ns)
                o("    s_cselect_b32 s%d, s%d, 0x7fffffff" % (S_RP, S_RP))
            if amask:
                o("    s_and_b32 s%d, s2, %d" % (U, amask))
                o("    s_cmp_eq_u32 s%d, %d" % (U, aval))
                o("    s_cselect_b32 s%d, s%d, 0x7fffffff" % (S_RP, S_RP))
            o("    s_mov_b32 s%d, %d" % (S_EV, cal[1] + lag))
            o("    s_mov_b32 s%d, 0" % S_OK)
            for r in range(S_C1, S_C1 + 4):
                o("    s_mov_b32 s%d, 0" % r)
        o("    s_mov_b32 s%d, 0" % S_LM)
        o("    s_mov_b32 s%d, 0" % S_MI)

    def srd_rest():
        o("    s_mov_b32 s%d, 8192" % (SRD_Q + 2))
        o("    s_mov_b32 s%d, 0x20000" % (SRD_Q + 3))
        o("    s_mov_b32 s%d, 8192" % (SRD_O + 2))
        o("    s_mov_b32 s%d, 0x20000" % (SRD_O + 3))

    if not early:
        o("    s_mov_b32 s%d, s%d" % (S_OFF0, S_OFF))
        ctl_setup()
        o("    s_lshr_b32 s%d, s%d, 7" % (S_EOFF, S_OFF))
    S_PAIR = S_T + 2
    if wmap == 0:
        o("    s_mov_b32 s%d, s2" % S_PAIR)
    elif wmap == 1:
        o("    s_and_b32 s%d, s2, 7" % S_PAIR)
        o("    s_lshl_b32 s%d, s%d, 5" % (S_PAIR, S_PAIR))
        o("    s_lshr_b32 s%d, s2, 3" % (S_T + 3))
        o("    s_or_b32 s%d, s%d, s%d" % (S_PAIR, S_PAIR, S_T + 3))
    elif wmap == 2:
        o("    s_lshr_b32 s%d, s2, 3" % (S_T + 3))
        o("    s_and_b32 s%d, s%d, 7" % (S_T + 3, S_T + 3))
        o("    s_xor_b32 s%d, s2, s%d" % (S_PAIR, S_T + 3))
    elif wmap == 3:
        o("    s_and_b32 s%d, s2, 7" % S_PAIR)
        o("    s_lshl_b32 s%d, s%d, 5" % (S_PAIR, S_PAIR))
        o("    s_lshr_b32 s%d, s2, 3" % (S_T + 3))
        o("    s_or_b32 s%d, s%d, s%d" % (S_PAIR, S_PAIR, S_T + 3))
        o("    s_and_b32 s%d, s%d, 7" % (S_T + 3, S_T + 3))
        o("    s_lshl_b32 s%d, s%d, 5" % (S_T + 3, S_T + 3))
        o("    s_xor_b32 s%d, s%d, s%d" % (S_PAIR, S_PAIR, S_T + 3))
    elif wmap == 4:
        o("    s_and_b32 s%d, s2, 7" % S_PAIR)
        o("    s_lshr_b32 s%d, s2, 3" % (S_T + 3))
        o("    s_lshl_b32 s%d, s%d, 2" % (S_T + 4, S_PAIR))
        o("    s_add_u32 s%d, s%d, s%d" % (S_T + 3, S_T + 3, S_T + 4))
        o("    s_and_b32 s%d, s%d, 31" % (S_T + 3, S_T + 3))
        o("    s_lshl_b32 s%d, s%d, 5" % (S_PAIR, S_PAIR))
        o("    s_or_b32 s%d, s%d, s%d" % (S_PAIR, S_PAIR, S_T + 3))
    elif wmap == 5:
        o("    s_brev_b32 s%d, s2" % S_PAIR)
        o("    s_lshr_b32 s%d, s%d, 24" % (S_PAIR, S_PAIR))
    elif wmap == 6:
        o("    s_bfe_u32 s%d, s2, 0x20001" % S_PAIR)
        o("    s_lshl_b32 s%d, s%d, 6" % (S_PAIR, S_PAIR))
        o("    s_lshr_b32 s%d, s2, 3" % (S_T + 3))
        o("    s_lshl_b32 s%d, s%d, 1" % (S_T + 3, S_T + 3))
        o("    s_or_b32 s%d, s%d, s%d" % (S_PAIR, S_PAIR, S_T + 3))
        o("    s_and_b32 s%d, s2, 1" % (S_T + 3))
        o("    s_or_b32 s%d, s%d, s%d" % (S_PAIR, S_PAIR, S_T + 3))
    elif wmap == 7:
        o("    s_and_b32 s%d, s2, 7" % S_PAIR)
        o("    s_lshl_b32 s%d, s%d, 3" % (S_PAIR, S_PAIR))
        o("    s_bfe_u32 s%d, s2, 0x30003" % (S_T + 3))
        o("    s_or_b32 s%d, s%d, s%d" % (S_PAIR, S_PAIR, S_T + 3))
        o("    s_lshr_b32 s%d, s2, 6" % (S_T + 3))
        o("    s_lshl_b32 s%d, s%d, 6" % (S_T + 3, S_T + 3))
        o("    s_or_b32 s%d, s%d, s%d" % (S_PAIR, S_PAIR, S_T + 3))
    o("    s_lshl_b32 s%d, s%d, 21" % (S_T, S_PAIR))
    o("    s_mov_b32 s%d, 0x100000" % (SRD_D + 2))
    o("    s_mov_b32 s%d, 0x20000" % (SRD_D + 3))
    if not early:
        o("    s_lshl_b32 s%d, s%d, 13" % (S_T + 1, S_PAIR))
        o("    s_mov_b32 s%d, 0x20000" % (SRD_P + 2))
        o("    s_mov_b32 s%d, 0x20000" % (SRD_P + 3))
        srd_rest()
    pstp(0)
    o("    s_waitcnt lgkmcnt(0)")
    if pstamp:
        o("    s_memrealtime s[82:83]")
    pstp(1)
    o("    s_add_u32 s%d, s6, s%d" % (SRD_D, S_T))
    o("    s_addc_u32 s%d, s7, 0" % (SRD_D + 1))
    if not early:
        o("    s_mov_b32 s%d, s10" % SRD_P)
        o("    s_mov_b32 s%d, s11" % (SRD_P + 1))

    def issue_E(step):
        if noE:
            return
        if esplit:
            r = V_ER + (step % ER) * 4
            for t in range(2):
                o("    buffer_load_dwordx2 v[%d:%d], v%d, s[%d:%d], s%d offen offset:%d %s" %
                  (r + 2 * t, r + 2 * t + 1, V_EOFF, SRD_P, SRD_P + 3, S_EOFF, t << (jbits[0] - 7), eflags))
            return
        r = A_E + (step % ER) * 4
        o("    buffer_load_dwordx4 a[%d:%d], v%d, s[%d:%d], s%d offen %s" %
          (r, r + 3, V_EOFF, SRD_P, SRD_P + 3, S_EOFF, eflags))

    def issue_one(n):
        q, h = divmod(n, 2)
        a = q % 4
        slot = q % (4 * RS)
        i = 2 * a + h
        r = RING + (slot * 2 + h) * 4
        imm, sel = 0, 0
        for t, b in enumerate(jbits):
            if (i >> t) & 1:
                if b >= 12:
                    sel |= 1 << big_j.index(b)
                else:
                    imm += 1 << b
        o("    buffer_load_dwordx4 v[%d:%d], v%d, s[%d:%d], s%d offen offset:%d %s" %
          (r, r + 3, V_OFFX + sel - 1 if sel else V_OFF, SRD_D, SRD_D + 3, S_OFF, imm, flags))

    def issue_pair(q):
        issue_one(2 * q)
        issue_one(2 * q + 1)

    stubs = []
    events = []

    if not early:
        issue_E(0)
    for q in range(LA):
        issue_pair(q)
    if early:
        o("    v_lshlrev_b32 v%d, 13, v%d" % (V_EOFF, V_X))
        o("    v_lshl_add_u32 v%d, v%d, 4, v%d" % (V_EOFF, V_Y, V_EOFF))
        o("    s_lshr_b32 s%d, s%d, 7" % (S_EOFF, S_OFF))
        o("    s_mov_b32 s%d, s10" % SRD_P)
        o("    s_mov_b32 s%d, s11" % (SRD_P + 1))
        o("    s_mov_b32 s%d, 0x20000" % (SRD_P + 2))
        o("    s_mov_b32 s%d, 0x20000" % (SRD_P + 3))
        issue_E(0)
        o("    s_mov_b32 s%d, s%d" % (S_OFF0, S_OFF))
    if bp and not pro8:
        step_inc()
        o("    s_lshr_b32 s%d, s%d, 7" % (S_EOFF, S_OFF))
        issue_one(8)
        issue_E(1)
        for n in range(9, 16):
            issue_one(n)
    pstp(2)
    if early:
        o("    s_mov_b32 s%d, 0x05040100" % S_SELLO)
        o("    s_mov_b32 s%d, 0x07060302" % S_SELHI)
        o("    s_lshl_b32 s%d, s%d, 13" % (S_T + 1, S_PAIR))
        srd_rest()
        ctl_setup()
    o("    s_add_u32 s%d, s8, s%d" % (NXT_D, S_T))
    o("    s_addc_u32 s%d, s9, 0" % (NXT_D + 1))
    o("    s_mov_b32 s%d, s12" % NXT_P)
    o("    s_mov_b32 s%d, s13" % (NXT_P + 1))
    o("    s_add_u32 s%d, s4, s%d" % (SRD_Q, S_T + 1))
    o("    s_addc_u32 s%d, s5, 0" % (SRD_Q + 1))
    o("    s_add_u32 s%d, s14, s%d" % (SRD_O, S_T + 1))
    o("    s_addc_u32 s%d, s15, 0" % (SRD_O + 1))
    def load_q(vx, vy, va, st):
        o("    v_lshlrev_b32 v%d, 8, v%d" % (va, vx))
        o("    v_lshl_add_u32 v%d, v%d, 6, v%d" % (va, vy, va))
        o("    s_lshr_b32 s%d, s%d, 1" % (st, S_WAVE))
        o("    s_lshl_b32 s%d, s%d, 12" % (st, st))
        for s in range(4):
            o("    buffer_load_dwordx4 a[%d:%d], v%d, s[%d:%d], s%d offen offset:%d" %
              (A_Q + 4 * s, A_Q + 4 * s + 3, va, SRD_Q, SRD_Q + 3, st, 16 * s))

    if qm == 0:
        load_q(V_X, V_Y, V_PW, S_T + 2)
    elif qm == 1:
        o("    s_bitcmp1_b32 s%d, 0" % S_WAVE)
        o("    s_cbranch_scc1 L_noq")
        load_q(V_X, V_Y, V_PW, S_T + 2)
        o("L_noq:")
    if tw:
        assert defer
        o("    v_and_b32 v%d, 3, v%d" % (V_PW, V_LANE))
        o("    v_lshlrev_b32 v%d, 19, v%d" % (V_PW, V_PW))
        o("    s_cmp_eq_u32 s%d, 1" % S_WAVE)
        o("    s_cbranch_scc0 L_tw1")
        o("    global_load_dword v%d, v%d, s[%d:%d]" % (V_DEF, V_PW, NXT_D, NXT_D + 1))
        o("L_tw1:")
        o("    s_cmp_eq_u32 s%d, 3" % S_WAVE)
        o("    s_cbranch_scc0 L_tw3")
        o("    v_mov_b32 v%d, 0" % V_PW)
        o("    buffer_load_dword v%d, v%d, s[%d:%d], 0 offen" % (V_DEF, V_PW, SRD_O, SRD_O + 3))
        o("    global_load_dword v%d, v%d, s[12:13]" % (V_DEF + 1, V_PW))
        o("L_tw3:")
    o("    v_lshlrev_b32 v%d, 8, v%d" % (V_OUT, V_X))
    o("    v_lshl_add_u32 v%d, v%d, 4, v%d" % (V_OUT, V_Y, V_OUT))
    o("    s_lshl_b32 s%d, s%d, 6" % (S_T + 2, S_WAVE))
    o("    v_add_u32 v%d, s%d, v%d" % (V_OUT, S_T + 2, V_OUT))
    o("    v_and_b32 v%d, 3, v%d" % (V_VR, V_X))
    o("    v_mul_u32_u24 v%d, %d, v%d" % (V_VR, DS, V_VR))
    o("    v_lshrrev_b32 v%d, 2, v%d" % (V_X, V_X))
    o("    v_lshl_add_u32 v%d, v%d, 4, v%d" % (V_X, V_Y, V_X))
    o("    v_lshl_add_u32 v%d, v%d, 4, v%d" % (V_VR, V_X, V_VR))
    o("    s_lshl_b32 s%d, s%d, 6" % (S_T + 2, S_WAVE))
    o("    s_add_u32 s%d, s%d, %d" % (S_T + 2, S_T + 2, LDS_VP))
    o("    v_add_u32 v%d, s%d, v%d" % (V_VR, S_T + 2, V_VR))
    o("    v_lshlrev_b32 v%d, 4, v%d" % (V_X, V_LANE))
    o("    s_mul_i32 s%d, s%d, %d" % (S_T + 2, S_WAVE, WS))
    o("    s_add_u32 s%d, s%d, %d" % (S_T + 2, S_T + 2, LDS_KP))
    o("    v_add_u32 v%d, s%d, v%d" % (V_PW, S_T + 2, V_X))
    for j in range(32):
        o("    v_mov_b32 v%d, 0" % (ACC + j))


    def allowed(n, req, e_done):
        cnt = n - 1 - req
        for qq in range(0, n // 2 + 1):
            if qq % 4 == 0 and 2 * qq >= req and (qq < n // 2 or e_done):
                cnt += NE
        return cnt

    def wait_of(m, p, h, extra=0):
        q = p + LA
        n = 2 * q + h
        N, gr = int(m[:-1]), m[-1]
        if gr == "p":
            if h == 1:
                return None
            req = n - N + 1
        else:
            req = n - N
        if h == 0:
            req = max(req, 2 * p + 1)
        elif req <= 2 * p + 1:
            return None
        big = 8000
        return allowed(n + big, req + big, h == 1) + (extra if req <= 7 else 0)

    def decide(tag):
        T0 = S_T + 6
        o("    s_waitcnt lgkmcnt(0)")
        if not noev:
            o("    s_cmp_eq_u32 s%d, s%d" % (S_PROG, S_RP))
            o("    s_cbranch_scc1 L_rp_%s" % tag)
            o("L_rpr_%s:" % tag)
            o("    s_cmp_eq_u32 s%d, s%d" % (S_PROG, S_EV))
            o("    s_cbranch_scc1 L_ev_%s" % tag)
        o("L_evr_%s:" % tag)
        if trace:
            o("    s_mov_b32 m0, s%d" % S_PROG)
            o("    s_nop 0")
            o("    v_writelane_b32 v%d, s%d, m0" % (V_BV, S_NOW))
        o("    s_sub_u32 s%d, s%d, s%d" % (T0, S_NOW, S_TM))
        o("    s_lshl_b32 s%d, s%d, 6" % (T0, T0))
        o("    s_sub_u32 s%d, s%d, s%d" % (T0, T0, S_ACC))
        o("    s_add_u32 s%d, s%d, s%d" % (S_ACC, S_ACC, S_INC))
        o("    s_add_u32 s%d, s%d, 1" % (S_PROG, S_PROG))
        if force < 0 and tag == "post" and pdec != 1:
            if pdec == 0:
                o("    s_mov_b32 s%d, 0" % S_MODE)
        elif force < 0:
            o("    s_cmp_gt_i32 s%d, s%d" % (T0, S_THI))
            o("    s_cselect_b32 s%d, 1, 0" % S_MODE)
            o("    s_cmp_lt_i32 s%d, s%d" % (T0, S_TLO))
            o("    s_cselect_b32 s%d, 2, s%d" % (S_MODE, S_MODE))
        if tail:
            o("    s_cmp_ge_u32 s%d, %d" % (S_PROG, 64 - tail))
            o("    s_cselect_b32 s%d, 1, s%d" % (S_MODE, S_MODE))
        if fin:
            o("    s_cmp_eq_u32 s%d, %d" % (S_PROG, 64 - fin))
            o("    s_cselect_b32 s%d, 3, s%d" % (S_MODE, S_MODE))
        if stamp:
            o("    s_and_b32 s%d, s%d, 1" % (T0, S_MODE))
            o("    s_add_u32 s%d, s%d, s%d" % (S_HI, S_HI, T0))
            o("    s_and_b32 s%d, s%d, 2" % (T0, S_MODE))
            o("    s_lshl_b32 s%d, s%d, 7" % (T0, T0))
            o("    s_add_u32 s%d, s%d, s%d" % (S_HI, S_HI, T0))
        events.append(tag)

    def emit_events():
        T0, T1 = S_T + 6, S_T + 7
        for tag in events:
            if noev:
                continue
            o("L_rp_%s:" % tag)
            o("    v_mov_b32 v%d, s%d" % (V_BV - 3, S_NOW))
            o("    v_mov_b32 v%d, 0x100" % (V_BV - 2))
            o("    s_mov_b64 exec, 1")
            if doat and akind == "atomic":
                o("    global_atomic_add_x2 v%d, v[%d:%d], s[%d:%d] %s" % (V_BO, V_BV - 3, V_BV - 2, abase, abase + 1, aflags))
            elif doat and akind == "store":
                o("    global_store_dwordx2 v%d, v[%d:%d], s[%d:%d] %s" % (V_BO, V_BV - 3, V_BV - 2, abase, abase + 1, aflags))
            elif doat and akind == "load":
                o("    global_load_dwordx2 v[%d:%d], v%d, s[%d:%d] %s" % (V_BV - 3, V_BV - 2, V_BO, abase, abase + 1, aflags))
            o("    s_mov_b64 exec, -1")
            o("    s_branch L_rpr_%s" % tag)
            o("L_ev_%s:" % tag)
            for k in range(1, len(cal)):
                o("    s_cmp_eq_u32 s%d, %d" % (S_EV, cal[k] + lag))
                o("    s_cbranch_scc1 L_evl%d_%s" % (k, tag))
                o("    s_cmp_eq_u32 s%d, %d" % (S_EV, cal[k] + lag + 1))
                o("    s_cbranch_scc1 L_evc%d_%s" % (k, tag))
            o("    s_branch L_evr_%s" % tag)
            for k in range(1, len(cal)):
                jr = cal[k] + lag
                span = cal[k] - cal[k - 1]
                assert span in (8, 16)
                o("L_evl%d_%s:" % (k, tag))
                if k == 1 and dold:
                    o("    s_load_dwordx2 s[%d:%d], s[16:17], %d" % (S_C1, S_C1 + 1, SLOT[0]))
                if dold:
                    o("    s_load_dwordx2 s[%d:%d], s[16:17], %d" % (S_C2, S_C2 + 1, SLOT[k]))
                o("    s_mov_b32 s%d, %d" % (S_EV, jr + 1))
                o("    s_branch L_evr_%s" % tag)
                o("L_evc%d_%s:" % (k, tag))
                o("    s_mov_b32 s%d, %s" % (S_EV, "0x7fffffff" if k == len(cal) - 1 else str(cal[k + 1] + lag)))
                if k == 1:
                    o("    s_lshr_b64 s[%d:%d], s[%d:%d], %d" % (S_C1, S_C1 + 1, S_C1, S_C1 + 1, nsh))
                o("    s_lshr_b64 s[%d:%d], s[%d:%d], %d" % (S_C2, S_C2 + 1, S_C2, S_C2 + 1, nsh))
                o("    s_and_b32 s%d, s%d, s%d" % (T0, S_C1 + 1, S_C2 + 1))
                o("    s_sub_u32 s%d, s%d, s%d" % (T1, S_C2, S_C1))
                o("    s_mov_b32 s%d, s%d" % (S_C1, S_C2))
                o("    s_mov_b32 s%d, s%d" % (S_C1 + 1, S_C2 + 1))
                o("    s_cmp_lg_u32 s%d, 256" % T0)
                o("    s_cbranch_scc1 L_evr_%s" % tag)
                if stamp:
                    o("    s_add_u32 s%d, s%d, 0x10000" % (S_HI, S_HI))
                if span == 8:
                    o("    s_lshl_b32 s%d, s%d, 1" % (T1, T1))
                o("    s_mov_b32 s%d, s%d" % (S_TM, S_C1))
                o("    s_lshl_b32 s%d, s%d, 2" % (S_INC, T1))
                o("    s_mul_i32 s%d, s%d, %d" % (S_ACC, T1, 4 * (jr + 1) - (4 * cal[k] + 2 * st2) + delta))
                o("    s_mul_i32 s%d, s%d, %d" % (S_THI, T1, dhi))
                o("    s_mul_i32 s%d, s%d, %d" % (S_TLO, T1, -dlo))
                if tsh:
                    o("    s_ashr_i32 s%d, s%d, %d" % (S_THI, S_THI, tsh))
                    o("    s_ashr_i32 s%d, s%d, %d" % (S_TLO, S_TLO, tsh))
                if eps:
                    o("    s_mul_i32 s%d, s%d, %d" % (T0, T1, eps))
                    o("    s_ashr_i32 s%d, s%d, 6" % (T0, T0))
                    o("    s_sub_u32 s%d, s%d, s%d" % (S_INC, S_INC, T0))
                o("    s_branch L_evr_%s" % tag)

    def round_mfma(s):
        if esplit:
            r = V_ER + (s % ER) * 4
            for t in range(2):
                o("    v_perm_b32 v%d, v%d, v%d, s%d" % (V_EA + 2 * t, r + 2 + t, r + t, S_SELLO))
                o("    v_perm_b32 v%d, v%d, v%d, s%d" % (V_EA + 2 * t + 1, r + 2 + t, r + t, S_SELHI))
            e = "v[%d:%d]" % (V_EA, V_EA + 3)
        else:
            e = "a[%d:%d]" % (A_E + (s % ER) * 4, A_E + (s % ER) * 4 + 3)
        o("    s_nop 1")
        for dd in range(8):
            acc = ACC + dd * 4
            o("    v_mfma_f32_16x16x32_bf16 v[%d:%d], %s, v[%d:%d], v[%d:%d]" %
              (acc, acc + 3, e, T + dd * 4, T + dd * 4 + 3, acc, acc + 3))

    def body(mode, m, post=False, extra=0):
        o("L_body_%s:" % mode)
        for p in range(8):
            s, a = divmod(p, 4)
            q = p + LA
            if p == 0 and not post:
                step_inc()
                o("    s_lshr_b32 s%d, s%d, 7" % (S_EOFF, S_OFF))
            if p == 4:
                step_inc()
                if not post:
                    o("    s_cmp_eq_u32 s%d, 1" % S_CNT)
                    o("    s_cbranch_scc1 L_sw_%s" % mode)
                    o("L_swr_%s:" % mode)
                    stubs.append(mode)
                o("    s_lshr_b32 s%d, s%d, 7" % (S_EOFF, S_OFF))
            if ctl and p == pc and pre:
                decide(mode)
                if ps == pc and not notime:
                    o("    s_memrealtime s[%d:%d]" % (S_NOW, S_NOW + 1))
            if post and p < 4:
                younger = 15 - (2 * p + 1) + NE
                o("    s_waitcnt vmcnt(%d)" % younger)
                if pst and not pro8 and p in (0, 3):
                    o("    s_cmp_eq_u32 s%d, 0" % S_MI)
                    o("    s_cbranch_scc0 L_nopst%d" % p)
                    pstp(4 if p == 0 else 5)
                    o("L_nopst%d:" % p)
            else:
                for h in range(2):
                    w = wait_of(m, p, h, extra)
                    if w is not None:
                        o("    s_waitcnt vmcnt(%d)" % w)
                    if h == 0 and q % 4 == 0:
                        issue_one(2 * q)
                        issue_E(q // 4)
                    else:
                        issue_one(2 * q + h)
                if pst and pro8 and p in (0, 3):
                    o("    s_cmp_eq_u32 s%d, 0" % S_PROG)
                    o("    s_cbranch_scc0 L_nopst%d_%s" % (p, mode))
                    pstp(4 if p == 0 else 5)
                    o("L_nopst%d_%s:" % (p, mode))
            if ctl and p == ps and ps != pc and not notime:
                o("    s_memrealtime s[%d:%d]" % (S_NOW, S_NOW + 1))
            if ctl and p == pc and not pre:
                decide(mode)
                if ps == pc and not notime:
                    o("    s_memrealtime s[%d:%d]" % (S_NOW, S_NOW + 1))
            slot = p % (4 * RS)
            xb = RING + slot * 8
            yb = xb + 4
            for c in range(4):
                o("    v_perm_b32 v%d, v%d, v%d, s%d" % (T + (2 * c) * 4 + a, yb + c, xb + c, S_SELLO))
                o("    v_perm_b32 v%d, v%d, v%d, s%d" % (T + (2 * c + 1) * 4 + a, yb + c, xb + c, S_SELHI))
            if a == 3:
                round_mfma(s)
        o("    s_sub_u32 s%d, s%d, 1" % (S_CNT, S_CNT))
        if not post:
            o("    s_cmp_eq_u32 s%d, 0" % S_CNT)
            o("    s_cbranch_scc1 L_matend")

    def body_fin():
        o("L_body_fin:")
        step_inc()
        o("    s_lshr_b32 s%d, s%d, 7" % (S_EOFF, S_OFF))
        issue_one(8)
        issue_E(1)
        for n in range(9, 16):
            issue_one(n)
        for p in range(8):
            s, a = divmod(p, 4)
            younger = 15 - (2 * p + 1) + (NE if p < 4 else 0)
            o("    s_waitcnt vmcnt(%d)" % younger)
            xb = RING + p * 8
            yb = xb + 4
            for c in range(4):
                o("    v_perm_b32 v%d, v%d, v%d, s%d" % (T + (2 * c) * 4 + a, yb + c, xb + c, S_SELLO))
                o("    v_perm_b32 v%d, v%d, v%d, s%d" % (T + (2 * c + 1) * 4 + a, yb + c, xb + c, S_SELHI))
            if a == 3:
                round_mfma(s)
        o("    s_branch L_matend")

    pstp(3)
    if pro8 and bp:
        o("    s_mov_b32 s%d, 16" % S_CNT)
        if m0:
            o("    s_mov_b32 s%d, %d" % (S_MODE, m0))
        if mfirst:
            assert qm in (0, 1)
            if qm == 1:
                o("    s_bitcmp1_b32 s%d, 0" % S_WAVE)
                o("    s_cbranch_scc1 L_dispatch")
            o("    s_branch L_body_first")
        else:
            o("    s_branch L_dispatch")
    o("L_outer:")
    o("    s_mov_b32 s%d, 16" % S_CNT)
    if bp:
        o("; first iteration of a matrix: both rounds were issued ahead of the previous handler")
        body("post", mpost or mmid, post=True)
    o("L_dispatch:")
    modes = [("mid", mmid)]
    if (ctl and force < 0) or force == 1 or tail:
        modes.append(("hi", mhi))
        o("    s_cmp_eq_u32 s%d, 1" % S_MODE)
        o("    s_cbranch_scc1 L_body_hi")
    if (ctl and force < 0) or force == 2:
        modes.append(("lo", mlo))
        o("    s_cmp_eq_u32 s%d, 2" % S_MODE)
        o("    s_cbranch_scc1 L_body_lo")
    if fin:
        assert ctl
        o("    s_cmp_eq_u32 s%d, 3" % S_MODE)
        o("    s_cbranch_scc1 L_body_fin")
    for mode, m in modes:
        body(mode, m)
        o("    s_branch L_dispatch")
    if mfirst:
        body("first", mfirst, extra=4)
        o("    s_branch L_dispatch")
    if fin:
        body_fin()
    o("L_matend:")
    if bp:
        o("    s_cmp_eq_u32 s%d, 3" % S_MI)
        o("    s_cbranch_scc1 L_nopf")
        step_inc()
        o("    s_lshr_b32 s%d, s%d, 7" % (S_EOFF, S_OFF))
        issue_one(8)
        issue_E(1)
        for n in range(9, 16):
            issue_one(n)
        o("L_nopf:")
    o("    s_and_b32 s%d, s%d, 1" % (S_T, S_MI))
    o("    s_mul_i32 s%d, s%d, %d" % (S_T + 1, S_T, 4 * WS))
    o("    v_add_u32 v%d, s%d, v%d" % (V_X, S_T + 1, V_PW))
    o("    s_nop 7")
    if ctl:
        o("    s_waitcnt lgkmcnt(0)")
    for dd in range(8):
        o("    ds_write_b128 v%d, v[%d:%d] offset:%d" % (V_X, ACC + 4 * dd, ACC + 4 * dd + 3, dd * DS))
    o("    s_waitcnt lgkmcnt(0)")
    o("    s_barrier")
    o("    s_cmp_eq_u32 s%d, 1" % S_T)
    o("    s_cbranch_scc1 L_vend")
    o("    s_cmp_lg_u32 s%d, s%d" % (S_WAVE, S_MI))
    o("    s_cbranch_scc1 L_mat_done")
    SUM, TMP, PA = ACC, T, MISC
    o("    v_lshlrev_b32 v%d, 4, v%d" % (V_X, V_LANE))
    for w in range(4):
        dst = SUM if w == 0 else TMP
        for dd in range(8):
            o("    ds_read_b128 v[%d:%d], v%d offset:%d" %
              (dst + 4 * dd, dst + 4 * dd + 3, V_X, LDS_KP + w * WS + dd * DS))
        if w > 0:
            for dd in range(8):
                o("    s_waitcnt lgkmcnt(%d)" % (7 - dd))
                for i in range(4):
                    o("    v_add_f32 v%d, v%d, v%d" % (SUM + 4 * dd + i, SUM + 4 * dd + i, TMP + 4 * dd + i))
    for dd in range(8):
        o("    v_cvt_pk_bf16_f32 v%d, v%d, v%d" % (PA + 2 * dd, SUM + 4 * dd, SUM + 4 * dd + 1))
        o("    v_cvt_pk_bf16_f32 v%d, v%d, v%d" % (PA + 2 * dd + 1, SUM + 4 * dd + 2, SUM + 4 * dd + 3))
    ID = MISC + 16
    o("    v_and_b32 v%d, 15, v%d" % (V_X, V_LANE))
    o("    v_lshrrev_b32 v%d, 4, v%d" % (V_Y, V_LANE))
    o("    v_lshlrev_b32 v%d, 2, v%d" % (V_Y, V_Y))
    o("    v_sub_u32 v%d, v%d, v%d" % (V_X, V_X, V_Y))
    o("    v_mov_b32 v%d, 0" % ID)
    o("    v_mov_b32 v%d, 0" % (ID + 1))
    o("    v_mov_b32 v%d, 0x3f80" % (ID + 2))
    o("    v_mov_b32 v%d, 0x3f800000" % (ID + 3))
    for j, (dst, src) in enumerate(((ID, ID + 2), (ID, ID + 3), (ID + 1, ID + 2), (ID + 1, ID + 3))):
        o("    v_cmp_eq_u32 vcc, %d, v%d" % (j, V_X))
        o("    s_nop 1")
        o("    v_cndmask_b32 v%d, v%d, v%d, vcc" % (dst, dst, src))
    o("    s_nop 1")
    for dd in range(8):
        o("    v_mfma_f32_16x16x16_bf16 v[%d:%d], v[%d:%d], v[%d:%d], 0" %
          (TMP + 4 * dd, TMP + 4 * dd + 3, PA + 2 * dd, PA + 2 * dd + 1, ID, ID + 1))
    o("    s_nop 7")
    PB = SUM
    for s in range(4):
        for j in range(4):
            o("    v_cvt_pk_bf16_f32 v%d, v%d, v%d" %
              (PB + 4 * s + j, TMP + (2 * j) * 4 + s, TMP + (2 * j + 1) * 4 + s))
    SC = SUM + 16
    if qwait:
        o("    s_waitcnt vmcnt(0)")
    if qm == 2:
        assert bp and not noE
        o("    s_waitcnt vmcnt(%d)" % (16 + 2 * NE))
    for s in range(4):
        c = "0" if s == 0 else "v[%d:%d]" % (SC, SC + 3)
        o("    v_mfma_f32_16x16x32_bf16 v[%d:%d], v[%d:%d], a[%d:%d], %s" %
          (SC, SC + 3, PB + 4 * s, PB + 4 * s + 3, A_Q + 4 * s, A_Q + 4 * s + 3, c))
    o("    s_mov_b32 s%d, 0x3db504f3" % (S_T + 2))
    o("    s_mov_b32 s%d, 0x3fb8aa3b" % (S_T + 3))
    o("    s_nop 7")
    W = SUM + 20
    M = SUM + 22

    def round_bf16():
        o("    v_cvt_pk_bf16_f32 v%d, v%d, v%d" % (W, SC, SC + 1))
        o("    v_cvt_pk_bf16_f32 v%d, v%d, v%d" % (W + 1, SC + 2, SC + 3))
        o("    v_lshlrev_b32 v%d, 16, v%d" % (SC, W))
        o("    v_and_b32 v%d, 0xffff0000, v%d" % (SC + 1, W))
        o("    v_lshlrev_b32 v%d, 16, v%d" % (SC + 2, W + 1))
        o("    v_and_b32 v%d, 0xffff0000, v%d" % (SC + 3, W + 1))

    round_bf16()
    for i in range(4):
        o("    v_mul_f32 v%d, s%d, v%d" % (SC + i, S_T + 2, SC + i))
    round_bf16()
    o("    v_max_f32 v%d, v%d, v%d" % (M, SC, SC + 1))
    o("    v_max3_f32 v%d, v%d, v%d, v%d" % (M, SC + 2, SC + 3, M))

    def xlane(op, reg, tmp):
        for sw in ("v_permlane32_swap_b32", "v_permlane16_swap_b32"):
            o("    v_mov_b32 v%d, v%d" % (tmp, reg))
            o("    s_nop 1")
            o("    %s v%d, v%d" % (sw, reg, tmp))
            o("    s_nop 1")
            o("    %s v%d, v%d, v%d" % (op, reg, reg, tmp))

    xlane("v_max_f32", M, M + 1)
    for i in range(4):
        o("    v_sub_f32 v%d, v%d, v%d" % (SC + i, SC + i, M))
    for i in range(4):
        o("    v_mul_f32 v%d, s%d, v%d" % (SC + i, S_T + 3, SC + i))
    for i in range(4):
        o("    v_exp_f32 v%d, v%d" % (SC + i, SC + i))
    o("    s_nop 0")
    o("    v_add_f32 v%d, v%d, v%d" % (M, SC, SC + 1))
    o("    v_add_f32 v%d, v%d, v%d" % (M + 1, SC + 2, SC + 3))
    o("    v_add_f32 v%d, v%d, v%d" % (M, M, M + 1))
    xlane("v_add_f32", M, M + 1)
    o("    v_rcp_f32 v%d, v%d" % (M, M))
    o("    s_nop 0")
    for i in range(4):
        o("    v_mul_f32 v%d, v%d, v%d" % (SC + i, SC + i, M))
    o("    v_cvt_pk_bf16_f32 v%d, v%d, v%d" % (W, SC, SC + 1))
    o("    v_cvt_pk_bf16_f32 v%d, v%d, v%d" % (W + 1, SC + 2, SC + 3))
    o("    v_lshlrev_b32 v%d, 3, v%d" % (V_X, V_LANE))
    o("    ds_write_b64 v%d, v[%d:%d] offset:%d" % (V_X, W, W + 1, LDS_P))
    o("    s_waitcnt lgkmcnt(0)")
    o("    s_branch L_mat_done")

    o("L_vend:")
    PP = MISC
    o("    v_lshlrev_b32 v%d, 3, v%d" % (V_X, V_LANE))
    o("    ds_read_b64 v[%d:%d], v%d offset:%d" % (PP, PP + 1, V_X, LDS_P))
    for w in range(4):
        for h in range(2):
            r = T + (w * 2 + h) * 4
            o("    ds_read_b128 v[%d:%d], v%d offset:%d" % (r, r + 3, V_VR, w * WS + h * 4 * DS))
    o("    s_waitcnt lgkmcnt(4)")
    for j in range(8):
        o("    v_add_f32 v%d, v%d, v%d" % (T + j, T + j, T + 8 + j))
    o("    s_waitcnt lgkmcnt(0)")
    for j in range(8):
        o("    v_add_f32 v%d, v%d, v%d" % (T + 16 + j, T + 16 + j, T + 24 + j))
    for j in range(8):
        o("    v_add_f32 v%d, v%d, v%d" % (T + j, T + j, T + 16 + j))
    VB = MISC + 4
    for h in range(2):
        o("    v_cvt_pk_bf16_f32 v%d, v%d, v%d" % (VB + 2 * h, T + 4 * h, T + 4 * h + 1))
        o("    v_cvt_pk_bf16_f32 v%d, v%d, v%d" % (VB + 2 * h + 1, T + 4 * h + 2, T + 4 * h + 3))
    OO = T + 16
    o("    s_lshr_b32 s%d, s%d, 1" % (S_T + 2, S_MI))
    o("    s_lshl_b32 s%d, s%d, 12" % (S_T + 2, S_T + 2))
    for h in range(2):
        o("    v_mfma_f32_16x16x16_bf16 v[%d:%d], v[%d:%d], v[%d:%d], 0" %
          (OO + 4 * h, OO + 4 * h + 3, VB + 2 * h, VB + 2 * h + 1, PP, PP + 1))
    o("    s_nop 7")
    for i in range(4):
        o("    v_cvt_pk_bf16_f32 v%d, v%d, v%d" % (MISC + 8 + i, OO + 2 * i, OO + 2 * i + 1))
    if noout or defer:
        o("    s_cmp_eq_u32 s%d, 1" % S_MI)
        o("    s_cbranch_scc0 L_store")
        if defer:
            for i in range(4):
                o("    v_mov_b32 v%d, v%d" % (V_DEF + i, MISC + 8 + i))
        o("    s_branch L_mat_done")
        o("L_store:")
        if defer:
            o("    buffer_store_dwordx4 v[%d:%d], v%d, s[%d:%d], 0 offen %s" %
              (V_DEF, V_DEF + 3, V_OUT, SRD_O, SRD_O + 3, oflags))
    o("    buffer_store_dwordx4 v[%d:%d], v%d, s[%d:%d], s%d offen %s" %
      (MISC + 8, MISC + 11, V_OUT, SRD_O, SRD_O + 3, S_T + 2, oflags))

    o("L_mat_done:")
    o("    s_add_u32 s%d, s%d, 1" % (S_MI, S_MI))
    o("    s_cmp_eq_u32 s%d, 4" % S_MI)
    o("    s_cbranch_scc1 L_fin")
    for j in range(32):
        o("    v_mov_b32 v%d, 0" % (ACC + j))
    o("    s_branch L_outer")

    if ctl:
        o("; ---- progress reports (L_rp) and progress line updates (L_ev) ----")
        emit_events()
    o("; ---- load side moves on to the next matrix ----")
    for tag in stubs:
        o("L_sw_%s:" % tag)
        if qm == 2:
            o("    s_cmp_lg_u32 s%d, s%d" % (S_LM, S_WAVE))
            o("    s_cbranch_scc1 L_swq_%s" % tag)
            o("    s_bitcmp1_b32 s%d, 0" % S_WAVE)
            o("    s_cbranch_scc1 L_swq_%s" % tag)
            o("    v_and_b32 v%d, 15, v%d" % (V_X, V_LANE))
            o("    v_lshrrev_b32 v%d, 4, v%d" % (V_Y, V_LANE))
            load_q(V_X, V_Y, V_X, S_T + 6)
            o("L_swq_%s:" % tag)
        o("    s_mov_b32 s%d, s%d" % (S_OFF, S_OFF0))
        if general:
            o("    s_mov_b32 s%d, 0" % S_STP)
        o("    s_add_u32 s%d, s%d, 0x100000" % (S_T + 4, SRD_D))
        o("    s_addc_u32 s%d, s%d, 0" % (S_T + 5, SRD_D + 1))
        o("    s_mov_b32 s%d, s%d" % (SRD_D, NXT_D))
        o("    s_mov_b32 s%d, s%d" % (SRD_D + 1, NXT_D + 1))
        o("    s_mov_b32 s%d, s%d" % (NXT_D, S_T + 4))
        o("    s_mov_b32 s%d, s%d" % (NXT_D + 1, S_T + 5))
        o("    s_mov_b32 s%d, s%d" % (S_T + 4, SRD_P))
        o("    s_mov_b32 s%d, s%d" % (S_T + 5, SRD_P + 1))
        o("    s_mov_b32 s%d, s%d" % (SRD_P, NXT_P))
        o("    s_mov_b32 s%d, s%d" % (SRD_P + 1, NXT_P + 1))
        o("    s_mov_b32 s%d, s%d" % (NXT_P, S_T + 4))
        o("    s_mov_b32 s%d, s%d" % (NXT_P + 1, S_T + 5))
        o("    s_add_u32 s%d, s%d, 1" % (S_LM, S_LM))
        o("    s_cmp_eq_u32 s%d, 4" % S_LM)
        o("    s_cselect_b32 s%d, 0, 0x100000" % (SRD_D + 2))
        o("    s_cselect_b32 s%d, 0, 0x20000" % (SRD_P + 2))
        o("    s_branch L_swr_%s" % tag)

    o("L_fin:")
    if stamp:
        o("    s_waitcnt vmcnt(0)")
        o("    s_memrealtime s[62:63]")
        o("    s_getreg_b32 s58, hwreg(HW_REG_XCC_ID)")
        o("    s_getreg_b32 s59, hwreg(HW_REG_HW_ID)")
        o("    s_waitcnt lgkmcnt(0)")
        o("    s_lshl_b32 s%d, s2, 2" % S_T)
        o("    s_add_u32 s%d, s%d, s%d" % (S_T, S_T, S_WAVE))
        o("    s_lshl_b32 s%d, s%d, 4" % (S_T, S_T))
        o("    v_mov_b32 v4, s60")
        o("    v_mov_b32 v5, s62")
        o("    v_mov_b32 v6, s58")
        if pstamp:
            o("    s_sub_u32 s82, s82, s60")
        o("    v_mov_b32 v7, s%d" % (82 if pstamp else (S_HI if ctl else 59)))
        o("    v_mov_b32 v2, s%d" % S_T)
        o("    global_store_dwordx4 v2, v[4:7], s[18:19]")
        if pst:
            o("    s_lshl_b32 s%d, s%d, 1" % (S_T + 1, S_T))
            o("    s_add_u32 s%d, s%d, 0x60000" % (S_T + 1, S_T + 1))
            o("    v_mov_b32 v2, s%d" % (S_T + 1))
            for k in range(6):
                o("    s_sub_u32 s%d, s%d, s60" % (PST[k], PST[k]))
                o("    v_mov_b32 v%d, s%d" % (8 + k, PST[k]))
            o("    global_store_dwordx4 v2, v[8:11], s[18:19]")
            o("    global_store_dwordx2 v2, v[12:13], s[18:19] offset:16")
        if trace:
            o("    s_lshl_b32 s%d, s%d, 4" % (S_T, S_T))
            o("    s_add_u32 s%d, s%d, 0x10000" % (S_T, S_T))
            o("    v_lshlrev_b32 v2, 2, v0")
            o("    v_add_u32 v2, s%d, v2" % S_T)
            o("    global_store_dword v2, v%d, s[18:19]" % V_BV)
    o("L_end:")
    o("    s_endpgm")
    nvg = max(accum_offset + na, 264)
    o('.section .rodata,"a"')
    o(".p2align 6")
    o(".amdhsa_kernel %s_kernel" % NAME)
    o("  .amdhsa_next_free_vgpr %d" % nvg)
    o("  .amdhsa_next_free_sgpr %d" % (96 if pst else 88))
    o("  .amdhsa_accum_offset %d" % accum_offset)
    o("  .amdhsa_group_segment_fixed_size 0")
    o("  .amdhsa_kernarg_size 64")
    o("  .amdhsa_user_sgpr_count 2")
    o("  .amdhsa_user_sgpr_kernarg_segment_ptr 1")
    o("  .amdhsa_system_sgpr_workgroup_id_x 1")
    o("  .amdhsa_float_denorm_mode_32 3")
    o(".end_amdhsa_kernel")
    return "\n".join(L) + "\n"


if __name__ == "__main__":
    out = sys.argv[1]
    kw = {}
    for a in sys.argv[2:]:
        k, v = a.split("=")
        if k not in ("flags", "eflags", "oflags", "mlo", "mmid", "mhi", "cal", "aflags", "akind", "mpost", "mfirst", "xm", "jb", "gb", "wb"):
            v = int(v)
        kw[k] = v
    open(out, "w").write(gen(**kw))
```

```python
import sys

NAME = "standalone__low_rank_proj_linformer__sampling"
HEADER = open("cdna_kernels/%s.s.ref" % NAME).read().split("; Override launch")[0]

DOC = """
Linformer attention: kp = E.K, vp = F.V (rank 16), p = softmax(bf16(q.kp^T) * 128^-0.5), out = p.vp.
The kernel is bound by the 1 GiB read of K and V.

Work split: 256 workgroups x 4 waves, one workgroup per CU, two heads per workgroup.
A workgroup streams K(h0), V(h0), K(h1), V(h1); a round covers 128 rows (32 KiB), wave w takes
rows [32w, 32w+32).  Per round a wave issues 8 dwordx4 loads into a register ring (two rounds deep),
transposes 8x8 blocks with v_perm and accumulates E^T-fragment x data with 8 MFMA 16x16x32.
At the end of a matrix the four partial sums are added through LDS; one wave does the scores and the
softmax, all four waves do p.vp.  The first head's output stays in registers until the end.

Load-window balancing: the dies get unequal shares of the memory bandwidth, and the slowest die sets the
run time.  The loop body exists three times and differs only in how many loads it keeps in flight
(lo / mid / hi).  A few waves add their clock value to counters in d_debug at fixed iterations; the mean of
these reports gives the grid-wide progress line.  Once per iteration each wave compares its clock with
the line and picks the body: hi when it lags, lo when it leads.  The choice changes timing only, never
the result, and no wave ever waits on the clock or on another workgroup.
"""


def gen(flags="nt", eflags="sc1", oflags="", stamp=0, force=-1, ctl=1,
        mlo="5s", mmid="6p", mhi="8p", dhi=1, dlo=1, cal="9,25", lag=8, delta=0, eps=0, ps=0, pc=6,
        tail=0, notime=0, pre=0, noev=0, trace=0,
        doat=1, dold=1, aflags="sc1", akind="atomic", abase=16, wmap=0, amask=0, aval=0,
        ns=256, stag=4, noout=0, defer=0, bp=0, noE=0, mpost="", qwait=0, pstamp=0, fin=0, tsh=0, pst=0, early=0, pf=0, pfw=256, pro8=0, qm=0, m0=0, mfirst="", tw=0, pdec=1, wa=0, rot=0, gp=11, wp=13, xm="", hb=8, hb2=0, jb="", gb="", wb="", sb="", mb=20, pb="", hf=-1, tf=-1, af="", jx="", prb=0, e0=0, eg=0, egs=1, mm2="", m2s=1, wsy="", nom=0, lag0=3, dl8=0, dh8=0, ew=0, ewf="", wskip=0, half=0, hca=2, hcb=6):
    LA, RS, ER, P = 4, 2, 2, 2
    cal = [int(x) for x in str(cal).split(",")]
    assert 2 <= len(cal) <= 4
    SLOT = [0, 128, 64, 192]
    nsh = ns.bit_length() - 1
    assert ns == 1 << nsh and ns >= 8 * stag
    st2 = stag - 1
    nobar = nocomp = 0
    wsyl = [int(x) for x in str(wsy).split(",")] if wsy != "" else []
    general = (gp, wp, xm, hb, jb, gb, wb, sb) != (11, 13, "", 8, "", "", "", "")
    gbits = [int(x) for x in str(gb).split(",")] if gb else [gp, gp + 1]
    wbits = [int(x) for x in str(wb).split(",")] if wb else [wp, wp + 1]
    if jb:
        jbits = [int(x) for x in str(jb).split(",")]
    elif hb == 8:
        jbits = [8, 9, 10]
    elif hb2:
        jbits = [hb, hb2, 8]
    else:
        jbits = [hb, 8, 9]
    holes = sum(1 << b for b in gbits + wbits + jbits)
    assert bin(holes).count("1") == 7 and min(gbits + wbits) >= 8
    sbits = [b for b in range(8, 20) if not (holes >> b) & 1]
    if sb:
        sbits = [int(x) for x in str(sb).split(",")]
        assert sbits == sorted(sbits) and len(sbits) == 5
        holes = 0xffffff00 & ~sum(1 << b for b in sbits)
    pbits = [int(x) for x in str(pb).split(",")] if pb else [b for b in range(20, 29) if b != mb]
    allb = gbits + wbits + jbits + sbits + [mb] + pbits
    assert sorted(allb) == list(range(8, 29)), sorted(allb)
    probe = max(gbits + wbits + jbits + sbits) >= 20 or mb < 20 or bool(prb)
    headmap = (mb, pbits) != (20, list(range(21, 29)))
    offmask = sum(1 << b for b in gbits + wbits + jbits + sbits) | 0xff
    big_j = [b for b in jbits if b >= 12]
    afl = [int(x) for x in str(af).split(",")] if af else []
    af_s = sum(1 << b for b in afl if b in wbits + sbits)
    af_g = sum(1 << b for b in afl if b in gbits)
    S_OFFB = 87
    jxl = [tuple(int(y) for y in x.split(":")) for x in jx.split(",")] if jx else []
    jx_j = [(tb, sb_) for tb, sb_ in jxl if tb in jbits]
    jx_g = [(tb, sb_) for tb, sb_ in jxl if tb in gbits]
    assert len(jx_j) + len(jx_g) == len(jxl)
    xml = [tuple(int(y) for y in x.split(":")) for x in xm.split(",")] if xm else []
    if general:
        assert wa == 0 and rot == 0 and not early
    L = []
    o = L.append
    DS = 1088
    WS = 8 * DS
    LDS_P, LDS_KP, LDS_VP = 0, 512, 512 + 4 * WS
    lds = 512 + 8 * WS
    o(HEADER.rstrip())
    o("; @launch grid=(256,1,1) block=(256,1,1) lds=%d" % lds)
    for line in DOC.strip("\n").split("\n"):
        o(("; " + line).rstrip())
    o('.amdgcn_target "amdgcn-amd-amdhsa--gfx950"')
    o(".text")
    o(".globl %s_kernel" % NAME)
    o(".p2align 8")
    o(".type %s_kernel,@function" % NAME)
    o("%s_kernel:" % NAME)

    V_LANE, V_OFF, V_EOFF, V_PW, V_VR, V_OUT, V_X, V_Y = 0, 1, 2, 3, 4, 5, 6, 7
    ACC = 8
    T = 40
    MISC = 72
    V_BO, V_BV = MISC + 22, MISC + 23
    RING = 96
    V_DEF = RING + 32 * RS
    V_OFFX = V_DEF + 4
    nv = V_DEF + 4 + ((1 << len(big_j)) - 1)
    V_OFFJ = nv
    if jx_j:
        assert not big_j
        nv += 8
    esplit = jbits[1:] == [8, 9] and jbits[0] > 9 and not prb
    NE = 0 if noE else (2 if esplit else 1)
    V_ER = V_EA = 0
    if esplit:
        nv = (nv + 1) // 2 * 2
        V_ER = nv
        V_EA = (V_ER + 4 * ER + 3) // 4 * 4
        nv = V_EA + 4
    assert nv <= 256
    A_Q = 0
    A_E = 16
    na = A_E + 4 * ER
    accum_offset = (nv + 3) // 4 * 4

    S_SELLO, S_SELHI, S_WAVE, S_OFF, S_EOFF, S_CNT, S_MI, S_LM = 20, 21, 22, 23, 24, 25, 26, 27
    S_PROG = 57
    SRD_D, SRD_P = 28, 32
    NXT_D, NXT_P = 36, 38
    SRD_Q, SRD_O = 40, 44
    S_T = 48

    o("    s_cmp_ge_u32 s2, 256")
    o("    s_cbranch_scc1 L_end")
    o("    s_load_dwordx16 s[4:19], s[0:1], 0")
    if stamp:
        o("    s_memrealtime s[60:61]")
    PST = [84, 86, 88, 90, 92, 94]

    def pstp(k):
        if pst:
            o("    s_memrealtime s[%d:%d]" % (PST[k], PST[k] + 1))

    def code_prefetch():
        if pfw < 256:
            o("    s_cmp_ge_u32 s2, %d" % pfw)
            o("    s_cbranch_scc1 L_nopfc")
        o("    s_getpc_b64 s[%d:%d]" % (S_T + 4, S_T + 5))
        o("L_pc:")
        o("    v_lshlrev_b32 v%d, 6, v%d" % (V_PW, V_TID))
        o("    v_min_u32 v%d, L_end-L_pc, v%d" % (V_PW, V_PW))
        o("    global_load_dword v%d, v%d, s[%d:%d]" % (V_DEF + 3, V_PW, S_T + 4, S_T + 5))
        if pfw < 256:
            o("L_nopfc:")

    V_TID = 0
    S_TMP0, S_TMP1, S_JC = S_T + 4, S_T + 5, 83
    if pf:
        code_prefetch()
    o("    v_lshrrev_b32 v%d, 6, v0" % V_X)
    o("    v_and_b32 v%d, 63, v0" % V_LANE)
    o("    v_readfirstlane_b32 s%d, v%d" % (S_WAVE, V_X))
    if not early:
        o("    s_mov_b32 s%d, 0x05040100" % S_SELLO)
        o("    s_mov_b32 s%d, 0x07060302" % S_SELHI)
    o("    v_and_b32 v%d, 15, v%d" % (V_X, V_LANE))
    o("    v_lshrrev_b32 v%d, 4, v%d" % (V_Y, V_LANE))
    o("    v_lshlrev_b32 v%d, 4, v%d" % (V_OFF, V_X))
    if gbits[1] == gbits[0] + 1:
        o("    v_lshl_add_u32 v%d, v%d, %d, v%d" % (V_OFF, V_Y, gbits[0], V_OFF))
    else:
        o("    v_and_b32 v%d, 1, v%d" % (V_PW, V_Y))
        o("    v_lshl_add_u32 v%d, v%d, %d, v%d" % (V_OFF, V_PW, gbits[0], V_OFF))
        o("    v_lshrrev_b32 v%d, 1, v%d" % (V_PW, V_Y))
        o("    v_lshl_add_u32 v%d, v%d, %d, v%d" % (V_OFF, V_PW, gbits[1], V_OFF))
    if probe:
        o("    v_lshlrev_b32 v%d, 13, v%d" % (V_EOFF, V_X))
        o("    v_lshl_add_u32 v%d, v%d, 4, v%d" % (V_EOFF, V_Y, V_EOFF))
    elif not early:
        o("    v_lshlrev_b32 v%d, 13, v%d" % (V_EOFF, V_X))
        if gbits[1] == gbits[0] + 1:
            o("    v_lshl_add_u32 v%d, v%d, %d, v%d" % (V_EOFF, V_Y, gbits[0] - 7, V_EOFF))
        else:
            o("    v_and_b32 v%d, 1, v%d" % (V_PW, V_Y))
            o("    v_lshl_add_u32 v%d, v%d, %d, v%d" % (V_EOFF, V_PW, gbits[0] - 7, V_EOFF))
            o("    v_lshrrev_b32 v%d, 1, v%d" % (V_PW, V_Y))
            o("    v_lshl_add_u32 v%d, v%d, %d, v%d" % (V_EOFF, V_PW, gbits[1] - 7, V_EOFF))
    for tb, sb_ in jx_g:
        o("    s_bfe_u32 s%d, s2, 0x%x" % (S_TMP0, 0x10000 | sb_))
        o("    s_lshl_b32 s%d, s%d, %d" % (S_TMP1, S_TMP0, tb))
        o("    v_xor_b32 v%d, s%d, v%d" % (V_OFF, S_TMP1, V_OFF))
        o("    s_lshl_b32 s%d, s%d, %d" % (S_TMP1, S_TMP0, tb - 7))
        o("    v_xor_b32 v%d, s%d, v%d" % (V_EOFF, S_TMP1, V_EOFF))
    if jx_j:
        o("    s_mov_b32 s%d, 0" % S_JC)
        for tb, sb_ in jx_j:
            o("    s_bfe_u32 s%d, s2, 0x%x" % (S_TMP0, 0x10000 | sb_))
            o("    s_lshl_b32 s%d, s%d, %d" % (S_TMP0, S_TMP0, tb))
            o("    s_xor_b32 s%d, s%d, s%d" % (S_JC, S_JC, S_TMP0))
        for i in range(8):
            a_ = sum(1 << b for t, b in enumerate(jbits) if (i >> t) & 1)
            o("    s_xor_b32 s%d, s%d, 0x%x" % (S_TMP0, S_JC, a_))
            o("    v_or_b32 v%d, s%d, v%d" % (V_OFFJ + i, S_TMP0, V_OFF))
    for sel in range(1, 1 << len(big_j)):
        add = sum(1 << b for t, b in enumerate(big_j) if (sel >> t) & 1)
        if af_g and sel & 1:
            o("    v_xor_b32 v%d, 0x%x, v%d" % (V_OFFX + sel - 1, af_g, V_OFF))
            o("    v_add_u32 v%d, 0x%x, v%d" % (V_OFFX + sel - 1, add, V_OFFX + sel - 1))
        else:
            o("    v_add_u32 v%d, 0x%x, v%d" % (V_OFFX + sel - 1, add, V_OFF))
    S_STP = 56
    if wbits[1] == wbits[0] + 1:
        o("    s_lshl_b32 s%d, s%d, %d" % (S_OFF, S_WAVE, wbits[0] if general else 13 + wa))
    else:
        o("    s_and_b32 s%d, s%d, 1" % (S_OFF, S_WAVE))
        o("    s_lshl_b32 s%d, s%d, %d" % (S_OFF, S_OFF, wbits[0]))
        o("    s_lshr_b32 s%d, s%d, 1" % (S_T + 4, S_WAVE))
        o("    s_lshl_b32 s%d, s%d, %d" % (S_T + 4, S_T + 4, wbits[1]))
        o("    s_or_b32 s%d, s%d, s%d" % (S_OFF, S_OFF, S_T + 4))
    if general:
        o("    s_mov_b32 s%d, 0" % S_STP)
        for tb, sb in xml:
            o("    s_bfe_u32 s%d, s2, 0x%x" % (S_T + 4, 0x10000 | sb))
            o("    s_lshl_b32 s%d, s%d, %d" % (S_T + 4, S_T + 4, tb))
            o("    s_xor_b32 s%d, s%d, s%d" % (S_OFF, S_OFF, S_T + 4))
    if rot:
        assert wa == 0
        R = S_T + 4
        if rot == 1:
            o("    s_lshr_b32 s%d, s2, 3" % R)
        elif rot == 2:
            o("    s_mov_b32 s%d, s2" % R)
        elif rot == 3:
            o("    s_lshl_b32 s%d, s2, 2" % R)
        elif rot == 4:
            o("    s_lshr_b32 s%d, s2, 3" % R)
            o("    s_lshl_b32 s%d, s2, 2" % (R + 1))
            o("    s_add_u32 s%d, s%d, s%d" % (R, R, R + 1))
        elif rot == 5:
            o("    s_lshr_b32 s%d, s2, 3" % R)
            o("    s_and_b32 s%d, s%d, 1" % (R, R))
        elif rot == 6:
            o("    s_lshr_b32 s%d, s2, 3" % R)
            o("    s_and_b32 s%d, s%d, 3" % (R, R))
        elif rot == 7:
            o("    s_lshr_b32 s%d, s2, 3" % R)
            o("    s_lshl_b32 s%d, s%d, 3" % (R, R))
        elif rot == 8:
            o("    s_lshr_b32 s%d, s2, 3" % R)
            o("    s_lshl_b32 s%d, s%d, 4" % (R, R))
        o("    s_and_b32 s%d, s%d, 31" % (R, R))
        o("    s_lshl_b32 s%d, s%d, 15" % (R, R))
        o("    s_add_u32 s%d, s%d, s%d" % (S_OFF, S_OFF, R))
    S_EV, S_MODE, S_ACC, S_INC, S_TM, S_NOW, S_THI, S_TLO = 64, 65, 66, 67, 72, 74, 76, 77
    S_C1, S_C2, S_HI, S_OFF0, S_RP, S_OK = 68, 70, 78, 79, 80, 81

    def eoff():
        o("    s_lshr_b32 s%d, s%d, 7" % (S_EOFF, S_OFF))
        if af_s:
            o("    s_xor_b32 s%d, s%d, 0x%x" % (S_OFFB, S_OFF, af_s))
        if probe:
            o("    s_and_b32 s%d, s%d, 0x1fc0" % (S_EOFF, S_EOFF))

    def step_inc():
        if general:
            o("    s_or_b32 s%d, s%d, 0x%x" % (S_STP, S_STP, holes))
            o("    s_add_u32 s%d, s%d, 0x%x" % (S_STP, S_STP, 1 << sbits[0]))
            o("    s_andn2_b32 s%d, s%d, 0x%x" % (S_STP, S_STP, holes))
            o("    s_xor_b32 s%d, s%d, s%d" % (S_OFF, S_STP, S_OFF0))
        elif wa == 0:
            o("    s_add_u32 s%d, s%d, 0x8000" % (S_OFF, S_OFF))
            if rot:
                o("    s_and_b32 s%d, s%d, 0xfffff" % (S_OFF, S_OFF))
        elif wa == 5:
            o("    s_add_u32 s%d, s%d, 0x2000" % (S_OFF, S_OFF))
        else:
            hole = 3 << (13 + wa)
            o("    s_or_b32 s%d, s%d, 0x%x" % (S_OFF, S_OFF, hole))
            o("    s_add_u32 s%d, s%d, 0x2000" % (S_OFF, S_OFF))
            o("    s_andn2_b32 s%d, s%d, 0x%x" % (S_OFF, S_OFF, hole))
            o("    s_or_b32 s%d, s%d, s%d" % (S_OFF, S_OFF, S_OFF0))

    def ctl_setup():
        U = S_T + 6 if early else S_T
        o("    s_mov_b32 s%d, %d" % (S_MODE, {-1: 0, 0: 0, 1: 1, 2: 2}[force]))
        if ctl:
            o("    s_mov_b32 s%d, 0" % S_PROG)
            o("    s_mov_b32 s%d, 0" % S_HI)
            o("    s_mov_b32 s%d, 0" % S_ACC)
            o("    s_mov_b32 s%d, 0" % S_INC)
            o("    s_mov_b32 s%d, 0" % S_TM)
            o("    s_mov_b32 s%d, 0" % S_NOW)
            o("    s_mov_b32 s%d, 0x7fffffff" % S_THI)
            if mm2:
                o("    s_mov_b32 s82, 0x7fffffff")
            o("    s_mov_b32 s%d, 0x80000000" % S_TLO)
            o("    s_lshr_b32 s%d, s2, 3" % U)
            o("    s_and_b32 s%d, s%d, %d" % (U, U, stag - 1))
            o("    s_mov_b32 s%d, 0x7fffffff" % S_RP)
            o("    s_mov_b32 s%d, 0" % (U + 1))
            for k, c in enumerate(cal):
                o("    s_cmp_eq_u32 s%d, %d" % (S_WAVE, (k + 1) & 3))
                o("    s_cselect_b32 s%d, %d, s%d" % (S_RP, c, S_RP))
                o("    s_cselect_b32 s%d, %d, s%d" % (U + 1, SLOT[k], U + 1))
            o("    v_mov_b32 v%d, s%d" % (V_BO, U + 1))
            o("    s_cmp_lg_u32 s%d, 0x7fffffff" % S_RP)
            o("    s_cselect_b32 s%d, s%d, 0" % (U, U))
            o("    s_add_u32 s%d, s%d, s%d" % (S_RP, S_RP, U))
            if ns < 256:
                o("    s_cmp_lt_u32 s2, %d" % ns)
                o("    s_cselect_b32 s%d, s%d, 0x7fffffff" % (S_RP, S_RP))
            if amask:
                o("    s_and_b32 s%d, s2, %d" % (U, amask))
                o("    s_cmp_eq_u32 s%d, %d" % (U, aval))
                o("    s_cselect_b32 s%d, s%d, 0x7fffffff" % (S_RP, S_RP))
            o("    s_mov_b32 s%d, %d" % (S_EV, cal[0] + lag0 if nom else cal[1] + lag))
            o("    s_mov_b32 s%d, 0" % S_OK)
            for r in range(S_C1, S_C1 + 4):
                o("    s_mov_b32 s%d, 0" % r)
        o("    s_mov_b32 s%d, 0" % S_LM)
        o("    s_mov_b32 s%d, 0" % S_MI)

    def srd_rest():
        qsz = 8192 if mb <= 20 or probe else (1 << (mb - 8)) + 4096
        o("    s_mov_b32 s%d, %d" % (SRD_Q + 2, qsz))
        o("    s_mov_b32 s%d, 0x20000" % (SRD_Q + 3))
        o("    s_mov_b32 s%d, %d" % (SRD_O + 2, qsz))
        o("    s_mov_b32 s%d, 0x20000" % (SRD_O + 3))

    if not early:
        o("    s_mov_b32 s%d, s%d" % (S_OFF0, S_OFF))
        ctl_setup()
        eoff()
    S_PAIR = S_T + 2
    if wmap == 0:
        o("    s_mov_b32 s%d, s2" % S_PAIR)
    elif wmap == 1:
        o("    s_and_b32 s%d, s2, 7" % S_PAIR)
        o("    s_lshl_b32 s%d, s%d, 5" % (S_PAIR, S_PAIR))
        o("    s_lshr_b32 s%d, s2, 3" % (S_T + 3))
        o("    s_or_b32 s%d, s%d, s%d" % (S_PAIR, S_PAIR, S_T + 3))
    elif wmap == 2:
        o("    s_lshr_b32 s%d, s2, 3" % (S_T + 3))
        o("    s_and_b32 s%d, s%d, 7" % (S_T + 3, S_T + 3))
        o("    s_xor_b32 s%d, s2, s%d" % (S_PAIR, S_T + 3))
    elif wmap == 3:
        o("    s_and_b32 s%d, s2, 7" % S_PAIR)
        o("    s_lshl_b32 s%d, s%d, 5" % (S_PAIR, S_PAIR))
        o("    s_lshr_b32 s%d, s2, 3" % (S_T + 3))
        o("    s_or_b32 s%d, s%d, s%d" % (S_PAIR, S_PAIR, S_T + 3))
        o("    s_and_b32 s%d, s%d, 7" % (S_T + 3, S_T + 3))
        o("    s_lshl_b32 s%d, s%d, 5" % (S_T + 3, S_T + 3))
        o("    s_xor_b32 s%d, s%d, s%d" % (S_PAIR, S_PAIR, S_T + 3))
    elif wmap == 4:
        o("    s_and_b32 s%d, s2, 7" % S_PAIR)
        o("    s_lshr_b32 s%d, s2, 3" % (S_T + 3))
        o("    s_lshl_b32 s%d, s%d, 2" % (S_T + 4, S_PAIR))
        o("    s_add_u32 s%d, s%d, s%d" % (S_T + 3, S_T + 3, S_T + 4))
        o("    s_and_b32 s%d, s%d, 31" % (S_T + 3, S_T + 3))
        o("    s_lshl_b32 s%d, s%d, 5" % (S_PAIR, S_PAIR))
        o("    s_or_b32 s%d, s%d, s%d" % (S_PAIR, S_PAIR, S_T + 3))
    elif wmap == 5:
        o("    s_brev_b32 s%d, s2" % S_PAIR)
        o("    s_lshr_b32 s%d, s%d, 24" % (S_PAIR, S_PAIR))
    elif wmap == 6:
        o("    s_bfe_u32 s%d, s2, 0x20001" % S_PAIR)
        o("    s_lshl_b32 s%d, s%d, 6" % (S_PAIR, S_PAIR))
        o("    s_lshr_b32 s%d, s2, 3" % (S_T + 3))
        o("    s_lshl_b32 s%d, s%d, 1" % (S_T + 3, S_T + 3))
        o("    s_or_b32 s%d, s%d, s%d" % (S_PAIR, S_PAIR, S_T + 3))
        o("    s_and_b32 s%d, s2, 1" % (S_T + 3))
        o("    s_or_b32 s%d, s%d, s%d" % (S_PAIR, S_PAIR, S_T + 3))
    elif wmap == 7:
        o("    s_and_b32 s%d, s2, 7" % S_PAIR)
        o("    s_lshl_b32 s%d, s%d, 3" % (S_PAIR, S_PAIR))
        o("    s_bfe_u32 s%d, s2, 0x30003" % (S_T + 3))
        o("    s_or_b32 s%d, s%d, s%d" % (S_PAIR, S_PAIR, S_T + 3))
        o("    s_lshr_b32 s%d, s2, 6" % (S_T + 3))
        o("    s_lshl_b32 s%d, s%d, 6" % (S_T + 3, S_T + 3))
        o("    s_or_b32 s%d, s%d, s%d" % (S_PAIR, S_PAIR, S_T + 3))
    if headmap:
        o("    s_mov_b32 s%d, 0" % S_T)
        for i, b in enumerate(pbits):
            o("    s_bfe_u32 s%d, s%d, 0x%x" % (S_T + 1, S_PAIR, 0x10000 | i))
            o("    s_lshl_b32 s%d, s%d, %d" % (S_T + 1, S_T + 1, b))
            o("    s_or_b32 s%d, s%d, s%d" % (S_T, S_T, S_T + 1))
    else:
        o("    s_lshl_b32 s%d, s%d, 21" % (S_T, S_PAIR))
    S_ADV, S_ADVH, S_FL = 84, 85, 86
    if hf >= 0:
        assert not pst and not early and qm == 0
        if hf == 99:
            o("    s_mov_b32 s%d, 1" % S_FL)
        else:
            o("    s_bfe_u32 s%d, s2, 0x%x" % (S_FL, 0x10000 | hf))
        o("    s_mov_b32 s%d, 0x%x" % (S_ADV, 1 << mb))
        o("    s_cmp_eq_u32 s%d, 1" % S_FL)
        o("    s_cselect_b32 s%d, 0x%x, s%d" % (S_ADV, (-(1 << mb)) & 0xffffffff, S_ADV))
        o("    s_cselect_b32 s%d, -1, 0" % S_ADVH)
    DSZ = (offmask + 1) if probe else 0x100000
    QSH = 12 if probe else mb - 8
    o("    s_mov_b32 s%d, 0x%x" % (SRD_D + 2, DSZ))
    o("    s_mov_b32 s%d, 0x20000" % (SRD_D + 3))
    if not early:
        if headmap and not probe:
            o("    s_lshr_b32 s%d, s%d, 8" % (S_T + 1, S_T))
        else:
            o("    s_lshl_b32 s%d, s%d, 13" % (S_T + 1, S_PAIR))
        o("    s_mov_b32 s%d, 0x20000" % (SRD_P + 2))
        o("    s_mov_b32 s%d, 0x20000" % (SRD_P + 3))
        srd_rest()
    pstp(0)
    o("    s_waitcnt lgkmcnt(0)")
    if pstamp:
        o("    s_memrealtime s[82:83]")
    pstp(1)
    if hf >= 0:
        o("    s_lshl_b32 s%d, s%d, %d" % (S_T + 4, S_FL, mb))
        o("    s_or_b32 s%d, s%d, s%d" % (S_T, S_T, S_T + 4))
        o("    s_lshl_b32 s%d, s%d, %d" % (S_FL, S_FL, QSH))
    if tf >= 0:
        if tf == 99:
            o("    s_cmp_eq_u32 s2, s2")
        else:
            o("    s_bitcmp1_b32 s2, %d" % tf)
        o("    s_cselect_b32 s%d, s8, s6" % (S_T + 4))
        o("    s_cselect_b32 s%d, s9, s7" % (S_T + 5))
        o("    s_cselect_b32 s8, s6, s8")
        o("    s_cselect_b32 s9, s7, s9")
        o("    s_mov_b32 s6, s%d" % (S_T + 4))
        o("    s_mov_b32 s7, s%d" % (S_T + 5))
    o("    s_add_u32 s%d, s6, s%d" % (SRD_D, S_T))
    o("    s_addc_u32 s%d, s7, 0" % (SRD_D + 1))
    if not early:
        o("    s_mov_b32 s%d, s10" % SRD_P)
        o("    s_mov_b32 s%d, s11" % (SRD_P + 1))

    def issue_E(step):
        if noE:
            return
        if esplit:
            r = V_ER + (step % ER) * 4
            for t in range(2):
                o("    buffer_load_dwordx2 v[%d:%d], v%d, s[%d:%d], s%d offen offset:%d %s" %
                  (r + 2 * t, r + 2 * t + 1, V_EOFF, SRD_P, SRD_P + 3, S_EOFF, t << (jbits[0] - 7), eflags))
            return
        r = A_E + (step % ER) * 4
        o("    buffer_load_dwordx4 a[%d:%d], v%d, s[%d:%d], s%d offen %s" %
          (r, r + 3, V_EOFF, SRD_P, SRD_P + 3, S_EOFF, eflags))

    def issue_one(n):
        q, h = divmod(n, 2)
        a = q % 4
        slot = q % (4 * RS)
        i = 2 * a + h
        r = RING + (slot * 2 + h) * 4
        imm, sel = 0, 0
        alt = bool(afl) and any((i >> t) & 1 and b == big_j[0] for t, b in enumerate(jbits))
        for t, b in enumerate(jbits):
            bit = (i >> t) & 1
            if alt and b in afl:
                bit ^= 1
            if bit:
                if b >= 12:
                    sel |= 1 << big_j.index(b)
                else:
                    imm += 1 << b
        if jx_j:
            o("    buffer_load_dwordx4 v[%d:%d], v%d, s[%d:%d], s%d offen %s" %
              (r, r + 3, V_OFFJ + i, SRD_D, SRD_D + 3, S_OFF, flags))
            return
        o("    buffer_load_dwordx4 v[%d:%d], v%d, s[%d:%d], s%d offen offset:%d %s" %
          (r, r + 3, V_OFFX + sel - 1 if sel else V_OFF, SRD_D, SRD_D + 3,
           S_OFFB if alt and af_s else S_OFF, imm, flags))

    def issue_pair(q):
        issue_one(2 * q)
        issue_one(2 * q + 1)

    stubs = []
    events = []

    if not early and not e0:
        issue_E(0)
    for q in range(LA):
        issue_pair(q)
        if not early and e0 == q + 1:
            issue_E(0)
    if early:
        o("    v_lshlrev_b32 v%d, 13, v%d" % (V_EOFF, V_X))
        o("    v_lshl_add_u32 v%d, v%d, 4, v%d" % (V_EOFF, V_Y, V_EOFF))
        eoff()
        o("    s_mov_b32 s%d, s10" % SRD_P)
        o("    s_mov_b32 s%d, s11" % (SRD_P + 1))
        o("    s_mov_b32 s%d, 0x20000" % (SRD_P + 2))
        o("    s_mov_b32 s%d, 0x20000" % (SRD_P + 3))
        issue_E(0)
        o("    s_mov_b32 s%d, s%d" % (S_OFF0, S_OFF))
    if bp and not pro8:
        step_inc()
        eoff()
        issue_one(8)
        issue_E(1)
        for n in range(9, 16):
            issue_one(n)
    pstp(2)
    if early:
        o("    s_mov_b32 s%d, 0x05040100" % S_SELLO)
        o("    s_mov_b32 s%d, 0x07060302" % S_SELHI)
        o("    s_lshl_b32 s%d, s%d, 13" % (S_T + 1, S_PAIR))
        srd_rest()
        ctl_setup()
    o("    s_add_u32 s%d, s8, s%d" % (NXT_D, S_T))
    o("    s_addc_u32 s%d, s9, 0" % (NXT_D + 1))
    o("    s_mov_b32 s%d, s12" % NXT_P)
    o("    s_mov_b32 s%d, s13" % (NXT_P + 1))
    o("    s_add_u32 s%d, s4, s%d" % (SRD_Q, S_T + 1))
    o("    s_addc_u32 s%d, s5, 0" % (SRD_Q + 1))
    o("    s_add_u32 s%d, s14, s%d" % (SRD_O, S_T + 1))
    o("    s_addc_u32 s%d, s15, 0" % (SRD_O + 1))
    def load_q(vx, vy, va, st):
        o("    v_lshlrev_b32 v%d, 8, v%d" % (va, vx))
        o("    v_lshl_add_u32 v%d, v%d, 6, v%d" % (va, vy, va))
        o("    s_lshr_b32 s%d, s%d, 1" % (st, S_WAVE))
        o("    s_lshl_b32 s%d, s%d, %d" % (st, st, QSH))
        if hf >= 0:
            o("    s_xor_b32 s%d, s%d, s%d" % (st, st, S_FL))
        for s in range(4):
            o("    buffer_load_dwordx4 a[%d:%d], v%d, s[%d:%d], s%d offen offset:%d" %
              (A_Q + 4 * s, A_Q + 4 * s + 3, va, SRD_Q, SRD_Q + 3, st, 16 * s))

    if qm == 0:
        load_q(V_X, V_Y, V_PW, S_T + 2)
    elif qm == 1:
        o("    s_bitcmp1_b32 s%d, 0" % S_WAVE)
        o("    s_cbranch_scc1 L_noq")
        load_q(V_X, V_Y, V_PW, S_T + 2)
        o("L_noq:")
    def warm_proj():
        o("    s_bfe_u32 s%d, s2, 0x50003" % (S_T + 2))
        o("    s_lshl_b32 s%d, s%d, 2" % (S_T + 2, S_T + 2))
        o("    s_add_u32 s%d, s%d, s%d" % (S_T + 2, S_T + 2, S_WAVE))
        o("    s_lshl_b32 s%d, s%d, 10" % (S_T + 2, S_T + 2))
        o("    v_lshlrev_b32 v%d, 4, v%d" % (V_PW, V_LANE))
        o("    v_add_u32 v%d, s%d, v%d" % (V_PW, S_T + 2, V_PW))
        if ew & 1:
            o("    global_load_dwordx4 v[%d:%d], v%d, s[10:11] %s" % (V_DEF, V_DEF + 3, V_PW, ewf))
        if ew & 2:
            o("    global_load_dwordx4 v[%d:%d], v%d, s[12:13] %s" % (V_DEF, V_DEF + 3, V_PW, ewf))

    if ew:
        assert defer and qm != 2
        warm_proj()
    if tw:
        assert defer
        o("    v_and_b32 v%d, 3, v%d" % (V_PW, V_LANE))
        o("    v_lshlrev_b32 v%d, 19, v%d" % (V_PW, V_PW))
        o("    s_cmp_eq_u32 s%d, 1" % S_WAVE)
        o("    s_cbranch_scc0 L_tw1")
        o("    global_load_dword v%d, v%d, s[%d:%d]" % (V_DEF, V_PW, NXT_D, NXT_D + 1))
        o("L_tw1:")
        o("    s_cmp_eq_u32 s%d, 3" % S_WAVE)
        o("    s_cbranch_scc0 L_tw3")
        o("    v_mov_b32 v%d, 0" % V_PW)
        o("    buffer_load_dword v%d, v%d, s[%d:%d], 0 offen" % (V_DEF, V_PW, SRD_O, SRD_O + 3))
        o("    global_load_dword v%d, v%d, s[12:13]" % (V_DEF + 1, V_PW))
        o("L_tw3:")
    o("    v_lshlrev_b32 v%d, 8, v%d" % (V_OUT, V_X))
    o("    v_lshl_add_u32 v%d, v%d, 4, v%d" % (V_OUT, V_Y, V_OUT))
    o("    s_lshl_b32 s%d, s%d, 6" % (S_T + 2, S_WAVE))
    o("    v_add_u32 v%d, s%d, v%d" % (V_OUT, S_T + 2, V_OUT))
    o("    v_and_b32 v%d, 3, v%d" % (V_VR, V_X))
    o("    v_mul_u32_u24 v%d, %d, v%d" % (V_VR, DS, V_VR))
    o("    v_lshrrev_b32 v%d, 2, v%d" % (V_X, V_X))
    o("    v_lshl_add_u32 v%d, v%d, 4, v%d" % (V_X, V_Y, V_X))
    o("    v_lshl_add_u32 v%d, v%d, 4, v%d" % (V_VR, V_X, V_VR))
    o("    s_lshl_b32 s%d, s%d, 6" % (S_T + 2, S_WAVE))
    o("    s_add_u32 s%d, s%d, %d" % (S_T + 2, S_T + 2, LDS_VP))
    o("    v_add_u32 v%d, s%d, v%d" % (V_VR, S_T + 2, V_VR))
    o("    v_lshlrev_b32 v%d, 4, v%d" % (V_X, V_LANE))
    o("    s_mul_i32 s%d, s%d, %d" % (S_T + 2, S_WAVE, WS))
    o("    s_add_u32 s%d, s%d, %d" % (S_T + 2, S_T + 2, LDS_KP))
    o("    v_add_u32 v%d, s%d, v%d" % (V_PW, S_T + 2, V_X))
    for j in range(32):
        o("    v_mov_b32 v%d, 0" % (ACC + j))


    def allowed(n, req, e_done):
        cnt = n - 1 - req
        for qq in range(0, n // 2 + 1):
            if qq % 4 == 0 and 2 * qq >= req and (qq < n // 2 or e_done):
                cnt += NE
        return cnt

    def wait_of(m, p, h, extra=0):
        q = p + LA
        n = 2 * q + h
        N, gr = int(m[:-1]), m[-1]
        if gr == "p":
            if h == 1:
                return None
            req = n - N + 1
        else:
            req = n - N
        if h == 0:
            req = max(req, 2 * p + 1)
        elif req <= 2 * p + 1:
            return None
        big = 8000
        return allowed(n + big, req + big, h == 1) + (extra if req <= 7 else 0)

    def decide(tag):
        T0 = S_T + 6
        o("    s_waitcnt lgkmcnt(0)")
        if not noev:
            o("    s_cmp_eq_u32 s%d, s%d" % (S_PROG, S_RP))
            o("    s_cbranch_scc1 L_rp_%s" % tag)
            o("L_rpr_%s:" % tag)
            o("    s_cmp_eq_u32 s%d, s%d" % (S_PROG, S_EV))
            o("    s_cbranch_scc1 L_ev_%s" % tag)
        o("L_evr_%s:" % tag)
        if trace:
            o("    s_mov_b32 m0, s%d" % S_PROG)
            o("    s_nop 0")
            o("    v_writelane_b32 v%d, s%d, m0" % (V_BV, S_NOW))
        o("    s_sub_u32 s%d, s%d, s%d" % (T0, S_NOW, S_TM))
        o("    s_lshl_b32 s%d, s%d, 6" % (T0, T0))
        o("    s_sub_u32 s%d, s%d, s%d" % (T0, T0, S_ACC))
        o("    s_add_u32 s%d, s%d, s%d" % (S_ACC, S_ACC, S_INC))
        o("    s_add_u32 s%d, s%d, 1" % (S_PROG, S_PROG))
        if force < 0 and tag == "post" and pdec != 1:
            if pdec == 0:
                o("    s_mov_b32 s%d, 0" % S_MODE)
        elif force < 0:
            if eg:
                o("    s_cmp_eq_u32 s%d, %d" % (S_PROG, 64 - eg))
                o("    s_cselect_b32 s%d, %d, 0" % (T0 + 1, egs))
                o("    s_ashr_i32 s%d, s%d, s%d" % (S_THI, S_THI, T0 + 1))
                if mm2:
                    o("    s_ashr_i32 s82, s82, s%d" % (T0 + 1))
            if mm2:
                o("    s_cmp_gt_i32 s%d, s82" % T0)
                o("    s_cselect_b32 s%d, 4, 0" % S_MODE)
                o("    s_cmp_gt_i32 s%d, s%d" % (T0, S_THI))
                o("    s_cselect_b32 s%d, 1, s%d" % (S_MODE, S_MODE))
            else:
                o("    s_cmp_gt_i32 s%d, s%d" % (T0, S_THI))
                o("    s_cselect_b32 s%d, 1, 0" % S_MODE)
            o("    s_cmp_lt_i32 s%d, s%d" % (T0, S_TLO))
            o("    s_cselect_b32 s%d, 2, s%d" % (S_MODE, S_MODE))
        if tail:
            o("    s_cmp_ge_u32 s%d, %d" % (S_PROG, 64 - tail))
            o("    s_cselect_b32 s%d, 1, s%d" % (S_MODE, S_MODE))
        if fin:
            o("    s_cmp_eq_u32 s%d, %d" % (S_PROG, 64 - fin))
            o("    s_cselect_b32 s%d, 3, s%d" % (S_MODE, S_MODE))
        if stamp:
            o("    s_and_b32 s%d, s%d, 1" % (T0, S_MODE))
            o("    s_add_u32 s%d, s%d, s%d" % (S_HI, S_HI, T0))
            o("    s_and_b32 s%d, s%d, 2" % (T0, S_MODE))
            o("    s_lshl_b32 s%d, s%d, 7" % (T0, T0))
            o("    s_add_u32 s%d, s%d, s%d" % (S_HI, S_HI, T0))
        events.append(tag)

    def decide_half(tag):
        T0 = S_T + 6
        o("    s_waitcnt lgkmcnt(0)")
        o("    s_sub_u32 s%d, s%d, s%d" % (T0, S_NOW, S_TM))
        o("    s_lshl_b32 s%d, s%d, 6" % (T0, T0))
        o("    s_sub_u32 s%d, s%d, s%d" % (T0, T0, S_ACC))
        o("    s_ashr_i32 s%d, s%d, 1" % (T0 + 1, S_INC))
        o("    s_add_u32 s%d, s%d, s%d" % (T0, T0, T0 + 1))
        if mm2:
            o("    s_cmp_gt_i32 s%d, s82" % T0)
            o("    s_cselect_b32 s%d, 4, 0" % S_MODE)
            o("    s_cmp_gt_i32 s%d, s%d" % (T0, S_THI))
            o("    s_cselect_b32 s%d, 1, s%d" % (S_MODE, S_MODE))
        else:
            o("    s_cmp_gt_i32 s%d, s%d" % (T0, S_THI))
            o("    s_cselect_b32 s%d, 1, 0" % S_MODE)
        o("    s_cmp_lt_i32 s%d, s%d" % (T0, S_TLO))
        o("    s_cselect_b32 s%d, 2, s%d" % (S_MODE, S_MODE))
        if stamp:
            o("    s_and_b32 s%d, s%d, 1" % (T0, S_MODE))
            o("    s_add_u32 s%d, s%d, s%d" % (S_HI, S_HI, T0))
            o("    s_and_b32 s%d, s%d, 2" % (T0, S_MODE))
            o("    s_lshl_b32 s%d, s%d, 7" % (T0, T0))
            o("    s_add_u32 s%d, s%d, s%d" % (S_HI, S_HI, T0))

    def emit_events():
        T0, T1 = S_T + 6, S_T + 7
        for tag in events:
            if noev:
                continue
            o("L_rp_%s:" % tag)
            o("    v_mov_b32 v%d, s%d" % (V_BV - 3, S_NOW))
            o("    v_mov_b32 v%d, 0x100" % (V_BV - 2))
            o("    s_mov_b64 exec, 1")
            if doat and akind == "atomic":
                o("    global_atomic_add_x2 v%d, v[%d:%d], s[%d:%d] %s" % (V_BO, V_BV - 3, V_BV - 2, abase, abase + 1, aflags))
            elif doat and akind == "store":
                o("    global_store_dwordx2 v%d, v[%d:%d], s[%d:%d] %s" % (V_BO, V_BV - 3, V_BV - 2, abase, abase + 1, aflags))
            elif doat and akind == "load":
                o("    global_load_dwordx2 v[%d:%d], v%d, s[%d:%d] %s" % (V_BV - 3, V_BV - 2, V_BO, abase, abase + 1, aflags))
            o("    s_mov_b64 exec, -1")
            o("    s_branch L_rpr_%s" % tag)
            o("L_ev_%s:" % tag)
            if nom:
                assert cal[0] + lag0 + 1 < cal[1] + lag
                o("    s_cmp_eq_u32 s%d, %d" % (S_EV, cal[0] + lag0))
                o("    s_cbranch_scc1 L_evl0_%s" % tag)
                o("    s_cmp_eq_u32 s%d, %d" % (S_EV, cal[0] + lag0 + 1))
                o("    s_cbranch_scc1 L_evc0_%s" % tag)
            for k in range(1, len(cal)):
                o("    s_cmp_eq_u32 s%d, %d" % (S_EV, cal[k] + lag))
                o("    s_cbranch_scc1 L_evl%d_%s" % (k, tag))
                o("    s_cmp_eq_u32 s%d, %d" % (S_EV, cal[k] + lag + 1))
                o("    s_cbranch_scc1 L_evc%d_%s" % (k, tag))
            o("    s_branch L_evr_%s" % tag)
            if nom:
                jr = cal[0] + lag0
                o("L_evl0_%s:" % tag)
                o("    s_load_dwordx2 s[%d:%d], s[16:17], %d" % (S_C1, S_C1 + 1, SLOT[0]))
                o("    s_mov_b32 s%d, %d" % (S_EV, jr + 1))
                o("    s_branch L_evr_%s" % tag)
                o("L_evc0_%s:" % tag)
                o("    s_mov_b32 s%d, %d" % (S_EV, cal[1] + lag))
                o("    s_lshr_b64 s[%d:%d], s[%d:%d], %d" % (S_C1, S_C1 + 1, S_C1, S_C1 + 1, nsh))
                o("    s_cmp_lg_u32 s%d, 256" % (S_C1 + 1))
                o("    s_cbranch_scc1 L_evr_%s" % tag)
                if stamp:
                    o("    s_add_u32 s%d, s%d, 0x10000" % (S_HI, S_HI))
                T1n = 16 * nom
                o("    s_mov_b32 s%d, s%d" % (S_TM, S_C1))
                o("    s_mov_b32 s%d, %d" % (S_INC, 4 * T1n))
                o("    s_mov_b32 s%d, %d" % (S_ACC, T1n * (4 * (jr + 1) - (4 * cal[0] + 2 * st2) + delta)))
                if dl8 or dh8:
                    o("    s_mov_b32 s%d, %d" % (S_THI, (T1n * (dh8 or 8 * dhi)) >> 3))
                    o("    s_mov_b32 s%d, %d" % (S_TLO, (-T1n * dl8) >> 3))
                else:
                    o("    s_mov_b32 s%d, %d" % (S_THI, (T1n * dhi) >> tsh))
                    o("    s_mov_b32 s%d, %d" % (S_TLO, (-T1n * dlo) >> tsh))
                if mm2:
                    o("    s_mov_b32 s82, %d" % ((T1n * dhi) >> (tsh + m2s)))
                o("    s_branch L_evr_%s" % tag)
            for k in range(1, len(cal)):
                jr = cal[k] + lag
                span = cal[k] - cal[k - 1]
                assert span in (8, 16)
                o("L_evl%d_%s:" % (k, tag))
                if k == 1 and dold:
                    o("    s_load_dwordx2 s[%d:%d], s[16:17], %d" % (S_C1, S_C1 + 1, SLOT[0]))
                if dold:
                    o("    s_load_dwordx2 s[%d:%d], s[16:17], %d" % (S_C2, S_C2 + 1, SLOT[k]))
                o("    s_mov_b32 s%d, %d" % (S_EV, jr + 1))
                o("    s_branch L_evr_%s" % tag)
                o("L_evc%d_%s:" % (k, tag))
                o("    s_mov_b32 s%d, %s" % (S_EV, "0x7fffffff" if k == len(cal) - 1 else str(cal[k + 1] + lag)))
                if k == 1:
                    o("    s_lshr_b64 s[%d:%d], s[%d:%d], %d" % (S_C1, S_C1 + 1, S_C1, S_C1 + 1, nsh))
                o("    s_lshr_b64 s[%d:%d], s[%d:%d], %d" % (S_C2, S_C2 + 1, S_C2, S_C2 + 1, nsh))
                o("    s_and_b32 s%d, s%d, s%d" % (T0, S_C1 + 1, S_C2 + 1))
                o("    s_sub_u32 s%d, s%d, s%d" % (T1, S_C2, S_C1))
                o("    s_mov_b32 s%d, s%d" % (S_C1, S_C2))
                o("    s_mov_b32 s%d, s%d" % (S_C1 + 1, S_C2 + 1))
                o("    s_cmp_lg_u32 s%d, 256" % T0)
                o("    s_cbranch_scc1 L_evr_%s" % tag)
                if stamp:
                    o("    s_add_u32 s%d, s%d, 0x10000" % (S_HI, S_HI))
                if span == 8:
                    o("    s_lshl_b32 s%d, s%d, 1" % (T1, T1))
                o("    s_mov_b32 s%d, s%d" % (S_TM, S_C1))
                o("    s_lshl_b32 s%d, s%d, 2" % (S_INC, T1))
                o("    s_mul_i32 s%d, s%d, %d" % (S_ACC, T1, 4 * (jr + 1) - (4 * cal[k] + 2 * st2) + delta))
                if dl8 or dh8:
                    o("    s_mul_i32 s%d, s%d, %d" % (S_THI, T1, dh8 or 8 * dhi))
                    o("    s_mul_i32 s%d, s%d, %d" % (S_TLO, T1, -dl8))
                    o("    s_ashr_i32 s%d, s%d, 3" % (S_THI, S_THI))
                    o("    s_ashr_i32 s%d, s%d, 3" % (S_TLO, S_TLO))
                else:
                    o("    s_mul_i32 s%d, s%d, %d" % (S_THI, T1, dhi))
                    o("    s_mul_i32 s%d, s%d, %d" % (S_TLO, T1, -dlo))
                if tsh:
                    o("    s_ashr_i32 s%d, s%d, %d" % (S_THI, S_THI, tsh))
                    o("    s_ashr_i32 s%d, s%d, %d" % (S_TLO, S_TLO, tsh))
                if mm2:
                    o("    s_ashr_i32 s82, s%d, %d" % (S_THI, m2s))
                if eps:
                    o("    s_mul_i32 s%d, s%d, %d" % (T0, T1, eps))
                    o("    s_ashr_i32 s%d, s%d, 6" % (T0, T0))
                    o("    s_sub_u32 s%d, s%d, s%d" % (S_INC, S_INC, T0))
                o("    s_branch L_evr_%s" % tag)

    def round_mfma(s):
        if esplit:
            r = V_ER + (s % ER) * 4
            for t in range(2):
                o("    v_perm_b32 v%d, v%d, v%d, s%d" % (V_EA + 2 * t, r + 2 + t, r + t, S_SELLO))
                o("    v_perm_b32 v%d, v%d, v%d, s%d" % (V_EA + 2 * t + 1, r + 2 + t, r + t, S_SELHI))
            e = "v[%d:%d]" % (V_EA, V_EA + 3)
        else:
            e = "a[%d:%d]" % (A_E + (s % ER) * 4, A_E + (s % ER) * 4 + 3)
        o("    s_nop 1")
        for dd in range(8):
            acc = ACC + dd * 4
            o("    v_mfma_f32_16x16x32_bf16 v[%d:%d], %s, v[%d:%d], v[%d:%d]" %
              (acc, acc + 3, e, T + dd * 4, T + dd * 4 + 3, acc, acc + 3))

    def body(mode, m, post=False, extra=0):
        o("L_body_%s:" % mode)
        for p in range(8):
            s, a = divmod(p, 4)
            q = p + LA
            if half and p == 4 and not post:
                for code, other in ((0, "mid"), (1, "hi"), (2, "lo"), (4, "mi2")):
                    if other != mode and other != "mid" and (other != "mi2" or mm2):
                        o("    s_cmp_eq_u32 s%d, %d" % (S_MODE, code))
                        o("    s_cbranch_scc1 L_bodyB_%s" % other)
                if mode != "mid":
                    o("    s_cmp_eq_u32 s%d, 0" % S_MODE)
                    o("    s_cbranch_scc1 L_bodyB_mid")
                o("L_bodyB_%s:" % mode)
            if p == 0 and not post:
                step_inc()
                eoff()
            if p == 4:
                step_inc()
                if not post:
                    o("    s_cmp_eq_u32 s%d, 1" % S_CNT)
                    o("    s_cbranch_scc1 L_sw_%s" % mode)
                    o("L_swr_%s:" % mode)
                    stubs.append(mode)
                eoff()
            if p in wsyl and not post:
                if wskip:
                    o("    s_cmp_ge_u32 s%d, %d" % (S_CNT, 16 - wskip))
                    o("    s_cbranch_scc1 L_nb%d_%s" % (p, mode))
                    o("    s_barrier")
                    o("L_nb%d_%s:" % (p, mode))
                else:
                    o("    s_barrier")
            if ctl and p == pc and pre:
                decide(mode)
                if ps == pc and not notime:
                    o("    s_memrealtime s[%d:%d]" % (S_NOW, S_NOW + 1))
            if post and p < 4:
                younger = 15 - (2 * p + 1) + NE
                o("    s_waitcnt vmcnt(%d)" % younger)
                if pst and not pro8 and p in (0, 3):
                    o("    s_cmp_eq_u32 s%d, 0" % S_MI)
                    o("    s_cbranch_scc0 L_nopst%d" % p)
                    pstp(4 if p == 0 else 5)
                    o("L_nopst%d:" % p)
            else:
                for h in range(2):
                    w = wait_of(m, p, h, extra)
                    if w is not None:
                        o("    s_waitcnt vmcnt(%d)" % w)
                    if h == 0 and q % 4 == 0:
                        issue_one(2 * q)
                        issue_E(q // 4)
                    else:
                        issue_one(2 * q + h)
                if pst and pro8 and p in (0, 3):
                    o("    s_cmp_eq_u32 s%d, 0" % S_PROG)
                    o("    s_cbranch_scc0 L_nopst%d_%s" % (p, mode))
                    pstp(4 if p == 0 else 5)
                    o("L_nopst%d_%s:" % (p, mode))
            if half:
                if p == 4 or (p == 0 and not post):
                    o("    s_memrealtime s[%d:%d]" % (S_NOW, S_NOW + 1))
                if p == hca and not post:
                    decide_half(mode)
                if p == hcb:
                    decide(mode)
            else:
                if ctl and p == ps and ps != pc and not notime:
                    o("    s_memrealtime s[%d:%d]" % (S_NOW, S_NOW + 1))
                if ctl and p == pc and not pre:
                    decide(mode)
                    if ps == pc and not notime:
                        o("    s_memrealtime s[%d:%d]" % (S_NOW, S_NOW + 1))
            slot = p % (4 * RS)
            xb = RING + slot * 8
            yb = xb + 4
            for c in range(4):
                o("    v_perm_b32 v%d, v%d, v%d, s%d" % (T + (2 * c) * 4 + a, yb + c, xb + c, S_SELLO))
                o("    v_perm_b32 v%d, v%d, v%d, s%d" % (T + (2 * c + 1) * 4 + a, yb + c, xb + c, S_SELHI))
            if a == 3:
                round_mfma(s)
        o("    s_sub_u32 s%d, s%d, 1" % (S_CNT, S_CNT))
        if not post:
            o("    s_cmp_eq_u32 s%d, 0" % S_CNT)
            o("    s_cbranch_scc1 L_matend")

    def body_fin():
        o("L_body_fin:")
        step_inc()
        eoff()
        issue_one(8)
        issue_E(1)
        for n in range(9, 16):
            issue_one(n)
        for p in range(8):
            s, a = divmod(p, 4)
            younger = 15 - (2 * p + 1) + (NE if p < 4 else 0)
            o("    s_waitcnt vmcnt(%d)" % younger)
            xb = RING + p * 8
            yb = xb + 4
            for c in range(4):
                o("    v_perm_b32 v%d, v%d, v%d, s%d" % (T + (2 * c) * 4 + a, yb + c, xb + c, S_SELLO))
                o("    v_perm_b32 v%d, v%d, v%d, s%d" % (T + (2 * c + 1) * 4 + a, yb + c, xb + c, S_SELHI))
            if a == 3:
                round_mfma(s)
        o("    s_branch L_matend")

    pstp(3)
    if pro8 and bp:
        o("    s_mov_b32 s%d, 16" % S_CNT)
        if m0:
            o("    s_mov_b32 s%d, %d" % (S_MODE, m0))
        if mfirst:
            assert qm in (0, 1)
            if qm == 1:
                o("    s_bitcmp1_b32 s%d, 0" % S_WAVE)
                o("    s_cbranch_scc1 L_dispatch")
            o("    s_branch L_body_first")
        else:
            o("    s_branch L_dispatch")
    o("L_outer:")
    o("    s_mov_b32 s%d, 16" % S_CNT)
    if bp:
        o("; first iteration of a matrix: both rounds were issued ahead of the previous handler")
        body("post", mpost or mmid, post=True)
    o("; body selection by window mode: 0 mid, 1 hi, 2 lo, 3 last iteration")
    o("L_dispatch:")
    modes = [("mid", mmid)]
    if (ctl and force < 0) or force == 1 or tail:
        modes.append(("hi", mhi))
        o("    s_cmp_eq_u32 s%d, 1" % S_MODE)
        o("    s_cbranch_scc1 L_body_hi")
    if (ctl and force < 0) or force == 2:
        modes.append(("lo", mlo))
        o("    s_cmp_eq_u32 s%d, 2" % S_MODE)
        o("    s_cbranch_scc1 L_body_lo")
    if mm2:
        modes.append(("mi2", mm2))
        o("    s_cmp_eq_u32 s%d, 4" % S_MODE)
        o("    s_cbranch_scc1 L_body_mi2")
    if fin:
        assert ctl
        o("    s_cmp_eq_u32 s%d, 3" % S_MODE)
        o("    s_cbranch_scc1 L_body_fin")
    for mode, m in modes:
        body(mode, m)
        o("    s_branch L_dispatch")
    if mfirst:
        body("first", mfirst, extra=4)
        o("    s_branch L_dispatch")
    if fin:
        body_fin()
    o("L_matend:")
    if bp:
        o("    s_cmp_eq_u32 s%d, 3" % S_MI)
        o("    s_cbranch_scc1 L_nopf")
        step_inc()
        eoff()
        issue_one(8)
        issue_E(1)
        for n in range(9, 16):
            issue_one(n)
        o("L_nopf:")
    o("    s_and_b32 s%d, s%d, 1" % (S_T, S_MI))
    o("    s_mul_i32 s%d, s%d, %d" % (S_T + 1, S_T, 4 * WS))
    o("    v_add_u32 v%d, s%d, v%d" % (V_X, S_T + 1, V_PW))
    o("    s_nop 7")
    if ctl:
        o("    s_waitcnt lgkmcnt(0)")
    for dd in range(8):
        o("    ds_write_b128 v%d, v[%d:%d] offset:%d" % (V_X, ACC + 4 * dd, ACC + 4 * dd + 3, dd * DS))
    o("    s_waitcnt lgkmcnt(0)")
    o("    s_barrier")
    o("    s_cmp_eq_u32 s%d, 1" % S_T)
    o("    s_cbranch_scc1 L_vend")
    o("    s_cmp_lg_u32 s%d, s%d" % (S_WAVE, S_MI))
    o("    s_cbranch_scc1 L_mat_done")
    SUM, TMP, PA = ACC, T, MISC
    o("    v_lshlrev_b32 v%d, 4, v%d" % (V_X, V_LANE))
    for w in range(4):
        dst = SUM if w == 0 else TMP
        for dd in range(8):
            o("    ds_read_b128 v[%d:%d], v%d offset:%d" %
              (dst + 4 * dd, dst + 4 * dd + 3, V_X, LDS_KP + w * WS + dd * DS))
        if w > 0:
            for dd in range(8):
                o("    s_waitcnt lgkmcnt(%d)" % (7 - dd))
                for i in range(4):
                    o("    v_add_f32 v%d, v%d, v%d" % (SUM + 4 * dd + i, SUM + 4 * dd + i, TMP + 4 * dd + i))
    for dd in range(8):
        o("    v_cvt_pk_bf16_f32 v%d, v%d, v%d" % (PA + 2 * dd, SUM + 4 * dd, SUM + 4 * dd + 1))
        o("    v_cvt_pk_bf16_f32 v%d, v%d, v%d" % (PA + 2 * dd + 1, SUM + 4 * dd + 2, SUM + 4 * dd + 3))
    ID = MISC + 16
    o("    v_and_b32 v%d, 15, v%d" % (V_X, V_LANE))
    o("    v_lshrrev_b32 v%d, 4, v%d" % (V_Y, V_LANE))
    o("    v_lshlrev_b32 v%d, 2, v%d" % (V_Y, V_Y))
    o("    v_sub_u32 v%d, v%d, v%d" % (V_X, V_X, V_Y))
    o("    v_mov_b32 v%d, 0" % ID)
    o("    v_mov_b32 v%d, 0" % (ID + 1))
    o("    v_mov_b32 v%d, 0x3f80" % (ID + 2))
    o("    v_mov_b32 v%d, 0x3f800000" % (ID + 3))
    for j, (dst, src) in enumerate(((ID, ID + 2), (ID, ID + 3), (ID + 1, ID + 2), (ID + 1, ID + 3))):
        o("    v_cmp_eq_u32 vcc, %d, v%d" % (j, V_X))
        o("    s_nop 1")
        o("    v_cndmask_b32 v%d, v%d, v%d, vcc" % (dst, dst, src))
    o("    s_nop 1")
    for dd in range(8):
        o("    v_mfma_f32_16x16x16_bf16 v[%d:%d], v[%d:%d], v[%d:%d], 0" %
          (TMP + 4 * dd, TMP + 4 * dd + 3, PA + 2 * dd, PA + 2 * dd + 1, ID, ID + 1))
    o("    s_nop 7")
    PB = SUM
    for s in range(4):
        for j in range(4):
            o("    v_cvt_pk_bf16_f32 v%d, v%d, v%d" %
              (PB + 4 * s + j, TMP + (2 * j) * 4 + s, TMP + (2 * j + 1) * 4 + s))
    SC = SUM + 16
    if qwait:
        o("    s_waitcnt vmcnt(0)")
    if qm == 2:
        assert bp and not noE
        o("    s_waitcnt vmcnt(%d)" % (16 + 2 * NE))
    for s in range(4):
        c = "0" if s == 0 else "v[%d:%d]" % (SC, SC + 3)
        o("    v_mfma_f32_16x16x32_bf16 v[%d:%d], v[%d:%d], a[%d:%d], %s" %
          (SC, SC + 3, PB + 4 * s, PB + 4 * s + 3, A_Q + 4 * s, A_Q + 4 * s + 3, c))
    o("    s_mov_b32 s%d, 0x3db504f3" % (S_T + 2))
    o("    s_mov_b32 s%d, 0x3fb8aa3b" % (S_T + 3))
    o("    s_nop 7")
    W = SUM + 20
    M = SUM + 22

    def round_bf16():
        o("    v_cvt_pk_bf16_f32 v%d, v%d, v%d" % (W, SC, SC + 1))
        o("    v_cvt_pk_bf16_f32 v%d, v%d, v%d" % (W + 1, SC + 2, SC + 3))
        o("    v_lshlrev_b32 v%d, 16, v%d" % (SC, W))
        o("    v_and_b32 v%d, 0xffff0000, v%d" % (SC + 1, W))
        o("    v_lshlrev_b32 v%d, 16, v%d" % (SC + 2, W + 1))
        o("    v_and_b32 v%d, 0xffff0000, v%d" % (SC + 3, W + 1))

    round_bf16()
    for i in range(4):
        o("    v_mul_f32 v%d, s%d, v%d" % (SC + i, S_T + 2, SC + i))
    round_bf16()
    o("    v_max_f32 v%d, v%d, v%d" % (M, SC, SC + 1))
    o("    v_max3_f32 v%d, v%d, v%d, v%d" % (M, SC + 2, SC + 3, M))

    def xlane(op, reg, tmp):
        for sw in ("v_permlane32_swap_b32", "v_permlane16_swap_b32"):
            o("    v_mov_b32 v%d, v%d" % (tmp, reg))
            o("    s_nop 1")
            o("    %s v%d, v%d" % (sw, reg, tmp))
            o("    s_nop 1")
            o("    %s v%d, v%d, v%d" % (op, reg, reg, tmp))

    xlane("v_max_f32", M, M + 1)
    for i in range(4):
        o("    v_sub_f32 v%d, v%d, v%d" % (SC + i, SC + i, M))
    for i in range(4):
        o("    v_mul_f32 v%d, s%d, v%d" % (SC + i, S_T + 3, SC + i))
    for i in range(4):
        o("    v_exp_f32 v%d, v%d" % (SC + i, SC + i))
    o("    s_nop 0")
    o("    v_add_f32 v%d, v%d, v%d" % (M, SC, SC + 1))
    o("    v_add_f32 v%d, v%d, v%d" % (M + 1, SC + 2, SC + 3))
    o("    v_add_f32 v%d, v%d, v%d" % (M, M, M + 1))
    xlane("v_add_f32", M, M + 1)
    o("    v_rcp_f32 v%d, v%d" % (M, M))
    o("    s_nop 0")
    for i in range(4):
        o("    v_mul_f32 v%d, v%d, v%d" % (SC + i, SC + i, M))
    o("    v_cvt_pk_bf16_f32 v%d, v%d, v%d" % (W, SC, SC + 1))
    o("    v_cvt_pk_bf16_f32 v%d, v%d, v%d" % (W + 1, SC + 2, SC + 3))
    o("    v_lshlrev_b32 v%d, 3, v%d" % (V_X, V_LANE))
    o("    ds_write_b64 v%d, v[%d:%d] offset:%d" % (V_X, W, W + 1, LDS_P))
    o("    s_waitcnt lgkmcnt(0)")
    o("    s_branch L_mat_done")

    o("L_vend:")
    PP = MISC
    o("    v_lshlrev_b32 v%d, 3, v%d" % (V_X, V_LANE))
    o("    ds_read_b64 v[%d:%d], v%d offset:%d" % (PP, PP + 1, V_X, LDS_P))
    for w in range(4):
        for h in range(2):
            r = T + (w * 2 + h) * 4
            o("    ds_read_b128 v[%d:%d], v%d offset:%d" % (r, r + 3, V_VR, w * WS + h * 4 * DS))
    o("    s_waitcnt lgkmcnt(4)")
    for j in range(8):
        o("    v_add_f32 v%d, v%d, v%d" % (T + j, T + j, T + 8 + j))
    o("    s_waitcnt lgkmcnt(0)")
    for j in range(8):
        o("    v_add_f32 v%d, v%d, v%d" % (T + 16 + j, T + 16 + j, T + 24 + j))
    for j in range(8):
        o("    v_add_f32 v%d, v%d, v%d" % (T + j, T + j, T + 16 + j))
    VB = MISC + 4
    for h in range(2):
        o("    v_cvt_pk_bf16_f32 v%d, v%d, v%d" % (VB + 2 * h, T + 4 * h, T + 4 * h + 1))
        o("    v_cvt_pk_bf16_f32 v%d, v%d, v%d" % (VB + 2 * h + 1, T + 4 * h + 2, T + 4 * h + 3))
    OO = T + 16
    o("    s_lshr_b32 s%d, s%d, 1" % (S_T + 2, S_MI))
    o("    s_lshl_b32 s%d, s%d, %d" % (S_T + 2, S_T + 2, QSH))
    if hf >= 0:
        o("    s_xor_b32 s%d, s%d, s%d" % (S_T + 2, S_T + 2, S_FL))
    for h in range(2):
        o("    v_mfma_f32_16x16x16_bf16 v[%d:%d], v[%d:%d], v[%d:%d], 0" %
          (OO + 4 * h, OO + 4 * h + 3, VB + 2 * h, VB + 2 * h + 1, PP, PP + 1))
    o("    s_nop 7")
    for i in range(4):
        o("    v_cvt_pk_bf16_f32 v%d, v%d, v%d" % (MISC + 8 + i, OO + 2 * i, OO + 2 * i + 1))
    if noout or defer:
        o("    s_cmp_eq_u32 s%d, 1" % S_MI)
        o("    s_cbranch_scc0 L_store")
        if defer:
            for i in range(4):
                o("    v_mov_b32 v%d, v%d" % (V_DEF + i, MISC + 8 + i))
        o("    s_branch L_mat_done")
        o("L_store:")
        if defer:
            o("    buffer_store_dwordx4 v[%d:%d], v%d, s[%d:%d], %s offen %s" %
              (V_DEF, V_DEF + 3, V_OUT, SRD_O, SRD_O + 3, "s%d" % S_FL if hf >= 0 else "0", oflags))
    o("    buffer_store_dwordx4 v[%d:%d], v%d, s[%d:%d], s%d offen %s" %
      (MISC + 8, MISC + 11, V_OUT, SRD_O, SRD_O + 3, S_T + 2, oflags))

    o("L_mat_done:")
    o("    s_add_u32 s%d, s%d, 1" % (S_MI, S_MI))
    o("    s_cmp_eq_u32 s%d, 4" % S_MI)
    o("    s_cbranch_scc1 L_fin")
    for j in range(32):
        o("    v_mov_b32 v%d, 0" % (ACC + j))
    o("    s_branch L_outer")

    if ctl:
        o("; ---- progress reports (L_rp) and progress line updates (L_ev) ----")
        emit_events()
    o("; ---- load side moves on to the next matrix ----")
    for tag in stubs:
        o("L_sw_%s:" % tag)
        if qm == 2:
            o("    s_cmp_lg_u32 s%d, s%d" % (S_LM, S_WAVE))
            o("    s_cbranch_scc1 L_swq_%s" % tag)
            o("    s_bitcmp1_b32 s%d, 0" % S_WAVE)
            o("    s_cbranch_scc1 L_swq_%s" % tag)
            o("    v_and_b32 v%d, 15, v%d" % (V_X, V_LANE))
            o("    v_lshrrev_b32 v%d, 4, v%d" % (V_Y, V_LANE))
            load_q(V_X, V_Y, V_X, S_T + 6)
            o("L_swq_%s:" % tag)
        o("    s_mov_b32 s%d, s%d" % (S_OFF, S_OFF0))
        if general:
            o("    s_mov_b32 s%d, 0" % S_STP)
        if hf >= 0:
            o("    s_add_u32 s%d, s%d, s%d" % (S_T + 4, SRD_D, S_ADV))
            o("    s_addc_u32 s%d, s%d, s%d" % (S_T + 5, SRD_D + 1, S_ADVH))
        else:
            o("    s_add_u32 s%d, s%d, 0x%x" % (S_T + 4, SRD_D, 1 << mb))
            o("    s_addc_u32 s%d, s%d, 0" % (S_T + 5, SRD_D + 1))
        o("    s_mov_b32 s%d, s%d" % (SRD_D, NXT_D))
        o("    s_mov_b32 s%d, s%d" % (SRD_D + 1, NXT_D + 1))
        o("    s_mov_b32 s%d, s%d" % (NXT_D, S_T + 4))
        o("    s_mov_b32 s%d, s%d" % (NXT_D + 1, S_T + 5))
        o("    s_mov_b32 s%d, s%d" % (S_T + 4, SRD_P))
        o("    s_mov_b32 s%d, s%d" % (S_T + 5, SRD_P + 1))
        o("    s_mov_b32 s%d, s%d" % (SRD_P, NXT_P))
        o("    s_mov_b32 s%d, s%d" % (SRD_P + 1, NXT_P + 1))
        o("    s_mov_b32 s%d, s%d" % (NXT_P, S_T + 4))
        o("    s_mov_b32 s%d, s%d" % (NXT_P + 1, S_T + 5))
        o("    s_add_u32 s%d, s%d, 1" % (S_LM, S_LM))
        o("    s_cmp_eq_u32 s%d, 4" % S_LM)
        o("    s_cselect_b32 s%d, 0, 0x%x" % (SRD_D + 2, DSZ))
        o("    s_cselect_b32 s%d, 0, 0x20000" % (SRD_P + 2))
        o("    s_branch L_swr_%s" % tag)

    o("L_fin:")
    if stamp:
        o("    s_waitcnt vmcnt(0)")
        o("    s_memrealtime s[62:63]")
        o("    s_getreg_b32 s58, hwreg(HW_REG_XCC_ID)")
        o("    s_getreg_b32 s59, hwreg(HW_REG_HW_ID)")
        o("    s_waitcnt lgkmcnt(0)")
        o("    s_lshl_b32 s%d, s2, 2" % S_T)
        o("    s_add_u32 s%d, s%d, s%d" % (S_T, S_T, S_WAVE))
        o("    s_lshl_b32 s%d, s%d, 4" % (S_T, S_T))
        o("    v_mov_b32 v4, s60")
        o("    v_mov_b32 v5, s62")
        o("    v_mov_b32 v6, s58")
        if pstamp:
            o("    s_sub_u32 s82, s82, s60")
        o("    v_mov_b32 v7, s%d" % (82 if pstamp else (S_HI if ctl else 59)))
        o("    v_mov_b32 v2, s%d" % S_T)
        o("    global_store_dwordx4 v2, v[4:7], s[18:19]")
        if pst:
            o("    s_lshl_b32 s%d, s%d, 1" % (S_T + 1, S_T))
            o("    s_add_u32 s%d, s%d, 0x60000" % (S_T + 1, S_T + 1))
            o("    v_mov_b32 v2, s%d" % (S_T + 1))
            for k in range(6):
                o("    s_sub_u32 s%d, s%d, s60" % (PST[k], PST[k]))
                o("    v_mov_b32 v%d, s%d" % (8 + k, PST[k]))
            o("    global_store_dwordx4 v2, v[8:11], s[18:19]")
            o("    global_store_dwordx2 v2, v[12:13], s[18:19] offset:16")
        if trace:
            o("    s_lshl_b32 s%d, s%d, 4" % (S_T, S_T))
            o("    s_add_u32 s%d, s%d, 0x10000" % (S_T, S_T))
            o("    v_lshlrev_b32 v2, 2, v0")
            o("    v_add_u32 v2, s%d, v2" % S_T)
            o("    global_store_dword v2, v%d, s[18:19]" % V_BV)
    o("L_end:")
    o("    s_endpgm")
    nvg = max(accum_offset + na, 264)
    o('.section .rodata,"a"')
    o(".p2align 6")
    o(".amdhsa_kernel %s_kernel" % NAME)
    o("  .amdhsa_next_free_vgpr %d" % nvg)
    o("  .amdhsa_next_free_sgpr %d" % (96 if pst else 88))
    o("  .amdhsa_accum_offset %d" % accum_offset)
    o("  .amdhsa_group_segment_fixed_size 0")
    o("  .amdhsa_kernarg_size 64")
    o("  .amdhsa_user_sgpr_count 2")
    o("  .amdhsa_user_sgpr_kernarg_segment_ptr 1")
    o("  .amdhsa_system_sgpr_workgroup_id_x 1")
    o("  .amdhsa_float_denorm_mode_32 3")
    o(".end_amdhsa_kernel")
    return "\n".join(L) + "\n"


if __name__ == "__main__":
    out = sys.argv[1]
    kw = {}
    for a in sys.argv[2:]:
        k, v = a.split("=")
        if k not in ("flags", "eflags", "oflags", "mlo", "mmid", "mhi", "cal", "aflags", "akind", "mpost", "mfirst", "xm", "jb", "gb", "wb", "sb", "pb", "af", "jx", "mm2", "wsy", "ewf"):
            v = int(v)
        kw[k] = v
    open(out, "w").write(gen(**kw))
```

```python
import sys

NAME = "standalone__low_rank_proj_linformer__sampling"
HEADER = open("cdna_kernels/%s.s.ref" % NAME).read().split("; Override launch")[0]

DOC = """
Linformer attention: kp = E.K, vp = F.V (rank 16), p = softmax(bf16(q.kp^T) * 128^-0.5), out = p.vp.
The kernel is bound by the 1 GiB read of K and V.

Work split: 256 workgroups x 4 waves, one workgroup per CU, two heads per workgroup.
A workgroup streams K(h0), V(h0), K(h1), V(h1); a round covers 128 rows (32 KiB), wave w takes
rows [32w, 32w+32).  Per round a wave issues 8 dwordx4 loads into a register ring (two rounds deep),
transposes 8x8 blocks with v_perm and accumulates E^T-fragment x data with 8 MFMA 16x16x32.
At the end of a matrix the four partial sums are added through LDS; one wave does the scores and the
softmax, all four waves do p.vp.  The first head's output stays in registers until the end.

Load-window balancing: the dies get unequal shares of the memory bandwidth, and the slowest die sets the
run time.  The loop body exists three times and differs only in how many loads it keeps in flight
(lo / mid / hi).  A few waves add their clock value to counters in d_debug at fixed iterations; the mean of
these reports gives the grid-wide progress line.  Once per iteration each wave compares its clock with
the line and picks the body: hi when it lags, lo when it leads.  The choice changes timing only, never
the result, and no wave ever waits on the clock or on another workgroup.
"""


def gen(flags="nt", eflags="sc1", oflags="", stamp=0, force=-1, ctl=1,
        mlo="5s", mmid="6p", mhi="8p", dhi=1, dlo=1, cal="9,25", lag=8, delta=0, eps=0, ps=0, pc=6,
        tail=0, notime=0, pre=0, noev=0, trace=0,
        doat=1, dold=1, aflags="sc1", akind="atomic", abase=16, wmap=0, amask=0, aval=0,
        ns=256, stag=4, noout=0, defer=0, bp=0, noE=0, mpost="", qwait=0, pstamp=0, fin=0, tsh=0, pst=0, early=0, pf=0, pfw=256, pro8=0, qm=0, m0=0, mfirst="", tw=0, pdec=1, wa=0, rot=0, gp=11, wp=13, xm="", hb=8, hb2=0, jb="", gb="", wb="", sb="", mb=20, pb="", hf=-1, tf=-1, af="", jx="", prb=0, e0=0, eg=0, egs=1, mm2="", m2s=1, wsy="", nom=0, lag0=3, dl8=0, dh8=0, ew=0, ewf="", wskip=0, half=0, hca=2, hcb=6, sl=-1, c0=210, n1=0, ih=0, mih="", ihp=2, sl0=1):
    LA, RS, ER, P = 4, 2, 2, 2
    cal = [int(x) for x in str(cal).split(",")]
    assert 2 <= len(cal) <= 4
    SLOT = [0, 128, 64, 192]
    if sl >= 0 and not n1:
        SLOT = [136, 128, 64, 192]
    j0 = sl0 if sl >= 0 else cal[0] + lag0
    nsh = ns.bit_length() - 1
    assert ns == 1 << nsh and ns >= 8 * stag
    st2 = stag - 1
    nobar = nocomp = 0
    wsyl = [int(x) for x in str(wsy).split(",")] if wsy != "" else []
    general = (gp, wp, xm, hb, jb, gb, wb, sb) != (11, 13, "", 8, "", "", "", "")
    gbits = [int(x) for x in str(gb).split(",")] if gb else [gp, gp + 1]
    wbits = [int(x) for x in str(wb).split(",")] if wb else [wp, wp + 1]
    if jb:
        jbits = [int(x) for x in str(jb).split(",")]
    elif hb == 8:
        jbits = [8, 9, 10]
    elif hb2:
        jbits = [hb, hb2, 8]
    else:
        jbits = [hb, 8, 9]
    holes = sum(1 << b for b in gbits + wbits + jbits)
    assert bin(holes).count("1") == 7 and min(gbits + wbits) >= 8
    sbits = [b for b in range(8, 20) if not (holes >> b) & 1]
    if sb:
        sbits = [int(x) for x in str(sb).split(",")]
        assert sbits == sorted(sbits) and len(sbits) == 5
        holes = 0xffffff00 & ~sum(1 << b for b in sbits)
    pbits = [int(x) for x in str(pb).split(",")] if pb else [b for b in range(20, 29) if b != mb]
    allb = gbits + wbits + jbits + sbits + [mb] + pbits
    assert sorted(allb) == list(range(8, 29)), sorted(allb)
    probe = max(gbits + wbits + jbits + sbits) >= 20 or mb < 20 or bool(prb)
    headmap = (mb, pbits) != (20, list(range(21, 29)))
    offmask = sum(1 << b for b in gbits + wbits + jbits + sbits) | 0xff
    big_j = [b for b in jbits if b >= 12]
    afl = [int(x) for x in str(af).split(",")] if af else []
    af_s = sum(1 << b for b in afl if b in wbits + sbits)
    af_g = sum(1 << b for b in afl if b in gbits)
    S_OFFB = 87
    jxl = [tuple(int(y) for y in x.split(":")) for x in jx.split(",")] if jx else []
    jx_j = [(tb, sb_) for tb, sb_ in jxl if tb in jbits]
    jx_g = [(tb, sb_) for tb, sb_ in jxl if tb in gbits]
    assert len(jx_j) + len(jx_g) == len(jxl)
    xml = [tuple(int(y) for y in x.split(":")) for x in xm.split(",")] if xm else []
    if general:
        assert wa == 0 and rot == 0 and not early
    L = []
    o = L.append
    DS = 1088
    WS = 8 * DS
    LDS_P, LDS_KP, LDS_VP = 0, 512, 512 + 4 * WS
    lds = 512 + 8 * WS
    o(HEADER.rstrip())
    o("; @launch grid=(256,1,1) block=(256,1,1) lds=%d" % lds)
    for line in DOC.strip("\n").split("\n"):
        o(("; " + line).rstrip())
    o('.amdgcn_target "amdgcn-amd-amdhsa--gfx950"')
    o(".text")
    o(".globl %s_kernel" % NAME)
    o(".p2align 8")
    o(".type %s_kernel,@function" % NAME)
    o("%s_kernel:" % NAME)

    V_LANE, V_OFF, V_EOFF, V_PW, V_VR, V_OUT, V_X, V_Y = 0, 1, 2, 3, 4, 5, 6, 7
    ACC = 8
    T = 40
    MISC = 72
    V_BO, V_BV = MISC + 22, MISC + 23
    RING = 96
    V_DEF = RING + 32 * RS
    V_OFFX = V_DEF + 4
    nv = V_DEF + 4 + ((1 << len(big_j)) - 1)
    V_OFFJ = nv
    if jx_j:
        assert not big_j
        nv += 8
    esplit = jbits[1:] == [8, 9] and jbits[0] > 9 and not prb
    NE = 0 if noE else (2 if esplit else 1)
    V_ER = V_EA = 0
    if esplit:
        nv = (nv + 1) // 2 * 2
        V_ER = nv
        V_EA = (V_ER + 4 * ER + 3) // 4 * 4
        nv = V_EA + 4
    V_S2 = V_T2 = 0
    if ih:
        V_S2 = (nv + 3) // 4 * 4
        V_T2 = V_S2 + 32
        nv = V_T2 + 32
    assert nv <= 256
    A_Q = 0
    A_E = 16
    na = A_E + 4 * ER
    accum_offset = (nv + 3) // 4 * 4

    S_SELLO, S_SELHI, S_WAVE, S_OFF, S_EOFF, S_CNT, S_MI, S_LM = 20, 21, 22, 23, 24, 25, 26, 27
    S_PROG = 57
    SRD_D, SRD_P = 28, 32
    NXT_D, NXT_P = 36, 38
    SRD_Q, SRD_O = 40, 44
    S_T = 48

    o("    s_cmp_ge_u32 s2, 256")
    o("    s_cbranch_scc1 L_end")
    o("    s_load_dwordx16 s[4:19], s[0:1], 0")
    if stamp:
        o("    s_memrealtime s[60:61]")
    if sl >= 0:
        o("    s_memrealtime s[72:73]")
    PST = [84, 86, 88, 90, 92, 94]

    def pstp(k):
        if pst:
            o("    s_memrealtime s[%d:%d]" % (PST[k], PST[k] + 1))

    def code_prefetch():
        if pfw < 256:
            o("    s_cmp_ge_u32 s2, %d" % pfw)
            o("    s_cbranch_scc1 L_nopfc")
        o("    s_getpc_b64 s[%d:%d]" % (S_T + 4, S_T + 5))
        o("L_pc:")
        o("    v_lshlrev_b32 v%d, 6, v%d" % (V_PW, V_TID))
        o("    v_min_u32 v%d, L_end-L_pc, v%d" % (V_PW, V_PW))
        o("    global_load_dword v%d, v%d, s[%d:%d]" % (V_DEF + 3, V_PW, S_T + 4, S_T + 5))
        if pfw < 256:
            o("L_nopfc:")

    V_TID = 0
    S_TMP0, S_TMP1, S_JC = S_T + 4, S_T + 5, 83
    if pf:
        code_prefetch()
    o("    v_lshrrev_b32 v%d, 6, v0" % V_X)
    o("    v_and_b32 v%d, 63, v0" % V_LANE)
    o("    v_readfirstlane_b32 s%d, v%d" % (S_WAVE, V_X))
    if not early:
        o("    s_mov_b32 s%d, 0x05040100" % S_SELLO)
        o("    s_mov_b32 s%d, 0x07060302" % S_SELHI)
    o("    v_and_b32 v%d, 15, v%d" % (V_X, V_LANE))
    o("    v_lshrrev_b32 v%d, 4, v%d" % (V_Y, V_LANE))
    o("    v_lshlrev_b32 v%d, 4, v%d" % (V_OFF, V_X))
    if gbits[1] == gbits[0] + 1:
        o("    v_lshl_add_u32 v%d, v%d, %d, v%d" % (V_OFF, V_Y, gbits[0], V_OFF))
    else:
        o("    v_and_b32 v%d, 1, v%d" % (V_PW, V_Y))
        o("    v_lshl_add_u32 v%d, v%d, %d, v%d" % (V_OFF, V_PW, gbits[0], V_OFF))
        o("    v_lshrrev_b32 v%d, 1, v%d" % (V_PW, V_Y))
        o("    v_lshl_add_u32 v%d, v%d, %d, v%d" % (V_OFF, V_PW, gbits[1], V_OFF))
    if probe:
        o("    v_lshlrev_b32 v%d, 13, v%d" % (V_EOFF, V_X))
        o("    v_lshl_add_u32 v%d, v%d, 4, v%d" % (V_EOFF, V_Y, V_EOFF))
    elif not early:
        o("    v_lshlrev_b32 v%d, 13, v%d" % (V_EOFF, V_X))
        if gbits[1] == gbits[0] + 1:
            o("    v_lshl_add_u32 v%d, v%d, %d, v%d" % (V_EOFF, V_Y, gbits[0] - 7, V_EOFF))
        else:
            o("    v_and_b32 v%d, 1, v%d" % (V_PW, V_Y))
            o("    v_lshl_add_u32 v%d, v%d, %d, v%d" % (V_EOFF, V_PW, gbits[0] - 7, V_EOFF))
            o("    v_lshrrev_b32 v%d, 1, v%d" % (V_PW, V_Y))
            o("    v_lshl_add_u32 v%d, v%d, %d, v%d" % (V_EOFF, V_PW, gbits[1] - 7, V_EOFF))
    for tb, sb_ in jx_g:
        o("    s_bfe_u32 s%d, s2, 0x%x" % (S_TMP0, 0x10000 | sb_))
        o("    s_lshl_b32 s%d, s%d, %d" % (S_TMP1, S_TMP0, tb))
        o("    v_xor_b32 v%d, s%d, v%d" % (V_OFF, S_TMP1, V_OFF))
        o("    s_lshl_b32 s%d, s%d, %d" % (S_TMP1, S_TMP0, tb - 7))
        o("    v_xor_b32 v%d, s%d, v%d" % (V_EOFF, S_TMP1, V_EOFF))
    if jx_j:
        o("    s_mov_b32 s%d, 0" % S_JC)
        for tb, sb_ in jx_j:
            o("    s_bfe_u32 s%d, s2, 0x%x" % (S_TMP0, 0x10000 | sb_))
            o("    s_lshl_b32 s%d, s%d, %d" % (S_TMP0, S_TMP0, tb))
            o("    s_xor_b32 s%d, s%d, s%d" % (S_JC, S_JC, S_TMP0))
        for i in range(8):
            a_ = sum(1 << b for t, b in enumerate(jbits) if (i >> t) & 1)
            o("    s_xor_b32 s%d, s%d, 0x%x" % (S_TMP0, S_JC, a_))
            o("    v_or_b32 v%d, s%d, v%d" % (V_OFFJ + i, S_TMP0, V_OFF))
    for sel in range(1, 1 << len(big_j)):
        add = sum(1 << b for t, b in enumerate(big_j) if (sel >> t) & 1)
        if af_g and sel & 1:
            o("    v_xor_b32 v%d, 0x%x, v%d" % (V_OFFX + sel - 1, af_g, V_OFF))
            o("    v_add_u32 v%d, 0x%x, v%d" % (V_OFFX + sel - 1, add, V_OFFX + sel - 1))
        else:
            o("    v_add_u32 v%d, 0x%x, v%d" % (V_OFFX + sel - 1, add, V_OFF))
    S_STP = 56
    if wbits[1] == wbits[0] + 1:
        o("    s_lshl_b32 s%d, s%d, %d" % (S_OFF, S_WAVE, wbits[0] if general else 13 + wa))
    else:
        o("    s_and_b32 s%d, s%d, 1" % (S_OFF, S_WAVE))
        o("    s_lshl_b32 s%d, s%d, %d" % (S_OFF, S_OFF, wbits[0]))
        o("    s_lshr_b32 s%d, s%d, 1" % (S_T + 4, S_WAVE))
        o("    s_lshl_b32 s%d, s%d, %d" % (S_T + 4, S_T + 4, wbits[1]))
        o("    s_or_b32 s%d, s%d, s%d" % (S_OFF, S_OFF, S_T + 4))
    if general:
        o("    s_mov_b32 s%d, 0" % S_STP)
        for tb, sb in xml:
            o("    s_bfe_u32 s%d, s2, 0x%x" % (S_T + 4, 0x10000 | sb))
            o("    s_lshl_b32 s%d, s%d, %d" % (S_T + 4, S_T + 4, tb))
            o("    s_xor_b32 s%d, s%d, s%d" % (S_OFF, S_OFF, S_T + 4))
    if rot:
        assert wa == 0
        R = S_T + 4
        if rot == 1:
            o("    s_lshr_b32 s%d, s2, 3" % R)
        elif rot == 2:
            o("    s_mov_b32 s%d, s2" % R)
        elif rot == 3:
            o("    s_lshl_b32 s%d, s2, 2" % R)
        elif rot == 4:
            o("    s_lshr_b32 s%d, s2, 3" % R)
            o("    s_lshl_b32 s%d, s2, 2" % (R + 1))
            o("    s_add_u32 s%d, s%d, s%d" % (R, R, R + 1))
        elif rot == 5:
            o("    s_lshr_b32 s%d, s2, 3" % R)
            o("    s_and_b32 s%d, s%d, 1" % (R, R))
        elif rot == 6:
            o("    s_lshr_b32 s%d, s2, 3" % R)
            o("    s_and_b32 s%d, s%d, 3" % (R, R))
        elif rot == 7:
            o("    s_lshr_b32 s%d, s2, 3" % R)
            o("    s_lshl_b32 s%d, s%d, 3" % (R, R))
        elif rot == 8:
            o("    s_lshr_b32 s%d, s2, 3" % R)
            o("    s_lshl_b32 s%d, s%d, 4" % (R, R))
        o("    s_and_b32 s%d, s%d, 31" % (R, R))
        o("    s_lshl_b32 s%d, s%d, 15" % (R, R))
        o("    s_add_u32 s%d, s%d, s%d" % (S_OFF, S_OFF, R))
    S_EV, S_MODE, S_ACC, S_INC, S_TM, S_NOW, S_THI, S_TLO = 64, 65, 66, 67, 72, 74, 76, 77
    S_C1, S_C2, S_HI, S_OFF0, S_RP, S_OK = 68, 70, 78, 79, 80, 81

    def eoff():
        o("    s_lshr_b32 s%d, s%d, 7" % (S_EOFF, S_OFF))
        if af_s:
            o("    s_xor_b32 s%d, s%d, 0x%x" % (S_OFFB, S_OFF, af_s))
        if probe:
            o("    s_and_b32 s%d, s%d, 0x1fc0" % (S_EOFF, S_EOFF))

    def step_inc():
        if general:
            o("    s_or_b32 s%d, s%d, 0x%x" % (S_STP, S_STP, holes))
            o("    s_add_u32 s%d, s%d, 0x%x" % (S_STP, S_STP, 1 << sbits[0]))
            o("    s_andn2_b32 s%d, s%d, 0x%x" % (S_STP, S_STP, holes))
            o("    s_xor_b32 s%d, s%d, s%d" % (S_OFF, S_STP, S_OFF0))
        elif wa == 0:
            o("    s_add_u32 s%d, s%d, 0x8000" % (S_OFF, S_OFF))
            if rot:
                o("    s_and_b32 s%d, s%d, 0xfffff" % (S_OFF, S_OFF))
        elif wa == 5:
            o("    s_add_u32 s%d, s%d, 0x2000" % (S_OFF, S_OFF))
        else:
            hole = 3 << (13 + wa)
            o("    s_or_b32 s%d, s%d, 0x%x" % (S_OFF, S_OFF, hole))
            o("    s_add_u32 s%d, s%d, 0x2000" % (S_OFF, S_OFF))
            o("    s_andn2_b32 s%d, s%d, 0x%x" % (S_OFF, S_OFF, hole))
            o("    s_or_b32 s%d, s%d, s%d" % (S_OFF, S_OFF, S_OFF0))

    def ctl_setup():
        U = S_T + 6 if early else S_T
        o("    s_mov_b32 s%d, %d" % (S_MODE, {-1: 0, 0: 0, 1: 1, 2: 2}[force]))
        if ctl:
            o("    s_mov_b32 s%d, 0" % S_PROG)
            o("    s_mov_b32 s%d, 0" % S_HI)
            if sl >= 0:
                T1n = 16 * nom
                o("    s_mov_b32 s%d, %d" % (S_ACC, 64 * c0))
                o("    s_mov_b32 s%d, %d" % (S_INC, 4 * T1n))
                o("    s_mov_b32 s%d, 0" % S_NOW)
                o("    s_mov_b32 s%d, %d" % (S_THI, (T1n * (dh8 or 8 * dhi)) >> 3))
                o("    s_mov_b32 s%d, %d" % (S_TLO, (-T1n * (dl8 or 8 * dlo)) >> 3))
                assert not mm2
            else:
                o("    s_mov_b32 s%d, 0" % S_ACC)
                o("    s_mov_b32 s%d, 0" % S_INC)
                o("    s_mov_b32 s%d, 0" % S_TM)
                o("    s_mov_b32 s%d, 0" % S_NOW)
                o("    s_mov_b32 s%d, 0x7fffffff" % S_THI)
                if mm2:
                    o("    s_mov_b32 s82, 0x7fffffff")
                o("    s_mov_b32 s%d, 0x80000000" % S_TLO)
            o("    s_lshr_b32 s%d, s2, 3" % U)
            o("    s_and_b32 s%d, s%d, %d" % (U, U, stag - 1))
            o("    s_mov_b32 s%d, 0x7fffffff" % S_RP)
            o("    s_mov_b32 s%d, 0" % (U + 1))
            for k, c in enumerate(cal):
                if sl >= 0 and k == 0 and n1:
                    continue
                o("    s_cmp_eq_u32 s%d, %d" % (S_WAVE, (k + 1) & 3))
                o("    s_cselect_b32 s%d, %d, s%d" % (S_RP, c, S_RP))
                o("    s_cselect_b32 s%d, %d, s%d" % (U + 1, SLOT[k], U + 1))
            o("    v_mov_b32 v%d, s%d" % (V_BO, U + 1))
            o("    s_cmp_lg_u32 s%d, 0x7fffffff" % S_RP)
            o("    s_cselect_b32 s%d, s%d, 0" % (U, U))
            o("    s_add_u32 s%d, s%d, s%d" % (S_RP, S_RP, U))
            if ns < 256:
                o("    s_cmp_lt_u32 s2, %d" % ns)
                o("    s_cselect_b32 s%d, s%d, 0x7fffffff" % (S_RP, S_RP))
            if amask:
                o("    s_and_b32 s%d, s2, %d" % (U, amask))
                o("    s_cmp_eq_u32 s%d, %d" % (U, aval))
                o("    s_cselect_b32 s%d, s%d, 0x7fffffff" % (S_RP, S_RP))
            o("    s_mov_b32 s%d, %d" % (S_EV, j0 if nom else cal[1] + lag))
            assert sl < 0 or nom
            o("    s_mov_b32 s%d, 0" % S_OK)
            for r in range(S_C1, S_C1 + 4):
                o("    s_mov_b32 s%d, 0" % r)
        o("    s_mov_b32 s%d, 0" % S_LM)
        o("    s_mov_b32 s%d, 0" % S_MI)

    def srd_rest():
        qsz = 8192 if mb <= 20 or probe else (1 << (mb - 8)) + 4096
        o("    s_mov_b32 s%d, %d" % (SRD_Q + 2, qsz))
        o("    s_mov_b32 s%d, 0x20000" % (SRD_Q + 3))
        o("    s_mov_b32 s%d, %d" % (SRD_O + 2, qsz))
        o("    s_mov_b32 s%d, 0x20000" % (SRD_O + 3))

    if not early:
        o("    s_mov_b32 s%d, s%d" % (S_OFF0, S_OFF))
        ctl_setup()
        eoff()
    S_PAIR = S_T + 2
    if wmap == 0:
        o("    s_mov_b32 s%d, s2" % S_PAIR)
    elif wmap == 1:
        o("    s_and_b32 s%d, s2, 7" % S_PAIR)
        o("    s_lshl_b32 s%d, s%d, 5" % (S_PAIR, S_PAIR))
        o("    s_lshr_b32 s%d, s2, 3" % (S_T + 3))
        o("    s_or_b32 s%d, s%d, s%d" % (S_PAIR, S_PAIR, S_T + 3))
    elif wmap == 2:
        o("    s_lshr_b32 s%d, s2, 3" % (S_T + 3))
        o("    s_and_b32 s%d, s%d, 7" % (S_T + 3, S_T + 3))
        o("    s_xor_b32 s%d, s2, s%d" % (S_PAIR, S_T + 3))
    elif wmap == 3:
        o("    s_and_b32 s%d, s2, 7" % S_PAIR)
        o("    s_lshl_b32 s%d, s%d, 5" % (S_PAIR, S_PAIR))
        o("    s_lshr_b32 s%d, s2, 3" % (S_T + 3))
        o("    s_or_b32 s%d, s%d, s%d" % (S_PAIR, S_PAIR, S_T + 3))
        o("    s_and_b32 s%d, s%d, 7" % (S_T + 3, S_T + 3))
        o("    s_lshl_b32 s%d, s%d, 5" % (S_T + 3, S_T + 3))
        o("    s_xor_b32 s%d, s%d, s%d" % (S_PAIR, S_PAIR, S_T + 3))
    elif wmap == 4:
        o("    s_and_b32 s%d, s2, 7" % S_PAIR)
        o("    s_lshr_b32 s%d, s2, 3" % (S_T + 3))
        o("    s_lshl_b32 s%d, s%d, 2" % (S_T + 4, S_PAIR))
        o("    s_add_u32 s%d, s%d, s%d" % (S_T + 3, S_T + 3, S_T + 4))
        o("    s_and_b32 s%d, s%d, 31" % (S_T + 3, S_T + 3))
        o("    s_lshl_b32 s%d, s%d, 5" % (S_PAIR, S_PAIR))
        o("    s_or_b32 s%d, s%d, s%d" % (S_PAIR, S_PAIR, S_T + 3))
    elif wmap == 5:
        o("    s_brev_b32 s%d, s2" % S_PAIR)
        o("    s_lshr_b32 s%d, s%d, 24" % (S_PAIR, S_PAIR))
    elif wmap == 6:
        o("    s_bfe_u32 s%d, s2, 0x20001" % S_PAIR)
        o("    s_lshl_b32 s%d, s%d, 6" % (S_PAIR, S_PAIR))
        o("    s_lshr_b32 s%d, s2, 3" % (S_T + 3))
        o("    s_lshl_b32 s%d, s%d, 1" % (S_T + 3, S_T + 3))
        o("    s_or_b32 s%d, s%d, s%d" % (S_PAIR, S_PAIR, S_T + 3))
        o("    s_and_b32 s%d, s2, 1" % (S_T + 3))
        o("    s_or_b32 s%d, s%d, s%d" % (S_PAIR, S_PAIR, S_T + 3))
    elif wmap == 7:
        o("    s_and_b32 s%d, s2, 7" % S_PAIR)
        o("    s_lshl_b32 s%d, s%d, 3" % (S_PAIR, S_PAIR))
        o("    s_bfe_u32 s%d, s2, 0x30003" % (S_T + 3))
        o("    s_or_b32 s%d, s%d, s%d" % (S_PAIR, S_PAIR, S_T + 3))
        o("    s_lshr_b32 s%d, s2, 6" % (S_T + 3))
        o("    s_lshl_b32 s%d, s%d, 6" % (S_T + 3, S_T + 3))
        o("    s_or_b32 s%d, s%d, s%d" % (S_PAIR, S_PAIR, S_T + 3))
    if headmap:
        o("    s_mov_b32 s%d, 0" % S_T)
        for i, b in enumerate(pbits):
            o("    s_bfe_u32 s%d, s%d, 0x%x" % (S_T + 1, S_PAIR, 0x10000 | i))
            o("    s_lshl_b32 s%d, s%d, %d" % (S_T + 1, S_T + 1, b))
            o("    s_or_b32 s%d, s%d, s%d" % (S_T, S_T, S_T + 1))
    else:
        o("    s_lshl_b32 s%d, s%d, 21" % (S_T, S_PAIR))
    S_ADV, S_ADVH, S_FL = 84, 85, 86
    if hf >= 0:
        assert not pst and not early and qm == 0
        if hf == 99:
            o("    s_mov_b32 s%d, 1" % S_FL)
        else:
            o("    s_bfe_u32 s%d, s2, 0x%x" % (S_FL, 0x10000 | hf))
        o("    s_mov_b32 s%d, 0x%x" % (S_ADV, 1 << mb))
        o("    s_cmp_eq_u32 s%d, 1" % S_FL)
        o("    s_cselect_b32 s%d, 0x%x, s%d" % (S_ADV, (-(1 << mb)) & 0xffffffff, S_ADV))
        o("    s_cselect_b32 s%d, -1, 0" % S_ADVH)
    DSZ = (offmask + 1) if probe else 0x100000
    QSH = 12 if probe else mb - 8
    o("    s_mov_b32 s%d, 0x%x" % (SRD_D + 2, DSZ))
    o("    s_mov_b32 s%d, 0x20000" % (SRD_D + 3))
    if not early:
        if headmap and not probe:
            o("    s_lshr_b32 s%d, s%d, 8" % (S_T + 1, S_T))
        else:
            o("    s_lshl_b32 s%d, s%d, 13" % (S_T + 1, S_PAIR))
        o("    s_mov_b32 s%d, 0x20000" % (SRD_P + 2))
        o("    s_mov_b32 s%d, 0x20000" % (SRD_P + 3))
        srd_rest()
    pstp(0)
    o("    s_waitcnt lgkmcnt(0)")
    if pstamp:
        o("    s_memrealtime s[82:83]")
    pstp(1)
    if hf >= 0:
        o("    s_lshl_b32 s%d, s%d, %d" % (S_T + 4, S_FL, mb))
        o("    s_or_b32 s%d, s%d, s%d" % (S_T, S_T, S_T + 4))
        o("    s_lshl_b32 s%d, s%d, %d" % (S_FL, S_FL, QSH))
    if tf >= 0:
        if tf == 99:
            o("    s_cmp_eq_u32 s2, s2")
        else:
            o("    s_bitcmp1_b32 s2, %d" % tf)
        o("    s_cselect_b32 s%d, s8, s6" % (S_T + 4))
        o("    s_cselect_b32 s%d, s9, s7" % (S_T + 5))
        o("    s_cselect_b32 s8, s6, s8")
        o("    s_cselect_b32 s9, s7, s9")
        o("    s_mov_b32 s6, s%d" % (S_T + 4))
        o("    s_mov_b32 s7, s%d" % (S_T + 5))
    o("    s_add_u32 s%d, s6, s%d" % (SRD_D, S_T))
    o("    s_addc_u32 s%d, s7, 0" % (SRD_D + 1))
    if not early:
        o("    s_mov_b32 s%d, s10" % SRD_P)
        o("    s_mov_b32 s%d, s11" % (SRD_P + 1))

    def issue_E(step):
        if noE:
            return
        if esplit:
            r = V_ER + (step % ER) * 4
            for t in range(2):
                o("    buffer_load_dwordx2 v[%d:%d], v%d, s[%d:%d], s%d offen offset:%d %s" %
                  (r + 2 * t, r + 2 * t + 1, V_EOFF, SRD_P, SRD_P + 3, S_EOFF, t << (jbits[0] - 7), eflags))
            return
        r = A_E + (step % ER) * 4
        o("    buffer_load_dwordx4 a[%d:%d], v%d, s[%d:%d], s%d offen %s" %
          (r, r + 3, V_EOFF, SRD_P, SRD_P + 3, S_EOFF, eflags))

    def issue_one(n):
        q, h = divmod(n, 2)
        a = q % 4
        slot = q % (4 * RS)
        i = 2 * a + h
        r = RING + (slot * 2 + h) * 4
        imm, sel = 0, 0
        alt = bool(afl) and any((i >> t) & 1 and b == big_j[0] for t, b in enumerate(jbits))
        for t, b in enumerate(jbits):
            bit = (i >> t) & 1
            if alt and b in afl:
                bit ^= 1
            if bit:
                if b >= 12:
                    sel |= 1 << big_j.index(b)
                else:
                    imm += 1 << b
        if jx_j:
            o("    buffer_load_dwordx4 v[%d:%d], v%d, s[%d:%d], s%d offen %s" %
              (r, r + 3, V_OFFJ + i, SRD_D, SRD_D + 3, S_OFF, flags))
            return
        o("    buffer_load_dwordx4 v[%d:%d], v%d, s[%d:%d], s%d offen offset:%d %s" %
          (r, r + 3, V_OFFX + sel - 1 if sel else V_OFF, SRD_D, SRD_D + 3,
           S_OFFB if alt and af_s else S_OFF, imm, flags))

    def issue_pair(q):
        issue_one(2 * q)
        issue_one(2 * q + 1)

    stubs = []
    events = []

    if not early and not e0:
        issue_E(0)
    for q in range(LA):
        issue_pair(q)
        if not early and e0 == q + 1:
            issue_E(0)
    if early:
        o("    v_lshlrev_b32 v%d, 13, v%d" % (V_EOFF, V_X))
        o("    v_lshl_add_u32 v%d, v%d, 4, v%d" % (V_EOFF, V_Y, V_EOFF))
        eoff()
        o("    s_mov_b32 s%d, s10" % SRD_P)
        o("    s_mov_b32 s%d, s11" % (SRD_P + 1))
        o("    s_mov_b32 s%d, 0x20000" % (SRD_P + 2))
        o("    s_mov_b32 s%d, 0x20000" % (SRD_P + 3))
        issue_E(0)
        o("    s_mov_b32 s%d, s%d" % (S_OFF0, S_OFF))
    if bp and not pro8:
        step_inc()
        eoff()
        issue_one(8)
        issue_E(1)
        for n in range(9, 16):
            issue_one(n)
    pstp(2)
    if early:
        o("    s_mov_b32 s%d, 0x05040100" % S_SELLO)
        o("    s_mov_b32 s%d, 0x07060302" % S_SELHI)
        o("    s_lshl_b32 s%d, s%d, 13" % (S_T + 1, S_PAIR))
        srd_rest()
        ctl_setup()
    o("    s_add_u32 s%d, s8, s%d" % (NXT_D, S_T))
    o("    s_addc_u32 s%d, s9, 0" % (NXT_D + 1))
    o("    s_mov_b32 s%d, s12" % NXT_P)
    o("    s_mov_b32 s%d, s13" % (NXT_P + 1))
    o("    s_add_u32 s%d, s4, s%d" % (SRD_Q, S_T + 1))
    o("    s_addc_u32 s%d, s5, 0" % (SRD_Q + 1))
    o("    s_add_u32 s%d, s14, s%d" % (SRD_O, S_T + 1))
    o("    s_addc_u32 s%d, s15, 0" % (SRD_O + 1))
    def load_q(vx, vy, va, st):
        o("    v_lshlrev_b32 v%d, 8, v%d" % (va, vx))
        o("    v_lshl_add_u32 v%d, v%d, 6, v%d" % (va, vy, va))
        o("    s_lshr_b32 s%d, s%d, 1" % (st, S_WAVE))
        o("    s_lshl_b32 s%d, s%d, %d" % (st, st, QSH))
        if hf >= 0:
            o("    s_xor_b32 s%d, s%d, s%d" % (st, st, S_FL))
        for s in range(4):
            o("    buffer_load_dwordx4 a[%d:%d], v%d, s[%d:%d], s%d offen offset:%d" %
              (A_Q + 4 * s, A_Q + 4 * s + 3, va, SRD_Q, SRD_Q + 3, st, 16 * s))

    if qm == 0:
        load_q(V_X, V_Y, V_PW, S_T + 2)
    elif qm == 1:
        o("    s_bitcmp1_b32 s%d, 0" % S_WAVE)
        o("    s_cbranch_scc1 L_noq")
        load_q(V_X, V_Y, V_PW, S_T + 2)
        o("L_noq:")
    def warm_proj():
        o("    s_bfe_u32 s%d, s2, 0x50003" % (S_T + 2))
        o("    s_lshl_b32 s%d, s%d, 2" % (S_T + 2, S_T + 2))
        o("    s_add_u32 s%d, s%d, s%d" % (S_T + 2, S_T + 2, S_WAVE))
        o("    s_lshl_b32 s%d, s%d, 10" % (S_T + 2, S_T + 2))
        o("    v_lshlrev_b32 v%d, 4, v%d" % (V_PW, V_LANE))
        o("    v_add_u32 v%d, s%d, v%d" % (V_PW, S_T + 2, V_PW))
        if ew & 1:
            o("    global_load_dwordx4 v[%d:%d], v%d, s[10:11] %s" % (V_DEF, V_DEF + 3, V_PW, ewf))
        if ew & 2:
            o("    global_load_dwordx4 v[%d:%d], v%d, s[12:13] %s" % (V_DEF, V_DEF + 3, V_PW, ewf))

    if sl >= 0:
        o("    s_cmp_lt_u32 s2, %d" % ns)
        o("    s_cbranch_scc0 L_nosr")
        o("    s_cmp_eq_u32 s%d, 1" % S_WAVE)
        o("    s_cbranch_scc0 L_nosr")
        o("    v_mov_b32 v%d, s%d" % (V_BV - 3, S_TM))
        o("    v_mov_b32 v%d, 0x100" % (V_BV - 2))
        o("    v_mov_b32 v%d, 0" % (V_BV - 4))
        o("    s_mov_b64 exec, 1")
        o("    global_atomic_add_x2 v%d, v[%d:%d], s[%d:%d] %s" % (V_BV - 4, V_BV - 3, V_BV - 2, abase, abase + 1, aflags))
        o("    s_mov_b64 exec, -1")
        o("L_nosr:")
    if ew:
        assert defer and qm != 2
        warm_proj()
    if tw:
        assert defer
        o("    v_and_b32 v%d, 3, v%d" % (V_PW, V_LANE))
        o("    v_lshlrev_b32 v%d, 19, v%d" % (V_PW, V_PW))
        o("    s_cmp_eq_u32 s%d, 1" % S_WAVE)
        o("    s_cbranch_scc0 L_tw1")
        o("    global_load_dword v%d, v%d, s[%d:%d]" % (V_DEF, V_PW, NXT_D, NXT_D + 1))
        o("L_tw1:")
        o("    s_cmp_eq_u32 s%d, 3" % S_WAVE)
        o("    s_cbranch_scc0 L_tw3")
        o("    v_mov_b32 v%d, 0" % V_PW)
        o("    buffer_load_dword v%d, v%d, s[%d:%d], 0 offen" % (V_DEF, V_PW, SRD_O, SRD_O + 3))
        o("    global_load_dword v%d, v%d, s[12:13]" % (V_DEF + 1, V_PW))
        o("L_tw3:")
    o("    v_lshlrev_b32 v%d, 8, v%d" % (V_OUT, V_X))
    o("    v_lshl_add_u32 v%d, v%d, 4, v%d" % (V_OUT, V_Y, V_OUT))
    o("    s_lshl_b32 s%d, s%d, 6" % (S_T + 2, S_WAVE))
    o("    v_add_u32 v%d, s%d, v%d" % (V_OUT, S_T + 2, V_OUT))
    o("    v_and_b32 v%d, 3, v%d" % (V_VR, V_X))
    o("    v_mul_u32_u24 v%d, %d, v%d" % (V_VR, DS, V_VR))
    o("    v_lshrrev_b32 v%d, 2, v%d" % (V_X, V_X))
    o("    v_lshl_add_u32 v%d, v%d, 4, v%d" % (V_X, V_Y, V_X))
    o("    v_lshl_add_u32 v%d, v%d, 4, v%d" % (V_VR, V_X, V_VR))
    o("    s_lshl_b32 s%d, s%d, 6" % (S_T + 2, S_WAVE))
    o("    s_add_u32 s%d, s%d, %d" % (S_T + 2, S_T + 2, LDS_VP))
    o("    v_add_u32 v%d, s%d, v%d" % (V_VR, S_T + 2, V_VR))
    o("    v_lshlrev_b32 v%d, 4, v%d" % (V_X, V_LANE))
    o("    s_mul_i32 s%d, s%d, %d" % (S_T + 2, S_WAVE, WS))
    o("    s_add_u32 s%d, s%d, %d" % (S_T + 2, S_T + 2, LDS_KP))
    o("    v_add_u32 v%d, s%d, v%d" % (V_PW, S_T + 2, V_X))
    for j in range(32):
        o("    v_mov_b32 v%d, 0" % (ACC + j))


    def allowed(n, req, e_done):
        cnt = n - 1 - req
        for qq in range(0, n // 2 + 1):
            if qq % 4 == 0 and 2 * qq >= req and (qq < n // 2 or e_done):
                cnt += NE
        return cnt

    def wait_of(m, p, h, extra=0):
        q = p + LA
        n = 2 * q + h
        N, gr = int(m[:-1]), m[-1]
        if gr == "p":
            if h == 1:
                return None
            req = n - N + 1
        else:
            req = n - N
        if h == 0:
            req = max(req, 2 * p + 1)
        elif req <= 2 * p + 1:
            return None
        big = 8000
        return allowed(n + big, req + big, h == 1) + (extra if req <= 7 else 0)

    def decide(tag):
        T0 = S_T + 6
        o("    s_waitcnt lgkmcnt(0)")
        if not noev:
            o("    s_cmp_eq_u32 s%d, s%d" % (S_PROG, S_RP))
            o("    s_cbranch_scc1 L_rp_%s" % tag)
            o("L_rpr_%s:" % tag)
            o("    s_cmp_eq_u32 s%d, s%d" % (S_PROG, S_EV))
            o("    s_cbranch_scc1 L_ev_%s" % tag)
        o("L_evr_%s:" % tag)
        if trace:
            o("    s_mov_b32 m0, s%d" % S_PROG)
            o("    s_nop 0")
            o("    v_writelane_b32 v%d, s%d, m0" % (V_BV, S_NOW))
        o("    s_sub_u32 s%d, s%d, s%d" % (T0, S_NOW, S_TM))
        o("    s_lshl_b32 s%d, s%d, 6" % (T0, T0))
        o("    s_sub_u32 s%d, s%d, s%d" % (T0, T0, S_ACC))
        o("    s_add_u32 s%d, s%d, s%d" % (S_ACC, S_ACC, S_INC))
        o("    s_add_u32 s%d, s%d, 1" % (S_PROG, S_PROG))
        if force < 0 and tag == "post" and pdec != 1:
            if pdec == 0:
                o("    s_mov_b32 s%d, 0" % S_MODE)
        elif force < 0:
            if eg:
                o("    s_cmp_eq_u32 s%d, %d" % (S_PROG, 64 - eg))
                o("    s_cselect_b32 s%d, %d, 0" % (T0 + 1, egs))
                o("    s_ashr_i32 s%d, s%d, s%d" % (S_THI, S_THI, T0 + 1))
                if mm2:
                    o("    s_ashr_i32 s82, s82, s%d" % (T0 + 1))
            if mm2:
                o("    s_cmp_gt_i32 s%d, s82" % T0)
                o("    s_cselect_b32 s%d, 4, 0" % S_MODE)
                o("    s_cmp_gt_i32 s%d, s%d" % (T0, S_THI))
                o("    s_cselect_b32 s%d, 1, s%d" % (S_MODE, S_MODE))
            else:
                o("    s_cmp_gt_i32 s%d, s%d" % (T0, S_THI))
                o("    s_cselect_b32 s%d, 1, 0" % S_MODE)
            o("    s_cmp_lt_i32 s%d, s%d" % (T0, S_TLO))
            o("    s_cselect_b32 s%d, 2, s%d" % (S_MODE, S_MODE))
        if tail:
            o("    s_cmp_ge_u32 s%d, %d" % (S_PROG, 64 - tail))
            o("    s_cselect_b32 s%d, 1, s%d" % (S_MODE, S_MODE))
        if fin:
            o("    s_cmp_eq_u32 s%d, %d" % (S_PROG, 64 - fin))
            o("    s_cselect_b32 s%d, 3, s%d" % (S_MODE, S_MODE))
        if stamp:
            o("    s_and_b32 s%d, s%d, 1" % (T0, S_MODE))
            o("    s_add_u32 s%d, s%d, s%d" % (S_HI, S_HI, T0))
            o("    s_and_b32 s%d, s%d, 2" % (T0, S_MODE))
            o("    s_lshl_b32 s%d, s%d, 7" % (T0, T0))
            o("    s_add_u32 s%d, s%d, s%d" % (S_HI, S_HI, T0))
        events.append(tag)

    def decide_half(tag):
        T0 = S_T + 6
        o("    s_waitcnt lgkmcnt(0)")
        o("    s_sub_u32 s%d, s%d, s%d" % (T0, S_NOW, S_TM))
        o("    s_lshl_b32 s%d, s%d, 6" % (T0, T0))
        o("    s_sub_u32 s%d, s%d, s%d" % (T0, T0, S_ACC))
        o("    s_ashr_i32 s%d, s%d, 1" % (T0 + 1, S_INC))
        o("    s_add_u32 s%d, s%d, s%d" % (T0, T0, T0 + 1))
        if mm2:
            o("    s_cmp_gt_i32 s%d, s82" % T0)
            o("    s_cselect_b32 s%d, 4, 0" % S_MODE)
            o("    s_cmp_gt_i32 s%d, s%d" % (T0, S_THI))
            o("    s_cselect_b32 s%d, 1, s%d" % (S_MODE, S_MODE))
        else:
            o("    s_cmp_gt_i32 s%d, s%d" % (T0, S_THI))
            o("    s_cselect_b32 s%d, 1, 0" % S_MODE)
        o("    s_cmp_lt_i32 s%d, s%d" % (T0, S_TLO))
        o("    s_cselect_b32 s%d, 2, s%d" % (S_MODE, S_MODE))
        if stamp:
            o("    s_and_b32 s%d, s%d, 1" % (T0, S_MODE))
            o("    s_add_u32 s%d, s%d, s%d" % (S_HI, S_HI, T0))
            o("    s_and_b32 s%d, s%d, 2" % (T0, S_MODE))
            o("    s_lshl_b32 s%d, s%d, 7" % (T0, T0))
            o("    s_add_u32 s%d, s%d, s%d" % (S_HI, S_HI, T0))

    def emit_events():
        T0, T1 = S_T + 6, S_T + 7
        for tag in events:
            if noev:
                continue
            o("L_rp_%s:" % tag)
            o("    v_mov_b32 v%d, s%d" % (V_BV - 3, S_NOW))
            o("    v_mov_b32 v%d, 0x100" % (V_BV - 2))
            o("    s_mov_b64 exec, 1")
            if doat and akind == "atomic":
                o("    global_atomic_add_x2 v%d, v[%d:%d], s[%d:%d] %s" % (V_BO, V_BV - 3, V_BV - 2, abase, abase + 1, aflags))
            elif doat and akind == "store":
                o("    global_store_dwordx2 v%d, v[%d:%d], s[%d:%d] %s" % (V_BO, V_BV - 3, V_BV - 2, abase, abase + 1, aflags))
            elif doat and akind == "load":
                o("    global_load_dwordx2 v[%d:%d], v%d, s[%d:%d] %s" % (V_BV - 3, V_BV - 2, V_BO, abase, abase + 1, aflags))
            o("    s_mov_b64 exec, -1")
            o("    s_branch L_rpr_%s" % tag)
            o("L_ev_%s:" % tag)
            if nom:
                assert j0 + 1 < cal[1] + lag
                o("    s_cmp_eq_u32 s%d, %d" % (S_EV, j0))
                o("    s_cbranch_scc1 L_evl0_%s" % tag)
                o("    s_cmp_eq_u32 s%d, %d" % (S_EV, j0 + 1))
                o("    s_cbranch_scc1 L_evc0_%s" % tag)
            for k in range(1, len(cal)):
                o("    s_cmp_eq_u32 s%d, %d" % (S_EV, cal[k] + lag))
                o("    s_cbranch_scc1 L_evl%d_%s" % (k, tag))
                o("    s_cmp_eq_u32 s%d, %d" % (S_EV, cal[k] + lag + 1))
                o("    s_cbranch_scc1 L_evc%d_%s" % (k, tag))
            o("    s_branch L_evr_%s" % tag)
            if nom:
                jr = j0
                o("L_evl0_%s:" % tag)
                o("    s_load_dwordx2 s[%d:%d], s[16:17], %d" % (S_C1, S_C1 + 1, 0 if sl >= 0 else SLOT[0]))
                o("    s_mov_b32 s%d, %d" % (S_EV, jr + 1))
                o("    s_branch L_evr_%s" % tag)
                o("L_evc0_%s:" % tag)
                o("    s_mov_b32 s%d, %d" % (S_EV, cal[1] + lag))
                o("    s_lshr_b64 s[%d:%d], s[%d:%d], %d" % (S_C1, S_C1 + 1, S_C1, S_C1 + 1, nsh))
                o("    s_cmp_lg_u32 s%d, 256" % (S_C1 + 1))
                o("    s_cbranch_scc1 L_evr_%s" % tag)
                if stamp:
                    o("    s_add_u32 s%d, s%d, 0x10000" % (S_HI, S_HI))
                T1n = 16 * nom
                if sl >= 0:
                    o("    s_sub_u32 s%d, s%d, s%d" % (T0, S_TM, S_C1))
                    o("    s_mul_i32 s%d, s%d, %d" % (T0, T0, sl))
                    o("    s_sub_u32 s%d, s%d, s%d" % (S_INC, S_INC, T0))
                else:
                    o("    s_mov_b32 s%d, s%d" % (S_TM, S_C1))
                    o("    s_mov_b32 s%d, %d" % (S_INC, 4 * T1n))
                    o("    s_mov_b32 s%d, %d" % (S_ACC, T1n * (4 * (jr + 1) - (4 * cal[0] + 2 * st2) + delta)))
                    if dl8 or dh8:
                        o("    s_mov_b32 s%d, %d" % (S_THI, (T1n * (dh8 or 8 * dhi)) >> 3))
                        o("    s_mov_b32 s%d, %d" % (S_TLO, (-T1n * dl8) >> 3))
                    else:
                        o("    s_mov_b32 s%d, %d" % (S_THI, (T1n * dhi) >> tsh))
                        o("    s_mov_b32 s%d, %d" % (S_TLO, (-T1n * dlo) >> tsh))
                    if mm2:
                        o("    s_mov_b32 s82, %d" % ((T1n * dhi) >> (tsh + m2s)))
                o("    s_branch L_evr_%s" % tag)
            for k in range(1, len(cal)):
                jr = cal[k] + lag
                span = 16 if (k == 1 and n1) else cal[k] - cal[k - 1]
                assert span in (8, 16)
                o("L_evl%d_%s:" % (k, tag))
                if k == 1 and dold and not n1:
                    o("    s_load_dwordx2 s[%d:%d], s[16:17], %d" % (S_C1, S_C1 + 1, SLOT[0]))
                if dold:
                    o("    s_load_dwordx2 s[%d:%d], s[16:17], %d" % (S_C2, S_C2 + 1, SLOT[k]))
                o("    s_mov_b32 s%d, %d" % (S_EV, jr + 1))
                o("    s_branch L_evr_%s" % tag)
                o("L_evc%d_%s:" % (k, tag))
                o("    s_mov_b32 s%d, %s" % (S_EV, "0x7fffffff" if k == len(cal) - 1 else str(cal[k + 1] + lag)))
                if k == 1 and not n1:
                    o("    s_lshr_b64 s[%d:%d], s[%d:%d], %d" % (S_C1, S_C1 + 1, S_C1, S_C1 + 1, nsh))
                o("    s_lshr_b64 s[%d:%d], s[%d:%d], %d" % (S_C2, S_C2 + 1, S_C2, S_C2 + 1, nsh))
                if k == 1 and n1:
                    o("    s_mov_b32 s%d, s%d" % (T0, S_C2 + 1))
                    o("    s_mov_b32 s%d, %d" % (T1, 16 * n1))
                else:
                    o("    s_and_b32 s%d, s%d, s%d" % (T0, S_C1 + 1, S_C2 + 1))
                    o("    s_sub_u32 s%d, s%d, s%d" % (T1, S_C2, S_C1))
                o("    s_mov_b32 s%d, s%d" % (S_C1, S_C2))
                o("    s_mov_b32 s%d, s%d" % (S_C1 + 1, S_C2 + 1))
                o("    s_cmp_lg_u32 s%d, 256" % T0)
                o("    s_cbranch_scc1 L_evr_%s" % tag)
                if stamp:
                    o("    s_add_u32 s%d, s%d, 0x10000" % (S_HI, S_HI))
                if span == 8:
                    o("    s_lshl_b32 s%d, s%d, 1" % (T1, T1))
                o("    s_mov_b32 s%d, s%d" % (S_TM, S_C1))
                o("    s_lshl_b32 s%d, s%d, 2" % (S_INC, T1))
                o("    s_mul_i32 s%d, s%d, %d" % (S_ACC, T1, 4 * (jr + 1) - (4 * cal[k] + 2 * st2) + delta))
                if dl8 or dh8:
                    o("    s_mul_i32 s%d, s%d, %d" % (S_THI, T1, dh8 or 8 * dhi))
                    o("    s_mul_i32 s%d, s%d, %d" % (S_TLO, T1, -dl8))
                    o("    s_ashr_i32 s%d, s%d, 3" % (S_THI, S_THI))
                    o("    s_ashr_i32 s%d, s%d, 3" % (S_TLO, S_TLO))
                else:
                    o("    s_mul_i32 s%d, s%d, %d" % (S_THI, T1, dhi))
                    o("    s_mul_i32 s%d, s%d, %d" % (S_TLO, T1, -dlo))
                if tsh:
                    o("    s_ashr_i32 s%d, s%d, %d" % (S_THI, S_THI, tsh))
                    o("    s_ashr_i32 s%d, s%d, %d" % (S_TLO, S_TLO, tsh))
                if mm2:
                    o("    s_ashr_i32 s82, s%d, %d" % (S_THI, m2s))
                if eps:
                    o("    s_mul_i32 s%d, s%d, %d" % (T0, T1, eps))
                    o("    s_ashr_i32 s%d, s%d, 6" % (T0, T0))
                    o("    s_sub_u32 s%d, s%d, s%d" % (S_INC, S_INC, T0))
                o("    s_branch L_evr_%s" % tag)

    def round_mfma(s, zero=False):
        if esplit:
            r = V_ER + (s % ER) * 4
            for t in range(2):
                o("    v_perm_b32 v%d, v%d, v%d, s%d" % (V_EA + 2 * t, r + 2 + t, r + t, S_SELLO))
                o("    v_perm_b32 v%d, v%d, v%d, s%d" % (V_EA + 2 * t + 1, r + 2 + t, r + t, S_SELHI))
            e = "v[%d:%d]" % (V_EA, V_EA + 3)
        else:
            e = "a[%d:%d]" % (A_E + (s % ER) * 4, A_E + (s % ER) * 4 + 3)
        o("    s_nop 1")
        for dd in range(8):
            acc = ACC + dd * 4
            o("    v_mfma_f32_16x16x32_bf16 v[%d:%d], %s, v[%d:%d], %s" %
              (acc, acc + 3, e, T + dd * 4, T + dd * 4 + 3, "0" if zero else "v[%d:%d]" % (acc, acc + 3)))

    def xlane(op, reg, tmp):
        for sw in ("v_permlane32_swap_b32", "v_permlane16_swap_b32"):
            o("    v_mov_b32 v%d, v%d" % (tmp, reg))
            o("    s_nop 1")
            o("    %s v%d, v%d" % (sw, reg, tmp))
            o("    s_nop 1")
            o("    %s v%d, v%d, v%d" % (op, reg, reg, tmp))

    def k_read(dst, w):
        for dd in range(8):
            o("    ds_read_b128 v[%d:%d], v%d offset:%d" %
              (dst + 4 * dd, dst + 4 * dd + 3, V_X, LDS_KP + w * WS + dd * DS))

    def k_add(SUM, TMP):
        for j in range(32):
            o("    v_add_f32 v%d, v%d, v%d" % (SUM + j, SUM + j, TMP + j))

    def k_transpose(SUM, TMP):
        PA = MISC
        for dd in range(8):
            o("    v_cvt_pk_bf16_f32 v%d, v%d, v%d" % (PA + 2 * dd, SUM + 4 * dd, SUM + 4 * dd + 1))
            o("    v_cvt_pk_bf16_f32 v%d, v%d, v%d" % (PA + 2 * dd + 1, SUM + 4 * dd + 2, SUM + 4 * dd + 3))
        ID = MISC + 16
        o("    v_and_b32 v%d, 15, v%d" % (V_X, V_LANE))
        o("    v_lshrrev_b32 v%d, 4, v%d" % (V_Y, V_LANE))
        o("    v_lshlrev_b32 v%d, 2, v%d" % (V_Y, V_Y))
        o("    v_sub_u32 v%d, v%d, v%d" % (V_X, V_X, V_Y))
        o("    v_mov_b32 v%d, 0" % ID)
        o("    v_mov_b32 v%d, 0" % (ID + 1))
        o("    v_mov_b32 v%d, 0x3f80" % (ID + 2))
        o("    v_mov_b32 v%d, 0x3f800000" % (ID + 3))
        for j, (dst, src) in enumerate(((ID, ID + 2), (ID, ID + 3), (ID + 1, ID + 2), (ID + 1, ID + 3))):
            o("    v_cmp_eq_u32 vcc, %d, v%d" % (j, V_X))
            o("    s_nop 1")
            o("    v_cndmask_b32 v%d, v%d, v%d, vcc" % (dst, dst, src))
        o("    s_nop 1")
        for dd in range(8):
            o("    v_mfma_f32_16x16x16_bf16 v[%d:%d], v[%d:%d], v[%d:%d], 0" %
              (TMP + 4 * dd, TMP + 4 * dd + 3, PA + 2 * dd, PA + 2 * dd + 1, ID, ID + 1))

    def k_scores(SUM, TMP):
        PB = SUM
        o("    s_nop 7")
        for s_ in range(4):
            for j in range(4):
                o("    v_cvt_pk_bf16_f32 v%d, v%d, v%d" %
                  (PB + 4 * s_ + j, TMP + (2 * j) * 4 + s_, TMP + (2 * j + 1) * 4 + s_))
        SC = SUM + 16
        o("    s_nop 1")
        for s_ in range(4):
            c = "0" if s_ == 0 else "v[%d:%d]" % (SC, SC + 3)
            o("    v_mfma_f32_16x16x32_bf16 v[%d:%d], v[%d:%d], a[%d:%d], %s" %
              (SC, SC + 3, PB + 4 * s_, PB + 4 * s_ + 3, A_Q + 4 * s_, A_Q + 4 * s_ + 3, c))

    def k_softmax(SUM):
        SC, W, M = SUM + 16, SUM + 20, SUM + 22
        o("    s_mov_b32 s%d, 0x3db504f3" % (S_T + 2))
        o("    s_mov_b32 s%d, 0x3fb8aa3b" % (S_T + 3))
        o("    s_nop 7")

        def rb():
            o("    v_cvt_pk_bf16_f32 v%d, v%d, v%d" % (W, SC, SC + 1))
            o("    v_cvt_pk_bf16_f32 v%d, v%d, v%d" % (W + 1, SC + 2, SC + 3))
            o("    v_lshlrev_b32 v%d, 16, v%d" % (SC, W))
            o("    v_and_b32 v%d, 0xffff0000, v%d" % (SC + 1, W))
            o("    v_lshlrev_b32 v%d, 16, v%d" % (SC + 2, W + 1))
            o("    v_and_b32 v%d, 0xffff0000, v%d" % (SC + 3, W + 1))

        rb()
        for i in range(4):
            o("    v_mul_f32 v%d, s%d, v%d" % (SC + i, S_T + 2, SC + i))
        rb()
        o("    v_max_f32 v%d, v%d, v%d" % (M, SC, SC + 1))
        o("    v_max3_f32 v%d, v%d, v%d, v%d" % (M, SC + 2, SC + 3, M))
        xlane("v_max_f32", M, M + 1)
        for i in range(4):
            o("    v_sub_f32 v%d, v%d, v%d" % (SC + i, SC + i, M))
        for i in range(4):
            o("    v_mul_f32 v%d, s%d, v%d" % (SC + i, S_T + 3, SC + i))
        for i in range(4):
            o("    v_exp_f32 v%d, v%d" % (SC + i, SC + i))
        o("    s_nop 0")
        o("    v_add_f32 v%d, v%d, v%d" % (M, SC, SC + 1))
        o("    v_add_f32 v%d, v%d, v%d" % (M + 1, SC + 2, SC + 3))
        o("    v_add_f32 v%d, v%d, v%d" % (M, M, M + 1))
        xlane("v_add_f32", M, M + 1)
        o("    v_rcp_f32 v%d, v%d" % (M, M))
        o("    s_nop 0")
        for i in range(4):
            o("    v_mul_f32 v%d, v%d, v%d" % (SC + i, SC + i, M))
        o("    v_cvt_pk_bf16_f32 v%d, v%d, v%d" % (W, SC, SC + 1))
        o("    v_cvt_pk_bf16_f32 v%d, v%d, v%d" % (W + 1, SC + 2, SC + 3))
        o("    v_lshlrev_b32 v%d, 3, v%d" % (V_X, V_LANE))
        o("    ds_write_b64 v%d, v[%d:%d] offset:%d" % (V_X, W, W + 1, LDS_P))

    def v_read(X):
        o("    v_lshlrev_b32 v%d, 3, v%d" % (V_X, V_LANE))
        o("    ds_read_b64 v[%d:%d], v%d offset:%d" % (MISC, MISC + 1, V_X, LDS_P))
        for w in range(4):
            for h in range(2):
                r = X + (w * 2 + h) * 4
                o("    ds_read_b128 v[%d:%d], v%d offset:%d" % (r, r + 3, V_VR, w * WS + h * 4 * DS))

    def v_prod(X):
        for j in range(8):
            o("    v_add_f32 v%d, v%d, v%d" % (X + j, X + j, X + 8 + j))
        for j in range(8):
            o("    v_add_f32 v%d, v%d, v%d" % (X + 16 + j, X + 16 + j, X + 24 + j))
        for j in range(8):
            o("    v_add_f32 v%d, v%d, v%d" % (X + j, X + j, X + 16 + j))
        VB = MISC + 4
        for h in range(2):
            o("    v_cvt_pk_bf16_f32 v%d, v%d, v%d" % (VB + 2 * h, X + 4 * h, X + 4 * h + 1))
            o("    v_cvt_pk_bf16_f32 v%d, v%d, v%d" % (VB + 2 * h + 1, X + 4 * h + 2, X + 4 * h + 3))
        o("    s_nop 1")
        for h in range(2):
            o("    v_mfma_f32_16x16x16_bf16 v[%d:%d], v[%d:%d], v[%d:%d], 0" %
              (X + 16 + 4 * h, X + 16 + 4 * h + 3, VB + 2 * h, VB + 2 * h + 1, MISC, MISC + 1))

    def ih_piece(kind, p):
        k = p - ihp
        if kind == "K" and 0 <= k < 6:
            o("    s_cmp_lg_u32 s%d, s%d" % (S_WAVE, S_PMI))
            o("    s_cbranch_scc1 L_ihs%d" % p)
            if k == 0:
                o("    v_lshlrev_b32 v%d, 4, v%d" % (V_X, V_LANE))
                k_read(V_S2, 0)
                k_read(V_T2, 1)
            elif k in (1, 2):
                o("    s_waitcnt lgkmcnt(0)")
                k_add(V_S2, V_T2)
                k_read(V_T2, k + 1)
            elif k == 3:
                o("    s_waitcnt lgkmcnt(0)")
                k_add(V_S2, V_T2)
                k_transpose(V_S2, V_T2)
            elif k == 4:
                k_scores(V_S2, V_T2)
            else:
                k_softmax(V_S2)
            o("L_ihs%d:" % p)
        if kind == "V":
            if k == 0:
                v_read(V_T2)
            elif k == 1:
                o("    s_waitcnt lgkmcnt(0)")
                v_prod(V_T2)
            elif k == 2:
                o("    s_nop 7")
                for i in range(4):
                    o("    v_cvt_pk_bf16_f32 v%d, v%d, v%d" % (V_DEF + i, V_T2 + 16 + 2 * i, V_T2 + 16 + 2 * i + 1))

    S_PMI = 63

    def body(mode, m, post=False, extra=0, kind=""):
        o("L_body_%s:" % mode)
        for p in range(8):
            s, a = divmod(p, 4)
            q = p + LA
            if half and p == 4 and not post:
                for code, other in ((0, "mid"), (1, "hi"), (2, "lo"), (4, "mi2")):
                    if other != mode and other != "mid" and (other != "mi2" or mm2):
                        o("    s_cmp_eq_u32 s%d, %d" % (S_MODE, code))
                        o("    s_cbranch_scc1 L_bodyB_%s" % other)
                if mode != "mid":
                    o("    s_cmp_eq_u32 s%d, 0" % S_MODE)
                    o("    s_cbranch_scc1 L_bodyB_mid")
                o("L_bodyB_%s:" % mode)
            if p == 0 and not post:
                step_inc()
                eoff()
            if p == 4:
                step_inc()
                if not post and not kind:
                    o("    s_cmp_eq_u32 s%d, 1" % S_CNT)
                    o("    s_cbranch_scc1 L_sw_%s" % mode)
                    o("L_swr_%s:" % mode)
                    stubs.append(mode)
                eoff()
            if kind and p == ihp:
                assert p in wsyl
                o("    s_waitcnt lgkmcnt(0)")
            if p in wsyl and not post:
                if wskip:
                    o("    s_cmp_ge_u32 s%d, %d" % (S_CNT, 16 - wskip))
                    o("    s_cbranch_scc1 L_nb%d_%s" % (p, mode))
                    o("    s_barrier")
                    o("L_nb%d_%s:" % (p, mode))
                else:
                    o("    s_barrier")
            if ctl and p == pc and pre:
                decide(mode)
                if ps == pc and not notime:
                    o("    s_memrealtime s[%d:%d]" % (S_NOW, S_NOW + 1))
            if post and p < 4:
                younger = 15 - (2 * p + 1) + NE
                o("    s_waitcnt vmcnt(%d)" % younger)
                if pst and not pro8 and p in (0, 3):
                    o("    s_cmp_eq_u32 s%d, 0" % S_MI)
                    o("    s_cbranch_scc0 L_nopst%d" % p)
                    pstp(4 if p == 0 else 5)
                    o("L_nopst%d:" % p)
            else:
                for h in range(2):
                    w = wait_of(m, p, h, extra)
                    if w is not None:
                        o("    s_waitcnt vmcnt(%d)" % w)
                    if h == 0 and q % 4 == 0:
                        issue_one(2 * q)
                        issue_E(q // 4)
                    else:
                        issue_one(2 * q + h)
                if pst and pro8 and p in (0, 3):
                    o("    s_cmp_eq_u32 s%d, 0" % S_PROG)
                    o("    s_cbranch_scc0 L_nopst%d_%s" % (p, mode))
                    pstp(4 if p == 0 else 5)
                    o("L_nopst%d_%s:" % (p, mode))
            if half:
                if p == 4 or (p == 0 and not post):
                    o("    s_memrealtime s[%d:%d]" % (S_NOW, S_NOW + 1))
                if p == hca and not post:
                    decide_half(mode)
                if p == hcb:
                    decide(mode)
            else:
                if ctl and p == ps and ps != pc and not notime:
                    o("    s_memrealtime s[%d:%d]" % (S_NOW, S_NOW + 1))
                if ctl and p == pc and not pre:
                    decide(mode)
                    if ps == pc and not notime:
                        o("    s_memrealtime s[%d:%d]" % (S_NOW, S_NOW + 1))
            if kind:
                ih_piece(kind, p)
            slot = p % (4 * RS)
            xb = RING + slot * 8
            yb = xb + 4
            for c in range(4):
                o("    v_perm_b32 v%d, v%d, v%d, s%d" % (T + (2 * c) * 4 + a, yb + c, xb + c, S_SELLO))
                o("    v_perm_b32 v%d, v%d, v%d, s%d" % (T + (2 * c + 1) * 4 + a, yb + c, xb + c, S_SELHI))
            if a == 3:
                round_mfma(s, zero=bool(kind) and s == 0)
        o("    s_sub_u32 s%d, s%d, 1" % (S_CNT, S_CNT))
        if not post and not kind:
            o("    s_cmp_eq_u32 s%d, 0" % S_CNT)
            o("    s_cbranch_scc1 L_matend")

    def body_fin():
        o("L_body_fin:")
        step_inc()
        eoff()
        issue_one(8)
        issue_E(1)
        for n in range(9, 16):
            issue_one(n)
        for p in range(8):
            s, a = divmod(p, 4)
            younger = 15 - (2 * p + 1) + (NE if p < 4 else 0)
            o("    s_waitcnt vmcnt(%d)" % younger)
            xb = RING + p * 8
            yb = xb + 4
            for c in range(4):
                o("    v_perm_b32 v%d, v%d, v%d, s%d" % (T + (2 * c) * 4 + a, yb + c, xb + c, S_SELLO))
                o("    v_perm_b32 v%d, v%d, v%d, s%d" % (T + (2 * c + 1) * 4 + a, yb + c, xb + c, S_SELHI))
            if a == 3:
                round_mfma(s)
        o("    s_branch L_matend")

    pstp(3)
    if pro8 and bp:
        o("    s_mov_b32 s%d, 16" % S_CNT)
        if m0:
            o("    s_mov_b32 s%d, %d" % (S_MODE, m0))
        if mfirst:
            assert qm in (0, 1)
            if qm == 1:
                o("    s_bitcmp1_b32 s%d, 0" % S_WAVE)
                o("    s_cbranch_scc1 L_dispatch")
            o("    s_branch L_body_first")
        else:
            o("    s_branch L_dispatch")
    o("L_outer:")
    o("    s_mov_b32 s%d, 16" % S_CNT)
    if bp:
        o("; first iteration of a matrix: both rounds were issued ahead of the previous handler")
        body("post", mpost or mmid, post=True)
    o("; body selection by window mode: 0 mid, 1 hi, 2 lo, 3 last iteration")
    o("L_dispatch:")
    modes = [("mid", mmid)]
    if (ctl and force < 0) or force == 1 or tail:
        modes.append(("hi", mhi))
        o("    s_cmp_eq_u32 s%d, 1" % S_MODE)
        o("    s_cbranch_scc1 L_body_hi")
    if (ctl and force < 0) or force == 2:
        modes.append(("lo", mlo))
        o("    s_cmp_eq_u32 s%d, 2" % S_MODE)
        o("    s_cbranch_scc1 L_body_lo")
    if mm2:
        modes.append(("mi2", mm2))
        o("    s_cmp_eq_u32 s%d, 4" % S_MODE)
        o("    s_cbranch_scc1 L_body_mi2")
    if fin:
        assert ctl
        o("    s_cmp_eq_u32 s%d, 3" % S_MODE)
        o("    s_cbranch_scc1 L_body_fin")
    for mode, m in modes:
        body(mode, m)
        o("    s_branch L_dispatch")
    if mfirst:
        body("first", mfirst, extra=4)
        o("    s_branch L_dispatch")
    if fin:
        body_fin()
    o("L_matend:")
    if ih:
        assert bp and defer and fin and ihp <= 2 and not half and not esplit and hf < 0
        o("    s_cmp_eq_u32 s%d, 3" % S_MI)
        o("    s_cbranch_scc1 L_final")
        o("    s_and_b32 s%d, s%d, 1" % (S_T, S_MI))
        o("    s_mul_i32 s%d, s%d, %d" % (S_T + 1, S_T, 4 * WS))
        o("    v_add_u32 v%d, s%d, v%d" % (V_X, S_T + 1, V_PW))
        o("    s_mov_b32 s%d, s%d" % (S_PMI, S_MI))
        o("    s_add_u32 s%d, s%d, 1" % (S_MI, S_MI))
        o("    s_mov_b32 s%d, 16" % S_CNT)
        o("    s_nop 7")
        for dd in range(8):
            o("    ds_write_b128 v%d, v[%d:%d] offset:%d" % (V_X, ACC + 4 * dd, ACC + 4 * dd + 3, dd * DS))
        o("    s_cmp_eq_u32 s%d, 1" % S_T)
        o("    s_cbranch_scc1 L_body_ihV")
        body("ihK", mih or mmid, kind="K")
        o("    s_branch L_dispatch")
        body("ihV", mih or mmid, kind="V")
        o("    s_branch L_dispatch")
        o("; last matrix: reduction, product and both stores")
        o("L_final:")
        o("    v_add_u32 v%d, %d, v%d" % (V_X, 4 * WS, V_PW))
        o("    s_nop 7")
        o("    s_waitcnt lgkmcnt(0)")
        for dd in range(8):
            o("    ds_write_b128 v%d, v[%d:%d] offset:%d" % (V_X, ACC + 4 * dd, ACC + 4 * dd + 3, dd * DS))
        o("    s_waitcnt lgkmcnt(0)")
        o("    s_barrier")
        v_read(T)
        o("    s_waitcnt lgkmcnt(0)")
        v_prod(T)
        o("    s_nop 7")
        for i in range(4):
            o("    v_cvt_pk_bf16_f32 v%d, v%d, v%d" % (MISC + 8 + i, T + 16 + 2 * i, T + 16 + 2 * i + 1))
        o("    buffer_store_dwordx4 v[%d:%d], v%d, s[%d:%d], 0 offen %s" %
          (V_DEF, V_DEF + 3, V_OUT, SRD_O, SRD_O + 3, oflags))
        o("    s_mov_b32 s%d, 0x%x" % (S_T + 2, 1 << QSH))
        o("    buffer_store_dwordx4 v[%d:%d], v%d, s[%d:%d], s%d offen %s" %
          (MISC + 8, MISC + 11, V_OUT, SRD_O, SRD_O + 3, S_T + 2, oflags))
        o("    s_branch L_fin")
    if bp and not ih:
        o("    s_cmp_eq_u32 s%d, 3" % S_MI)
        o("    s_cbranch_scc1 L_nopf")
        step_inc()
        eoff()
        issue_one(8)
        issue_E(1)
        for n in range(9, 16):
            issue_one(n)
        o("L_nopf:")
    mark = len(L)
    o("    s_and_b32 s%d, s%d, 1" % (S_T, S_MI))
    o("    s_mul_i32 s%d, s%d, %d" % (S_T + 1, S_T, 4 * WS))
    o("    v_add_u32 v%d, s%d, v%d" % (V_X, S_T + 1, V_PW))
    o("    s_nop 7")
    if ctl:
        o("    s_waitcnt lgkmcnt(0)")
    for dd in range(8):
        o("    ds_write_b128 v%d, v[%d:%d] offset:%d" % (V_X, ACC + 4 * dd, ACC + 4 * dd + 3, dd * DS))
    o("    s_waitcnt lgkmcnt(0)")
    o("    s_barrier")
    o("    s_cmp_eq_u32 s%d, 1" % S_T)
    o("    s_cbranch_scc1 L_vend")
    o("    s_cmp_lg_u32 s%d, s%d" % (S_WAVE, S_MI))
    o("    s_cbranch_scc1 L_mat_done")
    SUM, TMP, PA = ACC, T, MISC
    o("    v_lshlrev_b32 v%d, 4, v%d" % (V_X, V_LANE))
    for w in range(4):
        dst = SUM if w == 0 else TMP
        for dd in range(8):
            o("    ds_read_b128 v[%d:%d], v%d offset:%d" %
              (dst + 4 * dd, dst + 4 * dd + 3, V_X, LDS_KP + w * WS + dd * DS))
        if w > 0:
            for dd in range(8):
                o("    s_waitcnt lgkmcnt(%d)" % (7 - dd))
                for i in range(4):
                    o("    v_add_f32 v%d, v%d, v%d" % (SUM + 4 * dd + i, SUM + 4 * dd + i, TMP + 4 * dd + i))
    for dd in range(8):
        o("    v_cvt_pk_bf16_f32 v%d, v%d, v%d" % (PA + 2 * dd, SUM + 4 * dd, SUM + 4 * dd + 1))
        o("    v_cvt_pk_bf16_f32 v%d, v%d, v%d" % (PA + 2 * dd + 1, SUM + 4 * dd + 2, SUM + 4 * dd + 3))
    ID = MISC + 16
    o("    v_and_b32 v%d, 15, v%d" % (V_X, V_LANE))
    o("    v_lshrrev_b32 v%d, 4, v%d" % (V_Y, V_LANE))
    o("    v_lshlrev_b32 v%d, 2, v%d" % (V_Y, V_Y))
    o("    v_sub_u32 v%d, v%d, v%d" % (V_X, V_X, V_Y))
    o("    v_mov_b32 v%d, 0" % ID)
    o("    v_mov_b32 v%d, 0" % (ID + 1))
    o("    v_mov_b32 v%d, 0x3f80" % (ID + 2))
    o("    v_mov_b32 v%d, 0x3f800000" % (ID + 3))
    for j, (dst, src) in enumerate(((ID, ID + 2), (ID, ID + 3), (ID + 1, ID + 2), (ID + 1, ID + 3))):
        o("    v_cmp_eq_u32 vcc, %d, v%d" % (j, V_X))
        o("    s_nop 1")
        o("    v_cndmask_b32 v%d, v%d, v%d, vcc" % (dst, dst, src))
    o("    s_nop 1")
    for dd in range(8):
        o("    v_mfma_f32_16x16x16_bf16 v[%d:%d], v[%d:%d], v[%d:%d], 0" %
          (TMP + 4 * dd, TMP + 4 * dd + 3, PA + 2 * dd, PA + 2 * dd + 1, ID, ID + 1))
    o("    s_nop 7")
    PB = SUM
    for s in range(4):
        for j in range(4):
            o("    v_cvt_pk_bf16_f32 v%d, v%d, v%d" %
              (PB + 4 * s + j, TMP + (2 * j) * 4 + s, TMP + (2 * j + 1) * 4 + s))
    SC = SUM + 16
    if qwait:
        o("    s_waitcnt vmcnt(0)")
    if qm == 2:
        assert bp and not noE
        o("    s_waitcnt vmcnt(%d)" % (16 + 2 * NE))
    for s in range(4):
        c = "0" if s == 0 else "v[%d:%d]" % (SC, SC + 3)
        o("    v_mfma_f32_16x16x32_bf16 v[%d:%d], v[%d:%d], a[%d:%d], %s" %
          (SC, SC + 3, PB + 4 * s, PB + 4 * s + 3, A_Q + 4 * s, A_Q + 4 * s + 3, c))
    o("    s_mov_b32 s%d, 0x3db504f3" % (S_T + 2))
    o("    s_mov_b32 s%d, 0x3fb8aa3b" % (S_T + 3))
    o("    s_nop 7")
    W = SUM + 20
    M = SUM + 22

    def round_bf16():
        o("    v_cvt_pk_bf16_f32 v%d, v%d, v%d" % (W, SC, SC + 1))
        o("    v_cvt_pk_bf16_f32 v%d, v%d, v%d" % (W + 1, SC + 2, SC + 3))
        o("    v_lshlrev_b32 v%d, 16, v%d" % (SC, W))
        o("    v_and_b32 v%d, 0xffff0000, v%d" % (SC + 1, W))
        o("    v_lshlrev_b32 v%d, 16, v%d" % (SC + 2, W + 1))
        o("    v_and_b32 v%d, 0xffff0000, v%d" % (SC + 3, W + 1))

    round_bf16()
    for i in range(4):
        o("    v_mul_f32 v%d, s%d, v%d" % (SC + i, S_T + 2, SC + i))
    round_bf16()
    o("    v_max_f32 v%d, v%d, v%d" % (M, SC, SC + 1))
    o("    v_max3_f32 v%d, v%d, v%d, v%d" % (M, SC + 2, SC + 3, M))

    def xlane(op, reg, tmp):
        for sw in ("v_permlane32_swap_b32", "v_permlane16_swap_b32"):
            o("    v_mov_b32 v%d, v%d" % (tmp, reg))
            o("    s_nop 1")
            o("    %s v%d, v%d" % (sw, reg, tmp))
            o("    s_nop 1")
            o("    %s v%d, v%d, v%d" % (op, reg, reg, tmp))

    xlane("v_max_f32", M, M + 1)
    for i in range(4):
        o("    v_sub_f32 v%d, v%d, v%d" % (SC + i, SC + i, M))
    for i in range(4):
        o("    v_mul_f32 v%d, s%d, v%d" % (SC + i, S_T + 3, SC + i))
    for i in range(4):
        o("    v_exp_f32 v%d, v%d" % (SC + i, SC + i))
    o("    s_nop 0")
    o("    v_add_f32 v%d, v%d, v%d" % (M, SC, SC + 1))
    o("    v_add_f32 v%d, v%d, v%d" % (M + 1, SC + 2, SC + 3))
    o("    v_add_f32 v%d, v%d, v%d" % (M, M, M + 1))
    xlane("v_add_f32", M, M + 1)
    o("    v_rcp_f32 v%d, v%d" % (M, M))
    o("    s_nop 0")
    for i in range(4):
        o("    v_mul_f32 v%d, v%d, v%d" % (SC + i, SC + i, M))
    o("    v_cvt_pk_bf16_f32 v%d, v%d, v%d" % (W, SC, SC + 1))
    o("    v_cvt_pk_bf16_f32 v%d, v%d, v%d" % (W + 1, SC + 2, SC + 3))
    o("    v_lshlrev_b32 v%d, 3, v%d" % (V_X, V_LANE))
    o("    ds_write_b64 v%d, v[%d:%d] offset:%d" % (V_X, W, W + 1, LDS_P))
    o("    s_waitcnt lgkmcnt(0)")
    o("    s_branch L_mat_done")

    o("L_vend:")
    PP = MISC
    o("    v_lshlrev_b32 v%d, 3, v%d" % (V_X, V_LANE))
    o("    ds_read_b64 v[%d:%d], v%d offset:%d" % (PP, PP + 1, V_X, LDS_P))
    for w in range(4):
        for h in range(2):
            r = T + (w * 2 + h) * 4
            o("    ds_read_b128 v[%d:%d], v%d offset:%d" % (r, r + 3, V_VR, w * WS + h * 4 * DS))
    o("    s_waitcnt lgkmcnt(4)")
    for j in range(8):
        o("    v_add_f32 v%d, v%d, v%d" % (T + j, T + j, T + 8 + j))
    o("    s_waitcnt lgkmcnt(0)")
    for j in range(8):
        o("    v_add_f32 v%d, v%d, v%d" % (T + 16 + j, T + 16 + j, T + 24 + j))
    for j in range(8):
        o("    v_add_f32 v%d, v%d, v%d" % (T + j, T + j, T + 16 + j))
    VB = MISC + 4
    for h in range(2):
        o("    v_cvt_pk_bf16_f32 v%d, v%d, v%d" % (VB + 2 * h, T + 4 * h, T + 4 * h + 1))
        o("    v_cvt_pk_bf16_f32 v%d, v%d, v%d" % (VB + 2 * h + 1, T + 4 * h + 2, T + 4 * h + 3))
    OO = T + 16
    o("    s_lshr_b32 s%d, s%d, 1" % (S_T + 2, S_MI))
    o("    s_lshl_b32 s%d, s%d, %d" % (S_T + 2, S_T + 2, QSH))
    if hf >= 0:
        o("    s_xor_b32 s%d, s%d, s%d" % (S_T + 2, S_T + 2, S_FL))
    for h in range(2):
        o("    v_mfma_f32_16x16x16_bf16 v[%d:%d], v[%d:%d], v[%d:%d], 0" %
          (OO + 4 * h, OO + 4 * h + 3, VB + 2 * h, VB + 2 * h + 1, PP, PP + 1))
    o("    s_nop 7")
    for i in range(4):
        o("    v_cvt_pk_bf16_f32 v%d, v%d, v%d" % (MISC + 8 + i, OO + 2 * i, OO + 2 * i + 1))
    if noout or defer:
        o("    s_cmp_eq_u32 s%d, 1" % S_MI)
        o("    s_cbranch_scc0 L_store")
        if defer:
            for i in range(4):
                o("    v_mov_b32 v%d, v%d" % (V_DEF + i, MISC + 8 + i))
        o("    s_branch L_mat_done")
        o("L_store:")
        if defer:
            o("    buffer_store_dwordx4 v[%d:%d], v%d, s[%d:%d], %s offen %s" %
              (V_DEF, V_DEF + 3, V_OUT, SRD_O, SRD_O + 3, "s%d" % S_FL if hf >= 0 else "0", oflags))
    o("    buffer_store_dwordx4 v[%d:%d], v%d, s[%d:%d], s%d offen %s" %
      (MISC + 8, MISC + 11, V_OUT, SRD_O, SRD_O + 3, S_T + 2, oflags))

    o("L_mat_done:")
    o("    s_add_u32 s%d, s%d, 1" % (S_MI, S_MI))
    o("    s_cmp_eq_u32 s%d, 4" % S_MI)
    o("    s_cbranch_scc1 L_fin")
    for j in range(32):
        o("    v_mov_b32 v%d, 0" % (ACC + j))
    o("    s_branch L_outer")
    if ih:
        del L[mark:]

    if ctl:
        o("; ---- progress reports (L_rp) and progress line updates (L_ev) ----")
        emit_events()
    o("; ---- load side moves on to the next matrix ----")
    for tag in stubs:
        o("L_sw_%s:" % tag)
        if qm == 2:
            o("    s_cmp_lg_u32 s%d, s%d" % (S_LM, S_WAVE))
            o("    s_cbranch_scc1 L_swq_%s" % tag)
            o("    s_bitcmp1_b32 s%d, 0" % S_WAVE)
            o("    s_cbranch_scc1 L_swq_%s" % tag)
            o("    v_and_b32 v%d, 15, v%d" % (V_X, V_LANE))
            o("    v_lshrrev_b32 v%d, 4, v%d" % (V_Y, V_LANE))
            load_q(V_X, V_Y, V_X, S_T + 6)
            o("L_swq_%s:" % tag)
        o("    s_mov_b32 s%d, s%d" % (S_OFF, S_OFF0))
        if general:
            o("    s_mov_b32 s%d, 0" % S_STP)
        if hf >= 0:
            o("    s_add_u32 s%d, s%d, s%d" % (S_T + 4, SRD_D, S_ADV))
            o("    s_addc_u32 s%d, s%d, s%d" % (S_T + 5, SRD_D + 1, S_ADVH))
        else:
            o("    s_add_u32 s%d, s%d, 0x%x" % (S_T + 4, SRD_D, 1 << mb))
            o("    s_addc_u32 s%d, s%d, 0" % (S_T + 5, SRD_D + 1))
        o("    s_mov_b32 s%d, s%d" % (SRD_D, NXT_D))
        o("    s_mov_b32 s%d, s%d" % (SRD_D + 1, NXT_D + 1))
        o("    s_mov_b32 s%d, s%d" % (NXT_D, S_T + 4))
        o("    s_mov_b32 s%d, s%d" % (NXT_D + 1, S_T + 5))
        o("    s_mov_b32 s%d, s%d" % (S_T + 4, SRD_P))
        o("    s_mov_b32 s%d, s%d" % (S_T + 5, SRD_P + 1))
        o("    s_mov_b32 s%d, s%d" % (SRD_P, NXT_P))
        o("    s_mov_b32 s%d, s%d" % (SRD_P + 1, NXT_P + 1))
        o("    s_mov_b32 s%d, s%d" % (NXT_P, S_T + 4))
        o("    s_mov_b32 s%d, s%d" % (NXT_P + 1, S_T + 5))
        o("    s_add_u32 s%d, s%d, 1" % (S_LM, S_LM))
        o("    s_cmp_eq_u32 s%d, 4" % S_LM)
        o("    s_cselect_b32 s%d, 0, 0x%x" % (SRD_D + 2, DSZ))
        o("    s_cselect_b32 s%d, 0, 0x20000" % (SRD_P + 2))
        o("    s_branch L_swr_%s" % tag)

    o("L_fin:")
    if stamp:
        o("    s_waitcnt vmcnt(0)")
        o("    s_memrealtime s[62:63]")
        o("    s_getreg_b32 s58, hwreg(HW_REG_XCC_ID)")
        o("    s_getreg_b32 s59, hwreg(HW_REG_HW_ID)")
        o("    s_waitcnt lgkmcnt(0)")
        o("    s_lshl_b32 s%d, s2, 2" % S_T)
        o("    s_add_u32 s%d, s%d, s%d" % (S_T, S_T, S_WAVE))
        o("    s_lshl_b32 s%d, s%d, 4" % (S_T, S_T))
        o("    v_mov_b32 v4, s60")
        o("    v_mov_b32 v5, s62")
        o("    v_mov_b32 v6, s58")
        if pstamp:
            o("    s_sub_u32 s82, s82, s60")
        o("    v_mov_b32 v7, s%d" % (82 if pstamp else (S_HI if ctl else 59)))
        o("    v_mov_b32 v2, s%d" % S_T)
        o("    global_store_dwordx4 v2, v[4:7], s[18:19]")
        if pst:
            o("    s_lshl_b32 s%d, s%d, 1" % (S_T + 1, S_T))
            o("    s_add_u32 s%d, s%d, 0x60000" % (S_T + 1, S_T + 1))
            o("    v_mov_b32 v2, s%d" % (S_T + 1))
            for k in range(6):
                o("    s_sub_u32 s%d, s%d, s60" % (PST[k], PST[k]))
                o("    v_mov_b32 v%d, s%d" % (8 + k, PST[k]))
            o("    global_store_dwordx4 v2, v[8:11], s[18:19]")
            o("    global_store_dwordx2 v2, v[12:13], s[18:19] offset:16")
        if trace:
            o("    s_lshl_b32 s%d, s%d, 4" % (S_T, S_T))
            o("    s_add_u32 s%d, s%d, 0x10000" % (S_T, S_T))
            o("    v_lshlrev_b32 v2, 2, v0")
            o("    v_add_u32 v2, s%d, v2" % S_T)
            o("    global_store_dword v2, v%d, s[18:19]" % V_BV)
    o("L_end:")
    o("    s_endpgm")
    nvg = max(accum_offset + na, 264)
    o('.section .rodata,"a"')
    o(".p2align 6")
    o(".amdhsa_kernel %s_kernel" % NAME)
    o("  .amdhsa_next_free_vgpr %d" % nvg)
    o("  .amdhsa_next_free_sgpr %d" % (96 if pst else 88))
    o("  .amdhsa_accum_offset %d" % accum_offset)
    o("  .amdhsa_group_segment_fixed_size 0")
    o("  .amdhsa_kernarg_size 64")
    o("  .amdhsa_user_sgpr_count 2")
    o("  .amdhsa_user_sgpr_kernarg_segment_ptr 1")
    o("  .amdhsa_system_sgpr_workgroup_id_x 1")
    o("  .amdhsa_float_denorm_mode_32 3")
    o(".end_amdhsa_kernel")
    return "\n".join(L) + "\n"


if __name__ == "__main__":
    out = sys.argv[1]
    kw = {}
    for a in sys.argv[2:]:
        k, v = a.split("=")
        if k not in ("flags", "eflags", "oflags", "mlo", "mmid", "mhi", "cal", "aflags", "akind", "mpost", "mfirst", "xm", "jb", "gb", "wb", "sb", "pb", "af", "jx", "mm2", "wsy", "ewf", "mih"):
            v = int(v)
        kw[k] = v
    open(out, "w").write(gen(**kw))
```

```python
import sys

NAME = "standalone__low_rank_proj_linformer__sampling"
HEADER = open("cdna_kernels/%s.s.ref" % NAME).read().split("; Override launch")[0]

DOC = """
Linformer attention: kp = E.K, vp = F.V (rank 16), p = softmax(bf16(q.kp^T) * 128^-0.5), out = p.vp.
The kernel is bound by the 1 GiB read of K and V.

Work split: 256 workgroups x 4 waves, one workgroup per CU, two heads per workgroup.
A workgroup streams K(h0), V(h0), K(h1), V(h1); a round covers 128 rows (32 KiB), wave w takes
rows [32w, 32w+32).  Per round a wave issues 8 dwordx4 loads into a register ring (two rounds deep),
transposes 8x8 blocks with v_perm and accumulates E^T-fragment x data with 8 MFMA 16x16x32.
At the end of a matrix the four partial sums are added through LDS; one wave does the scores and the
softmax, all four waves do p.vp.  The first head's output stays in registers until the end.

Load-window balancing: the dies get unequal shares of the memory bandwidth, and the slowest die sets the
run time.  The loop body exists three times and differs only in how many loads it keeps in flight
(lo / mid / hi).  A few waves add their clock value to counters in d_debug at fixed iterations; the mean of
these reports gives the grid-wide progress line.  Once per iteration each wave compares its clock with
the line and picks the body: hi when it lags, lo when it leads.  The choice changes timing only, never
the result, and no wave ever waits on the clock or on another workgroup.
"""


def gen(flags="nt", eflags="sc1", oflags="", stamp=0, force=-1, ctl=1,
        mlo="5s", mmid="6p", mhi="8p", dhi=1, dlo=1, cal="9,25", lag=8, delta=0, eps=0, ps=0, pc=6,
        tail=0, notime=0, pre=0, noev=0, trace=0,
        doat=1, dold=1, aflags="sc1", akind="atomic", abase=16, wmap=0, amask=0, aval=0,
        ns=256, stag=4, noout=0, defer=0, bp=0, noE=0, mpost="", qwait=0, pstamp=0, fin=0, tsh=0, pst=0, early=0, pf=0, pfw=256, pro8=0, qm=0, m0=0, mfirst="", tw=0, pdec=1, wa=0, rot=0, gp=11, wp=13, xm="", hb=8, hb2=0, jb="", gb="", wb="", sb="", mb=20, pb="", hf=-1, tf=-1, af="", jx="", prb=0, e0=0, eg=0, egs=1, mm2="", m2s=1, wsy="", nom=0, lag0=3, dl8=0, dh8=0, ew=0, ewf="", wskip=0, half=0, hca=2, hcb=6, sl=-1, c0=210, n1=0, ih=0, mih="", ihp=2, sl0=1, rp=0, tst=0):
    LA, RS, ER, P = 4, 2, 2, 2
    cal = [int(x) for x in str(cal).split(",")]
    assert 2 <= len(cal) <= 4
    SLOT = [0, 128, 64, 192]
    if sl >= 0 and not n1:
        SLOT = [136, 128, 64, 192]
    j0 = sl0 if sl >= 0 else cal[0] + lag0
    nsh = ns.bit_length() - 1
    assert ns == 1 << nsh and ns >= 8 * stag
    st2 = stag - 1
    nobar = nocomp = 0
    wsyl = [int(x) for x in str(wsy).split(",")] if wsy != "" else []
    general = (gp, wp, xm, hb, jb, gb, wb, sb) != (11, 13, "", 8, "", "", "", "")
    gbits = [int(x) for x in str(gb).split(",")] if gb else [gp, gp + 1]
    wbits = [int(x) for x in str(wb).split(",")] if wb else [wp, wp + 1]
    if jb:
        jbits = [int(x) for x in str(jb).split(",")]
    elif hb == 8:
        jbits = [8, 9, 10]
    elif hb2:
        jbits = [hb, hb2, 8]
    else:
        jbits = [hb, 8, 9]
    holes = sum(1 << b for b in gbits + wbits + jbits)
    assert bin(holes).count("1") == 7 and min(gbits + wbits) >= 8
    sbits = [b for b in range(8, 20) if not (holes >> b) & 1]
    if sb:
        sbits = [int(x) for x in str(sb).split(",")]
        assert sbits == sorted(sbits) and len(sbits) == 5
        holes = 0xffffff00 & ~sum(1 << b for b in sbits)
    pbits = [int(x) for x in str(pb).split(",")] if pb else [b for b in range(20, 29) if b != mb]
    allb = gbits + wbits + jbits + sbits + [mb] + pbits
    assert sorted(allb) == list(range(8, 29)), sorted(allb)
    probe = max(gbits + wbits + jbits + sbits) >= 20 or mb < 20 or bool(prb)
    headmap = (mb, pbits) != (20, list(range(21, 29)))
    offmask = sum(1 << b for b in gbits + wbits + jbits + sbits) | 0xff
    big_j = [b for b in jbits if b >= 12]
    afl = [int(x) for x in str(af).split(",")] if af else []
    af_s = sum(1 << b for b in afl if b in wbits + sbits)
    af_g = sum(1 << b for b in afl if b in gbits)
    S_OFFB = 87
    jxl = [tuple(int(y) for y in x.split(":")) for x in jx.split(",")] if jx else []
    jx_j = [(tb, sb_) for tb, sb_ in jxl if tb in jbits]
    jx_g = [(tb, sb_) for tb, sb_ in jxl if tb in gbits]
    assert len(jx_j) + len(jx_g) == len(jxl)
    xml = [tuple(int(y) for y in x.split(":")) for x in xm.split(",")] if xm else []
    if general:
        assert wa == 0 and rot == 0 and not early
    L = []
    o = L.append
    DS = 1088
    WS = 8 * DS
    LDS_P, LDS_KP, LDS_VP = 0, 512, 512 + 4 * WS
    lds = 512 + 8 * WS
    o(HEADER.rstrip())
    o("; @launch grid=(256,1,1) block=(256,1,1) lds=%d" % lds)
    for line in DOC.strip("\n").split("\n"):
        o(("; " + line).rstrip())
    o('.amdgcn_target "amdgcn-amd-amdhsa--gfx950"')
    o(".text")
    o(".globl %s_kernel" % NAME)
    o(".p2align 8")
    o(".type %s_kernel,@function" % NAME)
    o("%s_kernel:" % NAME)

    V_LANE, V_OFF, V_EOFF, V_PW, V_VR, V_OUT, V_X, V_Y = 0, 1, 2, 3, 4, 5, 6, 7
    ACC = 8
    T = 40
    MISC = 72
    V_BO, V_BV = MISC + 22, MISC + 23
    RING = 96
    V_DEF = RING + 32 * RS
    V_OFFX = V_DEF + 4
    nv = V_DEF + 4 + ((1 << len(big_j)) - 1)
    V_OFFJ = nv
    if jx_j:
        assert not big_j
        nv += 8
    esplit = jbits[1:] == [8, 9] and jbits[0] > 9 and not prb
    NE = 0 if noE else (2 if esplit else 1)
    V_ER = V_EA = 0
    if esplit:
        nv = (nv + 1) // 2 * 2
        V_ER = nv
        V_EA = (V_ER + 4 * ER + 3) // 4 * 4
        nv = V_EA + 4
    V_S2 = V_T2 = 0
    if ih:
        V_S2 = (nv + 3) // 4 * 4
        V_T2 = V_S2 + 32
        nv = V_T2 + 32
    V_TR2 = nv
    if trace == 2 or rp:
        nv += 4
    assert nv <= 256
    A_Q = 0
    A_E = 16
    na = A_E + 4 * ER
    accum_offset = (nv + 3) // 4 * 4

    S_SELLO, S_SELHI, S_WAVE, S_OFF, S_EOFF, S_CNT, S_MI, S_LM = 20, 21, 22, 23, 24, 25, 26, 27
    S_PROG = 57
    SRD_D, SRD_P = 28, 32
    NXT_D, NXT_P = 36, 38
    SRD_Q, SRD_O = 40, 44
    S_T = 48

    o("    s_cmp_ge_u32 s2, 256")
    o("    s_cbranch_scc1 L_end")
    o("    s_load_dwordx16 s[4:19], s[0:1], 0")
    if stamp:
        o("    s_memrealtime s[60:61]")
    if sl >= 0:
        o("    s_memrealtime s[72:73]")
    PST = [84, 86, 88, 90, 92, 94]

    def pstp(k):
        if pst and not tst:
            o("    s_memrealtime s[%d:%d]" % (PST[k], PST[k] + 1))

    def tstp(k):
        if tst:
            o("    s_memrealtime s[%d:%d]" % (PST[k], PST[k] + 1))

    def code_prefetch():
        if pfw < 256:
            o("    s_cmp_ge_u32 s2, %d" % pfw)
            o("    s_cbranch_scc1 L_nopfc")
        o("    s_getpc_b64 s[%d:%d]" % (S_T + 4, S_T + 5))
        o("L_pc:")
        o("    v_lshlrev_b32 v%d, 6, v%d" % (V_PW, V_TID))
        o("    v_min_u32 v%d, L_end-L_pc, v%d" % (V_PW, V_PW))
        o("    global_load_dword v%d, v%d, s[%d:%d]" % (V_DEF + 3, V_PW, S_T + 4, S_T + 5))
        if pfw < 256:
            o("L_nopfc:")

    V_TID = 0
    S_TMP0, S_TMP1, S_JC = S_T + 4, S_T + 5, 83
    if pf:
        code_prefetch()
    o("    v_lshrrev_b32 v%d, 6, v0" % V_X)
    o("    v_and_b32 v%d, 63, v0" % V_LANE)
    o("    v_readfirstlane_b32 s%d, v%d" % (S_WAVE, V_X))
    if not early:
        o("    s_mov_b32 s%d, 0x05040100" % S_SELLO)
        o("    s_mov_b32 s%d, 0x07060302" % S_SELHI)
    o("    v_and_b32 v%d, 15, v%d" % (V_X, V_LANE))
    o("    v_lshrrev_b32 v%d, 4, v%d" % (V_Y, V_LANE))
    o("    v_lshlrev_b32 v%d, 4, v%d" % (V_OFF, V_X))
    if gbits[1] == gbits[0] + 1:
        o("    v_lshl_add_u32 v%d, v%d, %d, v%d" % (V_OFF, V_Y, gbits[0], V_OFF))
    else:
        o("    v_and_b32 v%d, 1, v%d" % (V_PW, V_Y))
        o("    v_lshl_add_u32 v%d, v%d, %d, v%d" % (V_OFF, V_PW, gbits[0], V_OFF))
        o("    v_lshrrev_b32 v%d, 1, v%d" % (V_PW, V_Y))
        o("    v_lshl_add_u32 v%d, v%d, %d, v%d" % (V_OFF, V_PW, gbits[1], V_OFF))
    if probe:
        o("    v_lshlrev_b32 v%d, 13, v%d" % (V_EOFF, V_X))
        o("    v_lshl_add_u32 v%d, v%d, 4, v%d" % (V_EOFF, V_Y, V_EOFF))
    elif not early:
        o("    v_lshlrev_b32 v%d, 13, v%d" % (V_EOFF, V_X))
        if gbits[1] == gbits[0] + 1:
            o("    v_lshl_add_u32 v%d, v%d, %d, v%d" % (V_EOFF, V_Y, gbits[0] - 7, V_EOFF))
        else:
            o("    v_and_b32 v%d, 1, v%d" % (V_PW, V_Y))
            o("    v_lshl_add_u32 v%d, v%d, %d, v%d" % (V_EOFF, V_PW, gbits[0] - 7, V_EOFF))
            o("    v_lshrrev_b32 v%d, 1, v%d" % (V_PW, V_Y))
            o("    v_lshl_add_u32 v%d, v%d, %d, v%d" % (V_EOFF, V_PW, gbits[1] - 7, V_EOFF))
    for tb, sb_ in jx_g:
        o("    s_bfe_u32 s%d, s2, 0x%x" % (S_TMP0, 0x10000 | sb_))
        o("    s_lshl_b32 s%d, s%d, %d" % (S_TMP1, S_TMP0, tb))
        o("    v_xor_b32 v%d, s%d, v%d" % (V_OFF, S_TMP1, V_OFF))
        o("    s_lshl_b32 s%d, s%d, %d" % (S_TMP1, S_TMP0, tb - 7))
        o("    v_xor_b32 v%d, s%d, v%d" % (V_EOFF, S_TMP1, V_EOFF))
    if jx_j:
        o("    s_mov_b32 s%d, 0" % S_JC)
        for tb, sb_ in jx_j:
            o("    s_bfe_u32 s%d, s2, 0x%x" % (S_TMP0, 0x10000 | sb_))
            o("    s_lshl_b32 s%d, s%d, %d" % (S_TMP0, S_TMP0, tb))
            o("    s_xor_b32 s%d, s%d, s%d" % (S_JC, S_JC, S_TMP0))
        for i in range(8):
            a_ = sum(1 << b for t, b in enumerate(jbits) if (i >> t) & 1)
            o("    s_xor_b32 s%d, s%d, 0x%x" % (S_TMP0, S_JC, a_))
            o("    v_or_b32 v%d, s%d, v%d" % (V_OFFJ + i, S_TMP0, V_OFF))
    for sel in range(1, 1 << len(big_j)):
        add = sum(1 << b for t, b in enumerate(big_j) if (sel >> t) & 1)
        if af_g and sel & 1:
            o("    v_xor_b32 v%d, 0x%x, v%d" % (V_OFFX + sel - 1, af_g, V_OFF))
            o("    v_add_u32 v%d, 0x%x, v%d" % (V_OFFX + sel - 1, add, V_OFFX + sel - 1))
        else:
            o("    v_add_u32 v%d, 0x%x, v%d" % (V_OFFX + sel - 1, add, V_OFF))
    S_STP = 56
    if wbits[1] == wbits[0] + 1:
        o("    s_lshl_b32 s%d, s%d, %d" % (S_OFF, S_WAVE, wbits[0] if general else 13 + wa))
    else:
        o("    s_and_b32 s%d, s%d, 1" % (S_OFF, S_WAVE))
        o("    s_lshl_b32 s%d, s%d, %d" % (S_OFF, S_OFF, wbits[0]))
        o("    s_lshr_b32 s%d, s%d, 1" % (S_T + 4, S_WAVE))
        o("    s_lshl_b32 s%d, s%d, %d" % (S_T + 4, S_T + 4, wbits[1]))
        o("    s_or_b32 s%d, s%d, s%d" % (S_OFF, S_OFF, S_T + 4))
    if general:
        o("    s_mov_b32 s%d, 0" % S_STP)
        for tb, sb in xml:
            o("    s_bfe_u32 s%d, s2, 0x%x" % (S_T + 4, 0x10000 | sb))
            o("    s_lshl_b32 s%d, s%d, %d" % (S_T + 4, S_T + 4, tb))
            o("    s_xor_b32 s%d, s%d, s%d" % (S_OFF, S_OFF, S_T + 4))
    if rot:
        assert wa == 0
        R = S_T + 4
        if rot == 1:
            o("    s_lshr_b32 s%d, s2, 3" % R)
        elif rot == 2:
            o("    s_mov_b32 s%d, s2" % R)
        elif rot == 3:
            o("    s_lshl_b32 s%d, s2, 2" % R)
        elif rot == 4:
            o("    s_lshr_b32 s%d, s2, 3" % R)
            o("    s_lshl_b32 s%d, s2, 2" % (R + 1))
            o("    s_add_u32 s%d, s%d, s%d" % (R, R, R + 1))
        elif rot == 5:
            o("    s_lshr_b32 s%d, s2, 3" % R)
            o("    s_and_b32 s%d, s%d, 1" % (R, R))
        elif rot == 6:
            o("    s_lshr_b32 s%d, s2, 3" % R)
            o("    s_and_b32 s%d, s%d, 3" % (R, R))
        elif rot == 7:
            o("    s_lshr_b32 s%d, s2, 3" % R)
            o("    s_lshl_b32 s%d, s%d, 3" % (R, R))
        elif rot == 8:
            o("    s_lshr_b32 s%d, s2, 3" % R)
            o("    s_lshl_b32 s%d, s%d, 4" % (R, R))
        o("    s_and_b32 s%d, s%d, 31" % (R, R))
        o("    s_lshl_b32 s%d, s%d, 15" % (R, R))
        o("    s_add_u32 s%d, s%d, s%d" % (S_OFF, S_OFF, R))
    S_EV, S_MODE, S_ACC, S_INC, S_TM, S_NOW, S_THI, S_TLO = 64, 65, 66, 67, 72, 74, 76, 77
    S_C1, S_C2, S_HI, S_OFF0, S_RP, S_OK = 68, 70, 78, 79, 80, 81

    def eoff():
        o("    s_lshr_b32 s%d, s%d, 7" % (S_EOFF, S_OFF))
        if af_s:
            o("    s_xor_b32 s%d, s%d, 0x%x" % (S_OFFB, S_OFF, af_s))
        if probe:
            o("    s_and_b32 s%d, s%d, 0x1fc0" % (S_EOFF, S_EOFF))

    def step_inc():
        if general:
            o("    s_or_b32 s%d, s%d, 0x%x" % (S_STP, S_STP, holes))
            o("    s_add_u32 s%d, s%d, 0x%x" % (S_STP, S_STP, 1 << sbits[0]))
            o("    s_andn2_b32 s%d, s%d, 0x%x" % (S_STP, S_STP, holes))
            o("    s_xor_b32 s%d, s%d, s%d" % (S_OFF, S_STP, S_OFF0))
        elif wa == 0:
            o("    s_add_u32 s%d, s%d, 0x8000" % (S_OFF, S_OFF))
            if rot:
                o("    s_and_b32 s%d, s%d, 0xfffff" % (S_OFF, S_OFF))
        elif wa == 5:
            o("    s_add_u32 s%d, s%d, 0x2000" % (S_OFF, S_OFF))
        else:
            hole = 3 << (13 + wa)
            o("    s_or_b32 s%d, s%d, 0x%x" % (S_OFF, S_OFF, hole))
            o("    s_add_u32 s%d, s%d, 0x2000" % (S_OFF, S_OFF))
            o("    s_andn2_b32 s%d, s%d, 0x%x" % (S_OFF, S_OFF, hole))
            o("    s_or_b32 s%d, s%d, s%d" % (S_OFF, S_OFF, S_OFF0))

    def ctl_setup():
        U = S_T + 6 if early else S_T
        o("    s_mov_b32 s%d, %d" % (S_MODE, {-1: 0, 0: 0, 1: 1, 2: 2}[force]))
        if ctl:
            o("    s_mov_b32 s%d, 0" % S_PROG)
            o("    s_mov_b32 s%d, 0" % S_HI)
            if sl >= 0:
                T1n = 16 * nom
                o("    s_mov_b32 s%d, %d" % (S_ACC, 64 * c0))
                o("    s_mov_b32 s%d, %d" % (S_INC, 4 * T1n))
                o("    s_mov_b32 s%d, 0" % S_NOW)
                o("    s_mov_b32 s%d, %d" % (S_THI, (T1n * (dh8 or 8 * dhi)) >> 3))
                o("    s_mov_b32 s%d, %d" % (S_TLO, (-T1n * (dl8 or 8 * dlo)) >> 3))
                assert not mm2
            else:
                o("    s_mov_b32 s%d, 0" % S_ACC)
                o("    s_mov_b32 s%d, 0" % S_INC)
                o("    s_mov_b32 s%d, 0" % S_TM)
                o("    s_mov_b32 s%d, 0" % S_NOW)
                o("    s_mov_b32 s%d, 0x7fffffff" % S_THI)
                if mm2:
                    o("    s_mov_b32 s82, 0x7fffffff")
                o("    s_mov_b32 s%d, 0x80000000" % S_TLO)
            o("    s_lshr_b32 s%d, s2, 3" % U)
            o("    s_and_b32 s%d, s%d, %d" % (U, U, stag - 1))
            o("    s_mov_b32 s%d, 0x7fffffff" % S_RP)
            o("    s_mov_b32 s%d, 0" % (U + 1))
            for k, c in enumerate(cal):
                if sl >= 0 and k == 0 and n1:
                    continue
                o("    s_cmp_eq_u32 s%d, %d" % (S_WAVE, (k + 1) & 3))
                o("    s_cselect_b32 s%d, %d, s%d" % (S_RP, c, S_RP))
                o("    s_cselect_b32 s%d, %d, s%d" % (U + 1, SLOT[k], U + 1))
            o("    v_mov_b32 v%d, s%d" % (V_BO, U + 1))
            o("    s_cmp_lg_u32 s%d, 0x7fffffff" % S_RP)
            o("    s_cselect_b32 s%d, s%d, 0" % (U, U))
            o("    s_add_u32 s%d, s%d, s%d" % (S_RP, S_RP, U))
            if ns < 256:
                o("    s_cmp_lt_u32 s2, %d" % ns)
                o("    s_cselect_b32 s%d, s%d, 0x7fffffff" % (S_RP, S_RP))
            if amask:
                o("    s_and_b32 s%d, s2, %d" % (U, amask))
                o("    s_cmp_eq_u32 s%d, %d" % (U, aval))
                o("    s_cselect_b32 s%d, s%d, 0x7fffffff" % (S_RP, S_RP))
            o("    s_mov_b32 s%d, %d" % (S_EV, j0 if nom else cal[1] + lag))
            assert sl < 0 or nom
            o("    s_mov_b32 s%d, 0" % S_OK)
            for r in range(S_C1, S_C1 + 4):
                o("    s_mov_b32 s%d, 0" % r)
        o("    s_mov_b32 s%d, 0" % S_LM)
        o("    s_mov_b32 s%d, 0" % S_MI)

    def srd_rest():
        qsz = 8192 if mb <= 20 or probe else (1 << (mb - 8)) + 4096
        o("    s_mov_b32 s%d, %d" % (SRD_Q + 2, qsz))
        o("    s_mov_b32 s%d, 0x20000" % (SRD_Q + 3))
        o("    s_mov_b32 s%d, %d" % (SRD_O + 2, qsz))
        o("    s_mov_b32 s%d, 0x20000" % (SRD_O + 3))

    if not early:
        o("    s_mov_b32 s%d, s%d" % (S_OFF0, S_OFF))
        ctl_setup()
        eoff()
    S_PAIR = S_T + 2
    if wmap == 0:
        o("    s_mov_b32 s%d, s2" % S_PAIR)
    elif wmap == 1:
        o("    s_and_b32 s%d, s2, 7" % S_PAIR)
        o("    s_lshl_b32 s%d, s%d, 5" % (S_PAIR, S_PAIR))
        o("    s_lshr_b32 s%d, s2, 3" % (S_T + 3))
        o("    s_or_b32 s%d, s%d, s%d" % (S_PAIR, S_PAIR, S_T + 3))
    elif wmap == 2:
        o("    s_lshr_b32 s%d, s2, 3" % (S_T + 3))
        o("    s_and_b32 s%d, s%d, 7" % (S_T + 3, S_T + 3))
        o("    s_xor_b32 s%d, s2, s%d" % (S_PAIR, S_T + 3))
    elif wmap == 3:
        o("    s_and_b32 s%d, s2, 7" % S_PAIR)
        o("    s_lshl_b32 s%d, s%d, 5" % (S_PAIR, S_PAIR))
        o("    s_lshr_b32 s%d, s2, 3" % (S_T + 3))
        o("    s_or_b32 s%d, s%d, s%d" % (S_PAIR, S_PAIR, S_T + 3))
        o("    s_and_b32 s%d, s%d, 7" % (S_T + 3, S_T + 3))
        o("    s_lshl_b32 s%d, s%d, 5" % (S_T + 3, S_T + 3))
        o("    s_xor_b32 s%d, s%d, s%d" % (S_PAIR, S_PAIR, S_T + 3))
    elif wmap == 4:
        o("    s_and_b32 s%d, s2, 7" % S_PAIR)
        o("    s_lshr_b32 s%d, s2, 3" % (S_T + 3))
        o("    s_lshl_b32 s%d, s%d, 2" % (S_T + 4, S_PAIR))
        o("    s_add_u32 s%d, s%d, s%d" % (S_T + 3, S_T + 3, S_T + 4))
        o("    s_and_b32 s%d, s%d, 31" % (S_T + 3, S_T + 3))
        o("    s_lshl_b32 s%d, s%d, 5" % (S_PAIR, S_PAIR))
        o("    s_or_b32 s%d, s%d, s%d" % (S_PAIR, S_PAIR, S_T + 3))
    elif wmap == 5:
        o("    s_brev_b32 s%d, s2" % S_PAIR)
        o("    s_lshr_b32 s%d, s%d, 24" % (S_PAIR, S_PAIR))
    elif wmap == 6:
        o("    s_bfe_u32 s%d, s2, 0x20001" % S_PAIR)
        o("    s_lshl_b32 s%d, s%d, 6" % (S_PAIR, S_PAIR))
        o("    s_lshr_b32 s%d, s2, 3" % (S_T + 3))
        o("    s_lshl_b32 s%d, s%d, 1" % (S_T + 3, S_T + 3))
        o("    s_or_b32 s%d, s%d, s%d" % (S_PAIR, S_PAIR, S_T + 3))
        o("    s_and_b32 s%d, s2, 1" % (S_T + 3))
        o("    s_or_b32 s%d, s%d, s%d" % (S_PAIR, S_PAIR, S_T + 3))
    elif wmap == 7:
        o("    s_and_b32 s%d, s2, 7" % S_PAIR)
        o("    s_lshl_b32 s%d, s%d, 3" % (S_PAIR, S_PAIR))
        o("    s_bfe_u32 s%d, s2, 0x30003" % (S_T + 3))
        o("    s_or_b32 s%d, s%d, s%d" % (S_PAIR, S_PAIR, S_T + 3))
        o("    s_lshr_b32 s%d, s2, 6" % (S_T + 3))
        o("    s_lshl_b32 s%d, s%d, 6" % (S_T + 3, S_T + 3))
        o("    s_or_b32 s%d, s%d, s%d" % (S_PAIR, S_PAIR, S_T + 3))
    if headmap:
        o("    s_mov_b32 s%d, 0" % S_T)
        for i, b in enumerate(pbits):
            o("    s_bfe_u32 s%d, s%d, 0x%x" % (S_T + 1, S_PAIR, 0x10000 | i))
            o("    s_lshl_b32 s%d, s%d, %d" % (S_T + 1, S_T + 1, b))
            o("    s_or_b32 s%d, s%d, s%d" % (S_T, S_T, S_T + 1))
    else:
        o("    s_lshl_b32 s%d, s%d, 21" % (S_T, S_PAIR))
    S_ADV, S_ADVH, S_FL = 84, 85, 86
    if hf >= 0:
        assert not pst and not early and qm == 0
        if hf == 99:
            o("    s_mov_b32 s%d, 1" % S_FL)
        else:
            o("    s_bfe_u32 s%d, s2, 0x%x" % (S_FL, 0x10000 | hf))
        o("    s_mov_b32 s%d, 0x%x" % (S_ADV, 1 << mb))
        o("    s_cmp_eq_u32 s%d, 1" % S_FL)
        o("    s_cselect_b32 s%d, 0x%x, s%d" % (S_ADV, (-(1 << mb)) & 0xffffffff, S_ADV))
        o("    s_cselect_b32 s%d, -1, 0" % S_ADVH)
    DSZ = (offmask + 1) if probe else 0x100000
    QSH = 12 if probe else mb - 8
    o("    s_mov_b32 s%d, 0x%x" % (SRD_D + 2, DSZ))
    o("    s_mov_b32 s%d, 0x20000" % (SRD_D + 3))
    if not early:
        if headmap and not probe:
            o("    s_lshr_b32 s%d, s%d, 8" % (S_T + 1, S_T))
        else:
            o("    s_lshl_b32 s%d, s%d, 13" % (S_T + 1, S_PAIR))
        o("    s_mov_b32 s%d, 0x20000" % (SRD_P + 2))
        o("    s_mov_b32 s%d, 0x20000" % (SRD_P + 3))
        srd_rest()
    pstp(0)
    o("    s_waitcnt lgkmcnt(0)")
    if pstamp:
        o("    s_memrealtime s[82:83]")
    pstp(1)
    if hf >= 0:
        o("    s_lshl_b32 s%d, s%d, %d" % (S_T + 4, S_FL, mb))
        o("    s_or_b32 s%d, s%d, s%d" % (S_T, S_T, S_T + 4))
        o("    s_lshl_b32 s%d, s%d, %d" % (S_FL, S_FL, QSH))
    if tf >= 0:
        if tf == 99:
            o("    s_cmp_eq_u32 s2, s2")
        else:
            o("    s_bitcmp1_b32 s2, %d" % tf)
        o("    s_cselect_b32 s%d, s8, s6" % (S_T + 4))
        o("    s_cselect_b32 s%d, s9, s7" % (S_T + 5))
        o("    s_cselect_b32 s8, s6, s8")
        o("    s_cselect_b32 s9, s7, s9")
        o("    s_mov_b32 s6, s%d" % (S_T + 4))
        o("    s_mov_b32 s7, s%d" % (S_T + 5))
    o("    s_add_u32 s%d, s6, s%d" % (SRD_D, S_T))
    o("    s_addc_u32 s%d, s7, 0" % (SRD_D + 1))
    if not early:
        o("    s_mov_b32 s%d, s10" % SRD_P)
        o("    s_mov_b32 s%d, s11" % (SRD_P + 1))

    def issue_E(step):
        if noE:
            return
        if esplit:
            r = V_ER + (step % ER) * 4
            for t in range(2):
                o("    buffer_load_dwordx2 v[%d:%d], v%d, s[%d:%d], s%d offen offset:%d %s" %
                  (r + 2 * t, r + 2 * t + 1, V_EOFF, SRD_P, SRD_P + 3, S_EOFF, t << (jbits[0] - 7), eflags))
            return
        r = A_E + (step % ER) * 4
        o("    buffer_load_dwordx4 a[%d:%d], v%d, s[%d:%d], s%d offen %s" %
          (r, r + 3, V_EOFF, SRD_P, SRD_P + 3, S_EOFF, eflags))

    def issue_one(n):
        q, h = divmod(n, 2)
        a = q % 4
        slot = q % (4 * RS)
        i = 2 * a + h
        r = RING + (slot * 2 + h) * 4
        imm, sel = 0, 0
        alt = bool(afl) and any((i >> t) & 1 and b == big_j[0] for t, b in enumerate(jbits))
        for t, b in enumerate(jbits):
            bit = (i >> t) & 1
            if alt and b in afl:
                bit ^= 1
            if bit:
                if b >= 12:
                    sel |= 1 << big_j.index(b)
                else:
                    imm += 1 << b
        if jx_j:
            o("    buffer_load_dwordx4 v[%d:%d], v%d, s[%d:%d], s%d offen %s" %
              (r, r + 3, V_OFFJ + i, SRD_D, SRD_D + 3, S_OFF, flags))
            return
        o("    buffer_load_dwordx4 v[%d:%d], v%d, s[%d:%d], s%d offen offset:%d %s" %
          (r, r + 3, V_OFFX + sel - 1 if sel else V_OFF, SRD_D, SRD_D + 3,
           S_OFFB if alt and af_s else S_OFF, imm, flags))

    def issue_pair(q):
        issue_one(2 * q)
        issue_one(2 * q + 1)

    stubs = []
    events = []

    if not early and not e0:
        issue_E(0)
    for q in range(LA):
        issue_pair(q)
        if not early and e0 == q + 1:
            issue_E(0)
    if early:
        o("    v_lshlrev_b32 v%d, 13, v%d" % (V_EOFF, V_X))
        o("    v_lshl_add_u32 v%d, v%d, 4, v%d" % (V_EOFF, V_Y, V_EOFF))
        eoff()
        o("    s_mov_b32 s%d, s10" % SRD_P)
        o("    s_mov_b32 s%d, s11" % (SRD_P + 1))
        o("    s_mov_b32 s%d, 0x20000" % (SRD_P + 2))
        o("    s_mov_b32 s%d, 0x20000" % (SRD_P + 3))
        issue_E(0)
        o("    s_mov_b32 s%d, s%d" % (S_OFF0, S_OFF))
    if bp and not pro8:
        step_inc()
        eoff()
        issue_one(8)
        issue_E(1)
        for n in range(9, 16):
            issue_one(n)
    pstp(2)
    if early:
        o("    s_mov_b32 s%d, 0x05040100" % S_SELLO)
        o("    s_mov_b32 s%d, 0x07060302" % S_SELHI)
        o("    s_lshl_b32 s%d, s%d, 13" % (S_T + 1, S_PAIR))
        srd_rest()
        ctl_setup()
    o("    s_add_u32 s%d, s8, s%d" % (NXT_D, S_T))
    o("    s_addc_u32 s%d, s9, 0" % (NXT_D + 1))
    o("    s_mov_b32 s%d, s12" % NXT_P)
    o("    s_mov_b32 s%d, s13" % (NXT_P + 1))
    o("    s_add_u32 s%d, s4, s%d" % (SRD_Q, S_T + 1))
    o("    s_addc_u32 s%d, s5, 0" % (SRD_Q + 1))
    o("    s_add_u32 s%d, s14, s%d" % (SRD_O, S_T + 1))
    o("    s_addc_u32 s%d, s15, 0" % (SRD_O + 1))
    def load_q(vx, vy, va, st):
        o("    v_lshlrev_b32 v%d, 8, v%d" % (va, vx))
        o("    v_lshl_add_u32 v%d, v%d, 6, v%d" % (va, vy, va))
        o("    s_lshr_b32 s%d, s%d, 1" % (st, S_WAVE))
        o("    s_lshl_b32 s%d, s%d, %d" % (st, st, QSH))
        if hf >= 0:
            o("    s_xor_b32 s%d, s%d, s%d" % (st, st, S_FL))
        for s in range(4):
            o("    buffer_load_dwordx4 a[%d:%d], v%d, s[%d:%d], s%d offen offset:%d" %
              (A_Q + 4 * s, A_Q + 4 * s + 3, va, SRD_Q, SRD_Q + 3, st, 16 * s))

    if qm == 0:
        load_q(V_X, V_Y, V_PW, S_T + 2)
    elif qm == 1:
        o("    s_bitcmp1_b32 s%d, 0" % S_WAVE)
        o("    s_cbranch_scc1 L_noq")
        load_q(V_X, V_Y, V_PW, S_T + 2)
        o("L_noq:")
    def warm_proj():
        o("    s_bfe_u32 s%d, s2, 0x50003" % (S_T + 2))
        o("    s_lshl_b32 s%d, s%d, 2" % (S_T + 2, S_T + 2))
        o("    s_add_u32 s%d, s%d, s%d" % (S_T + 2, S_T + 2, S_WAVE))
        o("    s_lshl_b32 s%d, s%d, 10" % (S_T + 2, S_T + 2))
        o("    v_lshlrev_b32 v%d, 4, v%d" % (V_PW, V_LANE))
        o("    v_add_u32 v%d, s%d, v%d" % (V_PW, S_T + 2, V_PW))
        if ew & 1:
            o("    global_load_dwordx4 v[%d:%d], v%d, s[10:11] %s" % (V_DEF, V_DEF + 3, V_PW, ewf))
        if ew & 2:
            o("    global_load_dwordx4 v[%d:%d], v%d, s[12:13] %s" % (V_DEF, V_DEF + 3, V_PW, ewf))

    if sl >= 0:
        o("    s_cmp_lt_u32 s2, %d" % ns)
        o("    s_cbranch_scc0 L_nosr")
        o("    s_cmp_eq_u32 s%d, 1" % S_WAVE)
        o("    s_cbranch_scc0 L_nosr")
        o("    v_mov_b32 v%d, s%d" % (V_BV - 3, S_TM))
        o("    v_mov_b32 v%d, 0x100" % (V_BV - 2))
        o("    v_mov_b32 v%d, 0" % (V_BV - 4))
        o("    s_mov_b64 exec, 1")
        o("    global_atomic_add_x2 v%d, v[%d:%d], s[%d:%d] %s" % (V_BV - 4, V_BV - 3, V_BV - 2, abase, abase + 1, aflags))
        o("    s_mov_b64 exec, -1")
        o("L_nosr:")
    if ew:
        assert defer and qm != 2
        warm_proj()
    if tw:
        assert defer
        o("    v_and_b32 v%d, 3, v%d" % (V_PW, V_LANE))
        o("    v_lshlrev_b32 v%d, 19, v%d" % (V_PW, V_PW))
        o("    s_cmp_eq_u32 s%d, 1" % S_WAVE)
        o("    s_cbranch_scc0 L_tw1")
        o("    global_load_dword v%d, v%d, s[%d:%d]" % (V_DEF, V_PW, NXT_D, NXT_D + 1))
        o("L_tw1:")
        o("    s_cmp_eq_u32 s%d, 3" % S_WAVE)
        o("    s_cbranch_scc0 L_tw3")
        o("    v_mov_b32 v%d, 0" % V_PW)
        o("    buffer_load_dword v%d, v%d, s[%d:%d], 0 offen" % (V_DEF, V_PW, SRD_O, SRD_O + 3))
        o("    global_load_dword v%d, v%d, s[12:13]" % (V_DEF + 1, V_PW))
        o("L_tw3:")
    o("    v_lshlrev_b32 v%d, 8, v%d" % (V_OUT, V_X))
    o("    v_lshl_add_u32 v%d, v%d, 4, v%d" % (V_OUT, V_Y, V_OUT))
    o("    s_lshl_b32 s%d, s%d, 6" % (S_T + 2, S_WAVE))
    o("    v_add_u32 v%d, s%d, v%d" % (V_OUT, S_T + 2, V_OUT))
    o("    v_and_b32 v%d, 3, v%d" % (V_VR, V_X))
    o("    v_mul_u32_u24 v%d, %d, v%d" % (V_VR, DS, V_VR))
    o("    v_lshrrev_b32 v%d, 2, v%d" % (V_X, V_X))
    o("    v_lshl_add_u32 v%d, v%d, 4, v%d" % (V_X, V_Y, V_X))
    o("    v_lshl_add_u32 v%d, v%d, 4, v%d" % (V_VR, V_X, V_VR))
    o("    s_lshl_b32 s%d, s%d, 6" % (S_T + 2, S_WAVE))
    o("    s_add_u32 s%d, s%d, %d" % (S_T + 2, S_T + 2, LDS_VP))
    o("    v_add_u32 v%d, s%d, v%d" % (V_VR, S_T + 2, V_VR))
    o("    v_lshlrev_b32 v%d, 4, v%d" % (V_X, V_LANE))
    o("    s_mul_i32 s%d, s%d, %d" % (S_T + 2, S_WAVE, WS))
    o("    s_add_u32 s%d, s%d, %d" % (S_T + 2, S_T + 2, LDS_KP))
    o("    v_add_u32 v%d, s%d, v%d" % (V_PW, S_T + 2, V_X))
    for j in range(32):
        o("    v_mov_b32 v%d, 0" % (ACC + j))
    if rp:
        o("    s_mov_b32 s90, 0")
        o("    v_mov_b32 v%d, 0" % V_TR2)


    def allowed(n, req, e_done):
        cnt = n - 1 - req
        for qq in range(0, n // 2 + 1):
            if qq % 4 == 0 and 2 * qq >= req and (qq < n // 2 or e_done):
                cnt += NE
        return cnt

    def wait_of(m, p, h, extra=0):
        q = p + LA
        n = 2 * q + h
        N, gr = int(m[:-1]), m[-1]
        if gr == "p":
            if h == 1:
                return None
            req = n - N + 1
        else:
            req = n - N
        if h == 0:
            req = max(req, 2 * p + 1)
        elif req <= 2 * p + 1:
            return None
        big = 8000
        return allowed(n + big, req + big, h == 1) + (extra if req <= 7 else 0)

    def decide(tag):
        T0 = S_T + 6
        o("    s_waitcnt lgkmcnt(0)")
        if not noev:
            o("    s_cmp_eq_u32 s%d, s%d" % (S_PROG, S_RP))
            o("    s_cbranch_scc1 L_rp_%s" % tag)
            o("L_rpr_%s:" % tag)
            o("    s_cmp_eq_u32 s%d, s%d" % (S_PROG, S_EV))
            o("    s_cbranch_scc1 L_ev_%s" % tag)
        o("L_evr_%s:" % tag)
        if trace:
            o("    s_mov_b32 m0, s%d" % S_PROG)
            o("    s_nop 0")
            o("    v_writelane_b32 v%d, s%d, m0" % (V_BV, S_NOW))
        o("    s_sub_u32 s%d, s%d, s%d" % (T0, S_NOW, S_TM))
        o("    s_lshl_b32 s%d, s%d, 6" % (T0, T0))
        o("    s_sub_u32 s%d, s%d, s%d" % (T0, T0, S_ACC))
        if trace == 2:
            o("    v_writelane_b32 v%d, s%d, m0" % (V_TR2, T0))
        o("    s_add_u32 s%d, s%d, s%d" % (S_ACC, S_ACC, S_INC))
        o("    s_add_u32 s%d, s%d, 1" % (S_PROG, S_PROG))
        if force < 0 and tag == "post" and pdec != 1:
            if pdec == 0:
                o("    s_mov_b32 s%d, 0" % S_MODE)
        elif force < 0:
            if eg:
                o("    s_cmp_eq_u32 s%d, %d" % (S_PROG, 64 - eg))
                o("    s_cselect_b32 s%d, %d, 0" % (T0 + 1, egs))
                o("    s_ashr_i32 s%d, s%d, s%d" % (S_THI, S_THI, T0 + 1))
                if mm2:
                    o("    s_ashr_i32 s82, s82, s%d" % (T0 + 1))
            if mm2:
                o("    s_cmp_gt_i32 s%d, s82" % T0)
                o("    s_cselect_b32 s%d, 4, 0" % S_MODE)
                o("    s_cmp_gt_i32 s%d, s%d" % (T0, S_THI))
                o("    s_cselect_b32 s%d, 1, s%d" % (S_MODE, S_MODE))
            else:
                o("    s_cmp_gt_i32 s%d, s%d" % (T0, S_THI))
                o("    s_cselect_b32 s%d, 1, 0" % S_MODE)
            o("    s_cmp_lt_i32 s%d, s%d" % (T0, S_TLO))
            o("    s_cselect_b32 s%d, 2, s%d" % (S_MODE, S_MODE))
        if tail:
            o("    s_cmp_ge_u32 s%d, %d" % (S_PROG, 64 - tail))
            o("    s_cselect_b32 s%d, 1, s%d" % (S_MODE, S_MODE))
        if fin:
            o("    s_cmp_eq_u32 s%d, %d" % (S_PROG, 64 - fin))
            o("    s_cselect_b32 s%d, 3, s%d" % (S_MODE, S_MODE))
        if stamp:
            o("    s_and_b32 s%d, s%d, 1" % (T0, S_MODE))
            o("    s_add_u32 s%d, s%d, s%d" % (S_HI, S_HI, T0))
            o("    s_and_b32 s%d, s%d, 2" % (T0, S_MODE))
            o("    s_lshl_b32 s%d, s%d, 7" % (T0, T0))
            o("    s_add_u32 s%d, s%d, s%d" % (S_HI, S_HI, T0))
        events.append(tag)

    def decide_half(tag):
        T0 = S_T + 6
        o("    s_waitcnt lgkmcnt(0)")
        o("    s_sub_u32 s%d, s%d, s%d" % (T0, S_NOW, S_TM))
        o("    s_lshl_b32 s%d, s%d, 6" % (T0, T0))
        o("    s_sub_u32 s%d, s%d, s%d" % (T0, T0, S_ACC))
        o("    s_ashr_i32 s%d, s%d, 1" % (T0 + 1, S_INC))
        o("    s_add_u32 s%d, s%d, s%d" % (T0, T0, T0 + 1))
        if mm2:
            o("    s_cmp_gt_i32 s%d, s82" % T0)
            o("    s_cselect_b32 s%d, 4, 0" % S_MODE)
            o("    s_cmp_gt_i32 s%d, s%d" % (T0, S_THI))
            o("    s_cselect_b32 s%d, 1, s%d" % (S_MODE, S_MODE))
        else:
            o("    s_cmp_gt_i32 s%d, s%d" % (T0, S_THI))
            o("    s_cselect_b32 s%d, 1, 0" % S_MODE)
        o("    s_cmp_lt_i32 s%d, s%d" % (T0, S_TLO))
        o("    s_cselect_b32 s%d, 2, s%d" % (S_MODE, S_MODE))
        if stamp:
            o("    s_and_b32 s%d, s%d, 1" % (T0, S_MODE))
            o("    s_add_u32 s%d, s%d, s%d" % (S_HI, S_HI, T0))
            o("    s_and_b32 s%d, s%d, 2" % (T0, S_MODE))
            o("    s_lshl_b32 s%d, s%d, 7" % (T0, T0))
            o("    s_add_u32 s%d, s%d, s%d" % (S_HI, S_HI, T0))

    def emit_events():
        T0, T1 = S_T + 6, S_T + 7
        for tag in events:
            if noev:
                continue
            o("L_rp_%s:" % tag)
            o("    v_mov_b32 v%d, s%d" % (V_BV - 3, S_NOW))
            o("    v_mov_b32 v%d, 0x100" % (V_BV - 2))
            o("    s_mov_b64 exec, 1")
            if doat and akind == "atomic":
                o("    global_atomic_add_x2 v%d, v[%d:%d], s[%d:%d] %s" % (V_BO, V_BV - 3, V_BV - 2, abase, abase + 1, aflags))
            elif doat and akind == "store":
                o("    global_store_dwordx2 v%d, v[%d:%d], s[%d:%d] %s" % (V_BO, V_BV - 3, V_BV - 2, abase, abase + 1, aflags))
            elif doat and akind == "load":
                o("    global_load_dwordx2 v[%d:%d], v%d, s[%d:%d] %s" % (V_BV - 3, V_BV - 2, V_BO, abase, abase + 1, aflags))
            o("    s_mov_b64 exec, -1")
            o("    s_branch L_rpr_%s" % tag)
            o("L_ev_%s:" % tag)
            if nom:
                assert j0 + 1 < cal[1] + lag
                o("    s_cmp_eq_u32 s%d, %d" % (S_EV, j0))
                o("    s_cbranch_scc1 L_evl0_%s" % tag)
                o("    s_cmp_eq_u32 s%d, %d" % (S_EV, j0 + 1))
                o("    s_cbranch_scc1 L_evc0_%s" % tag)
            for k in range(1, len(cal)):
                o("    s_cmp_eq_u32 s%d, %d" % (S_EV, cal[k] + lag))
                o("    s_cbranch_scc1 L_evl%d_%s" % (k, tag))
                o("    s_cmp_eq_u32 s%d, %d" % (S_EV, cal[k] + lag + 1))
                o("    s_cbranch_scc1 L_evc%d_%s" % (k, tag))
            o("    s_branch L_evr_%s" % tag)
            if nom:
                jr = j0
                o("L_evl0_%s:" % tag)
                o("    s_load_dwordx2 s[%d:%d], s[16:17], %d" % (S_C1, S_C1 + 1, 0 if sl >= 0 else SLOT[0]))
                o("    s_mov_b32 s%d, %d" % (S_EV, jr + 1))
                o("    s_branch L_evr_%s" % tag)
                o("L_evc0_%s:" % tag)
                o("    s_mov_b32 s%d, %d" % (S_EV, cal[1] + lag))
                o("    s_lshr_b64 s[%d:%d], s[%d:%d], %d" % (S_C1, S_C1 + 1, S_C1, S_C1 + 1, nsh))
                o("    s_cmp_lg_u32 s%d, 256" % (S_C1 + 1))
                o("    s_cbranch_scc1 L_evr_%s" % tag)
                if stamp:
                    o("    s_add_u32 s%d, s%d, 0x10000" % (S_HI, S_HI))
                T1n = 16 * nom
                if sl >= 0:
                    o("    s_sub_u32 s%d, s%d, s%d" % (T0, S_TM, S_C1))
                    o("    s_mul_i32 s%d, s%d, %d" % (T0, T0, sl))
                    o("    s_sub_u32 s%d, s%d, s%d" % (S_INC, S_INC, T0))
                else:
                    o("    s_mov_b32 s%d, s%d" % (S_TM, S_C1))
                    o("    s_mov_b32 s%d, %d" % (S_INC, 4 * T1n))
                    o("    s_mov_b32 s%d, %d" % (S_ACC, T1n * (4 * (jr + 1) - (4 * cal[0] + 2 * st2) + delta)))
                    if dl8 or dh8:
                        o("    s_mov_b32 s%d, %d" % (S_THI, (T1n * (dh8 or 8 * dhi)) >> 3))
                        o("    s_mov_b32 s%d, %d" % (S_TLO, (-T1n * dl8) >> 3))
                    else:
                        o("    s_mov_b32 s%d, %d" % (S_THI, (T1n * dhi) >> tsh))
                        o("    s_mov_b32 s%d, %d" % (S_TLO, (-T1n * dlo) >> tsh))
                    if mm2:
                        o("    s_mov_b32 s82, %d" % ((T1n * dhi) >> (tsh + m2s)))
                o("    s_branch L_evr_%s" % tag)
            for k in range(1, len(cal)):
                jr = cal[k] + lag
                span = 16 if (k == 1 and n1) else cal[k] - cal[k - 1]
                assert span in (8, 16)
                o("L_evl%d_%s:" % (k, tag))
                if k == 1 and dold and not n1:
                    o("    s_load_dwordx2 s[%d:%d], s[16:17], %d" % (S_C1, S_C1 + 1, SLOT[0]))
                if dold:
                    o("    s_load_dwordx2 s[%d:%d], s[16:17], %d" % (S_C2, S_C2 + 1, SLOT[k]))
                o("    s_mov_b32 s%d, %d" % (S_EV, jr + 1))
                o("    s_branch L_evr_%s" % tag)
                o("L_evc%d_%s:" % (k, tag))
                o("    s_mov_b32 s%d, %s" % (S_EV, "0x7fffffff" if k == len(cal) - 1 else str(cal[k + 1] + lag)))
                if k == 1 and not n1:
                    o("    s_lshr_b64 s[%d:%d], s[%d:%d], %d" % (S_C1, S_C1 + 1, S_C1, S_C1 + 1, nsh))
                o("    s_lshr_b64 s[%d:%d], s[%d:%d], %d" % (S_C2, S_C2 + 1, S_C2, S_C2 + 1, nsh))
                if k == 1 and n1:
                    o("    s_mov_b32 s%d, s%d" % (T0, S_C2 + 1))
                    o("    s_mov_b32 s%d, %d" % (T1, 16 * n1))
                else:
                    o("    s_and_b32 s%d, s%d, s%d" % (T0, S_C1 + 1, S_C2 + 1))
                    o("    s_sub_u32 s%d, s%d, s%d" % (T1, S_C2, S_C1))
                o("    s_mov_b32 s%d, s%d" % (S_C1, S_C2))
                o("    s_mov_b32 s%d, s%d" % (S_C1 + 1, S_C2 + 1))
                o("    s_cmp_lg_u32 s%d, 256" % T0)
                o("    s_cbranch_scc1 L_evr_%s" % tag)
                if stamp:
                    o("    s_add_u32 s%d, s%d, 0x10000" % (S_HI, S_HI))
                if span == 8:
                    o("    s_lshl_b32 s%d, s%d, 1" % (T1, T1))
                o("    s_mov_b32 s%d, s%d" % (S_TM, S_C1))
                o("    s_lshl_b32 s%d, s%d, 2" % (S_INC, T1))
                o("    s_mul_i32 s%d, s%d, %d" % (S_ACC, T1, 4 * (jr + 1) - (4 * cal[k] + 2 * st2) + delta))
                if dl8 or dh8:
                    o("    s_mul_i32 s%d, s%d, %d" % (S_THI, T1, dh8 or 8 * dhi))
                    o("    s_mul_i32 s%d, s%d, %d" % (S_TLO, T1, -dl8))
                    o("    s_ashr_i32 s%d, s%d, 3" % (S_THI, S_THI))
                    o("    s_ashr_i32 s%d, s%d, 3" % (S_TLO, S_TLO))
                else:
                    o("    s_mul_i32 s%d, s%d, %d" % (S_THI, T1, dhi))
                    o("    s_mul_i32 s%d, s%d, %d" % (S_TLO, T1, -dlo))
                if tsh:
                    o("    s_ashr_i32 s%d, s%d, %d" % (S_THI, S_THI, tsh))
                    o("    s_ashr_i32 s%d, s%d, %d" % (S_TLO, S_TLO, tsh))
                if mm2:
                    o("    s_ashr_i32 s82, s%d, %d" % (S_THI, m2s))
                if eps:
                    o("    s_mul_i32 s%d, s%d, %d" % (T0, T1, eps))
                    o("    s_ashr_i32 s%d, s%d, 6" % (T0, T0))
                    o("    s_sub_u32 s%d, s%d, s%d" % (S_INC, S_INC, T0))
                o("    s_branch L_evr_%s" % tag)

    def round_mfma(s, zero=False):
        if esplit:
            r = V_ER + (s % ER) * 4
            for t in range(2):
                o("    v_perm_b32 v%d, v%d, v%d, s%d" % (V_EA + 2 * t, r + 2 + t, r + t, S_SELLO))
                o("    v_perm_b32 v%d, v%d, v%d, s%d" % (V_EA + 2 * t + 1, r + 2 + t, r + t, S_SELHI))
            e = "v[%d:%d]" % (V_EA, V_EA + 3)
        else:
            e = "a[%d:%d]" % (A_E + (s % ER) * 4, A_E + (s % ER) * 4 + 3)
        o("    s_nop 1")
        for dd in range(8):
            acc = ACC + dd * 4
            o("    v_mfma_f32_16x16x32_bf16 v[%d:%d], %s, v[%d:%d], %s" %
              (acc, acc + 3, e, T + dd * 4, T + dd * 4 + 3, "0" if zero else "v[%d:%d]" % (acc, acc + 3)))

    def xlane(op, reg, tmp):
        for sw in ("v_permlane32_swap_b32", "v_permlane16_swap_b32"):
            o("    v_mov_b32 v%d, v%d" % (tmp, reg))
            o("    s_nop 1")
            o("    %s v%d, v%d" % (sw, reg, tmp))
            o("    s_nop 1")
            o("    %s v%d, v%d, v%d" % (op, reg, reg, tmp))

    def k_read(dst, w):
        for dd in range(8):
            o("    ds_read_b128 v[%d:%d], v%d offset:%d" %
              (dst + 4 * dd, dst + 4 * dd + 3, V_X, LDS_KP + w * WS + dd * DS))

    def k_add(SUM, TMP):
        for j in range(32):
            o("    v_add_f32 v%d, v%d, v%d" % (SUM + j, SUM + j, TMP + j))

    def k_transpose(SUM, TMP):
        PA = MISC
        for dd in range(8):
            o("    v_cvt_pk_bf16_f32 v%d, v%d, v%d" % (PA + 2 * dd, SUM + 4 * dd, SUM + 4 * dd + 1))
            o("    v_cvt_pk_bf16_f32 v%d, v%d, v%d" % (PA + 2 * dd + 1, SUM + 4 * dd + 2, SUM + 4 * dd + 3))
        ID = MISC + 16
        o("    v_and_b32 v%d, 15, v%d" % (V_X, V_LANE))
        o("    v_lshrrev_b32 v%d, 4, v%d" % (V_Y, V_LANE))
        o("    v_lshlrev_b32 v%d, 2, v%d" % (V_Y, V_Y))
        o("    v_sub_u32 v%d, v%d, v%d" % (V_X, V_X, V_Y))
        o("    v_mov_b32 v%d, 0" % ID)
        o("    v_mov_b32 v%d, 0" % (ID + 1))
        o("    v_mov_b32 v%d, 0x3f80" % (ID + 2))
        o("    v_mov_b32 v%d, 0x3f800000" % (ID + 3))
        for j, (dst, src) in enumerate(((ID, ID + 2), (ID, ID + 3), (ID + 1, ID + 2), (ID + 1, ID + 3))):
            o("    v_cmp_eq_u32 vcc, %d, v%d" % (j, V_X))
            o("    s_nop 1")
            o("    v_cndmask_b32 v%d, v%d, v%d, vcc" % (dst, dst, src))
        o("    s_nop 1")
        for dd in range(8):
            o("    v_mfma_f32_16x16x16_bf16 v[%d:%d], v[%d:%d], v[%d:%d], 0" %
              (TMP + 4 * dd, TMP + 4 * dd + 3, PA + 2 * dd, PA + 2 * dd + 1, ID, ID + 1))

    def k_scores(SUM, TMP):
        PB = SUM
        o("    s_nop 7")
        for s_ in range(4):
            for j in range(4):
                o("    v_cvt_pk_bf16_f32 v%d, v%d, v%d" %
                  (PB + 4 * s_ + j, TMP + (2 * j) * 4 + s_, TMP + (2 * j + 1) * 4 + s_))
        SC = SUM + 16
        o("    s_nop 1")
        for s_ in range(4):
            c = "0" if s_ == 0 else "v[%d:%d]" % (SC, SC + 3)
            o("    v_mfma_f32_16x16x32_bf16 v[%d:%d], v[%d:%d], a[%d:%d], %s" %
              (SC, SC + 3, PB + 4 * s_, PB + 4 * s_ + 3, A_Q + 4 * s_, A_Q + 4 * s_ + 3, c))

    def k_softmax(SUM):
        SC, W, M = SUM + 16, SUM + 20, SUM + 22
        o("    s_mov_b32 s%d, 0x3db504f3" % (S_T + 2))
        o("    s_mov_b32 s%d, 0x3fb8aa3b" % (S_T + 3))
        o("    s_nop 7")

        def rb():
            o("    v_cvt_pk_bf16_f32 v%d, v%d, v%d" % (W, SC, SC + 1))
            o("    v_cvt_pk_bf16_f32 v%d, v%d, v%d" % (W + 1, SC + 2, SC + 3))
            o("    v_lshlrev_b32 v%d, 16, v%d" % (SC, W))
            o("    v_and_b32 v%d, 0xffff0000, v%d" % (SC + 1, W))
            o("    v_lshlrev_b32 v%d, 16, v%d" % (SC + 2, W + 1))
            o("    v_and_b32 v%d, 0xffff0000, v%d" % (SC + 3, W + 1))

        rb()
        for i in range(4):
            o("    v_mul_f32 v%d, s%d, v%d" % (SC + i, S_T + 2, SC + i))
        rb()
        o("    v_max_f32 v%d, v%d, v%d" % (M, SC, SC + 1))
        o("    v_max3_f32 v%d, v%d, v%d, v%d" % (M, SC + 2, SC + 3, M))
        xlane("v_max_f32", M, M + 1)
        for i in range(4):
            o("    v_sub_f32 v%d, v%d, v%d" % (SC + i, SC + i, M))
        for i in range(4):
            o("    v_mul_f32 v%d, s%d, v%d" % (SC + i, S_T + 3, SC + i))
        for i in range(4):
            o("    v_exp_f32 v%d, v%d" % (SC + i, SC + i))
        o("    s_nop 0")
        o("    v_add_f32 v%d, v%d, v%d" % (M, SC, SC + 1))
        o("    v_add_f32 v%d, v%d, v%d" % (M + 1, SC + 2, SC + 3))
        o("    v_add_f32 v%d, v%d, v%d" % (M, M, M + 1))
        xlane("v_add_f32", M, M + 1)
        o("    v_rcp_f32 v%d, v%d" % (M, M))
        o("    s_nop 0")
        for i in range(4):
            o("    v_mul_f32 v%d, v%d, v%d" % (SC + i, SC + i, M))
        o("    v_cvt_pk_bf16_f32 v%d, v%d, v%d" % (W, SC, SC + 1))
        o("    v_cvt_pk_bf16_f32 v%d, v%d, v%d" % (W + 1, SC + 2, SC + 3))
        o("    v_lshlrev_b32 v%d, 3, v%d" % (V_X, V_LANE))
        o("    ds_write_b64 v%d, v[%d:%d] offset:%d" % (V_X, W, W + 1, LDS_P))

    def v_read(X):
        o("    v_lshlrev_b32 v%d, 3, v%d" % (V_X, V_LANE))
        o("    ds_read_b64 v[%d:%d], v%d offset:%d" % (MISC, MISC + 1, V_X, LDS_P))
        for w in range(4):
            for h in range(2):
                r = X + (w * 2 + h) * 4
                o("    ds_read_b128 v[%d:%d], v%d offset:%d" % (r, r + 3, V_VR, w * WS + h * 4 * DS))

    def v_prod(X):
        for j in range(8):
            o("    v_add_f32 v%d, v%d, v%d" % (X + j, X + j, X + 8 + j))
        for j in range(8):
            o("    v_add_f32 v%d, v%d, v%d" % (X + 16 + j, X + 16 + j, X + 24 + j))
        for j in range(8):
            o("    v_add_f32 v%d, v%d, v%d" % (X + j, X + j, X + 16 + j))
        VB = MISC + 4
        for h in range(2):
            o("    v_cvt_pk_bf16_f32 v%d, v%d, v%d" % (VB + 2 * h, X + 4 * h, X + 4 * h + 1))
            o("    v_cvt_pk_bf16_f32 v%d, v%d, v%d" % (VB + 2 * h + 1, X + 4 * h + 2, X + 4 * h + 3))
        o("    s_nop 1")
        for h in range(2):
            o("    v_mfma_f32_16x16x16_bf16 v[%d:%d], v[%d:%d], v[%d:%d], 0" %
              (X + 16 + 4 * h, X + 16 + 4 * h + 3, VB + 2 * h, VB + 2 * h + 1, MISC, MISC + 1))

    def ramp_stamp(tag):
        o("    s_cmp_ge_u32 s90, %d" % (63 + rp))
        o("    s_cbranch_scc1 L_rs_%s" % tag)
        o("    s_memrealtime s[92:93]")
        o("    s_sub_u32 s91, s90, %d" % (rp - 1))
        o("    s_cmp_lt_i32 s91, 0")
        o("    s_cselect_b32 s91, 0, s91")
        o("    s_mov_b32 m0, s91")
        o("    s_waitcnt lgkmcnt(0)")
        o("    v_writelane_b32 v%d, s92, m0" % V_TR2)
        o("L_rs_%s:" % tag)
        o("    s_add_u32 s90, s90, 1")

    def ih_piece(kind, p):
        k = p - ihp
        if kind == "K" and 0 <= k < 6:
            o("    s_cmp_lg_u32 s%d, s%d" % (S_WAVE, S_PMI))
            o("    s_cbranch_scc1 L_ihs%d" % p)
            if k == 0:
                o("    v_lshlrev_b32 v%d, 4, v%d" % (V_X, V_LANE))
                k_read(V_S2, 0)
                k_read(V_T2, 1)
            elif k in (1, 2):
                o("    s_waitcnt lgkmcnt(0)")
                k_add(V_S2, V_T2)
                k_read(V_T2, k + 1)
            elif k == 3:
                o("    s_waitcnt lgkmcnt(0)")
                k_add(V_S2, V_T2)
                k_transpose(V_S2, V_T2)
            elif k == 4:
                k_scores(V_S2, V_T2)
            else:
                k_softmax(V_S2)
            o("L_ihs%d:" % p)
        if kind == "V":
            if k == 0:
                v_read(V_T2)
            elif k == 1:
                o("    s_waitcnt lgkmcnt(0)")
                v_prod(V_T2)
            elif k == 2:
                o("    s_nop 7")
                for i in range(4):
                    o("    v_cvt_pk_bf16_f32 v%d, v%d, v%d" % (V_DEF + i, V_T2 + 16 + 2 * i, V_T2 + 16 + 2 * i + 1))

    S_PMI = 63

    def body(mode, m, post=False, extra=0, kind=""):
        o("L_body_%s:" % mode)
        for p in range(8):
            s, a = divmod(p, 4)
            q = p + LA
            if half and p == 4 and not post:
                for code, other in ((0, "mid"), (1, "hi"), (2, "lo"), (4, "mi2")):
                    if other != mode and other != "mid" and (other != "mi2" or mm2):
                        o("    s_cmp_eq_u32 s%d, %d" % (S_MODE, code))
                        o("    s_cbranch_scc1 L_bodyB_%s" % other)
                if mode != "mid":
                    o("    s_cmp_eq_u32 s%d, 0" % S_MODE)
                    o("    s_cbranch_scc1 L_bodyB_mid")
                o("L_bodyB_%s:" % mode)
            if p == 0 and not post:
                step_inc()
                eoff()
            if p == 4:
                step_inc()
                if not post and not kind:
                    o("    s_cmp_eq_u32 s%d, 1" % S_CNT)
                    o("    s_cbranch_scc1 L_sw_%s" % mode)
                    o("L_swr_%s:" % mode)
                    stubs.append(mode)
                eoff()
            if kind and p == ihp:
                assert p in wsyl
                o("    s_waitcnt lgkmcnt(0)")
            if p in wsyl and not post:
                if wskip:
                    o("    s_cmp_ge_u32 s%d, %d" % (S_CNT, 16 - wskip))
                    o("    s_cbranch_scc1 L_nb%d_%s" % (p, mode))
                    o("    s_barrier")
                    o("L_nb%d_%s:" % (p, mode))
                else:
                    o("    s_barrier")
            if ctl and p == pc and pre:
                decide(mode)
                if ps == pc and not notime:
                    o("    s_memrealtime s[%d:%d]" % (S_NOW, S_NOW + 1))
            if post and p < 4:
                younger = 15 - (2 * p + 1) + NE
                o("    s_waitcnt vmcnt(%d)" % younger)
                if rp:
                    ramp_stamp("%s_%d" % (mode, p))
                if pst and not pro8 and p in (0, 3):
                    o("    s_cmp_eq_u32 s%d, 0" % S_MI)
                    o("    s_cbranch_scc0 L_nopst%d" % p)
                    pstp(4 if p == 0 else 5)
                    o("L_nopst%d:" % p)
            else:
                for h in range(2):
                    w = wait_of(m, p, h, extra)
                    if w is not None:
                        o("    s_waitcnt vmcnt(%d)" % w)
                    if rp and h == 0:
                        ramp_stamp("%s_%d" % (mode, p))
                    if h == 0 and q % 4 == 0:
                        issue_one(2 * q)
                        issue_E(q // 4)
                    else:
                        issue_one(2 * q + h)
                if pst and pro8 and p in (0, 3):
                    o("    s_cmp_eq_u32 s%d, 0" % S_PROG)
                    o("    s_cbranch_scc0 L_nopst%d_%s" % (p, mode))
                    pstp(4 if p == 0 else 5)
                    o("L_nopst%d_%s:" % (p, mode))
            if half:
                if p == 4 or (p == 0 and not post):
                    o("    s_memrealtime s[%d:%d]" % (S_NOW, S_NOW + 1))
                if p == hca and not post:
                    decide_half(mode)
                if p == hcb:
                    decide(mode)
            else:
                if ctl and p == ps and ps != pc and not notime:
                    o("    s_memrealtime s[%d:%d]" % (S_NOW, S_NOW + 1))
                if ctl and p == pc and not pre:
                    decide(mode)
                    if ps == pc and not notime:
                        o("    s_memrealtime s[%d:%d]" % (S_NOW, S_NOW + 1))
            if kind:
                ih_piece(kind, p)
            slot = p % (4 * RS)
            xb = RING + slot * 8
            yb = xb + 4
            for c in range(4):
                o("    v_perm_b32 v%d, v%d, v%d, s%d" % (T + (2 * c) * 4 + a, yb + c, xb + c, S_SELLO))
                o("    v_perm_b32 v%d, v%d, v%d, s%d" % (T + (2 * c + 1) * 4 + a, yb + c, xb + c, S_SELHI))
            if a == 3:
                round_mfma(s, zero=bool(kind) and s == 0)
        o("    s_sub_u32 s%d, s%d, 1" % (S_CNT, S_CNT))
        if not post and not kind:
            o("    s_cmp_eq_u32 s%d, 0" % S_CNT)
            o("    s_cbranch_scc1 L_matend")

    def body_fin():
        o("L_body_fin:")
        tstp(0)
        step_inc()
        eoff()
        issue_one(8)
        issue_E(1)
        for n in range(9, 16):
            issue_one(n)
        for p in range(8):
            s, a = divmod(p, 4)
            younger = 15 - (2 * p + 1) + (NE if p < 4 else 0)
            o("    s_waitcnt vmcnt(%d)" % younger)
            if p == 0:
                tstp(1)
            if p == 7:
                tstp(2)
            xb = RING + p * 8
            yb = xb + 4
            for c in range(4):
                o("    v_perm_b32 v%d, v%d, v%d, s%d" % (T + (2 * c) * 4 + a, yb + c, xb + c, S_SELLO))
                o("    v_perm_b32 v%d, v%d, v%d, s%d" % (T + (2 * c + 1) * 4 + a, yb + c, xb + c, S_SELHI))
            if a == 3:
                round_mfma(s)
        o("    s_branch L_matend")

    pstp(3)
    if pro8 and bp:
        o("    s_mov_b32 s%d, 16" % S_CNT)
        if m0:
            o("    s_mov_b32 s%d, %d" % (S_MODE, m0))
        if mfirst:
            assert qm in (0, 1)
            if qm == 1:
                o("    s_bitcmp1_b32 s%d, 0" % S_WAVE)
                o("    s_cbranch_scc1 L_dispatch")
            o("    s_branch L_body_first")
        else:
            o("    s_branch L_dispatch")
    o("L_outer:")
    o("    s_mov_b32 s%d, 16" % S_CNT)
    if bp:
        o("; first iteration of a matrix: both rounds were issued ahead of the previous handler")
        body("post", mpost or mmid, post=True)
    o("; body selection by window mode: 0 mid, 1 hi, 2 lo, 3 last iteration")
    o("L_dispatch:")
    modes = [("mid", mmid)]
    if (ctl and force < 0) or force == 1 or tail:
        modes.append(("hi", mhi))
        o("    s_cmp_eq_u32 s%d, 1" % S_MODE)
        o("    s_cbranch_scc1 L_body_hi")
    if (ctl and force < 0) or force == 2:
        modes.append(("lo", mlo))
        o("    s_cmp_eq_u32 s%d, 2" % S_MODE)
        o("    s_cbranch_scc1 L_body_lo")
    if mm2:
        modes.append(("mi2", mm2))
        o("    s_cmp_eq_u32 s%d, 4" % S_MODE)
        o("    s_cbranch_scc1 L_body_mi2")
    if fin:
        assert ctl
        o("    s_cmp_eq_u32 s%d, 3" % S_MODE)
        o("    s_cbranch_scc1 L_body_fin")
    for mode, m in modes:
        body(mode, m)
        o("    s_branch L_dispatch")
    if mfirst:
        body("first", mfirst, extra=4)
        o("    s_branch L_dispatch")
    if fin:
        body_fin()
    o("L_matend:")
    if ih:
        assert bp and defer and fin and ihp <= 2 and not half and not esplit and hf < 0
        o("    s_cmp_eq_u32 s%d, 3" % S_MI)
        o("    s_cbranch_scc1 L_final")
        o("    s_and_b32 s%d, s%d, 1" % (S_T, S_MI))
        o("    s_mul_i32 s%d, s%d, %d" % (S_T + 1, S_T, 4 * WS))
        o("    v_add_u32 v%d, s%d, v%d" % (V_X, S_T + 1, V_PW))
        o("    s_mov_b32 s%d, s%d" % (S_PMI, S_MI))
        o("    s_add_u32 s%d, s%d, 1" % (S_MI, S_MI))
        o("    s_mov_b32 s%d, 16" % S_CNT)
        o("    s_nop 7")
        for dd in range(8):
            o("    ds_write_b128 v%d, v[%d:%d] offset:%d" % (V_X, ACC + 4 * dd, ACC + 4 * dd + 3, dd * DS))
        o("    s_cmp_eq_u32 s%d, 1" % S_T)
        o("    s_cbranch_scc1 L_body_ihV")
        body("ihK", mih or mmid, kind="K")
        o("    s_branch L_dispatch")
        body("ihV", mih or mmid, kind="V")
        o("    s_branch L_dispatch")
        o("; last matrix: reduction, product and both stores")
        o("L_final:")
        o("    v_add_u32 v%d, %d, v%d" % (V_X, 4 * WS, V_PW))
        o("    s_nop 7")
        o("    s_waitcnt lgkmcnt(0)")
        for dd in range(8):
            o("    ds_write_b128 v%d, v[%d:%d] offset:%d" % (V_X, ACC + 4 * dd, ACC + 4 * dd + 3, dd * DS))
        o("    s_waitcnt lgkmcnt(0)")
        tstp(3)
        o("    s_barrier")
        if tst:
            o("    s_memrealtime s[%d:%d]" % (PST[4], PST[4] + 1))
        v_read(T)
        o("    s_waitcnt lgkmcnt(0)")
        v_prod(T)
        o("    s_nop 7")
        for i in range(4):
            o("    v_cvt_pk_bf16_f32 v%d, v%d, v%d" % (MISC + 8 + i, T + 16 + 2 * i, T + 16 + 2 * i + 1))
        o("    buffer_store_dwordx4 v[%d:%d], v%d, s[%d:%d], 0 offen %s" %
          (V_DEF, V_DEF + 3, V_OUT, SRD_O, SRD_O + 3, oflags))
        o("    s_mov_b32 s%d, 0x%x" % (S_T + 2, 1 << QSH))
        o("    buffer_store_dwordx4 v[%d:%d], v%d, s[%d:%d], s%d offen %s" %
          (MISC + 8, MISC + 11, V_OUT, SRD_O, SRD_O + 3, S_T + 2, oflags))
        tstp(5)
        o("    s_branch L_fin")
    if bp and not ih:
        o("    s_cmp_eq_u32 s%d, 3" % S_MI)
        o("    s_cbranch_scc1 L_nopf")
        step_inc()
        eoff()
        issue_one(8)
        issue_E(1)
        for n in range(9, 16):
            issue_one(n)
        o("L_nopf:")
    mark = len(L)
    o("    s_and_b32 s%d, s%d, 1" % (S_T, S_MI))
    o("    s_mul_i32 s%d, s%d, %d" % (S_T + 1, S_T, 4 * WS))
    o("    v_add_u32 v%d, s%d, v%d" % (V_X, S_T + 1, V_PW))
    o("    s_nop 7")
    if ctl:
        o("    s_waitcnt lgkmcnt(0)")
    for dd in range(8):
        o("    ds_write_b128 v%d, v[%d:%d] offset:%d" % (V_X, ACC + 4 * dd, ACC + 4 * dd + 3, dd * DS))
    o("    s_waitcnt lgkmcnt(0)")
    o("    s_barrier")
    o("    s_cmp_eq_u32 s%d, 1" % S_T)
    o("    s_cbranch_scc1 L_vend")
    o("    s_cmp_lg_u32 s%d, s%d" % (S_WAVE, S_MI))
    o("    s_cbranch_scc1 L_mat_done")
    SUM, TMP, PA = ACC, T, MISC
    o("    v_lshlrev_b32 v%d, 4, v%d" % (V_X, V_LANE))
    for w in range(4):
        dst = SUM if w == 0 else TMP
        for dd in range(8):
            o("    ds_read_b128 v[%d:%d], v%d offset:%d" %
              (dst + 4 * dd, dst + 4 * dd + 3, V_X, LDS_KP + w * WS + dd * DS))
        if w > 0:
            for dd in range(8):
                o("    s_waitcnt lgkmcnt(%d)" % (7 - dd))
                for i in range(4):
                    o("    v_add_f32 v%d, v%d, v%d" % (SUM + 4 * dd + i, SUM + 4 * dd + i, TMP + 4 * dd + i))
    for dd in range(8):
        o("    v_cvt_pk_bf16_f32 v%d, v%d, v%d" % (PA + 2 * dd, SUM + 4 * dd, SUM + 4 * dd + 1))
        o("    v_cvt_pk_bf16_f32 v%d, v%d, v%d" % (PA + 2 * dd + 1, SUM + 4 * dd + 2, SUM + 4 * dd + 3))
    ID = MISC + 16
    o("    v_and_b32 v%d, 15, v%d" % (V_X, V_LANE))
    o("    v_lshrrev_b32 v%d, 4, v%d" % (V_Y, V_LANE))
    o("    v_lshlrev_b32 v%d, 2, v%d" % (V_Y, V_Y))
    o("    v_sub_u32 v%d, v%d, v%d" % (V_X, V_X, V_Y))
    o("    v_mov_b32 v%d, 0" % ID)
    o("    v_mov_b32 v%d, 0" % (ID + 1))
    o("    v_mov_b32 v%d, 0x3f80" % (ID + 2))
    o("    v_mov_b32 v%d, 0x3f800000" % (ID + 3))
    for j, (dst, src) in enumerate(((ID, ID + 2), (ID, ID + 3), (ID + 1, ID + 2), (ID + 1, ID + 3))):
        o("    v_cmp_eq_u32 vcc, %d, v%d" % (j, V_X))
        o("    s_nop 1")
        o("    v_cndmask_b32 v%d, v%d, v%d, vcc" % (dst, dst, src))
    o("    s_nop 1")
    for dd in range(8):
        o("    v_mfma_f32_16x16x16_bf16 v[%d:%d], v[%d:%d], v[%d:%d], 0" %
          (TMP + 4 * dd, TMP + 4 * dd + 3, PA + 2 * dd, PA + 2 * dd + 1, ID, ID + 1))
    o("    s_nop 7")
    PB = SUM
    for s in range(4):
        for j in range(4):
            o("    v_cvt_pk_bf16_f32 v%d, v%d, v%d" %
              (PB + 4 * s + j, TMP + (2 * j) * 4 + s, TMP + (2 * j + 1) * 4 + s))
    SC = SUM + 16
    if qwait:
        o("    s_waitcnt vmcnt(0)")
    if qm == 2:
        assert bp and not noE
        o("    s_waitcnt vmcnt(%d)" % (16 + 2 * NE))
    for s in range(4):
        c = "0" if s == 0 else "v[%d:%d]" % (SC, SC + 3)
        o("    v_mfma_f32_16x16x32_bf16 v[%d:%d], v[%d:%d], a[%d:%d], %s" %
          (SC, SC + 3, PB + 4 * s, PB + 4 * s + 3, A_Q + 4 * s, A_Q + 4 * s + 3, c))
    o("    s_mov_b32 s%d, 0x3db504f3" % (S_T + 2))
    o("    s_mov_b32 s%d, 0x3fb8aa3b" % (S_T + 3))
    o("    s_nop 7")
    W = SUM + 20
    M = SUM + 22

    def round_bf16():
        o("    v_cvt_pk_bf16_f32 v%d, v%d, v%d" % (W, SC, SC + 1))
        o("    v_cvt_pk_bf16_f32 v%d, v%d, v%d" % (W + 1, SC + 2, SC + 3))
        o("    v_lshlrev_b32 v%d, 16, v%d" % (SC, W))
        o("    v_and_b32 v%d, 0xffff0000, v%d" % (SC + 1, W))
        o("    v_lshlrev_b32 v%d, 16, v%d" % (SC + 2, W + 1))
        o("    v_and_b32 v%d, 0xffff0000, v%d" % (SC + 3, W + 1))

    round_bf16()
    for i in range(4):
        o("    v_mul_f32 v%d, s%d, v%d" % (SC + i, S_T + 2, SC + i))
    round_bf16()
    o("    v_max_f32 v%d, v%d, v%d" % (M, SC, SC + 1))
    o("    v_max3_f32 v%d, v%d, v%d, v%d" % (M, SC + 2, SC + 3, M))

    def xlane(op, reg, tmp):
        for sw in ("v_permlane32_swap_b32", "v_permlane16_swap_b32"):
            o("    v_mov_b32 v%d, v%d" % (tmp, reg))
            o("    s_nop 1")
            o("    %s v%d, v%d" % (sw, reg, tmp))
            o("    s_nop 1")
            o("    %s v%d, v%d, v%d" % (op, reg, reg, tmp))

    xlane("v_max_f32", M, M + 1)
    for i in range(4):
        o("    v_sub_f32 v%d, v%d, v%d" % (SC + i, SC + i, M))
    for i in range(4):
        o("    v_mul_f32 v%d, s%d, v%d" % (SC + i, S_T + 3, SC + i))
    for i in range(4):
        o("    v_exp_f32 v%d, v%d" % (SC + i, SC + i))
    o("    s_nop 0")
    o("    v_add_f32 v%d, v%d, v%d" % (M, SC, SC + 1))
    o("    v_add_f32 v%d, v%d, v%d" % (M + 1, SC + 2, SC + 3))
    o("    v_add_f32 v%d, v%d, v%d" % (M, M, M + 1))
    xlane("v_add_f32", M, M + 1)
    o("    v_rcp_f32 v%d, v%d" % (M, M))
    o("    s_nop 0")
    for i in range(4):
        o("    v_mul_f32 v%d, v%d, v%d" % (SC + i, SC + i, M))
    o("    v_cvt_pk_bf16_f32 v%d, v%d, v%d" % (W, SC, SC + 1))
    o("    v_cvt_pk_bf16_f32 v%d, v%d, v%d" % (W + 1, SC + 2, SC + 3))
    o("    v_lshlrev_b32 v%d, 3, v%d" % (V_X, V_LANE))
    o("    ds_write_b64 v%d, v[%d:%d] offset:%d" % (V_X, W, W + 1, LDS_P))
    o("    s_waitcnt lgkmcnt(0)")
    o("    s_branch L_mat_done")

    o("L_vend:")
    PP = MISC
    o("    v_lshlrev_b32 v%d, 3, v%d" % (V_X, V_LANE))
    o("    ds_read_b64 v[%d:%d], v%d offset:%d" % (PP, PP + 1, V_X, LDS_P))
    for w in range(4):
        for h in range(2):
            r = T + (w * 2 + h) * 4
            o("    ds_read_b128 v[%d:%d], v%d offset:%d" % (r, r + 3, V_VR, w * WS + h * 4 * DS))
    o("    s_waitcnt lgkmcnt(4)")
    for j in range(8):
        o("    v_add_f32 v%d, v%d, v%d" % (T + j, T + j, T + 8 + j))
    o("    s_waitcnt lgkmcnt(0)")
    for j in range(8):
        o("    v_add_f32 v%d, v%d, v%d" % (T + 16 + j, T + 16 + j, T + 24 + j))
    for j in range(8):
        o("    v_add_f32 v%d, v%d, v%d" % (T + j, T + j, T + 16 + j))
    VB = MISC + 4
    for h in range(2):
        o("    v_cvt_pk_bf16_f32 v%d, v%d, v%d" % (VB + 2 * h, T + 4 * h, T + 4 * h + 1))
        o("    v_cvt_pk_bf16_f32 v%d, v%d, v%d" % (VB + 2 * h + 1, T + 4 * h + 2, T + 4 * h + 3))
    OO = T + 16
    o("    s_lshr_b32 s%d, s%d, 1" % (S_T + 2, S_MI))
    o("    s_lshl_b32 s%d, s%d, %d" % (S_T + 2, S_T + 2, QSH))
    if hf >= 0:
        o("    s_xor_b32 s%d, s%d, s%d" % (S_T + 2, S_T + 2, S_FL))
    for h in range(2):
        o("    v_mfma_f32_16x16x16_bf16 v[%d:%d], v[%d:%d], v[%d:%d], 0" %
          (OO + 4 * h, OO + 4 * h + 3, VB + 2 * h, VB + 2 * h + 1, PP, PP + 1))
    o("    s_nop 7")
    for i in range(4):
        o("    v_cvt_pk_bf16_f32 v%d, v%d, v%d" % (MISC + 8 + i, OO + 2 * i, OO + 2 * i + 1))
    if noout or defer:
        o("    s_cmp_eq_u32 s%d, 1" % S_MI)
        o("    s_cbranch_scc0 L_store")
        if defer:
            for i in range(4):
                o("    v_mov_b32 v%d, v%d" % (V_DEF + i, MISC + 8 + i))
        o("    s_branch L_mat_done")
        o("L_store:")
        if defer:
            o("    buffer_store_dwordx4 v[%d:%d], v%d, s[%d:%d], %s offen %s" %
              (V_DEF, V_DEF + 3, V_OUT, SRD_O, SRD_O + 3, "s%d" % S_FL if hf >= 0 else "0", oflags))
    o("    buffer_store_dwordx4 v[%d:%d], v%d, s[%d:%d], s%d offen %s" %
      (MISC + 8, MISC + 11, V_OUT, SRD_O, SRD_O + 3, S_T + 2, oflags))

    o("L_mat_done:")
    o("    s_add_u32 s%d, s%d, 1" % (S_MI, S_MI))
    o("    s_cmp_eq_u32 s%d, 4" % S_MI)
    o("    s_cbranch_scc1 L_fin")
    for j in range(32):
        o("    v_mov_b32 v%d, 0" % (ACC + j))
    o("    s_branch L_outer")
    if ih:
        del L[mark:]

    if ctl:
        o("; ---- progress reports (L_rp) and progress line updates (L_ev) ----")
        emit_events()
    o("; ---- load side moves on to the next matrix ----")
    for tag in stubs:
        o("L_sw_%s:" % tag)
        if qm == 2:
            o("    s_cmp_lg_u32 s%d, s%d" % (S_LM, S_WAVE))
            o("    s_cbranch_scc1 L_swq_%s" % tag)
            o("    s_bitcmp1_b32 s%d, 0" % S_WAVE)
            o("    s_cbranch_scc1 L_swq_%s" % tag)
            o("    v_and_b32 v%d, 15, v%d" % (V_X, V_LANE))
            o("    v_lshrrev_b32 v%d, 4, v%d" % (V_Y, V_LANE))
            load_q(V_X, V_Y, V_X, S_T + 6)
            o("L_swq_%s:" % tag)
        o("    s_mov_b32 s%d, s%d" % (S_OFF, S_OFF0))
        if general:
            o("    s_mov_b32 s%d, 0" % S_STP)
        if hf >= 0:
            o("    s_add_u32 s%d, s%d, s%d" % (S_T + 4, SRD_D, S_ADV))
            o("    s_addc_u32 s%d, s%d, s%d" % (S_T + 5, SRD_D + 1, S_ADVH))
        else:
            o("    s_add_u32 s%d, s%d, 0x%x" % (S_T + 4, SRD_D, 1 << mb))
            o("    s_addc_u32 s%d, s%d, 0" % (S_T + 5, SRD_D + 1))
        o("    s_mov_b32 s%d, s%d" % (SRD_D, NXT_D))
        o("    s_mov_b32 s%d, s%d" % (SRD_D + 1, NXT_D + 1))
        o("    s_mov_b32 s%d, s%d" % (NXT_D, S_T + 4))
        o("    s_mov_b32 s%d, s%d" % (NXT_D + 1, S_T + 5))
        o("    s_mov_b32 s%d, s%d" % (S_T + 4, SRD_P))
        o("    s_mov_b32 s%d, s%d" % (S_T + 5, SRD_P + 1))
        o("    s_mov_b32 s%d, s%d" % (SRD_P, NXT_P))
        o("    s_mov_b32 s%d, s%d" % (SRD_P + 1, NXT_P + 1))
        o("    s_mov_b32 s%d, s%d" % (NXT_P, S_T + 4))
        o("    s_mov_b32 s%d, s%d" % (NXT_P + 1, S_T + 5))
        o("    s_add_u32 s%d, s%d, 1" % (S_LM, S_LM))
        o("    s_cmp_eq_u32 s%d, 4" % S_LM)
        o("    s_cselect_b32 s%d, 0, 0x%x" % (SRD_D + 2, DSZ))
        o("    s_cselect_b32 s%d, 0, 0x20000" % (SRD_P + 2))
        o("    s_branch L_swr_%s" % tag)

    o("L_fin:")
    if stamp:
        o("    s_waitcnt vmcnt(0)")
        o("    s_memrealtime s[62:63]")
        o("    s_getreg_b32 s58, hwreg(HW_REG_XCC_ID)")
        o("    s_getreg_b32 s59, hwreg(HW_REG_HW_ID)")
        o("    s_waitcnt lgkmcnt(0)")
        o("    s_lshl_b32 s%d, s2, 2" % S_T)
        o("    s_add_u32 s%d, s%d, s%d" % (S_T, S_T, S_WAVE))
        o("    s_lshl_b32 s%d, s%d, 4" % (S_T, S_T))
        o("    v_mov_b32 v4, s60")
        o("    v_mov_b32 v5, s62")
        o("    v_mov_b32 v6, s58")
        if pstamp:
            o("    s_sub_u32 s82, s82, s60")
        o("    v_mov_b32 v7, s%d" % (82 if pstamp else (S_HI if ctl else 59)))
        o("    v_mov_b32 v2, s%d" % S_T)
        o("    global_store_dwordx4 v2, v[4:7], s[18:19]")
        if pst:
            o("    s_lshl_b32 s%d, s%d, 1" % (S_T + 1, S_T))
            o("    s_add_u32 s%d, s%d, 0x60000" % (S_T + 1, S_T + 1))
            o("    v_mov_b32 v2, s%d" % (S_T + 1))
            for k in range(6):
                o("    s_sub_u32 s%d, s%d, s60" % (PST[k], PST[k]))
                o("    v_mov_b32 v%d, s%d" % (8 + k, PST[k]))
            o("    global_store_dwordx4 v2, v[8:11], s[18:19]")
            o("    global_store_dwordx2 v2, v[12:13], s[18:19] offset:16")
        if trace or rp:
            o("    s_lshl_b32 s%d, s%d, 4" % (S_T, S_T))
            o("    s_add_u32 s%d, s%d, 0x10000" % (S_T, S_T))
            o("    v_lshlrev_b32 v2, 2, v0")
            o("    v_add_u32 v2, s%d, v2" % S_T)
            o("    global_store_dword v2, v%d, s[18:19]" % V_BV)
            if trace == 2 or rp:
                o("    v_add_u32 v2, 0x40000, v2")
                o("    global_store_dword v2, v%d, s[18:19]" % V_TR2)
    o("L_end:")
    o("    s_endpgm")
    nvg = max(accum_offset + na, 264)
    o('.section .rodata,"a"')
    o(".p2align 6")
    o(".amdhsa_kernel %s_kernel" % NAME)
    o("  .amdhsa_next_free_vgpr %d" % nvg)
    o("  .amdhsa_next_free_sgpr %d" % (96 if pst or rp else 88))
    o("  .amdhsa_accum_offset %d" % accum_offset)
    o("  .amdhsa_group_segment_fixed_size 0")
    o("  .amdhsa_kernarg_size 64")
    o("  .amdhsa_user_sgpr_count 2")
    o("  .amdhsa_user_sgpr_kernarg_segment_ptr 1")
    o("  .amdhsa_system_sgpr_workgroup_id_x 1")
    o("  .amdhsa_float_denorm_mode_32 3")
    o(".end_amdhsa_kernel")
    return "\n".join(L) + "\n"


if __name__ == "__main__":
    out = sys.argv[1]
    kw = {}
    for a in sys.argv[2:]:
        k, v = a.split("=")
        if k not in ("flags", "eflags", "oflags", "mlo", "mmid", "mhi", "cal", "aflags", "akind", "mpost", "mfirst", "xm", "jb", "gb", "wb", "sb", "pb", "af", "jx", "mm2", "wsy", "ewf", "mih"):
            v = int(v)
        kw[k] = v
    open(out, "w").write(gen(**kw))
```

```python
import sys

NAME = "standalone__low_rank_proj_linformer__sampling"
HEADER = open("cdna_kernels/%s.s.ref" % NAME).read().split("; Override launch")[0]

DOC = """
Linformer attention: kp = E.K, vp = F.V (rank 16), p = softmax(bf16(q.kp^T) * 128^-0.5), out = p.vp.
The kernel is bound by the 1 GiB read of K and V.

Work split: 256 workgroups x 4 waves, one workgroup per CU, two heads per workgroup.
A workgroup streams K(h0), V(h0), K(h1), V(h1); a round covers 128 rows (32 KiB), wave w takes
rows [32w, 32w+32).  Per round a wave issues 8 dwordx4 loads into a register ring (two rounds deep),
transposes 8x8 blocks with v_perm and accumulates E^T-fragment x data with 8 MFMA 16x16x32.
At the end of a matrix the four partial sums are added through LDS; one wave does the scores and the
softmax, all four waves do p.vp.  The first head's output stays in registers until the end.

Load-window balancing: the dies get unequal shares of the memory bandwidth, and the slowest die sets the
run time.  The loop body exists three times and differs only in how many loads it keeps in flight
(lo / mid / hi).  A few waves add their clock value to counters in d_debug at fixed iterations; the mean of
these reports gives the grid-wide progress line.  Once per iteration each wave compares its clock with
the line and picks the body: hi when it lags, lo when it leads.  The choice changes timing only, never
the result, and no wave ever waits on the clock or on another workgroup.
"""


def gen(flags="nt", eflags="sc1", oflags="", stamp=0, force=-1, ctl=1,
        mlo="5s", mmid="6p", mhi="8p", dhi=1, dlo=1, cal="9,25", lag=8, delta=0, eps=0, ps=0, pc=6,
        tail=0, notime=0, pre=0, noev=0, trace=0,
        doat=1, dold=1, aflags="sc1", akind="atomic", abase=16, wmap=0, amask=0, aval=0,
        ns=256, stag=4, noout=0, defer=0, bp=0, noE=0, mpost="", qwait=0, pstamp=0, fin=0, tsh=0, pst=0, early=0, pf=0, pfw=256, pro8=0, qm=0, m0=0, mfirst="", tw=0, pdec=1, wa=0, rot=0, gp=11, wp=13, xm="", hb=8, hb2=0, jb="", gb="", wb="", sb="", mb=20, pb="", hf=-1, tf=-1, af="", jx="", prb=0, e0=0, eg=0, egs=1, mm2="", m2s=1, wsy="", nom=0, lag0=3, dl8=0, dh8=0, ew=0, ewf="", wskip=0, half=0, hca=2, hcb=6, sl=-1, c0=210, n1=0, ih=0, mih="", ihp=2, sl0=1, rp=0, tst=0, ft=0, es=0):
    LA, RS, ER, P = 4, 2, 2, 2
    cal = [int(x) for x in str(cal).split(",")]
    assert 2 <= len(cal) <= 4
    SLOT = [0, 128, 64, 192]
    if sl >= 0 and not n1:
        SLOT = [136, 128, 64, 192]
    j0 = sl0 if sl >= 0 else cal[0] + lag0
    nsh = ns.bit_length() - 1
    assert ns == 1 << nsh and ns >= 8 * stag
    st2 = stag - 1
    nobar = nocomp = 0
    wsyl = [int(x) for x in str(wsy).split(",")] if wsy != "" else []
    general = (gp, wp, xm, hb, jb, gb, wb, sb) != (11, 13, "", 8, "", "", "", "")
    gbits = [int(x) for x in str(gb).split(",")] if gb else [gp, gp + 1]
    wbits = [int(x) for x in str(wb).split(",")] if wb else [wp, wp + 1]
    if jb:
        jbits = [int(x) for x in str(jb).split(",")]
    elif hb == 8:
        jbits = [8, 9, 10]
    elif hb2:
        jbits = [hb, hb2, 8]
    else:
        jbits = [hb, 8, 9]
    holes = sum(1 << b for b in gbits + wbits + jbits)
    assert bin(holes).count("1") == 7 and min(gbits + wbits) >= 8
    sbits = [b for b in range(8, 20) if not (holes >> b) & 1]
    if sb:
        sbits = [int(x) for x in str(sb).split(",")]
        assert sbits == sorted(sbits) and len(sbits) == 5
        holes = 0xffffff00 & ~sum(1 << b for b in sbits)
    pbits = [int(x) for x in str(pb).split(",")] if pb else [b for b in range(20, 29) if b != mb]
    allb = gbits + wbits + jbits + sbits + [mb] + pbits
    assert sorted(allb) == list(range(8, 29)), sorted(allb)
    probe = max(gbits + wbits + jbits + sbits) >= 20 or mb < 20 or bool(prb)
    headmap = (mb, pbits) != (20, list(range(21, 29)))
    offmask = sum(1 << b for b in gbits + wbits + jbits + sbits) | 0xff
    big_j = [b for b in jbits if b >= 12]
    afl = [int(x) for x in str(af).split(",")] if af else []
    af_s = sum(1 << b for b in afl if b in wbits + sbits)
    af_g = sum(1 << b for b in afl if b in gbits)
    S_OFFB = 87
    jxl = [tuple(int(y) for y in x.split(":")) for x in jx.split(",")] if jx else []
    jx_j = [(tb, sb_) for tb, sb_ in jxl if tb in jbits]
    jx_g = [(tb, sb_) for tb, sb_ in jxl if tb in gbits]
    assert len(jx_j) + len(jx_g) == len(jxl)
    xml = [tuple(int(y) for y in x.split(":")) for x in xm.split(",")] if xm else []
    if general:
        assert wa == 0 and rot == 0 and not early
    L = []
    o = L.append
    DS = 1088
    WS = 8 * DS
    LDS_P, LDS_KP, LDS_VP = 0, 512, 512 + 4 * WS
    lds = 512 + 8 * WS
    o(HEADER.rstrip())
    o("; @launch grid=(256,1,1) block=(256,1,1) lds=%d" % lds)
    for line in DOC.strip("\n").split("\n"):
        o(("; " + line).rstrip())
    o('.amdgcn_target "amdgcn-amd-amdhsa--gfx950"')
    o(".text")
    o(".globl %s_kernel" % NAME)
    o(".p2align 8")
    o(".type %s_kernel,@function" % NAME)
    o("%s_kernel:" % NAME)

    V_LANE, V_OFF, V_EOFF, V_PW, V_VR, V_OUT, V_X, V_Y = 0, 1, 2, 3, 4, 5, 6, 7
    ACC = 8
    T = 40
    MISC = 72
    V_BO, V_BV = MISC + 22, MISC + 23
    RING = 96
    V_DEF = RING + 32 * RS
    V_OFFX = V_DEF + 4
    nv = V_DEF + 4 + ((1 << len(big_j)) - 1)
    V_OFFJ = nv
    if jx_j:
        assert not big_j
        nv += 8
    esplit = jbits[1:] == [8, 9] and jbits[0] > 9 and not prb
    NE = 0 if noE else (2 if esplit else 1)
    V_ER = V_EA = 0
    if esplit:
        nv = (nv + 1) // 2 * 2
        V_ER = nv
        V_EA = (V_ER + 4 * ER + 3) // 4 * 4
        nv = V_EA + 4
    V_S2 = V_T2 = 0
    if ih:
        V_S2 = (nv + 3) // 4 * 4
        V_T2 = V_S2 + 32
        nv = V_T2 + 32
    V_TR2 = nv
    if trace == 2 or rp:
        nv += 4
    assert nv <= 256
    A_Q = 0
    A_E = 16
    na = A_E + 4 * ER
    accum_offset = (nv + 3) // 4 * 4

    S_SELLO, S_SELHI, S_WAVE, S_OFF, S_EOFF, S_CNT, S_MI, S_LM = 20, 21, 22, 23, 24, 25, 26, 27
    S_PROG = 57
    SRD_D, SRD_P = 28, 32
    NXT_D, NXT_P = 36, 38
    SRD_Q, SRD_O = 40, 44
    S_T = 48

    o("    s_cmp_ge_u32 s2, 256")
    o("    s_cbranch_scc1 L_end")
    o("    s_load_dwordx16 s[4:19], s[0:1], 0")
    if stamp:
        o("    s_memrealtime s[60:61]")
    if sl >= 0:
        o("    s_memrealtime s[72:73]")
    PST = [84, 86, 88, 90, 92, 94]

    def pstp(k):
        if pst and not tst:
            o("    s_memrealtime s[%d:%d]" % (PST[k], PST[k] + 1))

    def tstp(k):
        if tst:
            o("    s_memrealtime s[%d:%d]" % (PST[k], PST[k] + 1))

    def code_prefetch():
        if pfw < 256:
            o("    s_cmp_ge_u32 s2, %d" % pfw)
            o("    s_cbranch_scc1 L_nopfc")
        o("    s_getpc_b64 s[%d:%d]" % (S_T + 4, S_T + 5))
        o("L_pc:")
        o("    v_lshlrev_b32 v%d, 6, v%d" % (V_PW, V_TID))
        o("    v_min_u32 v%d, L_end-L_pc, v%d" % (V_PW, V_PW))
        o("    global_load_dword v%d, v%d, s[%d:%d]" % (V_DEF + 3, V_PW, S_T + 4, S_T + 5))
        if pfw < 256:
            o("L_nopfc:")

    V_TID = 0
    S_TMP0, S_TMP1, S_JC = S_T + 4, S_T + 5, 83
    if pf:
        code_prefetch()
    o("    v_lshrrev_b32 v%d, 6, v0" % V_X)
    o("    v_and_b32 v%d, 63, v0" % V_LANE)
    o("    v_readfirstlane_b32 s%d, v%d" % (S_WAVE, V_X))
    if not early:
        o("    s_mov_b32 s%d, 0x05040100" % S_SELLO)
        o("    s_mov_b32 s%d, 0x07060302" % S_SELHI)
    o("    v_and_b32 v%d, 15, v%d" % (V_X, V_LANE))
    o("    v_lshrrev_b32 v%d, 4, v%d" % (V_Y, V_LANE))
    o("    v_lshlrev_b32 v%d, 4, v%d" % (V_OFF, V_X))
    if gbits[1] == gbits[0] + 1:
        o("    v_lshl_add_u32 v%d, v%d, %d, v%d" % (V_OFF, V_Y, gbits[0], V_OFF))
    else:
        o("    v_and_b32 v%d, 1, v%d" % (V_PW, V_Y))
        o("    v_lshl_add_u32 v%d, v%d, %d, v%d" % (V_OFF, V_PW, gbits[0], V_OFF))
        o("    v_lshrrev_b32 v%d, 1, v%d" % (V_PW, V_Y))
        o("    v_lshl_add_u32 v%d, v%d, %d, v%d" % (V_OFF, V_PW, gbits[1], V_OFF))
    if probe:
        o("    v_lshlrev_b32 v%d, 13, v%d" % (V_EOFF, V_X))
        o("    v_lshl_add_u32 v%d, v%d, 4, v%d" % (V_EOFF, V_Y, V_EOFF))
    elif not early:
        o("    v_lshlrev_b32 v%d, 13, v%d" % (V_EOFF, V_X))
        if gbits[1] == gbits[0] + 1:
            o("    v_lshl_add_u32 v%d, v%d, %d, v%d" % (V_EOFF, V_Y, gbits[0] - 7, V_EOFF))
        else:
            o("    v_and_b32 v%d, 1, v%d" % (V_PW, V_Y))
            o("    v_lshl_add_u32 v%d, v%d, %d, v%d" % (V_EOFF, V_PW, gbits[0] - 7, V_EOFF))
            o("    v_lshrrev_b32 v%d, 1, v%d" % (V_PW, V_Y))
            o("    v_lshl_add_u32 v%d, v%d, %d, v%d" % (V_EOFF, V_PW, gbits[1] - 7, V_EOFF))
    for tb, sb_ in jx_g:
        o("    s_bfe_u32 s%d, s2, 0x%x" % (S_TMP0, 0x10000 | sb_))
        o("    s_lshl_b32 s%d, s%d, %d" % (S_TMP1, S_TMP0, tb))
        o("    v_xor_b32 v%d, s%d, v%d" % (V_OFF, S_TMP1, V_OFF))
        o("    s_lshl_b32 s%d, s%d, %d" % (S_TMP1, S_TMP0, tb - 7))
        o("    v_xor_b32 v%d, s%d, v%d" % (V_EOFF, S_TMP1, V_EOFF))
    if jx_j:
        o("    s_mov_b32 s%d, 0" % S_JC)
        for tb, sb_ in jx_j:
            o("    s_bfe_u32 s%d, s2, 0x%x" % (S_TMP0, 0x10000 | sb_))
            o("    s_lshl_b32 s%d, s%d, %d" % (S_TMP0, S_TMP0, tb))
            o("    s_xor_b32 s%d, s%d, s%d" % (S_JC, S_JC, S_TMP0))
        for i in range(8):
            a_ = sum(1 << b for t, b in enumerate(jbits) if (i >> t) & 1)
            o("    s_xor_b32 s%d, s%d, 0x%x" % (S_TMP0, S_JC, a_))
            o("    v_or_b32 v%d, s%d, v%d" % (V_OFFJ + i, S_TMP0, V_OFF))
    for sel in range(1, 1 << len(big_j)):
        add = sum(1 << b for t, b in enumerate(big_j) if (sel >> t) & 1)
        if af_g and sel & 1:
            o("    v_xor_b32 v%d, 0x%x, v%d" % (V_OFFX + sel - 1, af_g, V_OFF))
            o("    v_add_u32 v%d, 0x%x, v%d" % (V_OFFX + sel - 1, add, V_OFFX + sel - 1))
        else:
            o("    v_add_u32 v%d, 0x%x, v%d" % (V_OFFX + sel - 1, add, V_OFF))
    S_STP = 56
    if wbits[1] == wbits[0] + 1:
        o("    s_lshl_b32 s%d, s%d, %d" % (S_OFF, S_WAVE, wbits[0] if general else 13 + wa))
    else:
        o("    s_and_b32 s%d, s%d, 1" % (S_OFF, S_WAVE))
        o("    s_lshl_b32 s%d, s%d, %d" % (S_OFF, S_OFF, wbits[0]))
        o("    s_lshr_b32 s%d, s%d, 1" % (S_T + 4, S_WAVE))
        o("    s_lshl_b32 s%d, s%d, %d" % (S_T + 4, S_T + 4, wbits[1]))
        o("    s_or_b32 s%d, s%d, s%d" % (S_OFF, S_OFF, S_T + 4))
    if general:
        o("    s_mov_b32 s%d, 0" % S_STP)
        for tb, sb in xml:
            o("    s_bfe_u32 s%d, s2, 0x%x" % (S_T + 4, 0x10000 | sb))
            o("    s_lshl_b32 s%d, s%d, %d" % (S_T + 4, S_T + 4, tb))
            o("    s_xor_b32 s%d, s%d, s%d" % (S_OFF, S_OFF, S_T + 4))
    if rot:
        assert wa == 0
        R = S_T + 4
        if rot == 1:
            o("    s_lshr_b32 s%d, s2, 3" % R)
        elif rot == 2:
            o("    s_mov_b32 s%d, s2" % R)
        elif rot == 3:
            o("    s_lshl_b32 s%d, s2, 2" % R)
        elif rot == 4:
            o("    s_lshr_b32 s%d, s2, 3" % R)
            o("    s_lshl_b32 s%d, s2, 2" % (R + 1))
            o("    s_add_u32 s%d, s%d, s%d" % (R, R, R + 1))
        elif rot == 5:
            o("    s_lshr_b32 s%d, s2, 3" % R)
            o("    s_and_b32 s%d, s%d, 1" % (R, R))
        elif rot == 6:
            o("    s_lshr_b32 s%d, s2, 3" % R)
            o("    s_and_b32 s%d, s%d, 3" % (R, R))
        elif rot == 7:
            o("    s_lshr_b32 s%d, s2, 3" % R)
            o("    s_lshl_b32 s%d, s%d, 3" % (R, R))
        elif rot == 8:
            o("    s_lshr_b32 s%d, s2, 3" % R)
            o("    s_lshl_b32 s%d, s%d, 4" % (R, R))
        o("    s_and_b32 s%d, s%d, 31" % (R, R))
        o("    s_lshl_b32 s%d, s%d, 15" % (R, R))
        o("    s_add_u32 s%d, s%d, s%d" % (S_OFF, S_OFF, R))
    S_EV, S_MODE, S_ACC, S_INC, S_TM, S_NOW, S_THI, S_TLO = 64, 65, 66, 67, 72, 74, 76, 77
    S_C1, S_C2, S_HI, S_OFF0, S_RP, S_OK = 68, 70, 78, 79, 80, 81

    def eoff():
        o("    s_lshr_b32 s%d, s%d, 7" % (S_EOFF, S_OFF))
        if af_s:
            o("    s_xor_b32 s%d, s%d, 0x%x" % (S_OFFB, S_OFF, af_s))
        if probe:
            o("    s_and_b32 s%d, s%d, 0x1fc0" % (S_EOFF, S_EOFF))

    def step_inc():
        if general:
            o("    s_or_b32 s%d, s%d, 0x%x" % (S_STP, S_STP, holes))
            o("    s_add_u32 s%d, s%d, 0x%x" % (S_STP, S_STP, 1 << sbits[0]))
            o("    s_andn2_b32 s%d, s%d, 0x%x" % (S_STP, S_STP, holes))
            o("    s_xor_b32 s%d, s%d, s%d" % (S_OFF, S_STP, S_OFF0))
        elif wa == 0:
            o("    s_add_u32 s%d, s%d, 0x8000" % (S_OFF, S_OFF))
            if rot:
                o("    s_and_b32 s%d, s%d, 0xfffff" % (S_OFF, S_OFF))
        elif wa == 5:
            o("    s_add_u32 s%d, s%d, 0x2000" % (S_OFF, S_OFF))
        else:
            hole = 3 << (13 + wa)
            o("    s_or_b32 s%d, s%d, 0x%x" % (S_OFF, S_OFF, hole))
            o("    s_add_u32 s%d, s%d, 0x2000" % (S_OFF, S_OFF))
            o("    s_andn2_b32 s%d, s%d, 0x%x" % (S_OFF, S_OFF, hole))
            o("    s_or_b32 s%d, s%d, s%d" % (S_OFF, S_OFF, S_OFF0))

    def ctl_setup():
        U = S_T + 6 if early else S_T
        o("    s_mov_b32 s%d, %d" % (S_MODE, {-1: 0, 0: 0, 1: 1, 2: 2}[force]))
        if ctl:
            o("    s_mov_b32 s%d, 0" % S_PROG)
            o("    s_mov_b32 s%d, 0" % S_HI)
            if sl >= 0:
                T1n = 16 * nom
                o("    s_mov_b32 s%d, %d" % (S_ACC, 64 * c0))
                o("    s_mov_b32 s%d, %d" % (S_INC, 4 * T1n))
                o("    s_mov_b32 s%d, 0" % S_NOW)
                o("    s_mov_b32 s%d, %d" % (S_THI, (T1n * (dh8 or 8 * dhi)) >> 3))
                o("    s_mov_b32 s%d, %d" % (S_TLO, (-T1n * (dl8 or 8 * dlo)) >> 3))
                assert not mm2
            else:
                o("    s_mov_b32 s%d, 0" % S_ACC)
                o("    s_mov_b32 s%d, 0" % S_INC)
                o("    s_mov_b32 s%d, 0" % S_TM)
                o("    s_mov_b32 s%d, 0" % S_NOW)
                o("    s_mov_b32 s%d, 0x7fffffff" % S_THI)
                if mm2:
                    o("    s_mov_b32 s82, 0x7fffffff")
                o("    s_mov_b32 s%d, 0x80000000" % S_TLO)
            o("    s_lshr_b32 s%d, s2, 3" % U)
            o("    s_and_b32 s%d, s%d, %d" % (U, U, stag - 1))
            o("    s_mov_b32 s%d, 0x7fffffff" % S_RP)
            o("    s_mov_b32 s%d, 0" % (U + 1))
            for k, c in enumerate(cal):
                if sl >= 0 and k == 0 and n1:
                    continue
                o("    s_cmp_eq_u32 s%d, %d" % (S_WAVE, (k + 1) & 3))
                o("    s_cselect_b32 s%d, %d, s%d" % (S_RP, c, S_RP))
                o("    s_cselect_b32 s%d, %d, s%d" % (U + 1, SLOT[k], U + 1))
            o("    v_mov_b32 v%d, s%d" % (V_BO, U + 1))
            o("    s_cmp_lg_u32 s%d, 0x7fffffff" % S_RP)
            o("    s_cselect_b32 s%d, s%d, 0" % (U, U))
            o("    s_add_u32 s%d, s%d, s%d" % (S_RP, S_RP, U))
            if ns < 256:
                o("    s_cmp_lt_u32 s2, %d" % ns)
                o("    s_cselect_b32 s%d, s%d, 0x7fffffff" % (S_RP, S_RP))
            if amask:
                o("    s_and_b32 s%d, s2, %d" % (U, amask))
                o("    s_cmp_eq_u32 s%d, %d" % (U, aval))
                o("    s_cselect_b32 s%d, s%d, 0x7fffffff" % (S_RP, S_RP))
            o("    s_mov_b32 s%d, %d" % (S_EV, j0 if nom else cal[1] + lag))
            assert sl < 0 or nom
            o("    s_mov_b32 s%d, 0" % S_OK)
            for r in range(S_C1, S_C1 + 4):
                o("    s_mov_b32 s%d, 0" % r)
        o("    s_mov_b32 s%d, 0" % S_LM)
        o("    s_mov_b32 s%d, 0" % S_MI)

    def srd_rest():
        qsz = 8192 if mb <= 20 or probe else (1 << (mb - 8)) + 4096
        o("    s_mov_b32 s%d, %d" % (SRD_Q + 2, qsz))
        o("    s_mov_b32 s%d, 0x20000" % (SRD_Q + 3))
        o("    s_mov_b32 s%d, %d" % (SRD_O + 2, qsz))
        o("    s_mov_b32 s%d, 0x20000" % (SRD_O + 3))

    if not early:
        o("    s_mov_b32 s%d, s%d" % (S_OFF0, S_OFF))
        ctl_setup()
        eoff()
    S_PAIR = S_T + 2
    if wmap == 0:
        o("    s_mov_b32 s%d, s2" % S_PAIR)
    elif wmap == 1:
        o("    s_and_b32 s%d, s2, 7" % S_PAIR)
        o("    s_lshl_b32 s%d, s%d, 5" % (S_PAIR, S_PAIR))
        o("    s_lshr_b32 s%d, s2, 3" % (S_T + 3))
        o("    s_or_b32 s%d, s%d, s%d" % (S_PAIR, S_PAIR, S_T + 3))
    elif wmap == 2:
        o("    s_lshr_b32 s%d, s2, 3" % (S_T + 3))
        o("    s_and_b32 s%d, s%d, 7" % (S_T + 3, S_T + 3))
        o("    s_xor_b32 s%d, s2, s%d" % (S_PAIR, S_T + 3))
    elif wmap == 3:
        o("    s_and_b32 s%d, s2, 7" % S_PAIR)
        o("    s_lshl_b32 s%d, s%d, 5" % (S_PAIR, S_PAIR))
        o("    s_lshr_b32 s%d, s2, 3" % (S_T + 3))
        o("    s_or_b32 s%d, s%d, s%d" % (S_PAIR, S_PAIR, S_T + 3))
        o("    s_and_b32 s%d, s%d, 7" % (S_T + 3, S_T + 3))
        o("    s_lshl_b32 s%d, s%d, 5" % (S_T + 3, S_T + 3))
        o("    s_xor_b32 s%d, s%d, s%d" % (S_PAIR, S_PAIR, S_T + 3))
    elif wmap == 4:
        o("    s_and_b32 s%d, s2, 7" % S_PAIR)
        o("    s_lshr_b32 s%d, s2, 3" % (S_T + 3))
        o("    s_lshl_b32 s%d, s%d, 2" % (S_T + 4, S_PAIR))
        o("    s_add_u32 s%d, s%d, s%d" % (S_T + 3, S_T + 3, S_T + 4))
        o("    s_and_b32 s%d, s%d, 31" % (S_T + 3, S_T + 3))
        o("    s_lshl_b32 s%d, s%d, 5" % (S_PAIR, S_PAIR))
        o("    s_or_b32 s%d, s%d, s%d" % (S_PAIR, S_PAIR, S_T + 3))
    elif wmap == 5:
        o("    s_brev_b32 s%d, s2" % S_PAIR)
        o("    s_lshr_b32 s%d, s%d, 24" % (S_PAIR, S_PAIR))
    elif wmap == 6:
        o("    s_bfe_u32 s%d, s2, 0x20001" % S_PAIR)
        o("    s_lshl_b32 s%d, s%d, 6" % (S_PAIR, S_PAIR))
        o("    s_lshr_b32 s%d, s2, 3" % (S_T + 3))
        o("    s_lshl_b32 s%d, s%d, 1" % (S_T + 3, S_T + 3))
        o("    s_or_b32 s%d, s%d, s%d" % (S_PAIR, S_PAIR, S_T + 3))
        o("    s_and_b32 s%d, s2, 1" % (S_T + 3))
        o("    s_or_b32 s%d, s%d, s%d" % (S_PAIR, S_PAIR, S_T + 3))
    elif wmap == 7:
        o("    s_and_b32 s%d, s2, 7" % S_PAIR)
        o("    s_lshl_b32 s%d, s%d, 3" % (S_PAIR, S_PAIR))
        o("    s_bfe_u32 s%d, s2, 0x30003" % (S_T + 3))
        o("    s_or_b32 s%d, s%d, s%d" % (S_PAIR, S_PAIR, S_T + 3))
        o("    s_lshr_b32 s%d, s2, 6" % (S_T + 3))
        o("    s_lshl_b32 s%d, s%d, 6" % (S_T + 3, S_T + 3))
        o("    s_or_b32 s%d, s%d, s%d" % (S_PAIR, S_PAIR, S_T + 3))
    if headmap:
        o("    s_mov_b32 s%d, 0" % S_T)
        for i, b in enumerate(pbits):
            o("    s_bfe_u32 s%d, s%d, 0x%x" % (S_T + 1, S_PAIR, 0x10000 | i))
            o("    s_lshl_b32 s%d, s%d, %d" % (S_T + 1, S_T + 1, b))
            o("    s_or_b32 s%d, s%d, s%d" % (S_T, S_T, S_T + 1))
    else:
        o("    s_lshl_b32 s%d, s%d, 21" % (S_T, S_PAIR))
    S_ADV, S_ADVH, S_FL = 84, 85, 86
    if hf >= 0:
        assert not pst and not early and qm == 0
        if hf == 99:
            o("    s_mov_b32 s%d, 1" % S_FL)
        else:
            o("    s_bfe_u32 s%d, s2, 0x%x" % (S_FL, 0x10000 | hf))
        o("    s_mov_b32 s%d, 0x%x" % (S_ADV, 1 << mb))
        o("    s_cmp_eq_u32 s%d, 1" % S_FL)
        o("    s_cselect_b32 s%d, 0x%x, s%d" % (S_ADV, (-(1 << mb)) & 0xffffffff, S_ADV))
        o("    s_cselect_b32 s%d, -1, 0" % S_ADVH)
    DSZ = (offmask + 1) if probe else 0x100000
    QSH = 12 if probe else mb - 8
    o("    s_mov_b32 s%d, 0x%x" % (SRD_D + 2, DSZ))
    o("    s_mov_b32 s%d, 0x20000" % (SRD_D + 3))
    if not early:
        if headmap and not probe:
            o("    s_lshr_b32 s%d, s%d, 8" % (S_T + 1, S_T))
        else:
            o("    s_lshl_b32 s%d, s%d, 13" % (S_T + 1, S_PAIR))
        o("    s_mov_b32 s%d, 0x20000" % (SRD_P + 2))
        o("    s_mov_b32 s%d, 0x20000" % (SRD_P + 3))
        srd_rest()
    pstp(0)
    o("    s_waitcnt lgkmcnt(0)")
    if pstamp:
        o("    s_memrealtime s[82:83]")
    pstp(1)
    if hf >= 0:
        o("    s_lshl_b32 s%d, s%d, %d" % (S_T + 4, S_FL, mb))
        o("    s_or_b32 s%d, s%d, s%d" % (S_T, S_T, S_T + 4))
        o("    s_lshl_b32 s%d, s%d, %d" % (S_FL, S_FL, QSH))
    if tf >= 0:
        if tf == 99:
            o("    s_cmp_eq_u32 s2, s2")
        else:
            o("    s_bitcmp1_b32 s2, %d" % tf)
        o("    s_cselect_b32 s%d, s8, s6" % (S_T + 4))
        o("    s_cselect_b32 s%d, s9, s7" % (S_T + 5))
        o("    s_cselect_b32 s8, s6, s8")
        o("    s_cselect_b32 s9, s7, s9")
        o("    s_mov_b32 s6, s%d" % (S_T + 4))
        o("    s_mov_b32 s7, s%d" % (S_T + 5))
    o("    s_add_u32 s%d, s6, s%d" % (SRD_D, S_T))
    o("    s_addc_u32 s%d, s7, 0" % (SRD_D + 1))
    if not early:
        o("    s_mov_b32 s%d, s10" % SRD_P)
        o("    s_mov_b32 s%d, s11" % (SRD_P + 1))

    def issue_E(step):
        if noE:
            return
        if esplit:
            r = V_ER + (step % ER) * 4
            for t in range(2):
                o("    buffer_load_dwordx2 v[%d:%d], v%d, s[%d:%d], s%d offen offset:%d %s" %
                  (r + 2 * t, r + 2 * t + 1, V_EOFF, SRD_P, SRD_P + 3, S_EOFF, t << (jbits[0] - 7), eflags))
            return
        r = A_E + (step % ER) * 4
        o("    buffer_load_dwordx4 a[%d:%d], v%d, s[%d:%d], s%d offen %s" %
          (r, r + 3, V_EOFF, SRD_P, SRD_P + 3, S_EOFF, eflags))

    def issue_one(n):
        q, h = divmod(n, 2)
        a = q % 4
        slot = q % (4 * RS)
        i = 2 * a + h
        r = RING + (slot * 2 + h) * 4
        imm, sel = 0, 0
        alt = bool(afl) and any((i >> t) & 1 and b == big_j[0] for t, b in enumerate(jbits))
        for t, b in enumerate(jbits):
            bit = (i >> t) & 1
            if alt and b in afl:
                bit ^= 1
            if bit:
                if b >= 12:
                    sel |= 1 << big_j.index(b)
                else:
                    imm += 1 << b
        if jx_j:
            o("    buffer_load_dwordx4 v[%d:%d], v%d, s[%d:%d], s%d offen %s" %
              (r, r + 3, V_OFFJ + i, SRD_D, SRD_D + 3, S_OFF, flags))
            return
        o("    buffer_load_dwordx4 v[%d:%d], v%d, s[%d:%d], s%d offen offset:%d %s" %
          (r, r + 3, V_OFFX + sel - 1 if sel else V_OFF, SRD_D, SRD_D + 3,
           S_OFFB if alt and af_s else S_OFF, imm, flags))

    def issue_pair(q):
        issue_one(2 * q)
        issue_one(2 * q + 1)

    stubs = []
    events = []

    if not early and not e0:
        issue_E(0)
    for q in range(LA):
        issue_pair(q)
        if not early and e0 == q + 1:
            issue_E(0)
    if early:
        o("    v_lshlrev_b32 v%d, 13, v%d" % (V_EOFF, V_X))
        o("    v_lshl_add_u32 v%d, v%d, 4, v%d" % (V_EOFF, V_Y, V_EOFF))
        eoff()
        o("    s_mov_b32 s%d, s10" % SRD_P)
        o("    s_mov_b32 s%d, s11" % (SRD_P + 1))
        o("    s_mov_b32 s%d, 0x20000" % (SRD_P + 2))
        o("    s_mov_b32 s%d, 0x20000" % (SRD_P + 3))
        issue_E(0)
        o("    s_mov_b32 s%d, s%d" % (S_OFF0, S_OFF))
    if bp and not pro8:
        step_inc()
        eoff()
        issue_one(8)
        issue_E(1)
        for n in range(9, 16):
            issue_one(n)
    pstp(2)
    if early:
        o("    s_mov_b32 s%d, 0x05040100" % S_SELLO)
        o("    s_mov_b32 s%d, 0x07060302" % S_SELHI)
        o("    s_lshl_b32 s%d, s%d, 13" % (S_T + 1, S_PAIR))
        srd_rest()
        ctl_setup()
    o("    s_add_u32 s%d, s8, s%d" % (NXT_D, S_T))
    o("    s_addc_u32 s%d, s9, 0" % (NXT_D + 1))
    o("    s_mov_b32 s%d, s12" % NXT_P)
    o("    s_mov_b32 s%d, s13" % (NXT_P + 1))
    o("    s_add_u32 s%d, s4, s%d" % (SRD_Q, S_T + 1))
    o("    s_addc_u32 s%d, s5, 0" % (SRD_Q + 1))
    o("    s_add_u32 s%d, s14, s%d" % (SRD_O, S_T + 1))
    o("    s_addc_u32 s%d, s15, 0" % (SRD_O + 1))
    def load_q(vx, vy, va, st):
        o("    v_lshlrev_b32 v%d, 8, v%d" % (va, vx))
        o("    v_lshl_add_u32 v%d, v%d, 6, v%d" % (va, vy, va))
        o("    s_lshr_b32 s%d, s%d, 1" % (st, S_WAVE))
        o("    s_lshl_b32 s%d, s%d, %d" % (st, st, QSH))
        if hf >= 0:
            o("    s_xor_b32 s%d, s%d, s%d" % (st, st, S_FL))
        for s in range(4):
            o("    buffer_load_dwordx4 a[%d:%d], v%d, s[%d:%d], s%d offen offset:%d" %
              (A_Q + 4 * s, A_Q + 4 * s + 3, va, SRD_Q, SRD_Q + 3, st, 16 * s))

    if qm == 0:
        load_q(V_X, V_Y, V_PW, S_T + 2)
    elif qm == 1:
        o("    s_bitcmp1_b32 s%d, 0" % S_WAVE)
        o("    s_cbranch_scc1 L_noq")
        load_q(V_X, V_Y, V_PW, S_T + 2)
        o("L_noq:")
    def warm_proj():
        o("    s_bfe_u32 s%d, s2, 0x50003" % (S_T + 2))
        o("    s_lshl_b32 s%d, s%d, 2" % (S_T + 2, S_T + 2))
        o("    s_add_u32 s%d, s%d, s%d" % (S_T + 2, S_T + 2, S_WAVE))
        o("    s_lshl_b32 s%d, s%d, 10" % (S_T + 2, S_T + 2))
        o("    v_lshlrev_b32 v%d, 4, v%d" % (V_PW, V_LANE))
        o("    v_add_u32 v%d, s%d, v%d" % (V_PW, S_T + 2, V_PW))
        if ew & 1:
            o("    global_load_dwordx4 v[%d:%d], v%d, s[10:11] %s" % (V_DEF, V_DEF + 3, V_PW, ewf))
        if ew & 2:
            o("    global_load_dwordx4 v[%d:%d], v%d, s[12:13] %s" % (V_DEF, V_DEF + 3, V_PW, ewf))

    if sl >= 0:
        o("    s_cmp_lt_u32 s2, %d" % ns)
        o("    s_cbranch_scc0 L_nosr")
        o("    s_cmp_eq_u32 s%d, 1" % S_WAVE)
        o("    s_cbranch_scc0 L_nosr")
        o("    v_mov_b32 v%d, s%d" % (V_BV - 3, S_TM))
        o("    v_mov_b32 v%d, 0x100" % (V_BV - 2))
        o("    v_mov_b32 v%d, 0" % (V_BV - 4))
        o("    s_mov_b64 exec, 1")
        o("    global_atomic_add_x2 v%d, v[%d:%d], s[%d:%d] %s" % (V_BV - 4, V_BV - 3, V_BV - 2, abase, abase + 1, aflags))
        o("    s_mov_b64 exec, -1")
        o("L_nosr:")
    if ew:
        assert defer and qm != 2
        warm_proj()
    if tw:
        assert defer
        o("    v_and_b32 v%d, 3, v%d" % (V_PW, V_LANE))
        o("    v_lshlrev_b32 v%d, 19, v%d" % (V_PW, V_PW))
        o("    s_cmp_eq_u32 s%d, 1" % S_WAVE)
        o("    s_cbranch_scc0 L_tw1")
        o("    global_load_dword v%d, v%d, s[%d:%d]" % (V_DEF, V_PW, NXT_D, NXT_D + 1))
        o("L_tw1:")
        o("    s_cmp_eq_u32 s%d, 3" % S_WAVE)
        o("    s_cbranch_scc0 L_tw3")
        o("    v_mov_b32 v%d, 0" % V_PW)
        o("    buffer_load_dword v%d, v%d, s[%d:%d], 0 offen" % (V_DEF, V_PW, SRD_O, SRD_O + 3))
        o("    global_load_dword v%d, v%d, s[12:13]" % (V_DEF + 1, V_PW))
        o("L_tw3:")
    o("    v_lshlrev_b32 v%d, 8, v%d" % (V_OUT, V_X))
    o("    v_lshl_add_u32 v%d, v%d, 4, v%d" % (V_OUT, V_Y, V_OUT))
    o("    s_lshl_b32 s%d, s%d, 6" % (S_T + 2, S_WAVE))
    o("    v_add_u32 v%d, s%d, v%d" % (V_OUT, S_T + 2, V_OUT))
    o("    v_and_b32 v%d, 3, v%d" % (V_VR, V_X))
    o("    v_mul_u32_u24 v%d, %d, v%d" % (V_VR, DS, V_VR))
    o("    v_lshrrev_b32 v%d, 2, v%d" % (V_X, V_X))
    o("    v_lshl_add_u32 v%d, v%d, 4, v%d" % (V_X, V_Y, V_X))
    o("    v_lshl_add_u32 v%d, v%d, 4, v%d" % (V_VR, V_X, V_VR))
    o("    s_lshl_b32 s%d, s%d, 6" % (S_T + 2, S_WAVE))
    o("    s_add_u32 s%d, s%d, %d" % (S_T + 2, S_T + 2, LDS_VP))
    o("    v_add_u32 v%d, s%d, v%d" % (V_VR, S_T + 2, V_VR))
    o("    v_lshlrev_b32 v%d, 4, v%d" % (V_X, V_LANE))
    o("    s_mul_i32 s%d, s%d, %d" % (S_T + 2, S_WAVE, WS))
    o("    s_add_u32 s%d, s%d, %d" % (S_T + 2, S_T + 2, LDS_KP))
    o("    v_add_u32 v%d, s%d, v%d" % (V_PW, S_T + 2, V_X))
    for j in range(32):
        o("    v_mov_b32 v%d, 0" % (ACC + j))
    if rp:
        o("    s_mov_b32 s90, 0")
        o("    v_mov_b32 v%d, 0" % V_TR2)


    def allowed(n, req, e_done):
        cnt = n - 1 - req
        for qq in range(0, n // 2 + 1):
            if qq % 4 == 0 and 2 * qq >= req and (qq < n // 2 or e_done):
                cnt += NE
        return cnt

    def wait_of(m, p, h, extra=0):
        q = p + LA
        n = 2 * q + h
        N, gr = int(m[:-1]), m[-1]
        if gr == "p":
            if h == 1:
                return None
            req = n - N + 1
        else:
            req = n - N
        if h == 0:
            req = max(req, 2 * p + 1)
        elif req <= 2 * p + 1:
            return None
        big = 8000
        return allowed(n + big, req + big, h == 1) + (extra if req <= 7 else 0)

    def decide(tag):
        T0 = S_T + 6
        o("    s_waitcnt lgkmcnt(0)")
        if not noev:
            o("    s_cmp_eq_u32 s%d, s%d" % (S_PROG, S_RP))
            o("    s_cbranch_scc1 L_rp_%s" % tag)
            o("L_rpr_%s:" % tag)
            o("    s_cmp_eq_u32 s%d, s%d" % (S_PROG, S_EV))
            o("    s_cbranch_scc1 L_ev_%s" % tag)
        o("L_evr_%s:" % tag)
        if trace:
            o("    s_mov_b32 m0, s%d" % S_PROG)
            o("    s_nop 0")
            o("    v_writelane_b32 v%d, s%d, m0" % (V_BV, S_NOW))
        o("    s_sub_u32 s%d, s%d, s%d" % (T0, S_NOW, S_TM))
        o("    s_lshl_b32 s%d, s%d, 6" % (T0, T0))
        o("    s_sub_u32 s%d, s%d, s%d" % (T0, T0, S_ACC))
        if trace == 2:
            o("    v_writelane_b32 v%d, s%d, m0" % (V_TR2, T0))
        o("    s_add_u32 s%d, s%d, s%d" % (S_ACC, S_ACC, S_INC))
        o("    s_add_u32 s%d, s%d, 1" % (S_PROG, S_PROG))
        if force < 0 and tag == "post" and pdec != 1:
            if pdec == 0:
                o("    s_mov_b32 s%d, 0" % S_MODE)
        elif force < 0:
            if eg:
                o("    s_cmp_eq_u32 s%d, %d" % (S_PROG, 64 - eg))
                o("    s_cselect_b32 s%d, %d, 0" % (T0 + 1, egs))
                o("    s_ashr_i32 s%d, s%d, s%d" % (S_THI, S_THI, T0 + 1))
                if mm2:
                    o("    s_ashr_i32 s82, s82, s%d" % (T0 + 1))
            if mm2:
                o("    s_cmp_gt_i32 s%d, s82" % T0)
                o("    s_cselect_b32 s%d, 4, 0" % S_MODE)
                o("    s_cmp_gt_i32 s%d, s%d" % (T0, S_THI))
                o("    s_cselect_b32 s%d, 1, s%d" % (S_MODE, S_MODE))
            else:
                o("    s_cmp_gt_i32 s%d, s%d" % (T0, S_THI))
                o("    s_cselect_b32 s%d, 1, 0" % S_MODE)
            o("    s_cmp_lt_i32 s%d, s%d" % (T0, S_TLO))
            o("    s_cselect_b32 s%d, 2, s%d" % (S_MODE, S_MODE))
        if tail:
            o("    s_cmp_ge_u32 s%d, %d" % (S_PROG, 64 - tail))
            o("    s_cselect_b32 s%d, 1, s%d" % (S_MODE, S_MODE))
        if fin:
            o("    s_cmp_eq_u32 s%d, %d" % (S_PROG, 64 - fin))
            o("    s_cselect_b32 s%d, 3, s%d" % (S_MODE, S_MODE))
        if stamp:
            o("    s_and_b32 s%d, s%d, 1" % (T0, S_MODE))
            o("    s_add_u32 s%d, s%d, s%d" % (S_HI, S_HI, T0))
            o("    s_and_b32 s%d, s%d, 2" % (T0, S_MODE))
            o("    s_lshl_b32 s%d, s%d, 7" % (T0, T0))
            o("    s_add_u32 s%d, s%d, s%d" % (S_HI, S_HI, T0))
        events.append(tag)

    def decide_half(tag):
        T0 = S_T + 6
        o("    s_waitcnt lgkmcnt(0)")
        o("    s_sub_u32 s%d, s%d, s%d" % (T0, S_NOW, S_TM))
        o("    s_lshl_b32 s%d, s%d, 6" % (T0, T0))
        o("    s_sub_u32 s%d, s%d, s%d" % (T0, T0, S_ACC))
        o("    s_ashr_i32 s%d, s%d, 1" % (T0 + 1, S_INC))
        o("    s_add_u32 s%d, s%d, s%d" % (T0, T0, T0 + 1))
        if mm2:
            o("    s_cmp_gt_i32 s%d, s82" % T0)
            o("    s_cselect_b32 s%d, 4, 0" % S_MODE)
            o("    s_cmp_gt_i32 s%d, s%d" % (T0, S_THI))
            o("    s_cselect_b32 s%d, 1, s%d" % (S_MODE, S_MODE))
        else:
            o("    s_cmp_gt_i32 s%d, s%d" % (T0, S_THI))
            o("    s_cselect_b32 s%d, 1, 0" % S_MODE)
        o("    s_cmp_lt_i32 s%d, s%d" % (T0, S_TLO))
        o("    s_cselect_b32 s%d, 2, s%d" % (S_MODE, S_MODE))
        if stamp:
            o("    s_and_b32 s%d, s%d, 1" % (T0, S_MODE))
            o("    s_add_u32 s%d, s%d, s%d" % (S_HI, S_HI, T0))
            o("    s_and_b32 s%d, s%d, 2" % (T0, S_MODE))
            o("    s_lshl_b32 s%d, s%d, 7" % (T0, T0))
            o("    s_add_u32 s%d, s%d, s%d" % (S_HI, S_HI, T0))

    def emit_events():
        T0, T1 = S_T + 6, S_T + 7
        for tag in events:
            if noev:
                continue
            o("L_rp_%s:" % tag)
            o("    v_mov_b32 v%d, s%d" % (V_BV - 3, S_NOW))
            o("    v_mov_b32 v%d, 0x100" % (V_BV - 2))
            o("    s_mov_b64 exec, 1")
            if doat and akind == "atomic":
                o("    global_atomic_add_x2 v%d, v[%d:%d], s[%d:%d] %s" % (V_BO, V_BV - 3, V_BV - 2, abase, abase + 1, aflags))
            elif doat and akind == "store":
                o("    global_store_dwordx2 v%d, v[%d:%d], s[%d:%d] %s" % (V_BO, V_BV - 3, V_BV - 2, abase, abase + 1, aflags))
            elif doat and akind == "load":
                o("    global_load_dwordx2 v[%d:%d], v%d, s[%d:%d] %s" % (V_BV - 3, V_BV - 2, V_BO, abase, abase + 1, aflags))
            o("    s_mov_b64 exec, -1")
            o("    s_branch L_rpr_%s" % tag)
            o("L_ev_%s:" % tag)
            if nom:
                assert j0 + 1 < cal[1] + lag
                o("    s_cmp_eq_u32 s%d, %d" % (S_EV, j0))
                o("    s_cbranch_scc1 L_evl0_%s" % tag)
                o("    s_cmp_eq_u32 s%d, %d" % (S_EV, j0 + 1))
                o("    s_cbranch_scc1 L_evc0_%s" % tag)
            for k in range(1, len(cal)):
                o("    s_cmp_eq_u32 s%d, %d" % (S_EV, cal[k] + lag))
                o("    s_cbranch_scc1 L_evl%d_%s" % (k, tag))
                o("    s_cmp_eq_u32 s%d, %d" % (S_EV, cal[k] + lag + 1))
                o("    s_cbranch_scc1 L_evc%d_%s" % (k, tag))
            o("    s_branch L_evr_%s" % tag)
            if nom:
                jr = j0
                o("L_evl0_%s:" % tag)
                o("    s_load_dwordx2 s[%d:%d], s[16:17], %d" % (S_C1, S_C1 + 1, 0 if sl >= 0 else SLOT[0]))
                o("    s_mov_b32 s%d, %d" % (S_EV, jr + 1))
                o("    s_branch L_evr_%s" % tag)
                o("L_evc0_%s:" % tag)
                o("    s_mov_b32 s%d, %d" % (S_EV, cal[1] + lag))
                o("    s_lshr_b64 s[%d:%d], s[%d:%d], %d" % (S_C1, S_C1 + 1, S_C1, S_C1 + 1, nsh))
                o("    s_cmp_lg_u32 s%d, 256" % (S_C1 + 1))
                o("    s_cbranch_scc1 L_evr_%s" % tag)
                if stamp:
                    o("    s_add_u32 s%d, s%d, 0x10000" % (S_HI, S_HI))
                T1n = 16 * nom
                if sl >= 0:
                    o("    s_sub_u32 s%d, s%d, s%d" % (T0, S_TM, S_C1))
                    o("    s_mul_i32 s%d, s%d, %d" % (T0, T0, sl))
                    o("    s_sub_u32 s%d, s%d, s%d" % (S_INC, S_INC, T0))
                else:
                    o("    s_mov_b32 s%d, s%d" % (S_TM, S_C1))
                    o("    s_mov_b32 s%d, %d" % (S_INC, 4 * T1n))
                    o("    s_mov_b32 s%d, %d" % (S_ACC, T1n * (4 * (jr + 1) - (4 * cal[0] + 2 * st2) + delta)))
                    if dl8 or dh8:
                        o("    s_mov_b32 s%d, %d" % (S_THI, (T1n * (dh8 or 8 * dhi)) >> 3))
                        o("    s_mov_b32 s%d, %d" % (S_TLO, (-T1n * dl8) >> 3))
                    else:
                        o("    s_mov_b32 s%d, %d" % (S_THI, (T1n * dhi) >> tsh))
                        o("    s_mov_b32 s%d, %d" % (S_TLO, (-T1n * dlo) >> tsh))
                    if mm2:
                        o("    s_mov_b32 s82, %d" % ((T1n * dhi) >> (tsh + m2s)))
                o("    s_branch L_evr_%s" % tag)
            for k in range(1, len(cal)):
                jr = cal[k] + lag
                span = 16 if (k == 1 and n1) else cal[k] - cal[k - 1]
                assert span in (8, 16)
                o("L_evl%d_%s:" % (k, tag))
                if k == 1 and dold and not n1:
                    o("    s_load_dwordx2 s[%d:%d], s[16:17], %d" % (S_C1, S_C1 + 1, SLOT[0]))
                if dold:
                    o("    s_load_dwordx2 s[%d:%d], s[16:17], %d" % (S_C2, S_C2 + 1, SLOT[k]))
                o("    s_mov_b32 s%d, %d" % (S_EV, jr + 1))
                o("    s_branch L_evr_%s" % tag)
                o("L_evc%d_%s:" % (k, tag))
                o("    s_mov_b32 s%d, %s" % (S_EV, "0x7fffffff" if k == len(cal) - 1 else str(cal[k + 1] + lag)))
                if k == 1 and not n1:
                    o("    s_lshr_b64 s[%d:%d], s[%d:%d], %d" % (S_C1, S_C1 + 1, S_C1, S_C1 + 1, nsh))
                o("    s_lshr_b64 s[%d:%d], s[%d:%d], %d" % (S_C2, S_C2 + 1, S_C2, S_C2 + 1, nsh))
                if k == 1 and n1:
                    o("    s_mov_b32 s%d, s%d" % (T0, S_C2 + 1))
                    o("    s_mov_b32 s%d, %d" % (T1, 16 * n1))
                else:
                    o("    s_and_b32 s%d, s%d, s%d" % (T0, S_C1 + 1, S_C2 + 1))
                    o("    s_sub_u32 s%d, s%d, s%d" % (T1, S_C2, S_C1))
                o("    s_mov_b32 s%d, s%d" % (S_C1, S_C2))
                o("    s_mov_b32 s%d, s%d" % (S_C1 + 1, S_C2 + 1))
                o("    s_cmp_lg_u32 s%d, 256" % T0)
                o("    s_cbranch_scc1 L_evr_%s" % tag)
                if stamp:
                    o("    s_add_u32 s%d, s%d, 0x10000" % (S_HI, S_HI))
                if span == 8:
                    o("    s_lshl_b32 s%d, s%d, 1" % (T1, T1))
                o("    s_mov_b32 s%d, s%d" % (S_TM, S_C1))
                o("    s_lshl_b32 s%d, s%d, 2" % (S_INC, T1))
                o("    s_mul_i32 s%d, s%d, %d" % (S_ACC, T1, 4 * (jr + 1) - (4 * cal[k] + 2 * st2) + delta))
                if dl8 or dh8:
                    o("    s_mul_i32 s%d, s%d, %d" % (S_THI, T1, dh8 or 8 * dhi))
                    o("    s_mul_i32 s%d, s%d, %d" % (S_TLO, T1, -dl8))
                    o("    s_ashr_i32 s%d, s%d, 3" % (S_THI, S_THI))
                    o("    s_ashr_i32 s%d, s%d, 3" % (S_TLO, S_TLO))
                else:
                    o("    s_mul_i32 s%d, s%d, %d" % (S_THI, T1, dhi))
                    o("    s_mul_i32 s%d, s%d, %d" % (S_TLO, T1, -dlo))
                if tsh:
                    o("    s_ashr_i32 s%d, s%d, %d" % (S_THI, S_THI, tsh))
                    o("    s_ashr_i32 s%d, s%d, %d" % (S_TLO, S_TLO, tsh))
                if mm2:
                    o("    s_ashr_i32 s82, s%d, %d" % (S_THI, m2s))
                if eps:
                    o("    s_mul_i32 s%d, s%d, %d" % (T0, T1, eps))
                    o("    s_ashr_i32 s%d, s%d, 6" % (T0, T0))
                    o("    s_sub_u32 s%d, s%d, s%d" % (S_INC, S_INC, T0))
                o("    s_branch L_evr_%s" % tag)

    def round_mfma(s, zero=False):
        if esplit:
            r = V_ER + (s % ER) * 4
            for t in range(2):
                o("    v_perm_b32 v%d, v%d, v%d, s%d" % (V_EA + 2 * t, r + 2 + t, r + t, S_SELLO))
                o("    v_perm_b32 v%d, v%d, v%d, s%d" % (V_EA + 2 * t + 1, r + 2 + t, r + t, S_SELHI))
            e = "v[%d:%d]" % (V_EA, V_EA + 3)
        else:
            e = "a[%d:%d]" % (A_E + (s % ER) * 4, A_E + (s % ER) * 4 + 3)
        o("    s_nop 1")
        for dd in range(8):
            acc = ACC + dd * 4
            o("    v_mfma_f32_16x16x32_bf16 v[%d:%d], %s, v[%d:%d], %s" %
              (acc, acc + 3, e, T + dd * 4, T + dd * 4 + 3, "0" if zero else "v[%d:%d]" % (acc, acc + 3)))

    def xlane(op, reg, tmp):
        for sw in ("v_permlane32_swap_b32", "v_permlane16_swap_b32"):
            o("    v_mov_b32 v%d, v%d" % (tmp, reg))
            o("    s_nop 1")
            o("    %s v%d, v%d" % (sw, reg, tmp))
            o("    s_nop 1")
            o("    %s v%d, v%d, v%d" % (op, reg, reg, tmp))

    def k_read(dst, w):
        for dd in range(8):
            o("    ds_read_b128 v[%d:%d], v%d offset:%d" %
              (dst + 4 * dd, dst + 4 * dd + 3, V_X, LDS_KP + w * WS + dd * DS))

    def k_add(SUM, TMP):
        for j in range(32):
            o("    v_add_f32 v%d, v%d, v%d" % (SUM + j, SUM + j, TMP + j))

    def k_transpose(SUM, TMP):
        PA = MISC
        for dd in range(8):
            o("    v_cvt_pk_bf16_f32 v%d, v%d, v%d" % (PA + 2 * dd, SUM + 4 * dd, SUM + 4 * dd + 1))
            o("    v_cvt_pk_bf16_f32 v%d, v%d, v%d" % (PA + 2 * dd + 1, SUM + 4 * dd + 2, SUM + 4 * dd + 3))
        ID = MISC + 16
        o("    v_and_b32 v%d, 15, v%d" % (V_X, V_LANE))
        o("    v_lshrrev_b32 v%d, 4, v%d" % (V_Y, V_LANE))
        o("    v_lshlrev_b32 v%d, 2, v%d" % (V_Y, V_Y))
        o("    v_sub_u32 v%d, v%d, v%d" % (V_X, V_X, V_Y))
        o("    v_mov_b32 v%d, 0" % ID)
        o("    v_mov_b32 v%d, 0" % (ID + 1))
        o("    v_mov_b32 v%d, 0x3f80" % (ID + 2))
        o("    v_mov_b32 v%d, 0x3f800000" % (ID + 3))
        for j, (dst, src) in enumerate(((ID, ID + 2), (ID, ID + 3), (ID + 1, ID + 2), (ID + 1, ID + 3))):
            o("    v_cmp_eq_u32 vcc, %d, v%d" % (j, V_X))
            o("    s_nop 1")
            o("    v_cndmask_b32 v%d, v%d, v%d, vcc" % (dst, dst, src))
        o("    s_nop 1")
        for dd in range(8):
            o("    v_mfma_f32_16x16x16_bf16 v[%d:%d], v[%d:%d], v[%d:%d], 0" %
              (TMP + 4 * dd, TMP + 4 * dd + 3, PA + 2 * dd, PA + 2 * dd + 1, ID, ID + 1))

    def k_scores(SUM, TMP):
        PB = SUM
        o("    s_nop 7")
        for s_ in range(4):
            for j in range(4):
                o("    v_cvt_pk_bf16_f32 v%d, v%d, v%d" %
                  (PB + 4 * s_ + j, TMP + (2 * j) * 4 + s_, TMP + (2 * j + 1) * 4 + s_))
        SC = SUM + 16
        o("    s_nop 1")
        for s_ in range(4):
            c = "0" if s_ == 0 else "v[%d:%d]" % (SC, SC + 3)
            o("    v_mfma_f32_16x16x32_bf16 v[%d:%d], v[%d:%d], a[%d:%d], %s" %
              (SC, SC + 3, PB + 4 * s_, PB + 4 * s_ + 3, A_Q + 4 * s_, A_Q + 4 * s_ + 3, c))

    def k_softmax(SUM):
        SC, W, M = SUM + 16, SUM + 20, SUM + 22
        o("    s_mov_b32 s%d, 0x3db504f3" % (S_T + 2))
        o("    s_mov_b32 s%d, 0x3fb8aa3b" % (S_T + 3))
        o("    s_nop 7")

        def rb():
            o("    v_cvt_pk_bf16_f32 v%d, v%d, v%d" % (W, SC, SC + 1))
            o("    v_cvt_pk_bf16_f32 v%d, v%d, v%d" % (W + 1, SC + 2, SC + 3))
            o("    v_lshlrev_b32 v%d, 16, v%d" % (SC, W))
            o("    v_and_b32 v%d, 0xffff0000, v%d" % (SC + 1, W))
            o("    v_lshlrev_b32 v%d, 16, v%d" % (SC + 2, W + 1))
            o("    v_and_b32 v%d, 0xffff0000, v%d" % (SC + 3, W + 1))

        rb()
        for i in range(4):
            o("    v_mul_f32 v%d, s%d, v%d" % (SC + i, S_T + 2, SC + i))
        rb()
        o("    v_max_f32 v%d, v%d, v%d" % (M, SC, SC + 1))
        o("    v_max3_f32 v%d, v%d, v%d, v%d" % (M, SC + 2, SC + 3, M))
        xlane("v_max_f32", M, M + 1)
        for i in range(4):
            o("    v_sub_f32 v%d, v%d, v%d" % (SC + i, SC + i, M))
        for i in range(4):
            o("    v_mul_f32 v%d, s%d, v%d" % (SC + i, S_T + 3, SC + i))
        for i in range(4):
            o("    v_exp_f32 v%d, v%d" % (SC + i, SC + i))
        o("    s_nop 0")
        o("    v_add_f32 v%d, v%d, v%d" % (M, SC, SC + 1))
        o("    v_add_f32 v%d, v%d, v%d" % (M + 1, SC + 2, SC + 3))
        o("    v_add_f32 v%d, v%d, v%d" % (M, M, M + 1))
        xlane("v_add_f32", M, M + 1)
        o("    v_rcp_f32 v%d, v%d" % (M, M))
        o("    s_nop 0")
        for i in range(4):
            o("    v_mul_f32 v%d, v%d, v%d" % (SC + i, SC + i, M))
        o("    v_cvt_pk_bf16_f32 v%d, v%d, v%d" % (W, SC, SC + 1))
        o("    v_cvt_pk_bf16_f32 v%d, v%d, v%d" % (W + 1, SC + 2, SC + 3))
        o("    v_lshlrev_b32 v%d, 3, v%d" % (V_X, V_LANE))
        o("    ds_write_b64 v%d, v[%d:%d] offset:%d" % (V_X, W, W + 1, LDS_P))

    def v_read(X):
        o("    v_lshlrev_b32 v%d, 3, v%d" % (V_X, V_LANE))
        o("    ds_read_b64 v[%d:%d], v%d offset:%d" % (MISC, MISC + 1, V_X, LDS_P))
        for w in range(4):
            for h in range(2):
                r = X + (w * 2 + h) * 4
                o("    ds_read_b128 v[%d:%d], v%d offset:%d" % (r, r + 3, V_VR, w * WS + h * 4 * DS))

    def v_prod(X):
        for j in range(8):
            o("    v_add_f32 v%d, v%d, v%d" % (X + j, X + j, X + 8 + j))
        for j in range(8):
            o("    v_add_f32 v%d, v%d, v%d" % (X + 16 + j, X + 16 + j, X + 24 + j))
        for j in range(8):
            o("    v_add_f32 v%d, v%d, v%d" % (X + j, X + j, X + 16 + j))
        VB = MISC + 4
        for h in range(2):
            o("    v_cvt_pk_bf16_f32 v%d, v%d, v%d" % (VB + 2 * h, X + 4 * h, X + 4 * h + 1))
            o("    v_cvt_pk_bf16_f32 v%d, v%d, v%d" % (VB + 2 * h + 1, X + 4 * h + 2, X + 4 * h + 3))
        o("    s_nop 1")
        for h in range(2):
            o("    v_mfma_f32_16x16x16_bf16 v[%d:%d], v[%d:%d], v[%d:%d], 0" %
              (X + 16 + 4 * h, X + 16 + 4 * h + 3, VB + 2 * h, VB + 2 * h + 1, MISC, MISC + 1))

    def ramp_stamp(tag):
        o("    s_cmp_ge_u32 s90, %d" % (63 + rp))
        o("    s_cbranch_scc1 L_rs_%s" % tag)
        o("    s_memrealtime s[92:93]")
        o("    s_sub_u32 s91, s90, %d" % (rp - 1))
        o("    s_cmp_lt_i32 s91, 0")
        o("    s_cselect_b32 s91, 0, s91")
        o("    s_mov_b32 m0, s91")
        o("    s_waitcnt lgkmcnt(0)")
        o("    v_writelane_b32 v%d, s92, m0" % V_TR2)
        o("L_rs_%s:" % tag)
        o("    s_add_u32 s90, s90, 1")

    def ih_piece(kind, p):
        k = p - ihp
        if kind == "K" and 0 <= k < 6:
            o("    s_cmp_lg_u32 s%d, s%d" % (S_WAVE, S_PMI))
            o("    s_cbranch_scc1 L_ihs%d" % p)
            if k == 0:
                o("    v_lshlrev_b32 v%d, 4, v%d" % (V_X, V_LANE))
                k_read(V_S2, 0)
                k_read(V_T2, 1)
            elif k in (1, 2):
                o("    s_waitcnt lgkmcnt(0)")
                k_add(V_S2, V_T2)
                k_read(V_T2, k + 1)
            elif k == 3:
                o("    s_waitcnt lgkmcnt(0)")
                k_add(V_S2, V_T2)
                k_transpose(V_S2, V_T2)
            elif k == 4:
                k_scores(V_S2, V_T2)
            else:
                k_softmax(V_S2)
            o("L_ihs%d:" % p)
        if kind == "V":
            if k == 0:
                v_read(V_T2)
            elif k == 1:
                o("    s_waitcnt lgkmcnt(0)")
                v_prod(V_T2)
            elif k == 2:
                o("    s_nop 7")
                for i in range(4):
                    o("    v_cvt_pk_bf16_f32 v%d, v%d, v%d" % (V_DEF + i, V_T2 + 16 + 2 * i, V_T2 + 16 + 2 * i + 1))

    S_PMI = 63

    def body(mode, m, post=False, extra=0, kind=""):
        o("L_body_%s:" % mode)
        for p in range(8):
            s, a = divmod(p, 4)
            q = p + LA
            if half and p == 4 and not post:
                for code, other in ((0, "mid"), (1, "hi"), (2, "lo"), (4, "mi2")):
                    if other != mode and other != "mid" and (other != "mi2" or mm2):
                        o("    s_cmp_eq_u32 s%d, %d" % (S_MODE, code))
                        o("    s_cbranch_scc1 L_bodyB_%s" % other)
                if mode != "mid":
                    o("    s_cmp_eq_u32 s%d, 0" % S_MODE)
                    o("    s_cbranch_scc1 L_bodyB_mid")
                o("L_bodyB_%s:" % mode)
            if p == 0 and not post:
                step_inc()
                eoff()
            if p == 4:
                step_inc()
                if not post and not kind:
                    o("    s_cmp_eq_u32 s%d, 1" % S_CNT)
                    o("    s_cbranch_scc1 L_sw_%s" % mode)
                    o("L_swr_%s:" % mode)
                    stubs.append(mode)
                eoff()
            if kind and p == ihp:
                assert p in wsyl
                o("    s_waitcnt lgkmcnt(0)")
            if p in wsyl and not post:
                if wskip:
                    o("    s_cmp_ge_u32 s%d, %d" % (S_CNT, 16 - wskip))
                    o("    s_cbranch_scc1 L_nb%d_%s" % (p, mode))
                    o("    s_barrier")
                    o("L_nb%d_%s:" % (p, mode))
                else:
                    o("    s_barrier")
            if ctl and p == pc and pre:
                decide(mode)
                if ps == pc and not notime:
                    o("    s_memrealtime s[%d:%d]" % (S_NOW, S_NOW + 1))
            if post and p < 4:
                younger = 15 - (2 * p + 1) + NE
                o("    s_waitcnt vmcnt(%d)" % younger)
                if rp:
                    ramp_stamp("%s_%d" % (mode, p))
                if pst and not pro8 and p in (0, 3):
                    o("    s_cmp_eq_u32 s%d, 0" % S_MI)
                    o("    s_cbranch_scc0 L_nopst%d" % p)
                    pstp(4 if p == 0 else 5)
                    o("L_nopst%d:" % p)
            else:
                for h in range(2):
                    w = wait_of(m, p, h, extra)
                    if w is not None:
                        o("    s_waitcnt vmcnt(%d)" % w)
                    if rp and h == 0:
                        ramp_stamp("%s_%d" % (mode, p))
                    if h == 0 and q % 4 == 0:
                        issue_one(2 * q)
                        issue_E(q // 4)
                    else:
                        issue_one(2 * q + h)
                if pst and pro8 and p in (0, 3):
                    o("    s_cmp_eq_u32 s%d, 0" % S_PROG)
                    o("    s_cbranch_scc0 L_nopst%d_%s" % (p, mode))
                    pstp(4 if p == 0 else 5)
                    o("L_nopst%d_%s:" % (p, mode))
            if half:
                if p == 4 or (p == 0 and not post):
                    o("    s_memrealtime s[%d:%d]" % (S_NOW, S_NOW + 1))
                if p == hca and not post:
                    decide_half(mode)
                if p == hcb:
                    decide(mode)
            else:
                if ctl and p == ps and ps != pc and not notime:
                    o("    s_memrealtime s[%d:%d]" % (S_NOW, S_NOW + 1))
                if ctl and p == pc and not pre:
                    decide(mode)
                    if ps == pc and not notime:
                        o("    s_memrealtime s[%d:%d]" % (S_NOW, S_NOW + 1))
            if kind:
                ih_piece(kind, p)
            slot = p % (4 * RS)
            xb = RING + slot * 8
            yb = xb + 4
            for c in range(4):
                o("    v_perm_b32 v%d, v%d, v%d, s%d" % (T + (2 * c) * 4 + a, yb + c, xb + c, S_SELLO))
                o("    v_perm_b32 v%d, v%d, v%d, s%d" % (T + (2 * c + 1) * 4 + a, yb + c, xb + c, S_SELHI))
            if a == 3:
                round_mfma(s, zero=bool(kind) and s == 0)
        o("    s_sub_u32 s%d, s%d, 1" % (S_CNT, S_CNT))
        if not post and not kind:
            o("    s_cmp_eq_u32 s%d, 0" % S_CNT)
            o("    s_cbranch_scc1 L_matend")

    def body_fin():
        o("L_body_fin:")
        tstp(0)
        if ft:
            o("    v_lshlrev_b32 v%d, 3, v%d" % (V_X, V_LANE))
            o("    ds_read_b64 v[%d:%d], v%d offset:%d" % (MISC, MISC + 1, V_X, LDS_P))
            o("    v_add_u32 v%d, %d, v%d" % (V_Y, 4 * WS, V_PW))
        if es:
            o("    buffer_store_dwordx4 v[%d:%d], v%d, s[%d:%d], 0 offen %s" %
              (V_DEF, V_DEF + 3, V_OUT, SRD_O, SRD_O + 3, oflags))
        step_inc()
        eoff()
        issue_one(8)
        issue_E(1)
        for n in range(9, 16):
            issue_one(n)
        for p in range(8):
            s, a = divmod(p, 4)
            younger = 15 - (2 * p + 1) + (NE if p < 4 else 0)
            o("    s_waitcnt vmcnt(%d)" % younger)
            if p == 0:
                tstp(1)
            if p == 7:
                tstp(2)
            xb = RING + p * 8
            yb = xb + 4
            for c in range(4):
                o("    v_perm_b32 v%d, v%d, v%d, s%d" % (T + (2 * c) * 4 + a, yb + c, xb + c, S_SELLO))
                o("    v_perm_b32 v%d, v%d, v%d, s%d" % (T + (2 * c + 1) * 4 + a, yb + c, xb + c, S_SELHI))
            if a == 3:
                round_mfma(s)
        if not ft:
            o("    s_branch L_matend")
            return
        assert ih
        o("; last matrix: reduction, product and stores")
        o("    s_nop 0")
        for dd in range(8):
            o("    ds_write_b128 v%d, v[%d:%d] offset:%d" % (V_Y, ACC + 4 * dd, ACC + 4 * dd + 3, dd * DS))
        o("    s_mov_b32 s%d, 0x%x" % (S_T + 2, 1 << QSH))
        o("    s_waitcnt lgkmcnt(0)")
        tstp(3)
        o("    s_barrier")
        if tst:
            o("    s_memrealtime s[%d:%d]" % (PST[4], PST[4] + 1))
            o("    s_waitcnt lgkmcnt(0)")
        X = T
        for w in range(4):
            for h in range(2):
                r = X + (w * 2 + h) * 4
                o("    ds_read_b128 v[%d:%d], v%d offset:%d" % (r, r + 3, V_VR, w * WS + h * 4 * DS))
        o("    s_waitcnt lgkmcnt(4)")
        for j in range(8):
            o("    v_add_f32 v%d, v%d, v%d" % (X + j, X + j, X + 8 + j))
        o("    s_waitcnt lgkmcnt(2)")
        for j in range(8):
            o("    v_add_f32 v%d, v%d, v%d" % (X + j, X + j, X + 16 + j))
        o("    s_waitcnt lgkmcnt(0)")
        for j in range(8):
            o("    v_add_f32 v%d, v%d, v%d" % (X + j, X + j, X + 24 + j))
        VB = MISC + 4
        for h in range(2):
            o("    v_cvt_pk_bf16_f32 v%d, v%d, v%d" % (VB + 2 * h, X + 4 * h, X + 4 * h + 1))
            o("    v_cvt_pk_bf16_f32 v%d, v%d, v%d" % (VB + 2 * h + 1, X + 4 * h + 2, X + 4 * h + 3))
        o("    s_nop 1")
        for h in range(2):
            o("    v_mfma_f32_16x16x16_bf16 v[%d:%d], v[%d:%d], v[%d:%d], 0" %
              (X + 16 + 4 * h, X + 16 + 4 * h + 3, VB + 2 * h, VB + 2 * h + 1, MISC, MISC + 1))
        if not es:
            o("    buffer_store_dwordx4 v[%d:%d], v%d, s[%d:%d], 0 offen %s" %
              (V_DEF, V_DEF + 3, V_OUT, SRD_O, SRD_O + 3, oflags))
        o("    s_nop 6")
        for i in range(4):
            o("    v_cvt_pk_bf16_f32 v%d, v%d, v%d" % (MISC + 8 + i, X + 16 + 2 * i, X + 16 + 2 * i + 1))
        o("    buffer_store_dwordx4 v[%d:%d], v%d, s[%d:%d], s%d offen %s" %
          (MISC + 8, MISC + 11, V_OUT, SRD_O, SRD_O + 3, S_T + 2, oflags))
        tstp(5)
        o("    s_branch L_fin")

    pstp(3)
    if pro8 and bp:
        o("    s_mov_b32 s%d, 16" % S_CNT)
        if m0:
            o("    s_mov_b32 s%d, %d" % (S_MODE, m0))
        if mfirst:
            assert qm in (0, 1)
            if qm == 1:
                o("    s_bitcmp1_b32 s%d, 0" % S_WAVE)
                o("    s_cbranch_scc1 L_dispatch")
            o("    s_branch L_body_first")
        else:
            o("    s_branch L_dispatch")
    o("L_outer:")
    o("    s_mov_b32 s%d, 16" % S_CNT)
    if bp:
        o("; first iteration of a matrix: both rounds were issued ahead of the previous handler")
        body("post", mpost or mmid, post=True)
    o("; body selection by window mode: 0 mid, 1 hi, 2 lo, 3 last iteration")
    o("L_dispatch:")
    modes = [("mid", mmid)]
    if (ctl and force < 0) or force == 1 or tail:
        modes.append(("hi", mhi))
        o("    s_cmp_eq_u32 s%d, 1" % S_MODE)
        o("    s_cbranch_scc1 L_body_hi")
    if (ctl and force < 0) or force == 2:
        modes.append(("lo", mlo))
        o("    s_cmp_eq_u32 s%d, 2" % S_MODE)
        o("    s_cbranch_scc1 L_body_lo")
    if mm2:
        modes.append(("mi2", mm2))
        o("    s_cmp_eq_u32 s%d, 4" % S_MODE)
        o("    s_cbranch_scc1 L_body_mi2")
    if fin:
        assert ctl
        o("    s_cmp_eq_u32 s%d, 3" % S_MODE)
        o("    s_cbranch_scc1 L_body_fin")
    for mode, m in modes:
        body(mode, m)
        o("    s_branch L_dispatch")
    if mfirst:
        body("first", mfirst, extra=4)
        o("    s_branch L_dispatch")
    if fin:
        body_fin()
    o("L_matend:")
    if ih:
        assert bp and defer and fin and ihp <= 2 and not half and not esplit and hf < 0
        if not ft:
            o("    s_cmp_eq_u32 s%d, 3" % S_MI)
            o("    s_cbranch_scc1 L_final")
        o("    s_and_b32 s%d, s%d, 1" % (S_T, S_MI))
        o("    s_mul_i32 s%d, s%d, %d" % (S_T + 1, S_T, 4 * WS))
        o("    v_add_u32 v%d, s%d, v%d" % (V_X, S_T + 1, V_PW))
        o("    s_mov_b32 s%d, s%d" % (S_PMI, S_MI))
        o("    s_add_u32 s%d, s%d, 1" % (S_MI, S_MI))
        o("    s_mov_b32 s%d, 16" % S_CNT)
        o("    s_nop 7")
        for dd in range(8):
            o("    ds_write_b128 v%d, v[%d:%d] offset:%d" % (V_X, ACC + 4 * dd, ACC + 4 * dd + 3, dd * DS))
        o("    s_cmp_eq_u32 s%d, 1" % S_T)
        o("    s_cbranch_scc1 L_body_ihV")
        body("ihK", mih or mmid, kind="K")
        o("    s_branch L_dispatch")
        body("ihV", mih or mmid, kind="V")
        o("    s_branch L_dispatch")
        markf = len(L)
        o("; last matrix: reduction, product and both stores")
        o("L_final:")
        o("    v_add_u32 v%d, %d, v%d" % (V_X, 4 * WS, V_PW))
        o("    s_nop 7")
        o("    s_waitcnt lgkmcnt(0)")
        for dd in range(8):
            o("    ds_write_b128 v%d, v[%d:%d] offset:%d" % (V_X, ACC + 4 * dd, ACC + 4 * dd + 3, dd * DS))
        o("    s_waitcnt lgkmcnt(0)")
        tstp(3)
        o("    s_barrier")
        if tst:
            o("    s_memrealtime s[%d:%d]" % (PST[4], PST[4] + 1))
        v_read(T)
        o("    s_waitcnt lgkmcnt(0)")
        v_prod(T)
        o("    s_nop 7")
        for i in range(4):
            o("    v_cvt_pk_bf16_f32 v%d, v%d, v%d" % (MISC + 8 + i, T + 16 + 2 * i, T + 16 + 2 * i + 1))
        if not es:
            o("    buffer_store_dwordx4 v[%d:%d], v%d, s[%d:%d], 0 offen %s" %
              (V_DEF, V_DEF + 3, V_OUT, SRD_O, SRD_O + 3, oflags))
        o("    s_mov_b32 s%d, 0x%x" % (S_T + 2, 1 << QSH))
        o("    buffer_store_dwordx4 v[%d:%d], v%d, s[%d:%d], s%d offen %s" %
          (MISC + 8, MISC + 11, V_OUT, SRD_O, SRD_O + 3, S_T + 2, oflags))
        tstp(5)
        o("    s_branch L_fin")
        if ft:
            del L[markf:]
    if bp and not ih:
        o("    s_cmp_eq_u32 s%d, 3" % S_MI)
        o("    s_cbranch_scc1 L_nopf")
        step_inc()
        eoff()
        issue_one(8)
        issue_E(1)
        for n in range(9, 16):
            issue_one(n)
        o("L_nopf:")
    mark = len(L)
    o("    s_and_b32 s%d, s%d, 1" % (S_T, S_MI))
    o("    s_mul_i32 s%d, s%d, %d" % (S_T + 1, S_T, 4 * WS))
    o("    v_add_u32 v%d, s%d, v%d" % (V_X, S_T + 1, V_PW))
    o("    s_nop 7")
    if ctl:
        o("    s_waitcnt lgkmcnt(0)")
    for dd in range(8):
        o("    ds_write_b128 v%d, v[%d:%d] offset:%d" % (V_X, ACC + 4 * dd, ACC + 4 * dd + 3, dd * DS))
    o("    s_waitcnt lgkmcnt(0)")
    o("    s_barrier")
    o("    s_cmp_eq_u32 s%d, 1" % S_T)
    o("    s_cbranch_scc1 L_vend")
    o("    s_cmp_lg_u32 s%d, s%d" % (S_WAVE, S_MI))
    o("    s_cbranch_scc1 L_mat_done")
    SUM, TMP, PA = ACC, T, MISC
    o("    v_lshlrev_b32 v%d, 4, v%d" % (V_X, V_LANE))
    for w in range(4):
        dst = SUM if w == 0 else TMP
        for dd in range(8):
            o("    ds_read_b128 v[%d:%d], v%d offset:%d" %
              (dst + 4 * dd, dst + 4 * dd + 3, V_X, LDS_KP + w * WS + dd * DS))
        if w > 0:
            for dd in range(8):
                o("    s_waitcnt lgkmcnt(%d)" % (7 - dd))
                for i in range(4):
                    o("    v_add_f32 v%d, v%d, v%d" % (SUM + 4 * dd + i, SUM + 4 * dd + i, TMP + 4 * dd + i))
    for dd in range(8):
        o("    v_cvt_pk_bf16_f32 v%d, v%d, v%d" % (PA + 2 * dd, SUM + 4 * dd, SUM + 4 * dd + 1))
        o("    v_cvt_pk_bf16_f32 v%d, v%d, v%d" % (PA + 2 * dd + 1, SUM + 4 * dd + 2, SUM + 4 * dd + 3))
    ID = MISC + 16
    o("    v_and_b32 v%d, 15, v%d" % (V_X, V_LANE))
    o("    v_lshrrev_b32 v%d, 4, v%d" % (V_Y, V_LANE))
    o("    v_lshlrev_b32 v%d, 2, v%d" % (V_Y, V_Y))
    o("    v_sub_u32 v%d, v%d, v%d" % (V_X, V_X, V_Y))
    o("    v_mov_b32 v%d, 0" % ID)
    o("    v_mov_b32 v%d, 0" % (ID + 1))
    o("    v_mov_b32 v%d, 0x3f80" % (ID + 2))
    o("    v_mov_b32 v%d, 0x3f800000" % (ID + 3))
    for j, (dst, src) in enumerate(((ID, ID + 2), (ID, ID + 3), (ID + 1, ID + 2), (ID + 1, ID + 3))):
        o("    v_cmp_eq_u32 vcc, %d, v%d" % (j, V_X))
        o("    s_nop 1")
        o("    v_cndmask_b32 v%d, v%d, v%d, vcc" % (dst, dst, src))
    o("    s_nop 1")
    for dd in range(8):
        o("    v_mfma_f32_16x16x16_bf16 v[%d:%d], v[%d:%d], v[%d:%d], 0" %
          (TMP + 4 * dd, TMP + 4 * dd + 3, PA + 2 * dd, PA + 2 * dd + 1, ID, ID + 1))
    o("    s_nop 7")
    PB = SUM
    for s in range(4):
        for j in range(4):
            o("    v_cvt_pk_bf16_f32 v%d, v%d, v%d" %
              (PB + 4 * s + j, TMP + (2 * j) * 4 + s, TMP + (2 * j + 1) * 4 + s))
    SC = SUM + 16
    if qwait:
        o("    s_waitcnt vmcnt(0)")
    if qm == 2:
        assert bp and not noE
        o("    s_waitcnt vmcnt(%d)" % (16 + 2 * NE))
    for s in range(4):
        c = "0" if s == 0 else "v[%d:%d]" % (SC, SC + 3)
        o("    v_mfma_f32_16x16x32_bf16 v[%d:%d], v[%d:%d], a[%d:%d], %s" %
          (SC, SC + 3, PB + 4 * s, PB + 4 * s + 3, A_Q + 4 * s, A_Q + 4 * s + 3, c))
    o("    s_mov_b32 s%d, 0x3db504f3" % (S_T + 2))
    o("    s_mov_b32 s%d, 0x3fb8aa3b" % (S_T + 3))
    o("    s_nop 7")
    W = SUM + 20
    M = SUM + 22

    def round_bf16():
        o("    v_cvt_pk_bf16_f32 v%d, v%d, v%d" % (W, SC, SC + 1))
        o("    v_cvt_pk_bf16_f32 v%d, v%d, v%d" % (W + 1, SC + 2, SC + 3))
        o("    v_lshlrev_b32 v%d, 16, v%d" % (SC, W))
        o("    v_and_b32 v%d, 0xffff0000, v%d" % (SC + 1, W))
        o("    v_lshlrev_b32 v%d, 16, v%d" % (SC + 2, W + 1))
        o("    v_and_b32 v%d, 0xffff0000, v%d" % (SC + 3, W + 1))

    round_bf16()
    for i in range(4):
        o("    v_mul_f32 v%d, s%d, v%d" % (SC + i, S_T + 2, SC + i))
    round_bf16()
    o("    v_max_f32 v%d, v%d, v%d" % (M, SC, SC + 1))
    o("    v_max3_f32 v%d, v%d, v%d, v%d" % (M, SC + 2, SC + 3, M))

    def xlane(op, reg, tmp):
        for sw in ("v_permlane32_swap_b32", "v_permlane16_swap_b32"):
            o("    v_mov_b32 v%d, v%d" % (tmp, reg))
            o("    s_nop 1")
            o("    %s v%d, v%d" % (sw, reg, tmp))
            o("    s_nop 1")
            o("    %s v%d, v%d, v%d" % (op, reg, reg, tmp))

    xlane("v_max_f32", M, M + 1)
    for i in range(4):
        o("    v_sub_f32 v%d, v%d, v%d" % (SC + i, SC + i, M))
    for i in range(4):
        o("    v_mul_f32 v%d, s%d, v%d" % (SC + i, S_T + 3, SC + i))
    for i in range(4):
        o("    v_exp_f32 v%d, v%d" % (SC + i, SC + i))
    o("    s_nop 0")
    o("    v_add_f32 v%d, v%d, v%d" % (M, SC, SC + 1))
    o("    v_add_f32 v%d, v%d, v%d" % (M + 1, SC + 2, SC + 3))
    o("    v_add_f32 v%d, v%d, v%d" % (M, M, M + 1))
    xlane("v_add_f32", M, M + 1)
    o("    v_rcp_f32 v%d, v%d" % (M, M))
    o("    s_nop 0")
    for i in range(4):
        o("    v_mul_f32 v%d, v%d, v%d" % (SC + i, SC + i, M))
    o("    v_cvt_pk_bf16_f32 v%d, v%d, v%d" % (W, SC, SC + 1))
    o("    v_cvt_pk_bf16_f32 v%d, v%d, v%d" % (W + 1, SC + 2, SC + 3))
    o("    v_lshlrev_b32 v%d, 3, v%d" % (V_X, V_LANE))
    o("    ds_write_b64 v%d, v[%d:%d] offset:%d" % (V_X, W, W + 1, LDS_P))
    o("    s_waitcnt lgkmcnt(0)")
    o("    s_branch L_mat_done")

    o("L_vend:")
    PP = MISC
    o("    v_lshlrev_b32 v%d, 3, v%d" % (V_X, V_LANE))
    o("    ds_read_b64 v[%d:%d], v%d offset:%d" % (PP, PP + 1, V_X, LDS_P))
    for w in range(4):
        for h in range(2):
            r = T + (w * 2 + h) * 4
            o("    ds_read_b128 v[%d:%d], v%d offset:%d" % (r, r + 3, V_VR, w * WS + h * 4 * DS))
    o("    s_waitcnt lgkmcnt(4)")
    for j in range(8):
        o("    v_add_f32 v%d, v%d, v%d" % (T + j, T + j, T + 8 + j))
    o("    s_waitcnt lgkmcnt(0)")
    for j in range(8):
        o("    v_add_f32 v%d, v%d, v%d" % (T + 16 + j, T + 16 + j, T + 24 + j))
    for j in range(8):
        o("    v_add_f32 v%d, v%d, v%d" % (T + j, T + j, T + 16 + j))
    VB = MISC + 4
    for h in range(2):
        o("    v_cvt_pk_bf16_f32 v%d, v%d, v%d" % (VB + 2 * h, T + 4 * h, T + 4 * h + 1))
        o("    v_cvt_pk_bf16_f32 v%d, v%d, v%d" % (VB + 2 * h + 1, T + 4 * h + 2, T + 4 * h + 3))
    OO = T + 16
    o("    s_lshr_b32 s%d, s%d, 1" % (S_T + 2, S_MI))
    o("    s_lshl_b32 s%d, s%d, %d" % (S_T + 2, S_T + 2, QSH))
    if hf >= 0:
        o("    s_xor_b32 s%d, s%d, s%d" % (S_T + 2, S_T + 2, S_FL))
    for h in range(2):
        o("    v_mfma_f32_16x16x16_bf16 v[%d:%d], v[%d:%d], v[%d:%d], 0" %
          (OO + 4 * h, OO + 4 * h + 3, VB + 2 * h, VB + 2 * h + 1, PP, PP + 1))
    o("    s_nop 7")
    for i in range(4):
        o("    v_cvt_pk_bf16_f32 v%d, v%d, v%d" % (MISC + 8 + i, OO + 2 * i, OO + 2 * i + 1))
    if noout or defer:
        o("    s_cmp_eq_u32 s%d, 1" % S_MI)
        o("    s_cbranch_scc0 L_store")
        if defer:
            for i in range(4):
                o("    v_mov_b32 v%d, v%d" % (V_DEF + i, MISC + 8 + i))
        o("    s_branch L_mat_done")
        o("L_store:")
        if defer:
            o("    buffer_store_dwordx4 v[%d:%d], v%d, s[%d:%d], %s offen %s" %
              (V_DEF, V_DEF + 3, V_OUT, SRD_O, SRD_O + 3, "s%d" % S_FL if hf >= 0 else "0", oflags))
    o("    buffer_store_dwordx4 v[%d:%d], v%d, s[%d:%d], s%d offen %s" %
      (MISC + 8, MISC + 11, V_OUT, SRD_O, SRD_O + 3, S_T + 2, oflags))

    o("L_mat_done:")
    o("    s_add_u32 s%d, s%d, 1" % (S_MI, S_MI))
    o("    s_cmp_eq_u32 s%d, 4" % S_MI)
    o("    s_cbranch_scc1 L_fin")
    for j in range(32):
        o("    v_mov_b32 v%d, 0" % (ACC + j))
    o("    s_branch L_outer")
    if ih:
        del L[mark:]

    if ctl:
        o("; ---- progress reports (L_rp) and progress line updates (L_ev) ----")
        emit_events()
    o("; ---- load side moves on to the next matrix ----")
    for tag in stubs:
        o("L_sw_%s:" % tag)
        if qm == 2:
            o("    s_cmp_lg_u32 s%d, s%d" % (S_LM, S_WAVE))
            o("    s_cbranch_scc1 L_swq_%s" % tag)
            o("    s_bitcmp1_b32 s%d, 0" % S_WAVE)
            o("    s_cbranch_scc1 L_swq_%s" % tag)
            o("    v_and_b32 v%d, 15, v%d" % (V_X, V_LANE))
            o("    v_lshrrev_b32 v%d, 4, v%d" % (V_Y, V_LANE))
            load_q(V_X, V_Y, V_X, S_T + 6)
            o("L_swq_%s:" % tag)
        o("    s_mov_b32 s%d, s%d" % (S_OFF, S_OFF0))
        if general:
            o("    s_mov_b32 s%d, 0" % S_STP)
        if hf >= 0:
            o("    s_add_u32 s%d, s%d, s%d" % (S_T + 4, SRD_D, S_ADV))
            o("    s_addc_u32 s%d, s%d, s%d" % (S_T + 5, SRD_D + 1, S_ADVH))
        else:
            o("    s_add_u32 s%d, s%d, 0x%x" % (S_T + 4, SRD_D, 1 << mb))
            o("    s_addc_u32 s%d, s%d, 0" % (S_T + 5, SRD_D + 1))
        o("    s_mov_b32 s%d, s%d" % (SRD_D, NXT_D))
        o("    s_mov_b32 s%d, s%d" % (SRD_D + 1, NXT_D + 1))
        o("    s_mov_b32 s%d, s%d" % (NXT_D, S_T + 4))
        o("    s_mov_b32 s%d, s%d" % (NXT_D + 1, S_T + 5))
        o("    s_mov_b32 s%d, s%d" % (S_T + 4, SRD_P))
        o("    s_mov_b32 s%d, s%d" % (S_T + 5, SRD_P + 1))
        o("    s_mov_b32 s%d, s%d" % (SRD_P, NXT_P))
        o("    s_mov_b32 s%d, s%d" % (SRD_P + 1, NXT_P + 1))
        o("    s_mov_b32 s%d, s%d" % (NXT_P, S_T + 4))
        o("    s_mov_b32 s%d, s%d" % (NXT_P + 1, S_T + 5))
        o("    s_add_u32 s%d, s%d, 1" % (S_LM, S_LM))
        o("    s_cmp_eq_u32 s%d, 4" % S_LM)
        o("    s_cselect_b32 s%d, 0, 0x%x" % (SRD_D + 2, DSZ))
        o("    s_cselect_b32 s%d, 0, 0x20000" % (SRD_P + 2))
        o("    s_branch L_swr_%s" % tag)

    o("L_fin:")
    if stamp:
        o("    s_waitcnt vmcnt(0)")
        o("    s_memrealtime s[62:63]")
        o("    s_getreg_b32 s58, hwreg(HW_REG_XCC_ID)")
        o("    s_getreg_b32 s59, hwreg(HW_REG_HW_ID)")
        o("    s_waitcnt lgkmcnt(0)")
        o("    s_lshl_b32 s%d, s2, 2" % S_T)
        o("    s_add_u32 s%d, s%d, s%d" % (S_T, S_T, S_WAVE))
        o("    s_lshl_b32 s%d, s%d, 4" % (S_T, S_T))
        o("    v_mov_b32 v4, s60")
        o("    v_mov_b32 v5, s62")
        o("    v_mov_b32 v6, s58")
        if pstamp:
            o("    s_sub_u32 s82, s82, s60")
        o("    v_mov_b32 v7, s%d" % (82 if pstamp else (S_HI if ctl else 59)))
        o("    v_mov_b32 v2, s%d" % S_T)
        o("    global_store_dwordx4 v2, v[4:7], s[18:19]")
        if pst:
            o("    s_lshl_b32 s%d, s%d, 1" % (S_T + 1, S_T))
            o("    s_add_u32 s%d, s%d, 0x60000" % (S_T + 1, S_T + 1))
            o("    v_mov_b32 v2, s%d" % (S_T + 1))
            for k in range(6):
                o("    s_sub_u32 s%d, s%d, s60" % (PST[k], PST[k]))
                o("    v_mov_b32 v%d, s%d" % (8 + k, PST[k]))
            o("    global_store_dwordx4 v2, v[8:11], s[18:19]")
            o("    global_store_dwordx2 v2, v[12:13], s[18:19] offset:16")
        if trace or rp:
            o("    s_lshl_b32 s%d, s%d, 4" % (S_T, S_T))
            o("    s_add_u32 s%d, s%d, 0x10000" % (S_T, S_T))
            o("    v_lshlrev_b32 v2, 2, v0")
            o("    v_add_u32 v2, s%d, v2" % S_T)
            o("    global_store_dword v2, v%d, s[18:19]" % V_BV)
            if trace == 2 or rp:
                o("    v_add_u32 v2, 0x40000, v2")
                o("    global_store_dword v2, v%d, s[18:19]" % V_TR2)
    o("L_end:")
    o("    s_endpgm")
    nvg = max(accum_offset + na, 264)
    o('.section .rodata,"a"')
    o(".p2align 6")
    o(".amdhsa_kernel %s_kernel" % NAME)
    o("  .amdhsa_next_free_vgpr %d" % nvg)
    o("  .amdhsa_next_free_sgpr %d" % (96 if pst or rp else 88))
    o("  .amdhsa_accum_offset %d" % accum_offset)
    o("  .amdhsa_group_segment_fixed_size 0")
    o("  .amdhsa_kernarg_size 64")
    o("  .amdhsa_user_sgpr_count 2")
    o("  .amdhsa_user_sgpr_kernarg_segment_ptr 1")
    o("  .amdhsa_system_sgpr_workgroup_id_x 1")
    o("  .amdhsa_float_denorm_mode_32 3")
    o(".end_amdhsa_kernel")
    return "\n".join(L) + "\n"


if __name__ == "__main__":
    out = sys.argv[1]
    kw = {}
    for a in sys.argv[2:]:
        k, v = a.split("=")
        if k not in ("flags", "eflags", "oflags", "mlo", "mmid", "mhi", "cal", "aflags", "akind", "mpost", "mfirst", "xm", "jb", "gb", "wb", "sb", "pb", "af", "jx", "mm2", "wsy", "ewf", "mih"):
            v = int(v)
        kw[k] = v
    open(out, "w").write(gen(**kw))
```

```python
import sys

NAME = "standalone__low_rank_proj_linformer__sampling"
HEADER = open("cdna_kernels/%s.s.ref" % NAME).read().split("; Override launch")[0]

DOC = """
Linformer attention: kp = E.K, vp = F.V (rank 16), p = softmax(bf16(q.kp^T) * 128^-0.5), out = p.vp.
The kernel is bound by the 1 GiB read of K and V.

Work split: 256 workgroups x 4 waves, one workgroup per CU, two heads per workgroup.
A workgroup streams K(h0), V(h0), K(h1), V(h1); a round covers 128 rows (32 KiB), wave w takes
rows [32w, 32w+32), an iteration is two rounds.  Per round a wave issues 8 dwordx4 loads into a register
ring (two rounds deep), transposes 8x8 blocks with v_perm and accumulates E^T-fragment x data with
8 MFMA 16x16x32.  The four waves meet at a barrier every two load pairs, which keeps their DRAM pages common.
At the end of a matrix the four partial sums go to LDS; the reduction, the scores and the softmax (one
wave) or the product p.vp (all waves) run in pieces inside the next iteration, so the load stream never
pauses.  The first head's output stays in registers until the last iteration.
At the start the code and both projection matrices are touched once so that later uses hit the L2.

Load-window balancing: the dies start at different times and get unequal shares of the memory bandwidth,
and the slowest die sets the run time.  The loop body exists three times and differs only in how many
loads it keeps in flight (lo / mid / hi).  Once per iteration each wave compares its clock with a progress
line and picks the body: hi when it lags, lo when it leads.  The first line is the wave's own start time
plus nominal times; it moves towards the mean start time of the grid, and from iteration 14 on it is the
measured grid-wide progress.  A few waves add their clock value to counters in d_debug for this.
The choice changes timing only, never the result, and no wave ever waits on the clock or on another
workgroup.
"""


def gen(flags="nt", eflags="sc1", oflags="", stamp=0, force=-1, ctl=1,
        mlo="5s", mmid="6p", mhi="8p", dhi=1, dlo=1, cal="9,25", lag=8, delta=0, eps=0, ps=0, pc=6,
        tail=0, notime=0, pre=0, noev=0, trace=0,
        doat=1, dold=1, aflags="sc1", akind="atomic", abase=16, wmap=0, amask=0, aval=0,
        ns=256, stag=4, noout=0, defer=0, bp=0, noE=0, mpost="", qwait=0, pstamp=0, fin=0, tsh=0, pst=0, early=0, pf=0, pfw=256, pro8=0, qm=0, m0=0, mfirst="", tw=0, pdec=1, wa=0, rot=0, gp=11, wp=13, xm="", hb=8, hb2=0, jb="", gb="", wb="", sb="", mb=20, pb="", hf=-1, tf=-1, af="", jx="", prb=0, e0=0, eg=0, egs=1, mm2="", m2s=1, wsy="", nom=0, lag0=3, dl8=0, dh8=0, ew=0, ewf="", wskip=0, half=0, hca=2, hcb=6, sl=-1, c0=210, n1=0, ih=0, mih="", ihp=2, sl0=1, rp=0, tst=0, ft=0, es=0, pfs=6, epsl="", ki=0, im=40, kis=1, wba=0, jf=0):
    LA, RS, ER, P = 4, 2, 2, 2
    cal = [int(x) for x in str(cal).split(",")]
    assert 2 <= len(cal) <= 4
    SLOT = [0, 128, 64, 192]
    if sl >= 0 and not n1:
        SLOT = [136, 128, 64, 192]
    j0 = sl0 if sl >= 0 else cal[0] + lag0
    nsh = ns.bit_length() - 1
    assert ns == 1 << nsh and ns >= 8 * stag
    st2 = stag - 1
    nobar = nocomp = 0
    wsyl = [int(x) for x in str(wsy).split(",")] if wsy != "" else []
    general = (gp, wp, xm, hb, jb, gb, wb, sb) != (11, 13, "", 8, "", "", "", "")
    gbits = [int(x) for x in str(gb).split(",")] if gb else [gp, gp + 1]
    wbits = [int(x) for x in str(wb).split(",")] if wb else [wp, wp + 1]
    if jb:
        jbits = [int(x) for x in str(jb).split(",")]
    elif hb == 8:
        jbits = [8, 9, 10]
    elif hb2:
        jbits = [hb, hb2, 8]
    else:
        jbits = [hb, 8, 9]
    holes = sum(1 << b for b in gbits + wbits + jbits)
    assert bin(holes).count("1") == 7 and min(gbits + wbits) >= 8
    sbits = [b for b in range(8, 20) if not (holes >> b) & 1]
    if sb:
        sbits = [int(x) for x in str(sb).split(",")]
        assert sbits == sorted(sbits) and len(sbits) == 5
        holes = 0xffffff00 & ~sum(1 << b for b in sbits)
    pbits = [int(x) for x in str(pb).split(",")] if pb else [b for b in range(20, 29) if b != mb]
    allb = gbits + wbits + jbits + sbits + [mb] + pbits
    assert sorted(allb) == list(range(8, 29)), sorted(allb)
    probe = max(gbits + wbits + jbits + sbits) >= 20 or mb < 20 or bool(prb)
    headmap = (mb, pbits) != (20, list(range(21, 29)))
    offmask = sum(1 << b for b in gbits + wbits + jbits + sbits) | 0xff
    big_j = [b for b in jbits if b >= 12]
    afl = [int(x) for x in str(af).split(",")] if af else []
    af_s = sum(1 << b for b in afl if b in wbits + sbits)
    af_g = sum(1 << b for b in afl if b in gbits)
    S_OFFB = 87
    jxl = [tuple(int(y) for y in x.split(":")) for x in jx.split(",")] if jx else []
    jx_j = [(tb, sb_) for tb, sb_ in jxl if tb in jbits]
    jx_g = [(tb, sb_) for tb, sb_ in jxl if tb in gbits]
    assert len(jx_j) + len(jx_g) == len(jxl)
    xml = [tuple(int(y) for y in x.split(":")) for x in xm.split(",")] if xm else []
    if general:
        assert wa == 0 and rot == 0 and not early
    L = []
    o = L.append
    DS = 1088
    WS = 8 * DS
    LDS_P, LDS_KP, LDS_VP = 0, 512, 512 + 4 * WS
    lds = 512 + 8 * WS
    o(HEADER.rstrip())
    o("; @launch grid=(256,1,1) block=(256,1,1) lds=%d" % lds)
    for line in DOC.strip("\n").split("\n"):
        o(("; " + line).rstrip())
    o('.amdgcn_target "amdgcn-amd-amdhsa--gfx950"')
    o(".text")
    o(".globl %s_kernel" % NAME)
    o(".p2align 8")
    o(".type %s_kernel,@function" % NAME)
    o("%s_kernel:" % NAME)

    V_LANE, V_OFF, V_EOFF, V_PW, V_VR, V_OUT, V_X, V_Y = 0, 1, 2, 3, 4, 5, 6, 7
    ACC = 8
    T = 40
    MISC = 72
    V_BO, V_BV = MISC + 22, MISC + 23
    RING = 96
    V_DEF = RING + 32 * RS
    V_OFFX = V_DEF + 4
    nv = V_DEF + 4 + ((1 << len(big_j)) - 1)
    V_OFFJ = nv
    if jx_j:
        assert not big_j
        nv += 8
    esplit = jbits[1:] == [8, 9] and jbits[0] > 9 and not prb
    NE = 0 if noE else (2 if esplit else 1)
    V_ER = V_EA = 0
    if esplit:
        nv = (nv + 1) // 2 * 2
        V_ER = nv
        V_EA = (V_ER + 4 * ER + 3) // 4 * 4
        nv = V_EA + 4
    V_S2 = V_T2 = 0
    if ih:
        V_S2 = (nv + 3) // 4 * 4
        V_T2 = V_S2 + 32
        nv = V_T2 + 32
    V_TR2 = nv
    if trace == 2 or rp:
        nv += 4
    assert nv <= 256
    A_Q = 0
    A_E = 16
    na = A_E + 4 * ER
    accum_offset = (nv + 3) // 4 * 4

    S_SELLO, S_SELHI, S_WAVE, S_OFF, S_EOFF, S_CNT, S_MI, S_LM = 20, 21, 22, 23, 24, 25, 26, 27
    S_PROG = 57
    SRD_D, SRD_P = 28, 32
    NXT_D, NXT_P = 36, 38
    SRD_Q, SRD_O = 40, 44
    S_T = 48

    o("    s_cmp_ge_u32 s2, 256")
    o("    s_cbranch_scc1 L_end")
    o("    s_load_dwordx16 s[4:19], s[0:1], 0")
    if stamp:
        o("    s_memrealtime s[60:61]")
    if sl >= 0:
        o("    s_memrealtime s[72:73]")
    PST = [84, 86, 88, 90, 92, 94]

    def pstp(k):
        if pst and not tst:
            o("    s_memrealtime s[%d:%d]" % (PST[k], PST[k] + 1))

    def tstp(k):
        if tst:
            o("    s_memrealtime s[%d:%d]" % (PST[k], PST[k] + 1))

    def code_prefetch():
        if pfw < 256:
            o("    s_cmp_ge_u32 s2, %d" % pfw)
            o("    s_cbranch_scc1 L_nopfc")
        o("    s_getpc_b64 s[%d:%d]" % (S_T + 4, S_T + 5))
        o("L_pc:")
        o("    v_lshlrev_b32 v%d, %d, v%d" % (V_PW, pfs, V_TID))
        if pfs > 6:
            o("    v_cmp_gt_u32 vcc, L_end-L_pc, v%d" % V_PW)
            o("    s_and_saveexec_b64 s[%d:%d], vcc" % (S_T + 6, S_T + 7))
            o("    s_cbranch_execz L_pfx")
            o("    global_load_dword v%d, v%d, s[%d:%d]" % (V_DEF + 3, V_PW, S_T + 4, S_T + 5))
            o("L_pfx:")
            o("    s_mov_b64 exec, -1")
        else:
            o("    v_min_u32 v%d, L_end-L_pc, v%d" % (V_PW, V_PW))
            o("    global_load_dword v%d, v%d, s[%d:%d]" % (V_DEF + 3, V_PW, S_T + 4, S_T + 5))
        if pfw < 256:
            o("L_nopfc:")

    V_TID = 0
    S_TMP0, S_TMP1, S_JC = S_T + 4, S_T + 5, 83
    if pf:
        code_prefetch()
    o("    v_lshrrev_b32 v%d, 6, v0" % V_X)
    o("    v_and_b32 v%d, 63, v0" % V_LANE)
    o("    v_readfirstlane_b32 s%d, v%d" % (S_WAVE, V_X))
    if not early:
        o("    s_mov_b32 s%d, 0x05040100" % S_SELLO)
        o("    s_mov_b32 s%d, 0x07060302" % S_SELHI)
    o("    v_and_b32 v%d, 15, v%d" % (V_X, V_LANE))
    o("    v_lshrrev_b32 v%d, 4, v%d" % (V_Y, V_LANE))
    o("    v_lshlrev_b32 v%d, 4, v%d" % (V_OFF, V_X))
    if gbits[1] == gbits[0] + 1:
        o("    v_lshl_add_u32 v%d, v%d, %d, v%d" % (V_OFF, V_Y, gbits[0], V_OFF))
    else:
        o("    v_and_b32 v%d, 1, v%d" % (V_PW, V_Y))
        o("    v_lshl_add_u32 v%d, v%d, %d, v%d" % (V_OFF, V_PW, gbits[0], V_OFF))
        o("    v_lshrrev_b32 v%d, 1, v%d" % (V_PW, V_Y))
        o("    v_lshl_add_u32 v%d, v%d, %d, v%d" % (V_OFF, V_PW, gbits[1], V_OFF))
    if probe:
        o("    v_lshlrev_b32 v%d, 13, v%d" % (V_EOFF, V_X))
        o("    v_lshl_add_u32 v%d, v%d, 4, v%d" % (V_EOFF, V_Y, V_EOFF))
    elif not early:
        o("    v_lshlrev_b32 v%d, 13, v%d" % (V_EOFF, V_X))
        if gbits[1] == gbits[0] + 1:
            o("    v_lshl_add_u32 v%d, v%d, %d, v%d" % (V_EOFF, V_Y, gbits[0] - 7, V_EOFF))
        else:
            o("    v_and_b32 v%d, 1, v%d" % (V_PW, V_Y))
            o("    v_lshl_add_u32 v%d, v%d, %d, v%d" % (V_EOFF, V_PW, gbits[0] - 7, V_EOFF))
            o("    v_lshrrev_b32 v%d, 1, v%d" % (V_PW, V_Y))
            o("    v_lshl_add_u32 v%d, v%d, %d, v%d" % (V_EOFF, V_PW, gbits[1] - 7, V_EOFF))
    for tb, sb_ in jx_g:
        o("    s_bfe_u32 s%d, s2, 0x%x" % (S_TMP0, 0x10000 | sb_))
        o("    s_lshl_b32 s%d, s%d, %d" % (S_TMP1, S_TMP0, tb))
        o("    v_xor_b32 v%d, s%d, v%d" % (V_OFF, S_TMP1, V_OFF))
        o("    s_lshl_b32 s%d, s%d, %d" % (S_TMP1, S_TMP0, tb - 7))
        o("    v_xor_b32 v%d, s%d, v%d" % (V_EOFF, S_TMP1, V_EOFF))
    if jx_j:
        o("    s_mov_b32 s%d, 0" % S_JC)
        for tb, sb_ in jx_j:
            o("    s_bfe_u32 s%d, s2, 0x%x" % (S_TMP0, 0x10000 | sb_))
            o("    s_lshl_b32 s%d, s%d, %d" % (S_TMP0, S_TMP0, tb))
            o("    s_xor_b32 s%d, s%d, s%d" % (S_JC, S_JC, S_TMP0))
        for i in range(8):
            a_ = sum(1 << b for t, b in enumerate(jbits) if (i >> t) & 1)
            o("    s_xor_b32 s%d, s%d, 0x%x" % (S_TMP0, S_JC, a_))
            o("    v_or_b32 v%d, s%d, v%d" % (V_OFFJ + i, S_TMP0, V_OFF))
    for sel in range(1, 1 << len(big_j)):
        add = sum(1 << b for t, b in enumerate(big_j) if (sel >> t) & 1)
        if af_g and sel & 1:
            o("    v_xor_b32 v%d, 0x%x, v%d" % (V_OFFX + sel - 1, af_g, V_OFF))
            o("    v_add_u32 v%d, 0x%x, v%d" % (V_OFFX + sel - 1, add, V_OFFX + sel - 1))
        else:
            o("    v_add_u32 v%d, 0x%x, v%d" % (V_OFFX + sel - 1, add, V_OFF))
    S_STP = 56
    if wbits[1] == wbits[0] + 1:
        o("    s_lshl_b32 s%d, s%d, %d" % (S_OFF, S_WAVE, wbits[0] if general else 13 + wa))
    else:
        o("    s_and_b32 s%d, s%d, 1" % (S_OFF, S_WAVE))
        o("    s_lshl_b32 s%d, s%d, %d" % (S_OFF, S_OFF, wbits[0]))
        o("    s_lshr_b32 s%d, s%d, 1" % (S_T + 4, S_WAVE))
        o("    s_lshl_b32 s%d, s%d, %d" % (S_T + 4, S_T + 4, wbits[1]))
        o("    s_or_b32 s%d, s%d, s%d" % (S_OFF, S_OFF, S_T + 4))
    if general:
        o("    s_mov_b32 s%d, 0" % S_STP)
        for tb, sb in xml:
            o("    s_bfe_u32 s%d, s2, 0x%x" % (S_T + 4, 0x10000 | sb))
            o("    s_lshl_b32 s%d, s%d, %d" % (S_T + 4, S_T + 4, tb))
            o("    s_xor_b32 s%d, s%d, s%d" % (S_OFF, S_OFF, S_T + 4))
    if rot:
        assert wa == 0
        R = S_T + 4
        if rot == 1:
            o("    s_lshr_b32 s%d, s2, 3" % R)
        elif rot == 2:
            o("    s_mov_b32 s%d, s2" % R)
        elif rot == 3:
            o("    s_lshl_b32 s%d, s2, 2" % R)
        elif rot == 4:
            o("    s_lshr_b32 s%d, s2, 3" % R)
            o("    s_lshl_b32 s%d, s2, 2" % (R + 1))
            o("    s_add_u32 s%d, s%d, s%d" % (R, R, R + 1))
        elif rot == 5:
            o("    s_lshr_b32 s%d, s2, 3" % R)
            o("    s_and_b32 s%d, s%d, 1" % (R, R))
        elif rot == 6:
            o("    s_lshr_b32 s%d, s2, 3" % R)
            o("    s_and_b32 s%d, s%d, 3" % (R, R))
        elif rot == 7:
            o("    s_lshr_b32 s%d, s2, 3" % R)
            o("    s_lshl_b32 s%d, s%d, 3" % (R, R))
        elif rot == 8:
            o("    s_lshr_b32 s%d, s2, 3" % R)
            o("    s_lshl_b32 s%d, s%d, 4" % (R, R))
        o("    s_and_b32 s%d, s%d, 31" % (R, R))
        o("    s_lshl_b32 s%d, s%d, 15" % (R, R))
        o("    s_add_u32 s%d, s%d, s%d" % (S_OFF, S_OFF, R))
    S_EV, S_MODE, S_ACC, S_INC, S_TM, S_NOW, S_THI, S_TLO = 64, 65, 66, 67, 72, 74, 76, 77
    S_C1, S_C2, S_HI, S_OFF0, S_RP, S_OK = 68, 70, 78, 79, 80, 81

    def eoff():
        o("    s_lshr_b32 s%d, s%d, 7" % (S_EOFF, S_OFF))
        if af_s:
            o("    s_xor_b32 s%d, s%d, 0x%x" % (S_OFFB, S_OFF, af_s))
        if probe:
            o("    s_and_b32 s%d, s%d, 0x1fc0" % (S_EOFF, S_EOFF))

    def step_inc():
        if general:
            o("    s_or_b32 s%d, s%d, 0x%x" % (S_STP, S_STP, holes))
            o("    s_add_u32 s%d, s%d, 0x%x" % (S_STP, S_STP, 1 << sbits[0]))
            o("    s_andn2_b32 s%d, s%d, 0x%x" % (S_STP, S_STP, holes))
            o("    s_xor_b32 s%d, s%d, s%d" % (S_OFF, S_STP, S_OFF0))
        elif wa == 0:
            o("    s_add_u32 s%d, s%d, 0x8000" % (S_OFF, S_OFF))
            if rot:
                o("    s_and_b32 s%d, s%d, 0xfffff" % (S_OFF, S_OFF))
        elif wa == 5:
            o("    s_add_u32 s%d, s%d, 0x2000" % (S_OFF, S_OFF))
        else:
            hole = 3 << (13 + wa)
            o("    s_or_b32 s%d, s%d, 0x%x" % (S_OFF, S_OFF, hole))
            o("    s_add_u32 s%d, s%d, 0x2000" % (S_OFF, S_OFF))
            o("    s_andn2_b32 s%d, s%d, 0x%x" % (S_OFF, S_OFF, hole))
            o("    s_or_b32 s%d, s%d, s%d" % (S_OFF, S_OFF, S_OFF0))

    def ctl_setup():
        U = S_T + 6 if early else S_T
        o("    s_mov_b32 s%d, %d" % (S_MODE, {-1: 0, 0: 0, 1: 1, 2: 2}[force]))
        if ctl:
            o("    s_mov_b32 s%d, 0" % S_PROG)
            if ki:
                o("    s_mov_b32 s82, 0")
                o("    s_mov_b32 s83, 0")
            o("    s_mov_b32 s%d, 0" % S_HI)
            if sl >= 0:
                T1n = 16 * nom
                o("    s_mov_b32 s%d, %d" % (S_ACC, 64 * c0))
                o("    s_mov_b32 s%d, %d" % (S_INC, 4 * T1n))
                o("    s_mov_b32 s%d, 0" % S_NOW)
                o("    s_mov_b32 s%d, %d" % (S_THI, (T1n * (dh8 or 8 * dhi)) >> 3))
                o("    s_mov_b32 s%d, %d" % (S_TLO, (-T1n * (dl8 or 8 * dlo)) >> 3))
                assert not mm2
            else:
                o("    s_mov_b32 s%d, 0" % S_ACC)
                o("    s_mov_b32 s%d, 0" % S_INC)
                o("    s_mov_b32 s%d, 0" % S_TM)
                o("    s_mov_b32 s%d, 0" % S_NOW)
                o("    s_mov_b32 s%d, 0x7fffffff" % S_THI)
                if mm2:
                    o("    s_mov_b32 s82, 0x7fffffff")
                o("    s_mov_b32 s%d, 0x80000000" % S_TLO)
            o("    s_lshr_b32 s%d, s2, 3" % U)
            o("    s_and_b32 s%d, s%d, %d" % (U, U, stag - 1))
            o("    s_mov_b32 s%d, 0x7fffffff" % S_RP)
            o("    s_mov_b32 s%d, 0" % (U + 1))
            for k, c in enumerate(cal):
                if sl >= 0 and k == 0 and n1:
                    continue
                o("    s_cmp_eq_u32 s%d, %d" % (S_WAVE, (k + 1) & 3))
                o("    s_cselect_b32 s%d, %d, s%d" % (S_RP, c, S_RP))
                o("    s_cselect_b32 s%d, %d, s%d" % (U + 1, SLOT[k], U + 1))
            o("    v_mov_b32 v%d, s%d" % (V_BO, U + 1))
            o("    s_cmp_lg_u32 s%d, 0x7fffffff" % S_RP)
            o("    s_cselect_b32 s%d, s%d, 0" % (U, U))
            o("    s_add_u32 s%d, s%d, s%d" % (S_RP, S_RP, U))
            if ns < 256:
                o("    s_cmp_lt_u32 s2, %d" % ns)
                o("    s_cselect_b32 s%d, s%d, 0x7fffffff" % (S_RP, S_RP))
            if amask:
                o("    s_and_b32 s%d, s2, %d" % (U, amask))
                o("    s_cmp_eq_u32 s%d, %d" % (U, aval))
                o("    s_cselect_b32 s%d, s%d, 0x7fffffff" % (S_RP, S_RP))
            o("    s_mov_b32 s%d, %d" % (S_EV, j0 if nom else cal[1] + lag))
            assert sl < 0 or nom
            o("    s_mov_b32 s%d, 0" % S_OK)
            for r in range(S_C1, S_C1 + 4):
                o("    s_mov_b32 s%d, 0" % r)
        o("    s_mov_b32 s%d, 0" % S_LM)
        o("    s_mov_b32 s%d, 0" % S_MI)

    def srd_rest():
        qsz = 8192 if mb <= 20 or probe else (1 << (mb - 8)) + 4096
        o("    s_mov_b32 s%d, %d" % (SRD_Q + 2, qsz))
        o("    s_mov_b32 s%d, 0x20000" % (SRD_Q + 3))
        o("    s_mov_b32 s%d, %d" % (SRD_O + 2, qsz))
        o("    s_mov_b32 s%d, 0x20000" % (SRD_O + 3))

    if not early:
        o("    s_mov_b32 s%d, s%d" % (S_OFF0, S_OFF))
        ctl_setup()
        eoff()
    S_PAIR = S_T + 2
    if wmap == 0:
        o("    s_mov_b32 s%d, s2" % S_PAIR)
    elif wmap == 1:
        o("    s_and_b32 s%d, s2, 7" % S_PAIR)
        o("    s_lshl_b32 s%d, s%d, 5" % (S_PAIR, S_PAIR))
        o("    s_lshr_b32 s%d, s2, 3" % (S_T + 3))
        o("    s_or_b32 s%d, s%d, s%d" % (S_PAIR, S_PAIR, S_T + 3))
    elif wmap == 2:
        o("    s_lshr_b32 s%d, s2, 3" % (S_T + 3))
        o("    s_and_b32 s%d, s%d, 7" % (S_T + 3, S_T + 3))
        o("    s_xor_b32 s%d, s2, s%d" % (S_PAIR, S_T + 3))
    elif wmap == 3:
        o("    s_and_b32 s%d, s2, 7" % S_PAIR)
        o("    s_lshl_b32 s%d, s%d, 5" % (S_PAIR, S_PAIR))
        o("    s_lshr_b32 s%d, s2, 3" % (S_T + 3))
        o("    s_or_b32 s%d, s%d, s%d" % (S_PAIR, S_PAIR, S_T + 3))
        o("    s_and_b32 s%d, s%d, 7" % (S_T + 3, S_T + 3))
        o("    s_lshl_b32 s%d, s%d, 5" % (S_T + 3, S_T + 3))
        o("    s_xor_b32 s%d, s%d, s%d" % (S_PAIR, S_PAIR, S_T + 3))
    elif wmap == 4:
        o("    s_and_b32 s%d, s2, 7" % S_PAIR)
        o("    s_lshr_b32 s%d, s2, 3" % (S_T + 3))
        o("    s_lshl_b32 s%d, s%d, 2" % (S_T + 4, S_PAIR))
        o("    s_add_u32 s%d, s%d, s%d" % (S_T + 3, S_T + 3, S_T + 4))
        o("    s_and_b32 s%d, s%d, 31" % (S_T + 3, S_T + 3))
        o("    s_lshl_b32 s%d, s%d, 5" % (S_PAIR, S_PAIR))
        o("    s_or_b32 s%d, s%d, s%d" % (S_PAIR, S_PAIR, S_T + 3))
    elif wmap == 5:
        o("    s_brev_b32 s%d, s2" % S_PAIR)
        o("    s_lshr_b32 s%d, s%d, 24" % (S_PAIR, S_PAIR))
    elif wmap == 6:
        o("    s_bfe_u32 s%d, s2, 0x20001" % S_PAIR)
        o("    s_lshl_b32 s%d, s%d, 6" % (S_PAIR, S_PAIR))
        o("    s_lshr_b32 s%d, s2, 3" % (S_T + 3))
        o("    s_lshl_b32 s%d, s%d, 1" % (S_T + 3, S_T + 3))
        o("    s_or_b32 s%d, s%d, s%d" % (S_PAIR, S_PAIR, S_T + 3))
        o("    s_and_b32 s%d, s2, 1" % (S_T + 3))
        o("    s_or_b32 s%d, s%d, s%d" % (S_PAIR, S_PAIR, S_T + 3))
    elif wmap == 7:
        o("    s_and_b32 s%d, s2, 7" % S_PAIR)
        o("    s_lshl_b32 s%d, s%d, 3" % (S_PAIR, S_PAIR))
        o("    s_bfe_u32 s%d, s2, 0x30003" % (S_T + 3))
        o("    s_or_b32 s%d, s%d, s%d" % (S_PAIR, S_PAIR, S_T + 3))
        o("    s_lshr_b32 s%d, s2, 6" % (S_T + 3))
        o("    s_lshl_b32 s%d, s%d, 6" % (S_T + 3, S_T + 3))
        o("    s_or_b32 s%d, s%d, s%d" % (S_PAIR, S_PAIR, S_T + 3))
    if headmap:
        o("    s_mov_b32 s%d, 0" % S_T)
        for i, b in enumerate(pbits):
            o("    s_bfe_u32 s%d, s%d, 0x%x" % (S_T + 1, S_PAIR, 0x10000 | i))
            o("    s_lshl_b32 s%d, s%d, %d" % (S_T + 1, S_T + 1, b))
            o("    s_or_b32 s%d, s%d, s%d" % (S_T, S_T, S_T + 1))
    else:
        o("    s_lshl_b32 s%d, s%d, 21" % (S_T, S_PAIR))
    S_ADV, S_ADVH, S_FL = 84, 85, 86
    if hf >= 0:
        assert not pst and not early and qm == 0
        if hf == 99:
            o("    s_mov_b32 s%d, 1" % S_FL)
        else:
            o("    s_bfe_u32 s%d, s2, 0x%x" % (S_FL, 0x10000 | hf))
        o("    s_mov_b32 s%d, 0x%x" % (S_ADV, 1 << mb))
        o("    s_cmp_eq_u32 s%d, 1" % S_FL)
        o("    s_cselect_b32 s%d, 0x%x, s%d" % (S_ADV, (-(1 << mb)) & 0xffffffff, S_ADV))
        o("    s_cselect_b32 s%d, -1, 0" % S_ADVH)
    DSZ = (offmask + 1) if probe else 0x100000
    QSH = 12 if probe else mb - 8
    o("    s_mov_b32 s%d, 0x%x" % (SRD_D + 2, DSZ))
    o("    s_mov_b32 s%d, 0x20000" % (SRD_D + 3))
    if not early:
        if headmap and not probe:
            o("    s_lshr_b32 s%d, s%d, 8" % (S_T + 1, S_T))
        else:
            o("    s_lshl_b32 s%d, s%d, 13" % (S_T + 1, S_PAIR))
        o("    s_mov_b32 s%d, 0x20000" % (SRD_P + 2))
        o("    s_mov_b32 s%d, 0x20000" % (SRD_P + 3))
        srd_rest()
    pstp(0)
    o("    s_waitcnt lgkmcnt(0)")
    if pstamp:
        o("    s_memrealtime s[82:83]")
    pstp(1)
    if hf >= 0:
        o("    s_lshl_b32 s%d, s%d, %d" % (S_T + 4, S_FL, mb))
        o("    s_or_b32 s%d, s%d, s%d" % (S_T, S_T, S_T + 4))
        o("    s_lshl_b32 s%d, s%d, %d" % (S_FL, S_FL, QSH))
    if tf >= 0:
        if tf == 99:
            o("    s_cmp_eq_u32 s2, s2")
        else:
            o("    s_bitcmp1_b32 s2, %d" % tf)
        o("    s_cselect_b32 s%d, s8, s6" % (S_T + 4))
        o("    s_cselect_b32 s%d, s9, s7" % (S_T + 5))
        o("    s_cselect_b32 s8, s6, s8")
        o("    s_cselect_b32 s9, s7, s9")
        o("    s_mov_b32 s6, s%d" % (S_T + 4))
        o("    s_mov_b32 s7, s%d" % (S_T + 5))
    o("    s_add_u32 s%d, s6, s%d" % (SRD_D, S_T))
    o("    s_addc_u32 s%d, s7, 0" % (SRD_D + 1))
    if not early:
        o("    s_mov_b32 s%d, s10" % SRD_P)
        o("    s_mov_b32 s%d, s11" % (SRD_P + 1))

    def issue_E(step):
        if noE:
            return
        if esplit:
            r = V_ER + (step % ER) * 4
            for t in range(2):
                o("    buffer_load_dwordx2 v[%d:%d], v%d, s[%d:%d], s%d offen offset:%d %s" %
                  (r + 2 * t, r + 2 * t + 1, V_EOFF, SRD_P, SRD_P + 3, S_EOFF, t << (jbits[0] - 7), eflags))
            return
        r = A_E + (step % ER) * 4
        o("    buffer_load_dwordx4 a[%d:%d], v%d, s[%d:%d], s%d offen %s" %
          (r, r + 3, V_EOFF, SRD_P, SRD_P + 3, S_EOFF, eflags))

    def issue_one(n):
        q, h = divmod(n, 2)
        a = q % 4
        slot = q % (4 * RS)
        i = (2 * a + h) ^ jf
        r = RING + (slot * 2 + h) * 4
        imm, sel = 0, 0
        alt = bool(afl) and any((i >> t) & 1 and b == big_j[0] for t, b in enumerate(jbits))
        for t, b in enumerate(jbits):
            bit = (i >> t) & 1
            if alt and b in afl:
                bit ^= 1
            if bit:
                if b >= 12:
                    sel |= 1 << big_j.index(b)
                else:
                    imm += 1 << b
        if jx_j:
            o("    buffer_load_dwordx4 v[%d:%d], v%d, s[%d:%d], s%d offen %s" %
              (r, r + 3, V_OFFJ + i, SRD_D, SRD_D + 3, S_OFF, flags))
            return
        o("    buffer_load_dwordx4 v[%d:%d], v%d, s[%d:%d], s%d offen offset:%d %s" %
          (r, r + 3, V_OFFX + sel - 1 if sel else V_OFF, SRD_D, SRD_D + 3,
           S_OFFB if alt and af_s else S_OFF, imm, flags))

    def issue_pair(q):
        issue_one(2 * q)
        issue_one(2 * q + 1)

    stubs = []
    events = []

    if not early and not e0:
        issue_E(0)
    for q in range(LA):
        issue_pair(q)
        if not early and e0 == q + 1:
            issue_E(0)
    if early:
        o("    v_lshlrev_b32 v%d, 13, v%d" % (V_EOFF, V_X))
        o("    v_lshl_add_u32 v%d, v%d, 4, v%d" % (V_EOFF, V_Y, V_EOFF))
        eoff()
        o("    s_mov_b32 s%d, s10" % SRD_P)
        o("    s_mov_b32 s%d, s11" % (SRD_P + 1))
        o("    s_mov_b32 s%d, 0x20000" % (SRD_P + 2))
        o("    s_mov_b32 s%d, 0x20000" % (SRD_P + 3))
        issue_E(0)
        o("    s_mov_b32 s%d, s%d" % (S_OFF0, S_OFF))
    if bp and not pro8:
        step_inc()
        eoff()
        issue_one(8)
        issue_E(1)
        for n in range(9, 16):
            issue_one(n)
    pstp(2)
    if early:
        o("    s_mov_b32 s%d, 0x05040100" % S_SELLO)
        o("    s_mov_b32 s%d, 0x07060302" % S_SELHI)
        o("    s_lshl_b32 s%d, s%d, 13" % (S_T + 1, S_PAIR))
        srd_rest()
        ctl_setup()
    o("    s_add_u32 s%d, s8, s%d" % (NXT_D, S_T))
    o("    s_addc_u32 s%d, s9, 0" % (NXT_D + 1))
    o("    s_mov_b32 s%d, s12" % NXT_P)
    o("    s_mov_b32 s%d, s13" % (NXT_P + 1))
    o("    s_add_u32 s%d, s4, s%d" % (SRD_Q, S_T + 1))
    o("    s_addc_u32 s%d, s5, 0" % (SRD_Q + 1))
    o("    s_add_u32 s%d, s14, s%d" % (SRD_O, S_T + 1))
    o("    s_addc_u32 s%d, s15, 0" % (SRD_O + 1))
    def load_q(vx, vy, va, st):
        o("    v_lshlrev_b32 v%d, 8, v%d" % (va, vx))
        o("    v_lshl_add_u32 v%d, v%d, 6, v%d" % (va, vy, va))
        o("    s_lshr_b32 s%d, s%d, 1" % (st, S_WAVE))
        o("    s_lshl_b32 s%d, s%d, %d" % (st, st, QSH))
        if hf >= 0:
            o("    s_xor_b32 s%d, s%d, s%d" % (st, st, S_FL))
        for s in range(4):
            o("    buffer_load_dwordx4 a[%d:%d], v%d, s[%d:%d], s%d offen offset:%d" %
              (A_Q + 4 * s, A_Q + 4 * s + 3, va, SRD_Q, SRD_Q + 3, st, 16 * s))

    if qm == 0:
        load_q(V_X, V_Y, V_PW, S_T + 2)
    elif qm == 1:
        o("    s_bitcmp1_b32 s%d, 0" % S_WAVE)
        o("    s_cbranch_scc1 L_noq")
        load_q(V_X, V_Y, V_PW, S_T + 2)
        o("L_noq:")
    def warm_proj():
        o("    s_bfe_u32 s%d, s2, 0x50003" % (S_T + 2))
        o("    s_lshl_b32 s%d, s%d, 2" % (S_T + 2, S_T + 2))
        o("    s_add_u32 s%d, s%d, s%d" % (S_T + 2, S_T + 2, S_WAVE))
        o("    s_lshl_b32 s%d, s%d, 10" % (S_T + 2, S_T + 2))
        o("    v_lshlrev_b32 v%d, 4, v%d" % (V_PW, V_LANE))
        o("    v_add_u32 v%d, s%d, v%d" % (V_PW, S_T + 2, V_PW))
        if ew & 1:
            o("    global_load_dwordx4 v[%d:%d], v%d, s[10:11] %s" % (V_DEF, V_DEF + 3, V_PW, ewf))
        if ew & 2:
            o("    global_load_dwordx4 v[%d:%d], v%d, s[12:13] %s" % (V_DEF, V_DEF + 3, V_PW, ewf))

    if sl >= 0:
        o("    s_cmp_lt_u32 s2, %d" % ns)
        o("    s_cbranch_scc0 L_nosr")
        o("    s_cmp_eq_u32 s%d, 1" % S_WAVE)
        o("    s_cbranch_scc0 L_nosr")
        o("    v_mov_b32 v%d, s%d" % (V_BV - 3, S_TM))
        o("    v_mov_b32 v%d, 0x100" % (V_BV - 2))
        o("    v_mov_b32 v%d, 0" % (V_BV - 4))
        o("    s_mov_b64 exec, 1")
        o("    global_atomic_add_x2 v%d, v[%d:%d], s[%d:%d] %s" % (V_BV - 4, V_BV - 3, V_BV - 2, abase, abase + 1, aflags))
        o("    s_mov_b64 exec, -1")
        o("L_nosr:")
    if ew:
        assert defer and qm != 2
        warm_proj()
    if tw:
        assert defer
        o("    v_and_b32 v%d, 3, v%d" % (V_PW, V_LANE))
        o("    v_lshlrev_b32 v%d, 19, v%d" % (V_PW, V_PW))
        o("    s_cmp_eq_u32 s%d, 1" % S_WAVE)
        o("    s_cbranch_scc0 L_tw1")
        o("    global_load_dword v%d, v%d, s[%d:%d]" % (V_DEF, V_PW, NXT_D, NXT_D + 1))
        o("L_tw1:")
        o("    s_cmp_eq_u32 s%d, 3" % S_WAVE)
        o("    s_cbranch_scc0 L_tw3")
        o("    v_mov_b32 v%d, 0" % V_PW)
        o("    buffer_load_dword v%d, v%d, s[%d:%d], 0 offen" % (V_DEF, V_PW, SRD_O, SRD_O + 3))
        o("    global_load_dword v%d, v%d, s[12:13]" % (V_DEF + 1, V_PW))
        o("L_tw3:")
    o("    v_lshlrev_b32 v%d, 8, v%d" % (V_OUT, V_X))
    o("    v_lshl_add_u32 v%d, v%d, 4, v%d" % (V_OUT, V_Y, V_OUT))
    o("    s_lshl_b32 s%d, s%d, 6" % (S_T + 2, S_WAVE))
    o("    v_add_u32 v%d, s%d, v%d" % (V_OUT, S_T + 2, V_OUT))
    o("    v_and_b32 v%d, 3, v%d" % (V_VR, V_X))
    o("    v_mul_u32_u24 v%d, %d, v%d" % (V_VR, DS, V_VR))
    o("    v_lshrrev_b32 v%d, 2, v%d" % (V_X, V_X))
    o("    v_lshl_add_u32 v%d, v%d, 4, v%d" % (V_X, V_Y, V_X))
    o("    v_lshl_add_u32 v%d, v%d, 4, v%d" % (V_VR, V_X, V_VR))
    o("    s_lshl_b32 s%d, s%d, 6" % (S_T + 2, S_WAVE))
    o("    s_add_u32 s%d, s%d, %d" % (S_T + 2, S_T + 2, LDS_VP))
    o("    v_add_u32 v%d, s%d, v%d" % (V_VR, S_T + 2, V_VR))
    o("    v_lshlrev_b32 v%d, 4, v%d" % (V_X, V_LANE))
    o("    s_mul_i32 s%d, s%d, %d" % (S_T + 2, S_WAVE, WS))
    o("    s_add_u32 s%d, s%d, %d" % (S_T + 2, S_T + 2, LDS_KP))
    o("    v_add_u32 v%d, s%d, v%d" % (V_PW, S_T + 2, V_X))
    for j in range(32):
        o("    v_mov_b32 v%d, 0" % (ACC + j))
    if rp:
        o("    s_mov_b32 s90, 0")
        o("    v_mov_b32 v%d, 0" % V_TR2)


    def allowed(n, req, e_done):
        cnt = n - 1 - req
        for qq in range(0, n // 2 + 1):
            if qq % 4 == 0 and 2 * qq >= req and (qq < n // 2 or e_done):
                cnt += NE
        return cnt

    def wait_of(m, p, h, extra=0):
        q = p + LA
        n = 2 * q + h
        N, gr = int(m[:-1]), m[-1]
        if gr == "p":
            if h == 1:
                return None
            req = n - N + 1
        else:
            req = n - N
        if h == 0:
            req = max(req, 2 * p + 1)
        elif req <= 2 * p + 1:
            return None
        big = 8000
        return allowed(n + big, req + big, h == 1) + (extra if req <= 7 else 0)

    def decide(tag):
        T0 = S_T + 6
        o("    s_waitcnt lgkmcnt(0)")
        if not noev:
            o("    s_cmp_eq_u32 s%d, s%d" % (S_PROG, S_RP))
            o("    s_cbranch_scc1 L_rp_%s" % tag)
            o("L_rpr_%s:" % tag)
            o("    s_cmp_eq_u32 s%d, s%d" % (S_PROG, S_EV))
            o("    s_cbranch_scc1 L_ev_%s" % tag)
        o("L_evr_%s:" % tag)
        if trace:
            o("    s_mov_b32 m0, s%d" % S_PROG)
            o("    s_nop 0")
            o("    v_writelane_b32 v%d, s%d, m0" % (V_BV, S_NOW))
        o("    s_sub_u32 s%d, s%d, s%d" % (T0, S_NOW, S_TM))
        o("    s_lshl_b32 s%d, s%d, 6" % (T0, T0))
        o("    s_sub_u32 s%d, s%d, s%d" % (T0, T0, S_ACC))
        if trace == 2:
            o("    v_writelane_b32 v%d, s%d, m0" % (V_TR2, T0))
        o("    s_add_u32 s%d, s%d, s%d" % (S_ACC, S_ACC, S_INC))
        o("    s_add_u32 s%d, s%d, 1" % (S_PROG, S_PROG))
        if ki:
            assert not mm2 and not jx
            o("    s_mul_i32 s%d, s%d, s83" % (T0 + 1, T0))
            o("    s_ashr_i32 s%d, s%d, 8" % (T0 + 1, T0 + 1))
            o("    s_add_i32 s82, s82, s%d" % (T0 + 1))
            o("    s_min_i32 s82, s82, %d" % (64 * im))
            o("    s_max_i32 s82, s82, %d" % (-64 * im))
            o("    s_add_i32 s%d, s%d, s82" % (T0, T0))
        if force < 0 and tag == "post" and pdec != 1:
            if pdec == 0:
                o("    s_mov_b32 s%d, 0" % S_MODE)
        elif force < 0:
            if eg:
                o("    s_cmp_eq_u32 s%d, %d" % (S_PROG, 64 - eg))
                o("    s_cselect_b32 s%d, %d, 0" % (T0 + 1, egs))
                o("    s_ashr_i32 s%d, s%d, s%d" % (S_THI, S_THI, T0 + 1))
                if mm2:
                    o("    s_ashr_i32 s82, s82, s%d" % (T0 + 1))
            if mm2:
                o("    s_cmp_gt_i32 s%d, s82" % T0)
                o("    s_cselect_b32 s%d, 4, 0" % S_MODE)
                o("    s_cmp_gt_i32 s%d, s%d" % (T0, S_THI))
                o("    s_cselect_b32 s%d, 1, s%d" % (S_MODE, S_MODE))
            else:
                o("    s_cmp_gt_i32 s%d, s%d" % (T0, S_THI))
                o("    s_cselect_b32 s%d, 1, 0" % S_MODE)
            o("    s_cmp_lt_i32 s%d, s%d" % (T0, S_TLO))
            o("    s_cselect_b32 s%d, 2, s%d" % (S_MODE, S_MODE))
        if tail:
            o("    s_cmp_ge_u32 s%d, %d" % (S_PROG, 64 - tail))
            o("    s_cselect_b32 s%d, 1, s%d" % (S_MODE, S_MODE))
        if fin:
            o("    s_cmp_eq_u32 s%d, %d" % (S_PROG, 64 - fin))
            o("    s_cselect_b32 s%d, 3, s%d" % (S_MODE, S_MODE))
        if stamp:
            o("    s_and_b32 s%d, s%d, 1" % (T0, S_MODE))
            o("    s_add_u32 s%d, s%d, s%d" % (S_HI, S_HI, T0))
            o("    s_and_b32 s%d, s%d, 2" % (T0, S_MODE))
            o("    s_lshl_b32 s%d, s%d, 7" % (T0, T0))
            o("    s_add_u32 s%d, s%d, s%d" % (S_HI, S_HI, T0))
        events.append(tag)

    def decide_half(tag):
        T0 = S_T + 6
        o("    s_waitcnt lgkmcnt(0)")
        o("    s_sub_u32 s%d, s%d, s%d" % (T0, S_NOW, S_TM))
        o("    s_lshl_b32 s%d, s%d, 6" % (T0, T0))
        o("    s_sub_u32 s%d, s%d, s%d" % (T0, T0, S_ACC))
        o("    s_ashr_i32 s%d, s%d, 1" % (T0 + 1, S_INC))
        o("    s_add_u32 s%d, s%d, s%d" % (T0, T0, T0 + 1))
        if mm2:
            o("    s_cmp_gt_i32 s%d, s82" % T0)
            o("    s_cselect_b32 s%d, 4, 0" % S_MODE)
            o("    s_cmp_gt_i32 s%d, s%d" % (T0, S_THI))
            o("    s_cselect_b32 s%d, 1, s%d" % (S_MODE, S_MODE))
        else:
            o("    s_cmp_gt_i32 s%d, s%d" % (T0, S_THI))
            o("    s_cselect_b32 s%d, 1, 0" % S_MODE)
        o("    s_cmp_lt_i32 s%d, s%d" % (T0, S_TLO))
        o("    s_cselect_b32 s%d, 2, s%d" % (S_MODE, S_MODE))
        if stamp:
            o("    s_and_b32 s%d, s%d, 1" % (T0, S_MODE))
            o("    s_add_u32 s%d, s%d, s%d" % (S_HI, S_HI, T0))
            o("    s_and_b32 s%d, s%d, 2" % (T0, S_MODE))
            o("    s_lshl_b32 s%d, s%d, 7" % (T0, T0))
            o("    s_add_u32 s%d, s%d, s%d" % (S_HI, S_HI, T0))

    def emit_events():
        T0, T1 = S_T + 6, S_T + 7
        for tag in events:
            if noev:
                continue
            o("L_rp_%s:" % tag)
            o("    v_mov_b32 v%d, s%d" % (V_BV - 3, S_NOW))
            o("    v_mov_b32 v%d, 0x100" % (V_BV - 2))
            o("    s_mov_b64 exec, 1")
            if doat and akind == "atomic":
                o("    global_atomic_add_x2 v%d, v[%d:%d], s[%d:%d] %s" % (V_BO, V_BV - 3, V_BV - 2, abase, abase + 1, aflags))
            elif doat and akind == "store":
                o("    global_store_dwordx2 v%d, v[%d:%d], s[%d:%d] %s" % (V_BO, V_BV - 3, V_BV - 2, abase, abase + 1, aflags))
            elif doat and akind == "load":
                o("    global_load_dwordx2 v[%d:%d], v%d, s[%d:%d] %s" % (V_BV - 3, V_BV - 2, V_BO, abase, abase + 1, aflags))
            o("    s_mov_b64 exec, -1")
            o("    s_branch L_rpr_%s" % tag)
            o("L_ev_%s:" % tag)
            if nom:
                assert j0 + 1 < cal[1] + lag
                o("    s_cmp_eq_u32 s%d, %d" % (S_EV, j0))
                o("    s_cbranch_scc1 L_evl0_%s" % tag)
                o("    s_cmp_eq_u32 s%d, %d" % (S_EV, j0 + 1))
                o("    s_cbranch_scc1 L_evc0_%s" % tag)
            for k in range(1, len(cal)):
                o("    s_cmp_eq_u32 s%d, %d" % (S_EV, cal[k] + lag))
                o("    s_cbranch_scc1 L_evl%d_%s" % (k, tag))
                o("    s_cmp_eq_u32 s%d, %d" % (S_EV, cal[k] + lag + 1))
                o("    s_cbranch_scc1 L_evc%d_%s" % (k, tag))
            o("    s_branch L_evr_%s" % tag)
            if nom:
                jr = j0
                o("L_evl0_%s:" % tag)
                o("    s_load_dwordx2 s[%d:%d], s[16:17], %d" % (S_C1, S_C1 + 1, 0 if sl >= 0 else SLOT[0]))
                o("    s_mov_b32 s%d, %d" % (S_EV, jr + 1))
                o("    s_branch L_evr_%s" % tag)
                o("L_evc0_%s:" % tag)
                o("    s_mov_b32 s%d, %d" % (S_EV, cal[1] + lag))
                o("    s_lshr_b64 s[%d:%d], s[%d:%d], %d" % (S_C1, S_C1 + 1, S_C1, S_C1 + 1, nsh))
                o("    s_cmp_lg_u32 s%d, 256" % (S_C1 + 1))
                o("    s_cbranch_scc1 L_evr_%s" % tag)
                if stamp:
                    o("    s_add_u32 s%d, s%d, 0x10000" % (S_HI, S_HI))
                T1n = 16 * nom
                if sl >= 0:
                    o("    s_sub_u32 s%d, s%d, s%d" % (T0, S_TM, S_C1))
                    o("    s_mul_i32 s%d, s%d, %d" % (T0, T0, sl))
                    o("    s_sub_u32 s%d, s%d, s%d" % (S_INC, S_INC, T0))
                else:
                    o("    s_mov_b32 s%d, s%d" % (S_TM, S_C1))
                    o("    s_mov_b32 s%d, %d" % (S_INC, 4 * T1n))
                    o("    s_mov_b32 s%d, %d" % (S_ACC, T1n * (4 * (jr + 1) - (4 * cal[0] + 2 * st2) + delta)))
                    if dl8 or dh8:
                        o("    s_mov_b32 s%d, %d" % (S_THI, (T1n * (dh8 or 8 * dhi)) >> 3))
                        o("    s_mov_b32 s%d, %d" % (S_TLO, (-T1n * dl8) >> 3))
                    else:
                        o("    s_mov_b32 s%d, %d" % (S_THI, (T1n * dhi) >> tsh))
                        o("    s_mov_b32 s%d, %d" % (S_TLO, (-T1n * dlo) >> tsh))
                    if mm2:
                        o("    s_mov_b32 s82, %d" % ((T1n * dhi) >> (tsh + m2s)))
                o("    s_branch L_evr_%s" % tag)
            for k in range(1, len(cal)):
                jr = cal[k] + lag
                span = 16 if (k == 1 and n1) else cal[k] - cal[k - 1]
                assert span in (8, 16)
                o("L_evl%d_%s:" % (k, tag))
                if k == 1 and dold and not n1:
                    o("    s_load_dwordx2 s[%d:%d], s[16:17], %d" % (S_C1, S_C1 + 1, SLOT[0]))
                if dold:
                    o("    s_load_dwordx2 s[%d:%d], s[16:17], %d" % (S_C2, S_C2 + 1, SLOT[k]))
                o("    s_mov_b32 s%d, %d" % (S_EV, jr + 1))
                o("    s_branch L_evr_%s" % tag)
                o("L_evc%d_%s:" % (k, tag))
                o("    s_mov_b32 s%d, %s" % (S_EV, "0x7fffffff" if k == len(cal) - 1 else str(cal[k + 1] + lag)))
                if k == 1 and not n1:
                    o("    s_lshr_b64 s[%d:%d], s[%d:%d], %d" % (S_C1, S_C1 + 1, S_C1, S_C1 + 1, nsh))
                o("    s_lshr_b64 s[%d:%d], s[%d:%d], %d" % (S_C2, S_C2 + 1, S_C2, S_C2 + 1, nsh))
                if k == 1 and n1:
                    o("    s_mov_b32 s%d, s%d" % (T0, S_C2 + 1))
                    o("    s_mov_b32 s%d, %d" % (T1, 16 * n1))
                else:
                    o("    s_and_b32 s%d, s%d, s%d" % (T0, S_C1 + 1, S_C2 + 1))
                    o("    s_sub_u32 s%d, s%d, s%d" % (T1, S_C2, S_C1))
                o("    s_mov_b32 s%d, s%d" % (S_C1, S_C2))
                o("    s_mov_b32 s%d, s%d" % (S_C1 + 1, S_C2 + 1))
                o("    s_cmp_lg_u32 s%d, 256" % T0)
                o("    s_cbranch_scc1 L_evr_%s" % tag)
                if stamp:
                    o("    s_add_u32 s%d, s%d, 0x10000" % (S_HI, S_HI))
                if span == 8:
                    o("    s_lshl_b32 s%d, s%d, 1" % (T1, T1))
                o("    s_mov_b32 s%d, s%d" % (S_TM, S_C1))
                if ki and k == kis:
                    o("    s_mov_b32 s83, %d" % ki)
                o("    s_lshl_b32 s%d, s%d, 2" % (S_INC, T1))
                o("    s_mul_i32 s%d, s%d, %d" % (S_ACC, T1, 4 * (jr + 1) - (4 * cal[k] + 2 * st2) + delta))
                if dl8 or dh8:
                    o("    s_mul_i32 s%d, s%d, %d" % (S_THI, T1, dh8 or 8 * dhi))
                    o("    s_mul_i32 s%d, s%d, %d" % (S_TLO, T1, -dl8))
                    o("    s_ashr_i32 s%d, s%d, 3" % (S_THI, S_THI))
                    o("    s_ashr_i32 s%d, s%d, 3" % (S_TLO, S_TLO))
                else:
                    o("    s_mul_i32 s%d, s%d, %d" % (S_THI, T1, dhi))
                    o("    s_mul_i32 s%d, s%d, %d" % (S_TLO, T1, -dlo))
                if tsh:
                    o("    s_ashr_i32 s%d, s%d, %d" % (S_THI, S_THI, tsh))
                    o("    s_ashr_i32 s%d, s%d, %d" % (S_TLO, S_TLO, tsh))
                if mm2:
                    o("    s_ashr_i32 s82, s%d, %d" % (S_THI, m2s))
                epk = int(str(epsl).split(",")[k - 1]) if epsl != "" else eps
                if epk:
                    o("    s_mul_i32 s%d, s%d, %d" % (T0, T1, epk))
                    o("    s_ashr_i32 s%d, s%d, 6" % (T0, T0))
                    o("    s_sub_u32 s%d, s%d, s%d" % (S_INC, S_INC, T0))
                o("    s_branch L_evr_%s" % tag)

    def round_mfma(s, zero=False):
        if esplit:
            r = V_ER + (s % ER) * 4
            for t in range(2):
                o("    v_perm_b32 v%d, v%d, v%d, s%d" % (V_EA + 2 * t, r + 2 + t, r + t, S_SELLO))
                o("    v_perm_b32 v%d, v%d, v%d, s%d" % (V_EA + 2 * t + 1, r + 2 + t, r + t, S_SELHI))
            e = "v[%d:%d]" % (V_EA, V_EA + 3)
        else:
            e = "a[%d:%d]" % (A_E + (s % ER) * 4, A_E + (s % ER) * 4 + 3)
        o("    s_nop 1")
        for dd in range(8):
            acc = ACC + dd * 4
            o("    v_mfma_f32_16x16x32_bf16 v[%d:%d], %s, v[%d:%d], %s" %
              (acc, acc + 3, e, T + dd * 4, T + dd * 4 + 3, "0" if zero else "v[%d:%d]" % (acc, acc + 3)))

    def xlane(op, reg, tmp):
        for sw in ("v_permlane32_swap_b32", "v_permlane16_swap_b32"):
            o("    v_mov_b32 v%d, v%d" % (tmp, reg))
            o("    s_nop 1")
            o("    %s v%d, v%d" % (sw, reg, tmp))
            o("    s_nop 1")
            o("    %s v%d, v%d, v%d" % (op, reg, reg, tmp))

    def k_read(dst, w):
        for dd in range(8):
            o("    ds_read_b128 v[%d:%d], v%d offset:%d" %
              (dst + 4 * dd, dst + 4 * dd + 3, V_X, LDS_KP + w * WS + dd * DS))

    def k_add(SUM, TMP):
        for j in range(32):
            o("    v_add_f32 v%d, v%d, v%d" % (SUM + j, SUM + j, TMP + j))

    def k_transpose(SUM, TMP):
        PA = MISC
        for dd in range(8):
            o("    v_cvt_pk_bf16_f32 v%d, v%d, v%d" % (PA + 2 * dd, SUM + 4 * dd, SUM + 4 * dd + 1))
            o("    v_cvt_pk_bf16_f32 v%d, v%d, v%d" % (PA + 2 * dd + 1, SUM + 4 * dd + 2, SUM + 4 * dd + 3))
        ID = MISC + 16
        o("    v_and_b32 v%d, 15, v%d" % (V_X, V_LANE))
        o("    v_lshrrev_b32 v%d, 4, v%d" % (V_Y, V_LANE))
        o("    v_lshlrev_b32 v%d, 2, v%d" % (V_Y, V_Y))
        o("    v_sub_u32 v%d, v%d, v%d" % (V_X, V_X, V_Y))
        o("    v_mov_b32 v%d, 0" % ID)
        o("    v_mov_b32 v%d, 0" % (ID + 1))
        o("    v_mov_b32 v%d, 0x3f80" % (ID + 2))
        o("    v_mov_b32 v%d, 0x3f800000" % (ID + 3))
        for j, (dst, src) in enumerate(((ID, ID + 2), (ID, ID + 3), (ID + 1, ID + 2), (ID + 1, ID + 3))):
            o("    v_cmp_eq_u32 vcc, %d, v%d" % (j, V_X))
            o("    s_nop 1")
            o("    v_cndmask_b32 v%d, v%d, v%d, vcc" % (dst, dst, src))
        o("    s_nop 1")
        for dd in range(8):
            o("    v_mfma_f32_16x16x16_bf16 v[%d:%d], v[%d:%d], v[%d:%d], 0" %
              (TMP + 4 * dd, TMP + 4 * dd + 3, PA + 2 * dd, PA + 2 * dd + 1, ID, ID + 1))

    def k_scores(SUM, TMP):
        PB = SUM
        o("    s_nop 7")
        for s_ in range(4):
            for j in range(4):
                o("    v_cvt_pk_bf16_f32 v%d, v%d, v%d" %
                  (PB + 4 * s_ + j, TMP + (2 * j) * 4 + s_, TMP + (2 * j + 1) * 4 + s_))
        SC = SUM + 16
        o("    s_nop 1")
        for s_ in range(4):
            c = "0" if s_ == 0 else "v[%d:%d]" % (SC, SC + 3)
            o("    v_mfma_f32_16x16x32_bf16 v[%d:%d], v[%d:%d], a[%d:%d], %s" %
              (SC, SC + 3, PB + 4 * s_, PB + 4 * s_ + 3, A_Q + 4 * s_, A_Q + 4 * s_ + 3, c))

    def k_softmax(SUM):
        SC, W, M = SUM + 16, SUM + 20, SUM + 22
        o("    s_mov_b32 s%d, 0x3db504f3" % (S_T + 2))
        o("    s_mov_b32 s%d, 0x3fb8aa3b" % (S_T + 3))
        o("    s_nop 7")

        def rb():
            o("    v_cvt_pk_bf16_f32 v%d, v%d, v%d" % (W, SC, SC + 1))
            o("    v_cvt_pk_bf16_f32 v%d, v%d, v%d" % (W + 1, SC + 2, SC + 3))
            o("    v_lshlrev_b32 v%d, 16, v%d" % (SC, W))
            o("    v_and_b32 v%d, 0xffff0000, v%d" % (SC + 1, W))
            o("    v_lshlrev_b32 v%d, 16, v%d" % (SC + 2, W + 1))
            o("    v_and_b32 v%d, 0xffff0000, v%d" % (SC + 3, W + 1))

        rb()
        for i in range(4):
            o("    v_mul_f32 v%d, s%d, v%d" % (SC + i, S_T + 2, SC + i))
        rb()
        o("    v_max_f32 v%d, v%d, v%d" % (M, SC, SC + 1))
        o("    v_max3_f32 v%d, v%d, v%d, v%d" % (M, SC + 2, SC + 3, M))
        xlane("v_max_f32", M, M + 1)
        for i in range(4):
            o("    v_sub_f32 v%d, v%d, v%d" % (SC + i, SC + i, M))
        for i in range(4):
            o("    v_mul_f32 v%d, s%d, v%d" % (SC + i, S_T + 3, SC + i))
        for i in range(4):
            o("    v_exp_f32 v%d, v%d" % (SC + i, SC + i))
        o("    s_nop 0")
        o("    v_add_f32 v%d, v%d, v%d" % (M, SC, SC + 1))
        o("    v_add_f32 v%d, v%d, v%d" % (M + 1, SC + 2, SC + 3))
        o("    v_add_f32 v%d, v%d, v%d" % (M, M, M + 1))
        xlane("v_add_f32", M, M + 1)
        o("    v_rcp_f32 v%d, v%d" % (M, M))
        o("    s_nop 0")
        for i in range(4):
            o("    v_mul_f32 v%d, v%d, v%d" % (SC + i, SC + i, M))
        o("    v_cvt_pk_bf16_f32 v%d, v%d, v%d" % (W, SC, SC + 1))
        o("    v_cvt_pk_bf16_f32 v%d, v%d, v%d" % (W + 1, SC + 2, SC + 3))
        o("    v_lshlrev_b32 v%d, 3, v%d" % (V_X, V_LANE))
        o("    ds_write_b64 v%d, v[%d:%d] offset:%d" % (V_X, W, W + 1, LDS_P))

    def v_read(X):
        o("    v_lshlrev_b32 v%d, 3, v%d" % (V_X, V_LANE))
        o("    ds_read_b64 v[%d:%d], v%d offset:%d" % (MISC, MISC + 1, V_X, LDS_P))
        for w in range(4):
            for h in range(2):
                r = X + (w * 2 + h) * 4
                o("    ds_read_b128 v[%d:%d], v%d offset:%d" % (r, r + 3, V_VR, w * WS + h * 4 * DS))

    def v_prod(X):
        for j in range(8):
            o("    v_add_f32 v%d, v%d, v%d" % (X + j, X + j, X + 8 + j))
        for j in range(8):
            o("    v_add_f32 v%d, v%d, v%d" % (X + 16 + j, X + 16 + j, X + 24 + j))
        for j in range(8):
            o("    v_add_f32 v%d, v%d, v%d" % (X + j, X + j, X + 16 + j))
        VB = MISC + 4
        for h in range(2):
            o("    v_cvt_pk_bf16_f32 v%d, v%d, v%d" % (VB + 2 * h, X + 4 * h, X + 4 * h + 1))
            o("    v_cvt_pk_bf16_f32 v%d, v%d, v%d" % (VB + 2 * h + 1, X + 4 * h + 2, X + 4 * h + 3))
        o("    s_nop 1")
        for h in range(2):
            o("    v_mfma_f32_16x16x16_bf16 v[%d:%d], v[%d:%d], v[%d:%d], 0" %
              (X + 16 + 4 * h, X + 16 + 4 * h + 3, VB + 2 * h, VB + 2 * h + 1, MISC, MISC + 1))

    def ramp_stamp(tag):
        o("    s_cmp_ge_u32 s90, %d" % (63 + rp))
        o("    s_cbranch_scc1 L_rs_%s" % tag)
        o("    s_memrealtime s[92:93]")
        o("    s_sub_u32 s91, s90, %d" % (rp - 1))
        o("    s_cmp_lt_i32 s91, 0")
        o("    s_cselect_b32 s91, 0, s91")
        o("    s_mov_b32 m0, s91")
        o("    s_waitcnt lgkmcnt(0)")
        o("    v_writelane_b32 v%d, s92, m0" % V_TR2)
        o("L_rs_%s:" % tag)
        o("    s_add_u32 s90, s90, 1")

    def ih_piece(kind, p):
        k = p - ihp
        if kind == "K" and 0 <= k < 6:
            o("    s_cmp_lg_u32 s%d, s%d" % (S_WAVE, S_PMI))
            o("    s_cbranch_scc1 L_ihs%d" % p)
            if k == 0:
                o("    v_lshlrev_b32 v%d, 4, v%d" % (V_X, V_LANE))
                k_read(V_S2, 0)
                k_read(V_T2, 1)
            elif k in (1, 2):
                o("    s_waitcnt lgkmcnt(0)")
                k_add(V_S2, V_T2)
                k_read(V_T2, k + 1)
            elif k == 3:
                o("    s_waitcnt lgkmcnt(0)")
                k_add(V_S2, V_T2)
                k_transpose(V_S2, V_T2)
            elif k == 4:
                k_scores(V_S2, V_T2)
            else:
                k_softmax(V_S2)
            o("L_ihs%d:" % p)
        if kind == "V":
            if k == 0:
                v_read(V_T2)
            elif k == 1:
                o("    s_waitcnt lgkmcnt(0)")
                v_prod(V_T2)
            elif k == 2:
                o("    s_nop 7")
                for i in range(4):
                    o("    v_cvt_pk_bf16_f32 v%d, v%d, v%d" % (V_DEF + i, V_T2 + 16 + 2 * i, V_T2 + 16 + 2 * i + 1))

    S_PMI = 63

    def body(mode, m, post=False, extra=0, kind=""):
        o("L_body_%s:" % mode)
        for p in range(8):
            s, a = divmod(p, 4)
            q = p + LA
            if half and p == 4 and not post:
                for code, other in ((0, "mid"), (1, "hi"), (2, "lo"), (4, "mi2")):
                    if other != mode and other != "mid" and (other != "mi2" or mm2):
                        o("    s_cmp_eq_u32 s%d, %d" % (S_MODE, code))
                        o("    s_cbranch_scc1 L_bodyB_%s" % other)
                if mode != "mid":
                    o("    s_cmp_eq_u32 s%d, 0" % S_MODE)
                    o("    s_cbranch_scc1 L_bodyB_mid")
                o("L_bodyB_%s:" % mode)
            if p == 0 and not post:
                step_inc()
                eoff()
            if p == 4:
                step_inc()
                if not post and not kind:
                    o("    s_cmp_eq_u32 s%d, 1" % S_CNT)
                    o("    s_cbranch_scc1 L_sw_%s" % mode)
                    o("L_swr_%s:" % mode)
                    stubs.append(mode)
                eoff()
            if kind and p == ihp:
                o("    s_waitcnt lgkmcnt(0)")
                if p not in wsyl:
                    o("    s_barrier")
            if p in wsyl and not post and not (wba and not (kind and p == ihp)):
                if wskip:
                    o("    s_cmp_ge_u32 s%d, %d" % (S_CNT, 16 - wskip))
                    o("    s_cbranch_scc1 L_nb%d_%s" % (p, mode))
                    o("    s_barrier")
                    o("L_nb%d_%s:" % (p, mode))
                else:
                    o("    s_barrier")
            if ctl and p == pc and pre:
                decide(mode)
                if ps == pc and not notime:
                    o("    s_memrealtime s[%d:%d]" % (S_NOW, S_NOW + 1))
            if post and p < 4:
                younger = 15 - (2 * p + 1) + NE
                o("    s_waitcnt vmcnt(%d)" % younger)
                if rp:
                    ramp_stamp("%s_%d" % (mode, p))
                if pst and not pro8 and p in (0, 3):
                    o("    s_cmp_eq_u32 s%d, 0" % S_MI)
                    o("    s_cbranch_scc0 L_nopst%d" % p)
                    pstp(4 if p == 0 else 5)
                    o("L_nopst%d:" % p)
            else:
                for h in range(2):
                    w = wait_of(m, p, h, extra)
                    if w is not None:
                        o("    s_waitcnt vmcnt(%d)" % w)
                    if wba and h == 0 and p in wsyl and not post and not (kind and p == ihp):
                        o("    s_barrier")
                    if rp and h == 0:
                        ramp_stamp("%s_%d" % (mode, p))
                    if h == 0 and q % 4 == 0:
                        issue_one(2 * q)
                        issue_E(q // 4)
                    else:
                        issue_one(2 * q + h)
                if pst and pro8 and p in (0, 3):
                    o("    s_cmp_eq_u32 s%d, 0" % S_PROG)
                    o("    s_cbranch_scc0 L_nopst%d_%s" % (p, mode))
                    pstp(4 if p == 0 else 5)
                    o("L_nopst%d_%s:" % (p, mode))
            if half:
                if p == 4 or (p == 0 and not post):
                    o("    s_memrealtime s[%d:%d]" % (S_NOW, S_NOW + 1))
                if p == hca and not post:
                    decide_half(mode)
                if p == hcb:
                    decide(mode)
            else:
                if ctl and p == ps and ps != pc and not notime:
                    o("    s_memrealtime s[%d:%d]" % (S_NOW, S_NOW + 1))
                if ctl and p == pc and not pre:
                    decide(mode)
                    if ps == pc and not notime:
                        o("    s_memrealtime s[%d:%d]" % (S_NOW, S_NOW + 1))
            if kind:
                ih_piece(kind, p)
            slot = p % (4 * RS)
            xb = RING + slot * 8
            yb = xb + 4
            if jf & 1:
                xb, yb = yb, xb
            for c in range(4):
                o("    v_perm_b32 v%d, v%d, v%d, s%d" % (T + (2 * c) * 4 + (a ^ (jf >> 1)), yb + c, xb + c, S_SELLO))
                o("    v_perm_b32 v%d, v%d, v%d, s%d" % (T + (2 * c + 1) * 4 + (a ^ (jf >> 1)), yb + c, xb + c, S_SELHI))
            if a == 3:
                round_mfma(s, zero=bool(kind) and s == 0)
        o("    s_sub_u32 s%d, s%d, 1" % (S_CNT, S_CNT))
        if not post and not kind:
            o("    s_cmp_eq_u32 s%d, 0" % S_CNT)
            o("    s_cbranch_scc1 L_matend")

    def body_fin():
        o("L_body_fin:")
        tstp(0)
        if ft:
            o("    v_lshlrev_b32 v%d, 3, v%d" % (V_X, V_LANE))
            o("    ds_read_b64 v[%d:%d], v%d offset:%d" % (MISC, MISC + 1, V_X, LDS_P))
            o("    v_add_u32 v%d, %d, v%d" % (V_Y, 4 * WS, V_PW))
        if es:
            o("    buffer_store_dwordx4 v[%d:%d], v%d, s[%d:%d], 0 offen %s" %
              (V_DEF, V_DEF + 3, V_OUT, SRD_O, SRD_O + 3, oflags))
        step_inc()
        eoff()
        issue_one(8)
        issue_E(1)
        for n in range(9, 16):
            issue_one(n)
        for p in range(8):
            s, a = divmod(p, 4)
            younger = 15 - (2 * p + 1) + (NE if p < 4 else 0)
            o("    s_waitcnt vmcnt(%d)" % younger)
            if p == 0:
                tstp(1)
            if p == 7:
                tstp(2)
            xb = RING + p * 8
            yb = xb + 4
            if jf & 1:
                xb, yb = yb, xb
            for c in range(4):
                o("    v_perm_b32 v%d, v%d, v%d, s%d" % (T + (2 * c) * 4 + (a ^ (jf >> 1)), yb + c, xb + c, S_SELLO))
                o("    v_perm_b32 v%d, v%d, v%d, s%d" % (T + (2 * c + 1) * 4 + (a ^ (jf >> 1)), yb + c, xb + c, S_SELHI))
            if a == 3:
                round_mfma(s)
        if not ft:
            o("    s_branch L_matend")
            return
        assert ih
        o("; last matrix: reduction, product and stores")
        o("    s_nop 0")
        for dd in range(8):
            o("    ds_write_b128 v%d, v[%d:%d] offset:%d" % (V_Y, ACC + 4 * dd, ACC + 4 * dd + 3, dd * DS))
        o("    s_mov_b32 s%d, 0x%x" % (S_T + 2, 1 << QSH))
        o("    s_waitcnt lgkmcnt(0)")
        tstp(3)
        o("    s_barrier")
        if tst:
            o("    s_memrealtime s[%d:%d]" % (PST[4], PST[4] + 1))
            o("    s_waitcnt lgkmcnt(0)")
        X = T
        for w in range(4):
            for h in range(2):
                r = X + (w * 2 + h) * 4
                o("    ds_read_b128 v[%d:%d], v%d offset:%d" % (r, r + 3, V_VR, w * WS + h * 4 * DS))
        o("    s_waitcnt lgkmcnt(4)")
        for j in range(8):
            o("    v_add_f32 v%d, v%d, v%d" % (X + j, X + j, X + 8 + j))
        o("    s_waitcnt lgkmcnt(2)")
        for j in range(8):
            o("    v_add_f32 v%d, v%d, v%d" % (X + j, X + j, X + 16 + j))
        o("    s_waitcnt lgkmcnt(0)")
        for j in range(8):
            o("    v_add_f32 v%d, v%d, v%d" % (X + j, X + j, X + 24 + j))
        VB = MISC + 4
        for h in range(2):
            o("    v_cvt_pk_bf16_f32 v%d, v%d, v%d" % (VB + 2 * h, X + 4 * h, X + 4 * h + 1))
            o("    v_cvt_pk_bf16_f32 v%d, v%d, v%d" % (VB + 2 * h + 1, X + 4 * h + 2, X + 4 * h + 3))
        o("    s_nop 1")
        for h in range(2):
            o("    v_mfma_f32_16x16x16_bf16 v[%d:%d], v[%d:%d], v[%d:%d], 0" %
              (X + 16 + 4 * h, X + 16 + 4 * h + 3, VB + 2 * h, VB + 2 * h + 1, MISC, MISC + 1))
        if not es:
            o("    buffer_store_dwordx4 v[%d:%d], v%d, s[%d:%d], 0 offen %s" %
              (V_DEF, V_DEF + 3, V_OUT, SRD_O, SRD_O + 3, oflags))
        o("    s_nop 6")
        for i in range(4):
            o("    v_cvt_pk_bf16_f32 v%d, v%d, v%d" % (MISC + 8 + i, X + 16 + 2 * i, X + 16 + 2 * i + 1))
        o("    buffer_store_dwordx4 v[%d:%d], v%d, s[%d:%d], s%d offen %s" %
          (MISC + 8, MISC + 11, V_OUT, SRD_O, SRD_O + 3, S_T + 2, oflags))
        tstp(5)
        o("    s_branch L_fin")

    pstp(3)
    if pro8 and bp:
        o("    s_mov_b32 s%d, 16" % S_CNT)
        if m0:
            o("    s_mov_b32 s%d, %d" % (S_MODE, m0))
        if mfirst:
            assert qm in (0, 1)
            if qm == 1:
                o("    s_bitcmp1_b32 s%d, 0" % S_WAVE)
                o("    s_cbranch_scc1 L_dispatch")
            o("    s_branch L_body_first")
        else:
            o("    s_branch L_dispatch")
    o("L_outer:")
    o("    s_mov_b32 s%d, 16" % S_CNT)
    if bp:
        o("; first iteration of a matrix: both rounds were issued ahead of the previous handler")
        body("post", mpost or mmid, post=True)
    o("; body selection by window mode: 0 mid, 1 hi, 2 lo, 3 last iteration")
    o("L_dispatch:")
    modes = [("mid", mmid)]
    if (ctl and force < 0) or force == 1 or tail:
        modes.append(("hi", mhi))
        o("    s_cmp_eq_u32 s%d, 1" % S_MODE)
        o("    s_cbranch_scc1 L_body_hi")
    if (ctl and force < 0) or force == 2:
        modes.append(("lo", mlo))
        o("    s_cmp_eq_u32 s%d, 2" % S_MODE)
        o("    s_cbranch_scc1 L_body_lo")
    if mm2:
        modes.append(("mi2", mm2))
        o("    s_cmp_eq_u32 s%d, 4" % S_MODE)
        o("    s_cbranch_scc1 L_body_mi2")
    if fin:
        assert ctl
        o("    s_cmp_eq_u32 s%d, 3" % S_MODE)
        o("    s_cbranch_scc1 L_body_fin")
    for mode, m in modes:
        body(mode, m)
        o("    s_branch L_dispatch")
    if mfirst:
        body("first", mfirst, extra=4)
        o("    s_branch L_dispatch")
    if fin:
        body_fin()
    o("L_matend:")
    if ih:
        assert bp and defer and fin and ihp <= 2 and not half and not esplit and hf < 0
        if not ft:
            o("    s_cmp_eq_u32 s%d, 3" % S_MI)
            o("    s_cbranch_scc1 L_final")
        o("    s_and_b32 s%d, s%d, 1" % (S_T, S_MI))
        o("    s_mul_i32 s%d, s%d, %d" % (S_T + 1, S_T, 4 * WS))
        o("    v_add_u32 v%d, s%d, v%d" % (V_X, S_T + 1, V_PW))
        o("    s_mov_b32 s%d, s%d" % (S_PMI, S_MI))
        o("    s_add_u32 s%d, s%d, 1" % (S_MI, S_MI))
        o("    s_mov_b32 s%d, 16" % S_CNT)
        o("    s_nop 7")
        for dd in range(8):
            o("    ds_write_b128 v%d, v[%d:%d] offset:%d" % (V_X, ACC + 4 * dd, ACC + 4 * dd + 3, dd * DS))
        o("    s_cmp_eq_u32 s%d, 1" % S_T)
        o("    s_cbranch_scc1 L_body_ihV")
        body("ihK", mih or mmid, kind="K")
        o("    s_branch L_dispatch")
        body("ihV", mih or mmid, kind="V")
        o("    s_branch L_dispatch")
        markf = len(L)
        o("; last matrix: reduction, product and both stores")
        o("L_final:")
        o("    v_add_u32 v%d, %d, v%d" % (V_X, 4 * WS, V_PW))
        o("    s_nop 7")
        o("    s_waitcnt lgkmcnt(0)")
        for dd in range(8):
            o("    ds_write_b128 v%d, v[%d:%d] offset:%d" % (V_X, ACC + 4 * dd, ACC + 4 * dd + 3, dd * DS))
        o("    s_waitcnt lgkmcnt(0)")
        tstp(3)
        o("    s_barrier")
        if tst:
            o("    s_memrealtime s[%d:%d]" % (PST[4], PST[4] + 1))
        v_read(T)
        o("    s_waitcnt lgkmcnt(0)")
        v_prod(T)
        o("    s_nop 7")
        for i in range(4):
            o("    v_cvt_pk_bf16_f32 v%d, v%d, v%d" % (MISC + 8 + i, T + 16 + 2 * i, T + 16 + 2 * i + 1))
        if not es:
            o("    buffer_store_dwordx4 v[%d:%d], v%d, s[%d:%d], 0 offen %s" %
              (V_DEF, V_DEF + 3, V_OUT, SRD_O, SRD_O + 3, oflags))
        o("    s_mov_b32 s%d, 0x%x" % (S_T + 2, 1 << QSH))
        o("    buffer_store_dwordx4 v[%d:%d], v%d, s[%d:%d], s%d offen %s" %
          (MISC + 8, MISC + 11, V_OUT, SRD_O, SRD_O + 3, S_T + 2, oflags))
        tstp(5)
        o("    s_branch L_fin")
        if ft:
            del L[markf:]
    if bp and not ih:
        o("    s_cmp_eq_u32 s%d, 3" % S_MI)
        o("    s_cbranch_scc1 L_nopf")
        step_inc()
        eoff()
        issue_one(8)
        issue_E(1)
        for n in range(9, 16):
            issue_one(n)
        o("L_nopf:")
    mark = len(L)
    o("    s_and_b32 s%d, s%d, 1" % (S_T, S_MI))
    o("    s_mul_i32 s%d, s%d, %d" % (S_T + 1, S_T, 4 * WS))
    o("    v_add_u32 v%d, s%d, v%d" % (V_X, S_T + 1, V_PW))
    o("    s_nop 7")
    if ctl:
        o("    s_waitcnt lgkmcnt(0)")
    for dd in range(8):
        o("    ds_write_b128 v%d, v[%d:%d] offset:%d" % (V_X, ACC + 4 * dd, ACC + 4 * dd + 3, dd * DS))
    o("    s_waitcnt lgkmcnt(0)")
    o("    s_barrier")
    o("    s_cmp_eq_u32 s%d, 1" % S_T)
    o("    s_cbranch_scc1 L_vend")
    o("    s_cmp_lg_u32 s%d, s%d" % (S_WAVE, S_MI))
    o("    s_cbranch_scc1 L_mat_done")
    SUM, TMP, PA = ACC, T, MISC
    o("    v_lshlrev_b32 v%d, 4, v%d" % (V_X, V_LANE))
    for w in range(4):
        dst = SUM if w == 0 else TMP
        for dd in range(8):
            o("    ds_read_b128 v[%d:%d], v%d offset:%d" %
              (dst + 4 * dd, dst + 4 * dd + 3, V_X, LDS_KP + w * WS + dd * DS))
        if w > 0:
            for dd in range(8):
                o("    s_waitcnt lgkmcnt(%d)" % (7 - dd))
                for i in range(4):
                    o("    v_add_f32 v%d, v%d, v%d" % (SUM + 4 * dd + i, SUM + 4 * dd + i, TMP + 4 * dd + i))
    for dd in range(8):
        o("    v_cvt_pk_bf16_f32 v%d, v%d, v%d" % (PA + 2 * dd, SUM + 4 * dd, SUM + 4 * dd + 1))
        o("    v_cvt_pk_bf16_f32 v%d, v%d, v%d" % (PA + 2 * dd + 1, SUM + 4 * dd + 2, SUM + 4 * dd + 3))
    ID = MISC + 16
    o("    v_and_b32 v%d, 15, v%d" % (V_X, V_LANE))
    o("    v_lshrrev_b32 v%d, 4, v%d" % (V_Y, V_LANE))
    o("    v_lshlrev_b32 v%d, 2, v%d" % (V_Y, V_Y))
    o("    v_sub_u32 v%d, v%d, v%d" % (V_X, V_X, V_Y))
    o("    v_mov_b32 v%d, 0" % ID)
    o("    v_mov_b32 v%d, 0" % (ID + 1))
    o("    v_mov_b32 v%d, 0x3f80" % (ID + 2))
    o("    v_mov_b32 v%d, 0x3f800000" % (ID + 3))
    for j, (dst, src) in enumerate(((ID, ID + 2), (ID, ID + 3), (ID + 1, ID + 2), (ID + 1, ID + 3))):
        o("    v_cmp_eq_u32 vcc, %d, v%d" % (j, V_X))
        o("    s_nop 1")
        o("    v_cndmask_b32 v%d, v%d, v%d, vcc" % (dst, dst, src))
    o("    s_nop 1")
    for dd in range(8):
        o("    v_mfma_f32_16x16x16_bf16 v[%d:%d], v[%d:%d], v[%d:%d], 0" %
          (TMP + 4 * dd, TMP + 4 * dd + 3, PA + 2 * dd, PA + 2 * dd + 1, ID, ID + 1))
    o("    s_nop 7")
    PB = SUM
    for s in range(4):
        for j in range(4):
            o("    v_cvt_pk_bf16_f32 v%d, v%d, v%d" %
              (PB + 4 * s + j, TMP + (2 * j) * 4 + s, TMP + (2 * j + 1) * 4 + s))
    SC = SUM + 16
    if qwait:
        o("    s_waitcnt vmcnt(0)")
    if qm == 2:
        assert bp and not noE
        o("    s_waitcnt vmcnt(%d)" % (16 + 2 * NE))
    for s in range(4):
        c = "0" if s == 0 else "v[%d:%d]" % (SC, SC + 3)
        o("    v_mfma_f32_16x16x32_bf16 v[%d:%d], v[%d:%d], a[%d:%d], %s" %
          (SC, SC + 3, PB + 4 * s, PB + 4 * s + 3, A_Q + 4 * s, A_Q + 4 * s + 3, c))
    o("    s_mov_b32 s%d, 0x3db504f3" % (S_T + 2))
    o("    s_mov_b32 s%d, 0x3fb8aa3b" % (S_T + 3))
    o("    s_nop 7")
    W = SUM + 20
    M = SUM + 22

    def round_bf16():
        o("    v_cvt_pk_bf16_f32 v%d, v%d, v%d" % (W, SC, SC + 1))
        o("    v_cvt_pk_bf16_f32 v%d, v%d, v%d" % (W + 1, SC + 2, SC + 3))
        o("    v_lshlrev_b32 v%d, 16, v%d" % (SC, W))
        o("    v_and_b32 v%d, 0xffff0000, v%d" % (SC + 1, W))
        o("    v_lshlrev_b32 v%d, 16, v%d" % (SC + 2, W + 1))
        o("    v_and_b32 v%d, 0xffff0000, v%d" % (SC + 3, W + 1))

    round_bf16()
    for i in range(4):
        o("    v_mul_f32 v%d, s%d, v%d" % (SC + i, S_T + 2, SC + i))
    round_bf16()
    o("    v_max_f32 v%d, v%d, v%d" % (M, SC, SC + 1))
    o("    v_max3_f32 v%d, v%d, v%d, v%d" % (M, SC + 2, SC + 3, M))

    def xlane(op, reg, tmp):
        for sw in ("v_permlane32_swap_b32", "v_permlane16_swap_b32"):
            o("    v_mov_b32 v%d, v%d" % (tmp, reg))
            o("    s_nop 1")
            o("    %s v%d, v%d" % (sw, reg, tmp))
            o("    s_nop 1")
            o("    %s v%d, v%d, v%d" % (op, reg, reg, tmp))

    xlane("v_max_f32", M, M + 1)
    for i in range(4):
        o("    v_sub_f32 v%d, v%d, v%d" % (SC + i, SC + i, M))
    for i in range(4):
        o("    v_mul_f32 v%d, s%d, v%d" % (SC + i, S_T + 3, SC + i))
    for i in range(4):
        o("    v_exp_f32 v%d, v%d" % (SC + i, SC + i))
    o("    s_nop 0")
    o("    v_add_f32 v%d, v%d, v%d" % (M, SC, SC + 1))
    o("    v_add_f32 v%d, v%d, v%d" % (M + 1, SC + 2, SC + 3))
    o("    v_add_f32 v%d, v%d, v%d" % (M, M, M + 1))
    xlane("v_add_f32", M, M + 1)
    o("    v_rcp_f32 v%d, v%d" % (M, M))
    o("    s_nop 0")
    for i in range(4):
        o("    v_mul_f32 v%d, v%d, v%d" % (SC + i, SC + i, M))
    o("    v_cvt_pk_bf16_f32 v%d, v%d, v%d" % (W, SC, SC + 1))
    o("    v_cvt_pk_bf16_f32 v%d, v%d, v%d" % (W + 1, SC + 2, SC + 3))
    o("    v_lshlrev_b32 v%d, 3, v%d" % (V_X, V_LANE))
    o("    ds_write_b64 v%d, v[%d:%d] offset:%d" % (V_X, W, W + 1, LDS_P))
    o("    s_waitcnt lgkmcnt(0)")
    o("    s_branch L_mat_done")

    o("L_vend:")
    PP = MISC
    o("    v_lshlrev_b32 v%d, 3, v%d" % (V_X, V_LANE))
    o("    ds_read_b64 v[%d:%d], v%d offset:%d" % (PP, PP + 1, V_X, LDS_P))
    for w in range(4):
        for h in range(2):
            r = T + (w * 2 + h) * 4
            o("    ds_read_b128 v[%d:%d], v%d offset:%d" % (r, r + 3, V_VR, w * WS + h * 4 * DS))
    o("    s_waitcnt lgkmcnt(4)")
    for j in range(8):
        o("    v_add_f32 v%d, v%d, v%d" % (T + j, T + j, T + 8 + j))
    o("    s_waitcnt lgkmcnt(0)")
    for j in range(8):
        o("    v_add_f32 v%d, v%d, v%d" % (T + 16 + j, T + 16 + j, T + 24 + j))
    for j in range(8):
        o("    v_add_f32 v%d, v%d, v%d" % (T + j, T + j, T + 16 + j))
    VB = MISC + 4
    for h in range(2):
        o("    v_cvt_pk_bf16_f32 v%d, v%d, v%d" % (VB + 2 * h, T + 4 * h, T + 4 * h + 1))
        o("    v_cvt_pk_bf16_f32 v%d, v%d, v%d" % (VB + 2 * h + 1, T + 4 * h + 2, T + 4 * h + 3))
    OO = T + 16
    o("    s_lshr_b32 s%d, s%d, 1" % (S_T + 2, S_MI))
    o("    s_lshl_b32 s%d, s%d, %d" % (S_T + 2, S_T + 2, QSH))
    if hf >= 0:
        o("    s_xor_b32 s%d, s%d, s%d" % (S_T + 2, S_T + 2, S_FL))
    for h in range(2):
        o("    v_mfma_f32_16x16x16_bf16 v[%d:%d], v[%d:%d], v[%d:%d], 0" %
          (OO + 4 * h, OO + 4 * h + 3, VB + 2 * h, VB + 2 * h + 1, PP, PP + 1))
    o("    s_nop 7")
    for i in range(4):
        o("    v_cvt_pk_bf16_f32 v%d, v%d, v%d" % (MISC + 8 + i, OO + 2 * i, OO + 2 * i + 1))
    if noout or defer:
        o("    s_cmp_eq_u32 s%d, 1" % S_MI)
        o("    s_cbranch_scc0 L_store")
        if defer:
            for i in range(4):
                o("    v_mov_b32 v%d, v%d" % (V_DEF + i, MISC + 8 + i))
        o("    s_branch L_mat_done")
        o("L_store:")
        if defer:
            o("    buffer_store_dwordx4 v[%d:%d], v%d, s[%d:%d], %s offen %s" %
              (V_DEF, V_DEF + 3, V_OUT, SRD_O, SRD_O + 3, "s%d" % S_FL if hf >= 0 else "0", oflags))
    o("    buffer_store_dwordx4 v[%d:%d], v%d, s[%d:%d], s%d offen %s" %
      (MISC + 8, MISC + 11, V_OUT, SRD_O, SRD_O + 3, S_T + 2, oflags))

    o("L_mat_done:")
    o("    s_add_u32 s%d, s%d, 1" % (S_MI, S_MI))
    o("    s_cmp_eq_u32 s%d, 4" % S_MI)
    o("    s_cbranch_scc1 L_fin")
    for j in range(32):
        o("    v_mov_b32 v%d, 0" % (ACC + j))
    o("    s_branch L_outer")
    if ih:
        del L[mark:]

    if ctl:
        o("; ---- progress reports (L_rp) and progress line updates (L_ev) ----")
        emit_events()
    o("; ---- load side moves on to the next matrix ----")
    for tag in stubs:
        o("L_sw_%s:" % tag)
        if qm == 2:
            o("    s_cmp_lg_u32 s%d, s%d" % (S_LM, S_WAVE))
            o("    s_cbranch_scc1 L_swq_%s" % tag)
            o("    s_bitcmp1_b32 s%d, 0" % S_WAVE)
            o("    s_cbranch_scc1 L_swq_%s" % tag)
            o("    v_and_b32 v%d, 15, v%d" % (V_X, V_LANE))
            o("    v_lshrrev_b32 v%d, 4, v%d" % (V_Y, V_LANE))
            load_q(V_X, V_Y, V_X, S_T + 6)
            o("L_swq_%s:" % tag)
        o("    s_mov_b32 s%d, s%d" % (S_OFF, S_OFF0))
        if general:
            o("    s_mov_b32 s%d, 0" % S_STP)
        if hf >= 0:
            o("    s_add_u32 s%d, s%d, s%d" % (S_T + 4, SRD_D, S_ADV))
            o("    s_addc_u32 s%d, s%d, s%d" % (S_T + 5, SRD_D + 1, S_ADVH))
        else:
            o("    s_add_u32 s%d, s%d, 0x%x" % (S_T + 4, SRD_D, 1 << mb))
            o("    s_addc_u32 s%d, s%d, 0" % (S_T + 5, SRD_D + 1))
        o("    s_mov_b32 s%d, s%d" % (SRD_D, NXT_D))
        o("    s_mov_b32 s%d, s%d" % (SRD_D + 1, NXT_D + 1))
        o("    s_mov_b32 s%d, s%d" % (NXT_D, S_T + 4))
        o("    s_mov_b32 s%d, s%d" % (NXT_D + 1, S_T + 5))
        o("    s_mov_b32 s%d, s%d" % (S_T + 4, SRD_P))
        o("    s_mov_b32 s%d, s%d" % (S_T + 5, SRD_P + 1))
        o("    s_mov_b32 s%d, s%d" % (SRD_P, NXT_P))
        o("    s_mov_b32 s%d, s%d" % (SRD_P + 1, NXT_P + 1))
        o("    s_mov_b32 s%d, s%d" % (NXT_P, S_T + 4))
        o("    s_mov_b32 s%d, s%d" % (NXT_P + 1, S_T + 5))
        o("    s_add_u32 s%d, s%d, 1" % (S_LM, S_LM))
        o("    s_cmp_eq_u32 s%d, 4" % S_LM)
        o("    s_cselect_b32 s%d, 0, 0x%x" % (SRD_D + 2, DSZ))
        o("    s_cselect_b32 s%d, 0, 0x20000" % (SRD_P + 2))
        o("    s_branch L_swr_%s" % tag)

    o("L_fin:")
    if stamp:
        o("    s_waitcnt vmcnt(0)")
        o("    s_memrealtime s[62:63]")
        o("    s_getreg_b32 s58, hwreg(HW_REG_XCC_ID)")
        o("    s_getreg_b32 s59, hwreg(HW_REG_HW_ID)")
        o("    s_waitcnt lgkmcnt(0)")
        o("    s_lshl_b32 s%d, s2, 2" % S_T)
        o("    s_add_u32 s%d, s%d, s%d" % (S_T, S_T, S_WAVE))
        o("    s_lshl_b32 s%d, s%d, 4" % (S_T, S_T))
        o("    v_mov_b32 v4, s60")
        o("    v_mov_b32 v5, s62")
        o("    v_mov_b32 v6, s58")
        if pstamp:
            o("    s_sub_u32 s82, s82, s60")
        o("    v_mov_b32 v7, s%d" % (82 if pstamp else (S_HI if ctl else 59)))
        o("    v_mov_b32 v2, s%d" % S_T)
        o("    global_store_dwordx4 v2, v[4:7], s[18:19]")
        if pst:
            o("    s_lshl_b32 s%d, s%d, 1" % (S_T + 1, S_T))
            o("    s_add_u32 s%d, s%d, 0x60000" % (S_T + 1, S_T + 1))
            o("    v_mov_b32 v2, s%d" % (S_T + 1))
            for k in range(6):
                o("    s_sub_u32 s%d, s%d, s60" % (PST[k], PST[k]))
                o("    v_mov_b32 v%d, s%d" % (8 + k, PST[k]))
            o("    global_store_dwordx4 v2, v[8:11], s[18:19]")
            o("    global_store_dwordx2 v2, v[12:13], s[18:19] offset:16")
        if trace or rp:
            o("    s_lshl_b32 s%d, s%d, 4" % (S_T, S_T))
            o("    s_add_u32 s%d, s%d, 0x10000" % (S_T, S_T))
            o("    v_lshlrev_b32 v2, 2, v0")
            o("    v_add_u32 v2, s%d, v2" % S_T)
            o("    global_store_dword v2, v%d, s[18:19]" % V_BV)
            if trace == 2 or rp:
                o("    v_add_u32 v2, 0x40000, v2")
                o("    global_store_dword v2, v%d, s[18:19]" % V_TR2)
    o("L_end:")
    o("    s_endpgm")
    nvg = max(accum_offset + na, 264)
    o('.section .rodata,"a"')
    o(".p2align 6")
    o(".amdhsa_kernel %s_kernel" % NAME)
    o("  .amdhsa_next_free_vgpr %d" % nvg)
    o("  .amdhsa_next_free_sgpr %d" % (96 if pst or rp else 88))
    o("  .amdhsa_accum_offset %d" % accum_offset)
    o("  .amdhsa_group_segment_fixed_size 0")
    o("  .amdhsa_kernarg_size 64")
    o("  .amdhsa_user_sgpr_count 2")
    o("  .amdhsa_user_sgpr_kernarg_segment_ptr 1")
    o("  .amdhsa_system_sgpr_workgroup_id_x 1")
    o("  .amdhsa_float_denorm_mode_32 3")
    o(".end_amdhsa_kernel")
    return "\n".join(L) + "\n"


if __name__ == "__main__":
    out = sys.argv[1]
    kw = {}
    for a in sys.argv[2:]:
        k, v = a.split("=")
        if k not in ("flags", "eflags", "oflags", "mlo", "mmid", "mhi", "cal", "aflags", "akind", "mpost", "mfirst", "xm", "jb", "gb", "wb", "sb", "pb", "af", "jx", "mm2", "wsy", "ewf", "mih", "epsl"):
            v = int(v)
        kw[k] = v
    open(out, "w").write(gen(**kw))
```

```python
import sys

NAME = "standalone__low_rank_proj_linformer__sampling"
HEADER = open("cdna_kernels/%s.s.ref" % NAME).read().split("; Override launch")[0]

DOC = """
Linformer attention: kp = E.K, vp = F.V (rank 16), p = softmax(bf16(q.kp^T) * 128^-0.5), out = p.vp.
The kernel is bound by the 1 GiB read of K and V.

Work split: 256 workgroups x 4 waves, one workgroup per CU, two heads per workgroup.
A workgroup streams K(h0), V(h0), K(h1), V(h1); a round covers 128 rows (32 KiB), wave w takes
rows [32w, 32w+32), an iteration is two rounds.  Per round a wave issues 8 dwordx4 loads into a register
ring (two rounds deep), transposes 8x8 blocks with v_perm and accumulates E^T-fragment x data with
8 MFMA 16x16x32.  The four waves meet at a barrier before every load pair, which keeps their DRAM pages common.
At the end of a matrix the four partial sums go to LDS; the reduction, the scores and the softmax (one
wave) or the product p.vp (all waves) run in pieces inside the next iteration, so the load stream never
pauses.  The first head's output stays in registers until the last iteration.
At the start the code and both projection matrices are touched once so that later uses hit the L2.

Load-window balancing: the dies start at different times and get unequal shares of the memory bandwidth,
and the slowest die sets the run time.  The loop body exists three times and differs only in how many
loads it keeps in flight (lo / mid / hi).  Once per iteration each wave compares its clock with a progress
line and picks the body: hi when it lags, lo when it leads.  The first line is the wave's own start time
plus nominal times; it moves towards the mean start time of the grid, and from iteration 14 on it is the
measured grid-wide progress.  A few waves add their clock value to counters in d_debug for this.
The choice changes timing only, never the result, and no wave ever waits on the clock or on another
workgroup.
"""


def gen(flags="nt", eflags="sc1", oflags="", stamp=0, force=-1, ctl=1,
        mlo="5s", mmid="6p", mhi="8p", dhi=1, dlo=1, cal="9,25", lag=8, delta=0, eps=0, ps=0, pc=6,
        tail=0, notime=0, pre=0, noev=0, trace=0,
        doat=1, dold=1, aflags="sc1", akind="atomic", abase=16, wmap=0, amask=0, aval=0,
        ns=256, stag=4, noout=0, defer=0, bp=0, noE=0, mpost="", qwait=0, pstamp=0, fin=0, tsh=0, pst=0, early=0, pf=0, pfw=256, pro8=0, qm=0, m0=0, mfirst="", tw=0, pdec=1, wa=0, rot=0, gp=11, wp=13, xm="", hb=8, hb2=0, jb="", gb="", wb="", sb="", mb=20, pb="", hf=-1, tf=-1, af="", jx="", prb=0, e0=0, eg=0, egs=1, mm2="", m2s=1, wsy="", nom=0, lag0=3, dl8=0, dh8=0, ew=0, ewf="", wskip=0, half=0, hca=2, hcb=6, sl=-1, c0=210, n1=0, ih=0, mih="", ihp=2, sl0=1, rp=0, tst=0, ft=0, es=0, pfs=6, epsl="", ki=0, im=40, kis=1, wba=0, jf=0, md=0):
    LA, RS, ER, P = 4, 2, 2, 2
    cal = [int(x) for x in str(cal).split(",")]
    assert 2 <= len(cal) <= 4
    SLOT = [0, 128, 64, 192]
    if sl >= 0 and not n1:
        SLOT = [136, 128, 64, 192]
    j0 = sl0 if sl >= 0 else cal[0] + lag0
    nsh = ns.bit_length() - 1
    assert ns == 1 << nsh and ns >= 8 * stag
    st2 = stag - 1
    nobar = nocomp = 0
    wsyl = [int(x) for x in str(wsy).split(",")] if wsy != "" else []
    general = (gp, wp, xm, hb, jb, gb, wb, sb) != (11, 13, "", 8, "", "", "", "")
    gbits = [int(x) for x in str(gb).split(",")] if gb else [gp, gp + 1]
    wbits = [int(x) for x in str(wb).split(",")] if wb else [wp, wp + 1]
    if jb:
        jbits = [int(x) for x in str(jb).split(",")]
    elif hb == 8:
        jbits = [8, 9, 10]
    elif hb2:
        jbits = [hb, hb2, 8]
    else:
        jbits = [hb, 8, 9]
    holes = sum(1 << b for b in gbits + wbits + jbits)
    assert bin(holes).count("1") == 7 and min(gbits + wbits) >= 8
    sbits = [b for b in range(8, 20) if not (holes >> b) & 1]
    if sb:
        sbits = [int(x) for x in str(sb).split(",")]
        assert sbits == sorted(sbits) and len(sbits) == 5
        holes = 0xffffff00 & ~sum(1 << b for b in sbits)
    pbits = [int(x) for x in str(pb).split(",")] if pb else [b for b in range(20, 29) if b != mb]
    allb = gbits + wbits + jbits + sbits + [mb] + pbits
    assert sorted(allb) == list(range(8, 29)), sorted(allb)
    probe = max(gbits + wbits + jbits + sbits) >= 20 or mb < 20 or bool(prb)
    headmap = (mb, pbits) != (20, list(range(21, 29)))
    offmask = sum(1 << b for b in gbits + wbits + jbits + sbits) | 0xff
    big_j = [b for b in jbits if b >= 12]
    afl = [int(x) for x in str(af).split(",")] if af else []
    af_s = sum(1 << b for b in afl if b in wbits + sbits)
    af_g = sum(1 << b for b in afl if b in gbits)
    S_OFFB = 87
    jxl = [tuple(int(y) for y in x.split(":")) for x in jx.split(",")] if jx else []
    jx_j = [(tb, sb_) for tb, sb_ in jxl if tb in jbits]
    jx_g = [(tb, sb_) for tb, sb_ in jxl if tb in gbits]
    assert len(jx_j) + len(jx_g) == len(jxl)
    xml = [tuple(int(y) for y in x.split(":")) for x in xm.split(",")] if xm else []
    if general:
        assert wa == 0 and rot == 0 and not early
    L = []
    o = L.append
    DS = 1088
    WS = 8 * DS
    LDS_P, LDS_KP, LDS_VP = 0, 512, 512 + 4 * WS
    lds = 512 + 8 * WS
    o(HEADER.rstrip())
    o("; @launch grid=(256,1,1) block=(256,1,1) lds=%d" % lds)
    for line in DOC.strip("\n").split("\n"):
        o(("; " + line).rstrip())
    o('.amdgcn_target "amdgcn-amd-amdhsa--gfx950"')
    o(".text")
    o(".globl %s_kernel" % NAME)
    o(".p2align 8")
    o(".type %s_kernel,@function" % NAME)
    o("%s_kernel:" % NAME)

    V_LANE, V_OFF, V_EOFF, V_PW, V_VR, V_OUT, V_X, V_Y = 0, 1, 2, 3, 4, 5, 6, 7
    ACC = 8
    T = 40
    MISC = 72
    V_BO, V_BV = MISC + 22, MISC + 23
    RING = 96
    V_DEF = RING + 32 * RS
    V_OFFX = V_DEF + 4
    nv = V_DEF + 4 + ((1 << len(big_j)) - 1)
    V_OFFJ = nv
    if jx_j:
        assert not big_j
        nv += 8
    esplit = jbits[1:] == [8, 9] and jbits[0] > 9 and not prb
    NE = 0 if noE else (2 if esplit else 1)
    V_ER = V_EA = 0
    if esplit:
        nv = (nv + 1) // 2 * 2
        V_ER = nv
        V_EA = (V_ER + 4 * ER + 3) // 4 * 4
        nv = V_EA + 4
    V_S2 = V_T2 = 0
    if ih:
        V_S2 = (nv + 3) // 4 * 4
        V_T2 = V_S2 + 32
        nv = V_T2 + 32
    V_TR2 = nv
    if trace == 2 or rp:
        nv += 4
    assert nv <= 256
    A_Q = 0
    A_E = 16
    na = A_E + 4 * ER
    accum_offset = (nv + 3) // 4 * 4

    S_SELLO, S_SELHI, S_WAVE, S_OFF, S_EOFF, S_CNT, S_MI, S_LM = 20, 21, 22, 23, 24, 25, 26, 27
    S_PROG = 57
    SRD_D, SRD_P = 28, 32
    NXT_D, NXT_P = 36, 38
    SRD_Q, SRD_O = 40, 44
    S_T = 48

    o("    s_cmp_ge_u32 s2, 256")
    o("    s_cbranch_scc1 L_end")
    o("    s_load_dwordx16 s[4:19], s[0:1], 0")
    if stamp:
        o("    s_memrealtime s[60:61]")
    if sl >= 0:
        o("    s_memrealtime s[72:73]")
    PST = [84, 86, 88, 90, 92, 94]

    def pstp(k):
        if pst and not tst:
            o("    s_memrealtime s[%d:%d]" % (PST[k], PST[k] + 1))

    def tstp(k):
        if tst:
            o("    s_memrealtime s[%d:%d]" % (PST[k], PST[k] + 1))

    def code_prefetch():
        if pfw < 256:
            o("    s_cmp_ge_u32 s2, %d" % pfw)
            o("    s_cbranch_scc1 L_nopfc")
        o("    s_getpc_b64 s[%d:%d]" % (S_T + 4, S_T + 5))
        o("L_pc:")
        o("    v_lshlrev_b32 v%d, %d, v%d" % (V_PW, pfs, V_TID))
        if pfs > 6:
            o("    v_cmp_gt_u32 vcc, L_end-L_pc, v%d" % V_PW)
            o("    s_and_saveexec_b64 s[%d:%d], vcc" % (S_T + 6, S_T + 7))
            o("    s_cbranch_execz L_pfx")
            o("    global_load_dword v%d, v%d, s[%d:%d]" % (V_DEF + 3, V_PW, S_T + 4, S_T + 5))
            o("L_pfx:")
            o("    s_mov_b64 exec, -1")
        else:
            o("    v_min_u32 v%d, L_end-L_pc, v%d" % (V_PW, V_PW))
            o("    global_load_dword v%d, v%d, s[%d:%d]" % (V_DEF + 3, V_PW, S_T + 4, S_T + 5))
        if pfw < 256:
            o("L_nopfc:")

    V_TID = 0
    S_TMP0, S_TMP1, S_JC = S_T + 4, S_T + 5, 83
    if pf:
        code_prefetch()
    o("    v_lshrrev_b32 v%d, 6, v0" % V_X)
    o("    v_and_b32 v%d, 63, v0" % V_LANE)
    o("    v_readfirstlane_b32 s%d, v%d" % (S_WAVE, V_X))
    if not early:
        o("    s_mov_b32 s%d, 0x05040100" % S_SELLO)
        o("    s_mov_b32 s%d, 0x07060302" % S_SELHI)
    o("    v_and_b32 v%d, 15, v%d" % (V_X, V_LANE))
    o("    v_lshrrev_b32 v%d, 4, v%d" % (V_Y, V_LANE))
    o("    v_lshlrev_b32 v%d, 4, v%d" % (V_OFF, V_X))
    if gbits[1] == gbits[0] + 1:
        o("    v_lshl_add_u32 v%d, v%d, %d, v%d" % (V_OFF, V_Y, gbits[0], V_OFF))
    else:
        o("    v_and_b32 v%d, 1, v%d" % (V_PW, V_Y))
        o("    v_lshl_add_u32 v%d, v%d, %d, v%d" % (V_OFF, V_PW, gbits[0], V_OFF))
        o("    v_lshrrev_b32 v%d, 1, v%d" % (V_PW, V_Y))
        o("    v_lshl_add_u32 v%d, v%d, %d, v%d" % (V_OFF, V_PW, gbits[1], V_OFF))
    if probe:
        o("    v_lshlrev_b32 v%d, 13, v%d" % (V_EOFF, V_X))
        o("    v_lshl_add_u32 v%d, v%d, 4, v%d" % (V_EOFF, V_Y, V_EOFF))
    elif not early:
        o("    v_lshlrev_b32 v%d, 13, v%d" % (V_EOFF, V_X))
        if gbits[1] == gbits[0] + 1:
            o("    v_lshl_add_u32 v%d, v%d, %d, v%d" % (V_EOFF, V_Y, gbits[0] - 7, V_EOFF))
        else:
            o("    v_and_b32 v%d, 1, v%d" % (V_PW, V_Y))
            o("    v_lshl_add_u32 v%d, v%d, %d, v%d" % (V_EOFF, V_PW, gbits[0] - 7, V_EOFF))
            o("    v_lshrrev_b32 v%d, 1, v%d" % (V_PW, V_Y))
            o("    v_lshl_add_u32 v%d, v%d, %d, v%d" % (V_EOFF, V_PW, gbits[1] - 7, V_EOFF))
    for tb, sb_ in jx_g:
        o("    s_bfe_u32 s%d, s2, 0x%x" % (S_TMP0, 0x10000 | sb_))
        o("    s_lshl_b32 s%d, s%d, %d" % (S_TMP1, S_TMP0, tb))
        o("    v_xor_b32 v%d, s%d, v%d" % (V_OFF, S_TMP1, V_OFF))
        o("    s_lshl_b32 s%d, s%d, %d" % (S_TMP1, S_TMP0, tb - 7))
        o("    v_xor_b32 v%d, s%d, v%d" % (V_EOFF, S_TMP1, V_EOFF))
    if jx_j:
        o("    s_mov_b32 s%d, 0" % S_JC)
        for tb, sb_ in jx_j:
            o("    s_bfe_u32 s%d, s2, 0x%x" % (S_TMP0, 0x10000 | sb_))
            o("    s_lshl_b32 s%d, s%d, %d" % (S_TMP0, S_TMP0, tb))
            o("    s_xor_b32 s%d, s%d, s%d" % (S_JC, S_JC, S_TMP0))
        for i in range(8):
            a_ = sum(1 << b for t, b in enumerate(jbits) if (i >> t) & 1)
            o("    s_xor_b32 s%d, s%d, 0x%x" % (S_TMP0, S_JC, a_))
            o("    v_or_b32 v%d, s%d, v%d" % (V_OFFJ + i, S_TMP0, V_OFF))
    for sel in range(1, 1 << len(big_j)):
        add = sum(1 << b for t, b in enumerate(big_j) if (sel >> t) & 1)
        if af_g and sel & 1:
            o("    v_xor_b32 v%d, 0x%x, v%d" % (V_OFFX + sel - 1, af_g, V_OFF))
            o("    v_add_u32 v%d, 0x%x, v%d" % (V_OFFX + sel - 1, add, V_OFFX + sel - 1))
        else:
            o("    v_add_u32 v%d, 0x%x, v%d" % (V_OFFX + sel - 1, add, V_OFF))
    S_STP = 56
    if wbits[1] == wbits[0] + 1:
        o("    s_lshl_b32 s%d, s%d, %d" % (S_OFF, S_WAVE, wbits[0] if general else 13 + wa))
    else:
        o("    s_and_b32 s%d, s%d, 1" % (S_OFF, S_WAVE))
        o("    s_lshl_b32 s%d, s%d, %d" % (S_OFF, S_OFF, wbits[0]))
        o("    s_lshr_b32 s%d, s%d, 1" % (S_T + 4, S_WAVE))
        o("    s_lshl_b32 s%d, s%d, %d" % (S_T + 4, S_T + 4, wbits[1]))
        o("    s_or_b32 s%d, s%d, s%d" % (S_OFF, S_OFF, S_T + 4))
    if general:
        o("    s_mov_b32 s%d, 0" % S_STP)
        for tb, sb in xml:
            o("    s_bfe_u32 s%d, s2, 0x%x" % (S_T + 4, 0x10000 | sb))
            o("    s_lshl_b32 s%d, s%d, %d" % (S_T + 4, S_T + 4, tb))
            o("    s_xor_b32 s%d, s%d, s%d" % (S_OFF, S_OFF, S_T + 4))
    if rot:
        assert wa == 0
        R = S_T + 4
        if rot == 1:
            o("    s_lshr_b32 s%d, s2, 3" % R)
        elif rot == 2:
            o("    s_mov_b32 s%d, s2" % R)
        elif rot == 3:
            o("    s_lshl_b32 s%d, s2, 2" % R)
        elif rot == 4:
            o("    s_lshr_b32 s%d, s2, 3" % R)
            o("    s_lshl_b32 s%d, s2, 2" % (R + 1))
            o("    s_add_u32 s%d, s%d, s%d" % (R, R, R + 1))
        elif rot == 5:
            o("    s_lshr_b32 s%d, s2, 3" % R)
            o("    s_and_b32 s%d, s%d, 1" % (R, R))
        elif rot == 6:
            o("    s_lshr_b32 s%d, s2, 3" % R)
            o("    s_and_b32 s%d, s%d, 3" % (R, R))
        elif rot == 7:
            o("    s_lshr_b32 s%d, s2, 3" % R)
            o("    s_lshl_b32 s%d, s%d, 3" % (R, R))
        elif rot == 8:
            o("    s_lshr_b32 s%d, s2, 3" % R)
            o("    s_lshl_b32 s%d, s%d, 4" % (R, R))
        o("    s_and_b32 s%d, s%d, 31" % (R, R))
        o("    s_lshl_b32 s%d, s%d, 15" % (R, R))
        o("    s_add_u32 s%d, s%d, s%d" % (S_OFF, S_OFF, R))
    S_EV, S_MODE, S_ACC, S_INC, S_TM, S_NOW, S_THI, S_TLO = 64, 65, 66, 67, 72, 74, 76, 77
    S_C1, S_C2, S_HI, S_OFF0, S_RP, S_OK = 68, 70, 78, 79, 80, 81

    def eoff():
        o("    s_lshr_b32 s%d, s%d, 7" % (S_EOFF, S_OFF))
        if af_s:
            o("    s_xor_b32 s%d, s%d, 0x%x" % (S_OFFB, S_OFF, af_s))
        if probe:
            o("    s_and_b32 s%d, s%d, 0x1fc0" % (S_EOFF, S_EOFF))

    def step_inc():
        if general:
            o("    s_or_b32 s%d, s%d, 0x%x" % (S_STP, S_STP, holes))
            o("    s_add_u32 s%d, s%d, 0x%x" % (S_STP, S_STP, 1 << sbits[0]))
            o("    s_andn2_b32 s%d, s%d, 0x%x" % (S_STP, S_STP, holes))
            o("    s_xor_b32 s%d, s%d, s%d" % (S_OFF, S_STP, S_OFF0))
        elif wa == 0:
            o("    s_add_u32 s%d, s%d, 0x8000" % (S_OFF, S_OFF))
            if rot:
                o("    s_and_b32 s%d, s%d, 0xfffff" % (S_OFF, S_OFF))
        elif wa == 5:
            o("    s_add_u32 s%d, s%d, 0x2000" % (S_OFF, S_OFF))
        else:
            hole = 3 << (13 + wa)
            o("    s_or_b32 s%d, s%d, 0x%x" % (S_OFF, S_OFF, hole))
            o("    s_add_u32 s%d, s%d, 0x2000" % (S_OFF, S_OFF))
            o("    s_andn2_b32 s%d, s%d, 0x%x" % (S_OFF, S_OFF, hole))
            o("    s_or_b32 s%d, s%d, s%d" % (S_OFF, S_OFF, S_OFF0))

    def ctl_setup():
        U = S_T + 6 if early else S_T
        o("    s_mov_b32 s%d, %d" % (S_MODE, {-1: 0, 0: 0, 1: 1, 2: 2}[force]))
        if ctl:
            o("    s_mov_b32 s%d, 0" % S_PROG)
            if ki:
                o("    s_mov_b32 s82, 0")
                o("    s_mov_b32 s83, 0")
            o("    s_mov_b32 s%d, 0" % S_HI)
            if sl >= 0:
                T1n = 16 * nom
                o("    s_mov_b32 s%d, %d" % (S_ACC, 64 * c0))
                o("    s_mov_b32 s%d, %d" % (S_INC, 4 * T1n))
                o("    s_mov_b32 s%d, 0" % S_NOW)
                o("    s_mov_b32 s%d, %d" % (S_THI, (T1n * (dh8 or 8 * dhi)) >> 3))
                o("    s_mov_b32 s%d, %d" % (S_TLO, (-T1n * (dl8 or 8 * dlo)) >> 3))
                assert not mm2
            else:
                o("    s_mov_b32 s%d, 0" % S_ACC)
                o("    s_mov_b32 s%d, 0" % S_INC)
                o("    s_mov_b32 s%d, 0" % S_TM)
                o("    s_mov_b32 s%d, 0" % S_NOW)
                o("    s_mov_b32 s%d, 0x7fffffff" % S_THI)
                if mm2:
                    o("    s_mov_b32 s82, 0x7fffffff")
                o("    s_mov_b32 s%d, 0x80000000" % S_TLO)
            o("    s_lshr_b32 s%d, s2, 3" % U)
            o("    s_and_b32 s%d, s%d, %d" % (U, U, stag - 1))
            o("    s_mov_b32 s%d, 0x7fffffff" % S_RP)
            o("    s_mov_b32 s%d, 0" % (U + 1))
            for k, c in enumerate(cal):
                if sl >= 0 and k == 0 and n1:
                    continue
                o("    s_cmp_eq_u32 s%d, %d" % (S_WAVE, (k + 1) & 3))
                o("    s_cselect_b32 s%d, %d, s%d" % (S_RP, c, S_RP))
                o("    s_cselect_b32 s%d, %d, s%d" % (U + 1, SLOT[k], U + 1))
            o("    v_mov_b32 v%d, s%d" % (V_BO, U + 1))
            o("    s_cmp_lg_u32 s%d, 0x7fffffff" % S_RP)
            o("    s_cselect_b32 s%d, s%d, 0" % (U, U))
            o("    s_add_u32 s%d, s%d, s%d" % (S_RP, S_RP, U))
            if ns < 256:
                o("    s_cmp_lt_u32 s2, %d" % ns)
                o("    s_cselect_b32 s%d, s%d, 0x7fffffff" % (S_RP, S_RP))
            if amask:
                o("    s_and_b32 s%d, s2, %d" % (U, amask))
                o("    s_cmp_eq_u32 s%d, %d" % (U, aval))
                o("    s_cselect_b32 s%d, s%d, 0x7fffffff" % (S_RP, S_RP))
            o("    s_mov_b32 s%d, %d" % (S_EV, j0 if nom else cal[1] + lag))
            assert sl < 0 or nom
            o("    s_mov_b32 s%d, 0" % S_OK)
            for r in range(S_C1, S_C1 + 4):
                o("    s_mov_b32 s%d, 0" % r)
        o("    s_mov_b32 s%d, 0" % S_LM)
        o("    s_mov_b32 s%d, 0" % S_MI)

    def srd_rest():
        qsz = 8192 if mb <= 20 or probe else (1 << (mb - 8)) + 4096
        o("    s_mov_b32 s%d, %d" % (SRD_Q + 2, qsz))
        o("    s_mov_b32 s%d, 0x20000" % (SRD_Q + 3))
        o("    s_mov_b32 s%d, %d" % (SRD_O + 2, qsz))
        o("    s_mov_b32 s%d, 0x20000" % (SRD_O + 3))

    if not early:
        o("    s_mov_b32 s%d, s%d" % (S_OFF0, S_OFF))
        ctl_setup()
        eoff()
    S_PAIR = S_T + 2
    if wmap == 0:
        o("    s_mov_b32 s%d, s2" % S_PAIR)
    elif wmap == 1:
        o("    s_and_b32 s%d, s2, 7" % S_PAIR)
        o("    s_lshl_b32 s%d, s%d, 5" % (S_PAIR, S_PAIR))
        o("    s_lshr_b32 s%d, s2, 3" % (S_T + 3))
        o("    s_or_b32 s%d, s%d, s%d" % (S_PAIR, S_PAIR, S_T + 3))
    elif wmap == 2:
        o("    s_lshr_b32 s%d, s2, 3" % (S_T + 3))
        o("    s_and_b32 s%d, s%d, 7" % (S_T + 3, S_T + 3))
        o("    s_xor_b32 s%d, s2, s%d" % (S_PAIR, S_T + 3))
    elif wmap == 3:
        o("    s_and_b32 s%d, s2, 7" % S_PAIR)
        o("    s_lshl_b32 s%d, s%d, 5" % (S_PAIR, S_PAIR))
        o("    s_lshr_b32 s%d, s2, 3" % (S_T + 3))
        o("    s_or_b32 s%d, s%d, s%d" % (S_PAIR, S_PAIR, S_T + 3))
        o("    s_and_b32 s%d, s%d, 7" % (S_T + 3, S_T + 3))
        o("    s_lshl_b32 s%d, s%d, 5" % (S_T + 3, S_T + 3))
        o("    s_xor_b32 s%d, s%d, s%d" % (S_PAIR, S_PAIR, S_T + 3))
    elif wmap == 4:
        o("    s_and_b32 s%d, s2, 7" % S_PAIR)
        o("    s_lshr_b32 s%d, s2, 3" % (S_T + 3))
        o("    s_lshl_b32 s%d, s%d, 2" % (S_T + 4, S_PAIR))
        o("    s_add_u32 s%d, s%d, s%d" % (S_T + 3, S_T + 3, S_T + 4))
        o("    s_and_b32 s%d, s%d, 31" % (S_T + 3, S_T + 3))
        o("    s_lshl_b32 s%d, s%d, 5" % (S_PAIR, S_PAIR))
        o("    s_or_b32 s%d, s%d, s%d" % (S_PAIR, S_PAIR, S_T + 3))
    elif wmap == 5:
        o("    s_brev_b32 s%d, s2" % S_PAIR)
        o("    s_lshr_b32 s%d, s%d, 24" % (S_PAIR, S_PAIR))
    elif wmap == 6:
        o("    s_bfe_u32 s%d, s2, 0x20001" % S_PAIR)
        o("    s_lshl_b32 s%d, s%d, 6" % (S_PAIR, S_PAIR))
        o("    s_lshr_b32 s%d, s2, 3" % (S_T + 3))
        o("    s_lshl_b32 s%d, s%d, 1" % (S_T + 3, S_T + 3))
        o("    s_or_b32 s%d, s%d, s%d" % (S_PAIR, S_PAIR, S_T + 3))
        o("    s_and_b32 s%d, s2, 1" % (S_T + 3))
        o("    s_or_b32 s%d, s%d, s%d" % (S_PAIR, S_PAIR, S_T + 3))
    elif wmap == 7:
        o("    s_and_b32 s%d, s2, 7" % S_PAIR)
        o("    s_lshl_b32 s%d, s%d, 3" % (S_PAIR, S_PAIR))
        o("    s_bfe_u32 s%d, s2, 0x30003" % (S_T + 3))
        o("    s_or_b32 s%d, s%d, s%d" % (S_PAIR, S_PAIR, S_T + 3))
        o("    s_lshr_b32 s%d, s2, 6" % (S_T + 3))
        o("    s_lshl_b32 s%d, s%d, 6" % (S_T + 3, S_T + 3))
        o("    s_or_b32 s%d, s%d, s%d" % (S_PAIR, S_PAIR, S_T + 3))
    if headmap:
        o("    s_mov_b32 s%d, 0" % S_T)
        for i, b in enumerate(pbits):
            o("    s_bfe_u32 s%d, s%d, 0x%x" % (S_T + 1, S_PAIR, 0x10000 | i))
            o("    s_lshl_b32 s%d, s%d, %d" % (S_T + 1, S_T + 1, b))
            o("    s_or_b32 s%d, s%d, s%d" % (S_T, S_T, S_T + 1))
    else:
        o("    s_lshl_b32 s%d, s%d, 21" % (S_T, S_PAIR))
    S_ADV, S_ADVH, S_FL = 84, 85, 86
    if hf >= 0:
        assert not pst and not early and qm == 0
        if hf == 99:
            o("    s_mov_b32 s%d, 1" % S_FL)
        else:
            o("    s_bfe_u32 s%d, s2, 0x%x" % (S_FL, 0x10000 | hf))
        o("    s_mov_b32 s%d, 0x%x" % (S_ADV, 1 << mb))
        o("    s_cmp_eq_u32 s%d, 1" % S_FL)
        o("    s_cselect_b32 s%d, 0x%x, s%d" % (S_ADV, (-(1 << mb)) & 0xffffffff, S_ADV))
        o("    s_cselect_b32 s%d, -1, 0" % S_ADVH)
    DSZ = (offmask + 1) if probe else 0x100000
    QSH = 12 if probe else mb - 8
    o("    s_mov_b32 s%d, 0x%x" % (SRD_D + 2, DSZ))
    o("    s_mov_b32 s%d, 0x20000" % (SRD_D + 3))
    if not early:
        if headmap and not probe:
            o("    s_lshr_b32 s%d, s%d, 8" % (S_T + 1, S_T))
        else:
            o("    s_lshl_b32 s%d, s%d, 13" % (S_T + 1, S_PAIR))
        o("    s_mov_b32 s%d, 0x20000" % (SRD_P + 2))
        o("    s_mov_b32 s%d, 0x20000" % (SRD_P + 3))
        srd_rest()
    pstp(0)
    o("    s_waitcnt lgkmcnt(0)")
    if pstamp:
        o("    s_memrealtime s[82:83]")
    pstp(1)
    if hf >= 0:
        o("    s_lshl_b32 s%d, s%d, %d" % (S_T + 4, S_FL, mb))
        o("    s_or_b32 s%d, s%d, s%d" % (S_T, S_T, S_T + 4))
        o("    s_lshl_b32 s%d, s%d, %d" % (S_FL, S_FL, QSH))
    if tf >= 0:
        if tf == 99:
            o("    s_cmp_eq_u32 s2, s2")
        else:
            o("    s_bitcmp1_b32 s2, %d" % tf)
        o("    s_cselect_b32 s%d, s8, s6" % (S_T + 4))
        o("    s_cselect_b32 s%d, s9, s7" % (S_T + 5))
        o("    s_cselect_b32 s8, s6, s8")
        o("    s_cselect_b32 s9, s7, s9")
        o("    s_mov_b32 s6, s%d" % (S_T + 4))
        o("    s_mov_b32 s7, s%d" % (S_T + 5))
    o("    s_add_u32 s%d, s6, s%d" % (SRD_D, S_T))
    o("    s_addc_u32 s%d, s7, 0" % (SRD_D + 1))
    if not early:
        o("    s_mov_b32 s%d, s10" % SRD_P)
        o("    s_mov_b32 s%d, s11" % (SRD_P + 1))

    def issue_E(step):
        if noE:
            return
        if esplit:
            r = V_ER + (step % ER) * 4
            for t in range(2):
                o("    buffer_load_dwordx2 v[%d:%d], v%d, s[%d:%d], s%d offen offset:%d %s" %
                  (r + 2 * t, r + 2 * t + 1, V_EOFF, SRD_P, SRD_P + 3, S_EOFF, t << (jbits[0] - 7), eflags))
            return
        r = A_E + (step % ER) * 4
        o("    buffer_load_dwordx4 a[%d:%d], v%d, s[%d:%d], s%d offen %s" %
          (r, r + 3, V_EOFF, SRD_P, SRD_P + 3, S_EOFF, eflags))

    def issue_one(n):
        q, h = divmod(n, 2)
        a = q % 4
        slot = q % (4 * RS)
        i = (2 * a + h) ^ jf
        r = RING + (slot * 2 + h) * 4
        imm, sel = 0, 0
        alt = bool(afl) and any((i >> t) & 1 and b == big_j[0] for t, b in enumerate(jbits))
        for t, b in enumerate(jbits):
            bit = (i >> t) & 1
            if alt and b in afl:
                bit ^= 1
            if bit:
                if b >= 12:
                    sel |= 1 << big_j.index(b)
                else:
                    imm += 1 << b
        if jx_j:
            o("    buffer_load_dwordx4 v[%d:%d], v%d, s[%d:%d], s%d offen %s" %
              (r, r + 3, V_OFFJ + i, SRD_D, SRD_D + 3, S_OFF, flags))
            return
        o("    buffer_load_dwordx4 v[%d:%d], v%d, s[%d:%d], s%d offen offset:%d %s" %
          (r, r + 3, V_OFFX + sel - 1 if sel else V_OFF, SRD_D, SRD_D + 3,
           S_OFFB if alt and af_s else S_OFF, imm, flags))

    def issue_pair(q):
        issue_one(2 * q)
        issue_one(2 * q + 1)

    stubs = []
    events = []

    if not early and not e0:
        issue_E(0)
    for q in range(LA):
        issue_pair(q)
        if not early and e0 == q + 1:
            issue_E(0)
    if early:
        o("    v_lshlrev_b32 v%d, 13, v%d" % (V_EOFF, V_X))
        o("    v_lshl_add_u32 v%d, v%d, 4, v%d" % (V_EOFF, V_Y, V_EOFF))
        eoff()
        o("    s_mov_b32 s%d, s10" % SRD_P)
        o("    s_mov_b32 s%d, s11" % (SRD_P + 1))
        o("    s_mov_b32 s%d, 0x20000" % (SRD_P + 2))
        o("    s_mov_b32 s%d, 0x20000" % (SRD_P + 3))
        issue_E(0)
        o("    s_mov_b32 s%d, s%d" % (S_OFF0, S_OFF))
    if bp and not pro8:
        step_inc()
        eoff()
        issue_one(8)
        issue_E(1)
        for n in range(9, 16):
            issue_one(n)
    pstp(2)
    if early:
        o("    s_mov_b32 s%d, 0x05040100" % S_SELLO)
        o("    s_mov_b32 s%d, 0x07060302" % S_SELHI)
        o("    s_lshl_b32 s%d, s%d, 13" % (S_T + 1, S_PAIR))
        srd_rest()
        ctl_setup()
    o("    s_add_u32 s%d, s8, s%d" % (NXT_D, S_T))
    o("    s_addc_u32 s%d, s9, 0" % (NXT_D + 1))
    o("    s_mov_b32 s%d, s12" % NXT_P)
    o("    s_mov_b32 s%d, s13" % (NXT_P + 1))
    o("    s_add_u32 s%d, s4, s%d" % (SRD_Q, S_T + 1))
    o("    s_addc_u32 s%d, s5, 0" % (SRD_Q + 1))
    o("    s_add_u32 s%d, s14, s%d" % (SRD_O, S_T + 1))
    o("    s_addc_u32 s%d, s15, 0" % (SRD_O + 1))
    def load_q(vx, vy, va, st):
        o("    v_lshlrev_b32 v%d, 8, v%d" % (va, vx))
        o("    v_lshl_add_u32 v%d, v%d, 6, v%d" % (va, vy, va))
        o("    s_lshr_b32 s%d, s%d, 1" % (st, S_WAVE))
        o("    s_lshl_b32 s%d, s%d, %d" % (st, st, QSH))
        if hf >= 0:
            o("    s_xor_b32 s%d, s%d, s%d" % (st, st, S_FL))
        for s in range(4):
            o("    buffer_load_dwordx4 a[%d:%d], v%d, s[%d:%d], s%d offen offset:%d" %
              (A_Q + 4 * s, A_Q + 4 * s + 3, va, SRD_Q, SRD_Q + 3, st, 16 * s))

    if qm == 0:
        load_q(V_X, V_Y, V_PW, S_T + 2)
    elif qm == 1:
        o("    s_bitcmp1_b32 s%d, 0" % S_WAVE)
        o("    s_cbranch_scc1 L_noq")
        load_q(V_X, V_Y, V_PW, S_T + 2)
        o("L_noq:")
    def warm_proj():
        o("    s_bfe_u32 s%d, s2, 0x50003" % (S_T + 2))
        o("    s_lshl_b32 s%d, s%d, 2" % (S_T + 2, S_T + 2))
        o("    s_add_u32 s%d, s%d, s%d" % (S_T + 2, S_T + 2, S_WAVE))
        o("    s_lshl_b32 s%d, s%d, 10" % (S_T + 2, S_T + 2))
        o("    v_lshlrev_b32 v%d, 4, v%d" % (V_PW, V_LANE))
        o("    v_add_u32 v%d, s%d, v%d" % (V_PW, S_T + 2, V_PW))
        if ew & 1:
            o("    global_load_dwordx4 v[%d:%d], v%d, s[10:11] %s" % (V_DEF, V_DEF + 3, V_PW, ewf))
        if ew & 2:
            o("    global_load_dwordx4 v[%d:%d], v%d, s[12:13] %s" % (V_DEF, V_DEF + 3, V_PW, ewf))

    if sl >= 0:
        o("    s_cmp_lt_u32 s2, %d" % ns)
        o("    s_cbranch_scc0 L_nosr")
        o("    s_cmp_eq_u32 s%d, 1" % S_WAVE)
        o("    s_cbranch_scc0 L_nosr")
        o("    v_mov_b32 v%d, s%d" % (V_BV - 3, S_TM))
        o("    v_mov_b32 v%d, 0x100" % (V_BV - 2))
        o("    v_mov_b32 v%d, 0" % (V_BV - 4))
        o("    s_mov_b64 exec, 1")
        o("    global_atomic_add_x2 v%d, v[%d:%d], s[%d:%d] %s" % (V_BV - 4, V_BV - 3, V_BV - 2, abase, abase + 1, aflags))
        o("    s_mov_b64 exec, -1")
        o("L_nosr:")
    if ew:
        assert defer and qm != 2
        warm_proj()
    if tw:
        assert defer
        o("    v_and_b32 v%d, 3, v%d" % (V_PW, V_LANE))
        o("    v_lshlrev_b32 v%d, 19, v%d" % (V_PW, V_PW))
        o("    s_cmp_eq_u32 s%d, 1" % S_WAVE)
        o("    s_cbranch_scc0 L_tw1")
        o("    global_load_dword v%d, v%d, s[%d:%d]" % (V_DEF, V_PW, NXT_D, NXT_D + 1))
        o("L_tw1:")
        o("    s_cmp_eq_u32 s%d, 3" % S_WAVE)
        o("    s_cbranch_scc0 L_tw3")
        o("    v_mov_b32 v%d, 0" % V_PW)
        o("    buffer_load_dword v%d, v%d, s[%d:%d], 0 offen" % (V_DEF, V_PW, SRD_O, SRD_O + 3))
        o("    global_load_dword v%d, v%d, s[12:13]" % (V_DEF + 1, V_PW))
        o("L_tw3:")
    o("    v_lshlrev_b32 v%d, 8, v%d" % (V_OUT, V_X))
    o("    v_lshl_add_u32 v%d, v%d, 4, v%d" % (V_OUT, V_Y, V_OUT))
    o("    s_lshl_b32 s%d, s%d, 6" % (S_T + 2, S_WAVE))
    o("    v_add_u32 v%d, s%d, v%d" % (V_OUT, S_T + 2, V_OUT))
    o("    v_and_b32 v%d, 3, v%d" % (V_VR, V_X))
    o("    v_mul_u32_u24 v%d, %d, v%d" % (V_VR, DS, V_VR))
    o("    v_lshrrev_b32 v%d, 2, v%d" % (V_X, V_X))
    o("    v_lshl_add_u32 v%d, v%d, 4, v%d" % (V_X, V_Y, V_X))
    o("    v_lshl_add_u32 v%d, v%d, 4, v%d" % (V_VR, V_X, V_VR))
    o("    s_lshl_b32 s%d, s%d, 6" % (S_T + 2, S_WAVE))
    o("    s_add_u32 s%d, s%d, %d" % (S_T + 2, S_T + 2, LDS_VP))
    o("    v_add_u32 v%d, s%d, v%d" % (V_VR, S_T + 2, V_VR))
    o("    v_lshlrev_b32 v%d, 4, v%d" % (V_X, V_LANE))
    o("    s_mul_i32 s%d, s%d, %d" % (S_T + 2, S_WAVE, WS))
    o("    s_add_u32 s%d, s%d, %d" % (S_T + 2, S_T + 2, LDS_KP))
    o("    v_add_u32 v%d, s%d, v%d" % (V_PW, S_T + 2, V_X))
    for j in range(32):
        o("    v_mov_b32 v%d, 0" % (ACC + j))
    if rp:
        o("    s_mov_b32 s90, 0")
        o("    v_mov_b32 v%d, 0" % V_TR2)


    def allowed(n, req, e_done):
        cnt = n - 1 - req
        for qq in range(0, n // 2 + 1):
            if md:
                if qq % 4 == 0 and 2 * qq + 1 >= req and qq < n // 2:
                    cnt += NE
            elif qq % 4 == 0 and 2 * qq >= req and (qq < n // 2 or e_done):
                cnt += NE
        return cnt

    def wait_of(m, p, h, extra=0):
        q = p + LA
        n = 2 * q + h
        N, gr = int(m[:-1]), m[-1]
        if gr == "p":
            if h == 1:
                return None
            req = n - N + 1
        else:
            req = n - N
        if h == 0:
            req = max(req, 2 * p + 1)
        elif req <= 2 * p + 1:
            return None
        big = 8000
        return allowed(n + big, req + big, h == 1) + (extra if req <= 7 else 0)

    def decide(tag):
        T0 = S_T + 6
        o("    s_waitcnt lgkmcnt(0)")
        if not noev:
            o("    s_cmp_eq_u32 s%d, s%d" % (S_PROG, S_RP))
            o("    s_cbranch_scc1 L_rp_%s" % tag)
            o("L_rpr_%s:" % tag)
            o("    s_cmp_eq_u32 s%d, s%d" % (S_PROG, S_EV))
            o("    s_cbranch_scc1 L_ev_%s" % tag)
        o("L_evr_%s:" % tag)
        if trace:
            o("    s_mov_b32 m0, s%d" % S_PROG)
            o("    s_nop 0")
            o("    v_writelane_b32 v%d, s%d, m0" % (V_BV, S_NOW))
        o("    s_sub_u32 s%d, s%d, s%d" % (T0, S_NOW, S_TM))
        o("    s_lshl_b32 s%d, s%d, 6" % (T0, T0))
        o("    s_sub_u32 s%d, s%d, s%d" % (T0, T0, S_ACC))
        if trace == 2:
            o("    v_writelane_b32 v%d, s%d, m0" % (V_TR2, T0))
        o("    s_add_u32 s%d, s%d, s%d" % (S_ACC, S_ACC, S_INC))
        o("    s_add_u32 s%d, s%d, 1" % (S_PROG, S_PROG))
        if ki:
            assert not mm2 and not jx
            o("    s_mul_i32 s%d, s%d, s83" % (T0 + 1, T0))
            o("    s_ashr_i32 s%d, s%d, 8" % (T0 + 1, T0 + 1))
            o("    s_add_i32 s82, s82, s%d" % (T0 + 1))
            o("    s_min_i32 s82, s82, %d" % (64 * im))
            o("    s_max_i32 s82, s82, %d" % (-64 * im))
            o("    s_add_i32 s%d, s%d, s82" % (T0, T0))
        if force < 0 and tag == "post" and pdec != 1:
            if pdec == 0:
                o("    s_mov_b32 s%d, 0" % S_MODE)
        elif force < 0:
            if eg:
                o("    s_cmp_eq_u32 s%d, %d" % (S_PROG, 64 - eg))
                o("    s_cselect_b32 s%d, %d, 0" % (T0 + 1, egs))
                o("    s_ashr_i32 s%d, s%d, s%d" % (S_THI, S_THI, T0 + 1))
                if mm2:
                    o("    s_ashr_i32 s82, s82, s%d" % (T0 + 1))
            if mm2:
                o("    s_cmp_gt_i32 s%d, s82" % T0)
                o("    s_cselect_b32 s%d, 4, 0" % S_MODE)
                o("    s_cmp_gt_i32 s%d, s%d" % (T0, S_THI))
                o("    s_cselect_b32 s%d, 1, s%d" % (S_MODE, S_MODE))
            else:
                o("    s_cmp_gt_i32 s%d, s%d" % (T0, S_THI))
                o("    s_cselect_b32 s%d, 1, 0" % S_MODE)
            o("    s_cmp_lt_i32 s%d, s%d" % (T0, S_TLO))
            o("    s_cselect_b32 s%d, 2, s%d" % (S_MODE, S_MODE))
        if tail:
            o("    s_cmp_ge_u32 s%d, %d" % (S_PROG, 64 - tail))
            o("    s_cselect_b32 s%d, 1, s%d" % (S_MODE, S_MODE))
        if fin:
            o("    s_cmp_eq_u32 s%d, %d" % (S_PROG, 64 - fin))
            o("    s_cselect_b32 s%d, 3, s%d" % (S_MODE, S_MODE))
        if stamp:
            o("    s_and_b32 s%d, s%d, 1" % (T0, S_MODE))
            o("    s_add_u32 s%d, s%d, s%d" % (S_HI, S_HI, T0))
            o("    s_and_b32 s%d, s%d, 2" % (T0, S_MODE))
            o("    s_lshl_b32 s%d, s%d, 7" % (T0, T0))
            o("    s_add_u32 s%d, s%d, s%d" % (S_HI, S_HI, T0))
        events.append(tag)

    def decide_half(tag):
        T0 = S_T + 6
        o("    s_waitcnt lgkmcnt(0)")
        o("    s_sub_u32 s%d, s%d, s%d" % (T0, S_NOW, S_TM))
        o("    s_lshl_b32 s%d, s%d, 6" % (T0, T0))
        o("    s_sub_u32 s%d, s%d, s%d" % (T0, T0, S_ACC))
        o("    s_ashr_i32 s%d, s%d, 1" % (T0 + 1, S_INC))
        o("    s_add_u32 s%d, s%d, s%d" % (T0, T0, T0 + 1))
        if mm2:
            o("    s_cmp_gt_i32 s%d, s82" % T0)
            o("    s_cselect_b32 s%d, 4, 0" % S_MODE)
            o("    s_cmp_gt_i32 s%d, s%d" % (T0, S_THI))
            o("    s_cselect_b32 s%d, 1, s%d" % (S_MODE, S_MODE))
        else:
            o("    s_cmp_gt_i32 s%d, s%d" % (T0, S_THI))
            o("    s_cselect_b32 s%d, 1, 0" % S_MODE)
        o("    s_cmp_lt_i32 s%d, s%d" % (T0, S_TLO))
        o("    s_cselect_b32 s%d, 2, s%d" % (S_MODE, S_MODE))
        if stamp:
            o("    s_and_b32 s%d, s%d, 1" % (T0, S_MODE))
            o("    s_add_u32 s%d, s%d, s%d" % (S_HI, S_HI, T0))
            o("    s_and_b32 s%d, s%d, 2" % (T0, S_MODE))
            o("    s_lshl_b32 s%d, s%d, 7" % (T0, T0))
            o("    s_add_u32 s%d, s%d, s%d" % (S_HI, S_HI, T0))

    def emit_events():
        T0, T1 = S_T + 6, S_T + 7
        for tag in events:
            if noev:
                continue
            o("L_rp_%s:" % tag)
            o("    v_mov_b32 v%d, s%d" % (V_BV - 3, S_NOW))
            o("    v_mov_b32 v%d, 0x100" % (V_BV - 2))
            o("    s_mov_b64 exec, 1")
            if doat and akind == "atomic":
                o("    global_atomic_add_x2 v%d, v[%d:%d], s[%d:%d] %s" % (V_BO, V_BV - 3, V_BV - 2, abase, abase + 1, aflags))
            elif doat and akind == "store":
                o("    global_store_dwordx2 v%d, v[%d:%d], s[%d:%d] %s" % (V_BO, V_BV - 3, V_BV - 2, abase, abase + 1, aflags))
            elif doat and akind == "load":
                o("    global_load_dwordx2 v[%d:%d], v%d, s[%d:%d] %s" % (V_BV - 3, V_BV - 2, V_BO, abase, abase + 1, aflags))
            o("    s_mov_b64 exec, -1")
            o("    s_branch L_rpr_%s" % tag)
            o("L_ev_%s:" % tag)
            if nom:
                assert j0 + 1 < cal[1] + lag
                o("    s_cmp_eq_u32 s%d, %d" % (S_EV, j0))
                o("    s_cbranch_scc1 L_evl0_%s" % tag)
                o("    s_cmp_eq_u32 s%d, %d" % (S_EV, j0 + 1))
                o("    s_cbranch_scc1 L_evc0_%s" % tag)
            for k in range(1, len(cal)):
                o("    s_cmp_eq_u32 s%d, %d" % (S_EV, cal[k] + lag))
                o("    s_cbranch_scc1 L_evl%d_%s" % (k, tag))
                o("    s_cmp_eq_u32 s%d, %d" % (S_EV, cal[k] + lag + 1))
                o("    s_cbranch_scc1 L_evc%d_%s" % (k, tag))
            o("    s_branch L_evr_%s" % tag)
            if nom:
                jr = j0
                o("L_evl0_%s:" % tag)
                o("    s_load_dwordx2 s[%d:%d], s[16:17], %d" % (S_C1, S_C1 + 1, 0 if sl >= 0 else SLOT[0]))
                o("    s_mov_b32 s%d, %d" % (S_EV, jr + 1))
                o("    s_branch L_evr_%s" % tag)
                o("L_evc0_%s:" % tag)
                o("    s_mov_b32 s%d, %d" % (S_EV, cal[1] + lag))
                o("    s_lshr_b64 s[%d:%d], s[%d:%d], %d" % (S_C1, S_C1 + 1, S_C1, S_C1 + 1, nsh))
                o("    s_cmp_lg_u32 s%d, 256" % (S_C1 + 1))
                o("    s_cbranch_scc1 L_evr_%s" % tag)
                if stamp:
                    o("    s_add_u32 s%d, s%d, 0x10000" % (S_HI, S_HI))
                T1n = 16 * nom
                if sl >= 0:
                    o("    s_sub_u32 s%d, s%d, s%d" % (T0, S_TM, S_C1))
                    o("    s_mul_i32 s%d, s%d, %d" % (T0, T0, sl))
                    o("    s_sub_u32 s%d, s%d, s%d" % (S_INC, S_INC, T0))
                else:
                    o("    s_mov_b32 s%d, s%d" % (S_TM, S_C1))
                    o("    s_mov_b32 s%d, %d" % (S_INC, 4 * T1n))
                    o("    s_mov_b32 s%d, %d" % (S_ACC, T1n * (4 * (jr + 1) - (4 * cal[0] + 2 * st2) + delta)))
                    if dl8 or dh8:
                        o("    s_mov_b32 s%d, %d" % (S_THI, (T1n * (dh8 or 8 * dhi)) >> 3))
                        o("    s_mov_b32 s%d, %d" % (S_TLO, (-T1n * dl8) >> 3))
                    else:
                        o("    s_mov_b32 s%d, %d" % (S_THI, (T1n * dhi) >> tsh))
                        o("    s_mov_b32 s%d, %d" % (S_TLO, (-T1n * dlo) >> tsh))
                    if mm2:
                        o("    s_mov_b32 s82, %d" % ((T1n * dhi) >> (tsh + m2s)))
                o("    s_branch L_evr_%s" % tag)
            for k in range(1, len(cal)):
                jr = cal[k] + lag
                span = 16 if (k == 1 and n1) else cal[k] - cal[k - 1]
                assert span in (8, 16)
                o("L_evl%d_%s:" % (k, tag))
                if k == 1 and dold and not n1:
                    o("    s_load_dwordx2 s[%d:%d], s[16:17], %d" % (S_C1, S_C1 + 1, SLOT[0]))
                if dold:
                    o("    s_load_dwordx2 s[%d:%d], s[16:17], %d" % (S_C2, S_C2 + 1, SLOT[k]))
                o("    s_mov_b32 s%d, %d" % (S_EV, jr + 1))
                o("    s_branch L_evr_%s" % tag)
                o("L_evc%d_%s:" % (k, tag))
                o("    s_mov_b32 s%d, %s" % (S_EV, "0x7fffffff" if k == len(cal) - 1 else str(cal[k + 1] + lag)))
                if k == 1 and not n1:
                    o("    s_lshr_b64 s[%d:%d], s[%d:%d], %d" % (S_C1, S_C1 + 1, S_C1, S_C1 + 1, nsh))
                o("    s_lshr_b64 s[%d:%d], s[%d:%d], %d" % (S_C2, S_C2 + 1, S_C2, S_C2 + 1, nsh))
                if k == 1 and n1:
                    o("    s_mov_b32 s%d, s%d" % (T0, S_C2 + 1))
                    o("    s_mov_b32 s%d, %d" % (T1, 16 * n1))
                else:
                    o("    s_and_b32 s%d, s%d, s%d" % (T0, S_C1 + 1, S_C2 + 1))
                    o("    s_sub_u32 s%d, s%d, s%d" % (T1, S_C2, S_C1))
                o("    s_mov_b32 s%d, s%d" % (S_C1, S_C2))
                o("    s_mov_b32 s%d, s%d" % (S_C1 + 1, S_C2 + 1))
                o("    s_cmp_lg_u32 s%d, 256" % T0)
                o("    s_cbranch_scc1 L_evr_%s" % tag)
                if stamp:
                    o("    s_add_u32 s%d, s%d, 0x10000" % (S_HI, S_HI))
                if span == 8:
                    o("    s_lshl_b32 s%d, s%d, 1" % (T1, T1))
                o("    s_mov_b32 s%d, s%d" % (S_TM, S_C1))
                if ki and k == kis:
                    o("    s_mov_b32 s83, %d" % ki)
                o("    s_lshl_b32 s%d, s%d, 2" % (S_INC, T1))
                o("    s_mul_i32 s%d, s%d, %d" % (S_ACC, T1, 4 * (jr + 1) - (4 * cal[k] + 2 * st2) + delta))
                if dl8 or dh8:
                    o("    s_mul_i32 s%d, s%d, %d" % (S_THI, T1, dh8 or 8 * dhi))
                    o("    s_mul_i32 s%d, s%d, %d" % (S_TLO, T1, -dl8))
                    o("    s_ashr_i32 s%d, s%d, 3" % (S_THI, S_THI))
                    o("    s_ashr_i32 s%d, s%d, 3" % (S_TLO, S_TLO))
                else:
                    o("    s_mul_i32 s%d, s%d, %d" % (S_THI, T1, dhi))
                    o("    s_mul_i32 s%d, s%d, %d" % (S_TLO, T1, -dlo))
                if tsh:
                    o("    s_ashr_i32 s%d, s%d, %d" % (S_THI, S_THI, tsh))
                    o("    s_ashr_i32 s%d, s%d, %d" % (S_TLO, S_TLO, tsh))
                if mm2:
                    o("    s_ashr_i32 s82, s%d, %d" % (S_THI, m2s))
                epk = int(str(epsl).split(",")[k - 1]) if epsl != "" else eps
                if epk:
                    o("    s_mul_i32 s%d, s%d, %d" % (T0, T1, epk))
                    o("    s_ashr_i32 s%d, s%d, 6" % (T0, T0))
                    o("    s_sub_u32 s%d, s%d, s%d" % (S_INC, S_INC, T0))
                o("    s_branch L_evr_%s" % tag)

    def round_mfma(s, zero=False):
        if esplit:
            r = V_ER + (s % ER) * 4
            for t in range(2):
                o("    v_perm_b32 v%d, v%d, v%d, s%d" % (V_EA + 2 * t, r + 2 + t, r + t, S_SELLO))
                o("    v_perm_b32 v%d, v%d, v%d, s%d" % (V_EA + 2 * t + 1, r + 2 + t, r + t, S_SELHI))
            e = "v[%d:%d]" % (V_EA, V_EA + 3)
        else:
            e = "a[%d:%d]" % (A_E + (s % ER) * 4, A_E + (s % ER) * 4 + 3)
        o("    s_nop 1")
        for dd in range(8):
            acc = ACC + dd * 4
            o("    v_mfma_f32_16x16x32_bf16 v[%d:%d], %s, v[%d:%d], %s" %
              (acc, acc + 3, e, T + dd * 4, T + dd * 4 + 3, "0" if zero else "v[%d:%d]" % (acc, acc + 3)))

    def xlane(op, reg, tmp):
        for sw in ("v_permlane32_swap_b32", "v_permlane16_swap_b32"):
            o("    v_mov_b32 v%d, v%d" % (tmp, reg))
            o("    s_nop 1")
            o("    %s v%d, v%d" % (sw, reg, tmp))
            o("    s_nop 1")
            o("    %s v%d, v%d, v%d" % (op, reg, reg, tmp))

    def k_read(dst, w):
        for dd in range(8):
            o("    ds_read_b128 v[%d:%d], v%d offset:%d" %
              (dst + 4 * dd, dst + 4 * dd + 3, V_X, LDS_KP + w * WS + dd * DS))

    def k_add(SUM, TMP):
        for j in range(32):
            o("    v_add_f32 v%d, v%d, v%d" % (SUM + j, SUM + j, TMP + j))

    def k_transpose(SUM, TMP):
        PA = MISC
        for dd in range(8):
            o("    v_cvt_pk_bf16_f32 v%d, v%d, v%d" % (PA + 2 * dd, SUM + 4 * dd, SUM + 4 * dd + 1))
            o("    v_cvt_pk_bf16_f32 v%d, v%d, v%d" % (PA + 2 * dd + 1, SUM + 4 * dd + 2, SUM + 4 * dd + 3))
        ID = MISC + 16
        o("    v_and_b32 v%d, 15, v%d" % (V_X, V_LANE))
        o("    v_lshrrev_b32 v%d, 4, v%d" % (V_Y, V_LANE))
        o("    v_lshlrev_b32 v%d, 2, v%d" % (V_Y, V_Y))
        o("    v_sub_u32 v%d, v%d, v%d" % (V_X, V_X, V_Y))
        o("    v_mov_b32 v%d, 0" % ID)
        o("    v_mov_b32 v%d, 0" % (ID + 1))
        o("    v_mov_b32 v%d, 0x3f80" % (ID + 2))
        o("    v_mov_b32 v%d, 0x3f800000" % (ID + 3))
        for j, (dst, src) in enumerate(((ID, ID + 2), (ID, ID + 3), (ID + 1, ID + 2), (ID + 1, ID + 3))):
            o("    v_cmp_eq_u32 vcc, %d, v%d" % (j, V_X))
            o("    s_nop 1")
            o("    v_cndmask_b32 v%d, v%d, v%d, vcc" % (dst, dst, src))
        o("    s_nop 1")
        for dd in range(8):
            o("    v_mfma_f32_16x16x16_bf16 v[%d:%d], v[%d:%d], v[%d:%d], 0" %
              (TMP + 4 * dd, TMP + 4 * dd + 3, PA + 2 * dd, PA + 2 * dd + 1, ID, ID + 1))

    def k_scores(SUM, TMP):
        PB = SUM
        o("    s_nop 7")
        for s_ in range(4):
            for j in range(4):
                o("    v_cvt_pk_bf16_f32 v%d, v%d, v%d" %
                  (PB + 4 * s_ + j, TMP + (2 * j) * 4 + s_, TMP + (2 * j + 1) * 4 + s_))
        SC = SUM + 16
        o("    s_nop 1")
        for s_ in range(4):
            c = "0" if s_ == 0 else "v[%d:%d]" % (SC, SC + 3)
            o("    v_mfma_f32_16x16x32_bf16 v[%d:%d], v[%d:%d], a[%d:%d], %s" %
              (SC, SC + 3, PB + 4 * s_, PB + 4 * s_ + 3, A_Q + 4 * s_, A_Q + 4 * s_ + 3, c))

    def k_softmax(SUM):
        SC, W, M = SUM + 16, SUM + 20, SUM + 22
        o("    s_mov_b32 s%d, 0x3db504f3" % (S_T + 2))
        o("    s_mov_b32 s%d, 0x3fb8aa3b" % (S_T + 3))
        o("    s_nop 7")

        def rb():
            o("    v_cvt_pk_bf16_f32 v%d, v%d, v%d" % (W, SC, SC + 1))
            o("    v_cvt_pk_bf16_f32 v%d, v%d, v%d" % (W + 1, SC + 2, SC + 3))
            o("    v_lshlrev_b32 v%d, 16, v%d" % (SC, W))
            o("    v_and_b32 v%d, 0xffff0000, v%d" % (SC + 1, W))
            o("    v_lshlrev_b32 v%d, 16, v%d" % (SC + 2, W + 1))
            o("    v_and_b32 v%d, 0xffff0000, v%d" % (SC + 3, W + 1))

        rb()
        for i in range(4):
            o("    v_mul_f32 v%d, s%d, v%d" % (SC + i, S_T + 2, SC + i))
        rb()
        o("    v_max_f32 v%d, v%d, v%d" % (M, SC, SC + 1))
        o("    v_max3_f32 v%d, v%d, v%d, v%d" % (M, SC + 2, SC + 3, M))
        xlane("v_max_f32", M, M + 1)
        for i in range(4):
            o("    v_sub_f32 v%d, v%d, v%d" % (SC + i, SC + i, M))
        for i in range(4):
            o("    v_mul_f32 v%d, s%d, v%d" % (SC + i, S_T + 3, SC + i))
        for i in range(4):
            o("    v_exp_f32 v%d, v%d" % (SC + i, SC + i))
        o("    s_nop 0")
        o("    v_add_f32 v%d, v%d, v%d" % (M, SC, SC + 1))
        o("    v_add_f32 v%d, v%d, v%d" % (M + 1, SC + 2, SC + 3))
        o("    v_add_f32 v%d, v%d, v%d" % (M, M, M + 1))
        xlane("v_add_f32", M, M + 1)
        o("    v_rcp_f32 v%d, v%d" % (M, M))
        o("    s_nop 0")
        for i in range(4):
            o("    v_mul_f32 v%d, v%d, v%d" % (SC + i, SC + i, M))
        o("    v_cvt_pk_bf16_f32 v%d, v%d, v%d" % (W, SC, SC + 1))
        o("    v_cvt_pk_bf16_f32 v%d, v%d, v%d" % (W + 1, SC + 2, SC + 3))
        o("    v_lshlrev_b32 v%d, 3, v%d" % (V_X, V_LANE))
        o("    ds_write_b64 v%d, v[%d:%d] offset:%d" % (V_X, W, W + 1, LDS_P))

    def v_read(X):
        o("    v_lshlrev_b32 v%d, 3, v%d" % (V_X, V_LANE))
        o("    ds_read_b64 v[%d:%d], v%d offset:%d" % (MISC, MISC + 1, V_X, LDS_P))
        for w in range(4):
            for h in range(2):
                r = X + (w * 2 + h) * 4
                o("    ds_read_b128 v[%d:%d], v%d offset:%d" % (r, r + 3, V_VR, w * WS + h * 4 * DS))

    def v_prod(X):
        for j in range(8):
            o("    v_add_f32 v%d, v%d, v%d" % (X + j, X + j, X + 8 + j))
        for j in range(8):
            o("    v_add_f32 v%d, v%d, v%d" % (X + 16 + j, X + 16 + j, X + 24 + j))
        for j in range(8):
            o("    v_add_f32 v%d, v%d, v%d" % (X + j, X + j, X + 16 + j))
        VB = MISC + 4
        for h in range(2):
            o("    v_cvt_pk_bf16_f32 v%d, v%d, v%d" % (VB + 2 * h, X + 4 * h, X + 4 * h + 1))
            o("    v_cvt_pk_bf16_f32 v%d, v%d, v%d" % (VB + 2 * h + 1, X + 4 * h + 2, X + 4 * h + 3))
        o("    s_nop 1")
        for h in range(2):
            o("    v_mfma_f32_16x16x16_bf16 v[%d:%d], v[%d:%d], v[%d:%d], 0" %
              (X + 16 + 4 * h, X + 16 + 4 * h + 3, VB + 2 * h, VB + 2 * h + 1, MISC, MISC + 1))

    def ramp_stamp(tag):
        o("    s_cmp_ge_u32 s90, %d" % (63 + rp))
        o("    s_cbranch_scc1 L_rs_%s" % tag)
        o("    s_memrealtime s[92:93]")
        o("    s_sub_u32 s91, s90, %d" % (rp - 1))
        o("    s_cmp_lt_i32 s91, 0")
        o("    s_cselect_b32 s91, 0, s91")
        o("    s_mov_b32 m0, s91")
        o("    s_waitcnt lgkmcnt(0)")
        o("    v_writelane_b32 v%d, s92, m0" % V_TR2)
        o("L_rs_%s:" % tag)
        o("    s_add_u32 s90, s90, 1")

    def ih_piece(kind, p):
        k = p - ihp
        if kind == "K" and 0 <= k < 6:
            o("    s_cmp_lg_u32 s%d, s%d" % (S_WAVE, S_PMI))
            o("    s_cbranch_scc1 L_ihs%d" % p)
            if k == 0:
                o("    v_lshlrev_b32 v%d, 4, v%d" % (V_X, V_LANE))
                k_read(V_S2, 0)
                k_read(V_T2, 1)
            elif k in (1, 2):
                o("    s_waitcnt lgkmcnt(0)")
                k_add(V_S2, V_T2)
                k_read(V_T2, k + 1)
            elif k == 3:
                o("    s_waitcnt lgkmcnt(0)")
                k_add(V_S2, V_T2)
                k_transpose(V_S2, V_T2)
            elif k == 4:
                k_scores(V_S2, V_T2)
            else:
                k_softmax(V_S2)
            o("L_ihs%d:" % p)
        if kind == "V":
            if k == 0:
                v_read(V_T2)
            elif k == 1:
                o("    s_waitcnt lgkmcnt(0)")
                v_prod(V_T2)
            elif k == 2:
                o("    s_nop 7")
                for i in range(4):
                    o("    v_cvt_pk_bf16_f32 v%d, v%d, v%d" % (V_DEF + i, V_T2 + 16 + 2 * i, V_T2 + 16 + 2 * i + 1))

    S_PMI = 63

    def body(mode, m, post=False, extra=0, kind=""):
        o("L_body_%s:" % mode)
        for p in range(8):
            s, a = divmod(p, 4)
            q = p + LA
            if half and p == 4 and not post:
                for code, other in ((0, "mid"), (1, "hi"), (2, "lo"), (4, "mi2")):
                    if other != mode and other != "mid" and (other != "mi2" or mm2):
                        o("    s_cmp_eq_u32 s%d, %d" % (S_MODE, code))
                        o("    s_cbranch_scc1 L_bodyB_%s" % other)
                if mode != "mid":
                    o("    s_cmp_eq_u32 s%d, 0" % S_MODE)
                    o("    s_cbranch_scc1 L_bodyB_mid")
                o("L_bodyB_%s:" % mode)
            if p == 0 and not post:
                step_inc()
                eoff()
            if p == 4:
                step_inc()
                if not post and not kind:
                    o("    s_cmp_eq_u32 s%d, 1" % S_CNT)
                    o("    s_cbranch_scc1 L_sw_%s" % mode)
                    o("L_swr_%s:" % mode)
                    stubs.append(mode)
                eoff()
            if kind and p == ihp:
                o("    s_waitcnt lgkmcnt(0)")
                if p not in wsyl:
                    o("    s_barrier")
            if p in wsyl and not post and not (wba and not (kind and p == ihp)):
                if wskip:
                    o("    s_cmp_ge_u32 s%d, %d" % (S_CNT, 16 - wskip))
                    o("    s_cbranch_scc1 L_nb%d_%s" % (p, mode))
                    o("    s_barrier")
                    o("L_nb%d_%s:" % (p, mode))
                else:
                    o("    s_barrier")
            if ctl and p == pc and pre:
                decide(mode)
                if ps == pc and not notime:
                    o("    s_memrealtime s[%d:%d]" % (S_NOW, S_NOW + 1))
            if post and p < 4:
                younger = 15 - (2 * p + 1) + NE
                o("    s_waitcnt vmcnt(%d)" % younger)
                if rp:
                    ramp_stamp("%s_%d" % (mode, p))
                if pst and not pro8 and p in (0, 3):
                    o("    s_cmp_eq_u32 s%d, 0" % S_MI)
                    o("    s_cbranch_scc0 L_nopst%d" % p)
                    pstp(4 if p == 0 else 5)
                    o("L_nopst%d:" % p)
            else:
                for h in range(2):
                    w = wait_of(m, p, h, extra)
                    if w is not None:
                        o("    s_waitcnt vmcnt(%d)" % w)
                    if wba and h == 0 and p in wsyl and not post and not (kind and p == ihp):
                        o("    s_barrier")
                    if rp and h == 0:
                        ramp_stamp("%s_%d" % (mode, p))
                    if h == 0 and q % 4 == 0 and not md:
                        issue_one(2 * q)
                        issue_E(q // 4)
                    else:
                        issue_one(2 * q + h)
                if pst and pro8 and p in (0, 3):
                    o("    s_cmp_eq_u32 s%d, 0" % S_PROG)
                    o("    s_cbranch_scc0 L_nopst%d_%s" % (p, mode))
                    pstp(4 if p == 0 else 5)
                    o("L_nopst%d_%s:" % (p, mode))
            if half:
                if p == 4 or (p == 0 and not post):
                    o("    s_memrealtime s[%d:%d]" % (S_NOW, S_NOW + 1))
                if p == hca and not post:
                    decide_half(mode)
                if p == hcb:
                    decide(mode)
            else:
                if ctl and p == ps and ps != pc and not notime:
                    o("    s_memrealtime s[%d:%d]" % (S_NOW, S_NOW + 1))
                if ctl and p == pc and not pre:
                    decide(mode)
                    if ps == pc and not notime:
                        o("    s_memrealtime s[%d:%d]" % (S_NOW, S_NOW + 1))
            if md and a == 0:
                if p == 4:
                    round_mfma(0, zero=bool(kind))
                elif not post and not kind:
                    round_mfma(1)
                if not (post and p < 4):
                    issue_E(q // 4)
            if kind:
                ih_piece(kind, p)
            slot = p % (4 * RS)
            xb = RING + slot * 8
            yb = xb + 4
            if jf & 1:
                xb, yb = yb, xb
            for c in range(4):
                o("    v_perm_b32 v%d, v%d, v%d, s%d" % (T + (2 * c) * 4 + (a ^ (jf >> 1)), yb + c, xb + c, S_SELLO))
                o("    v_perm_b32 v%d, v%d, v%d, s%d" % (T + (2 * c + 1) * 4 + (a ^ (jf >> 1)), yb + c, xb + c, S_SELHI))
            if a == 3 and not md:
                round_mfma(s, zero=bool(kind) and s == 0)
        o("    s_sub_u32 s%d, s%d, 1" % (S_CNT, S_CNT))
        if not post and not kind:
            o("    s_cmp_eq_u32 s%d, 0" % S_CNT)
            o("    s_cbranch_scc1 L_matend")

    def body_fin():
        o("L_body_fin:")
        tstp(0)
        if ft:
            o("    v_lshlrev_b32 v%d, 3, v%d" % (V_X, V_LANE))
            o("    ds_read_b64 v[%d:%d], v%d offset:%d" % (MISC, MISC + 1, V_X, LDS_P))
            o("    v_add_u32 v%d, %d, v%d" % (V_Y, 4 * WS, V_PW))
        if es:
            o("    buffer_store_dwordx4 v[%d:%d], v%d, s[%d:%d], 0 offen %s" %
              (V_DEF, V_DEF + 3, V_OUT, SRD_O, SRD_O + 3, oflags))
        step_inc()
        eoff()
        issue_one(8)
        if not md:
            issue_E(1)
        for n in range(9, 16):
            issue_one(n)
        if md:
            round_mfma(1)
            issue_E(1)
        for p in range(8):
            s, a = divmod(p, 4)
            younger = 15 - (2 * p + 1) + (NE if p < 4 else 0)
            o("    s_waitcnt vmcnt(%d)" % younger)
            if p == 0:
                tstp(1)
            if p == 7:
                tstp(2)
            xb = RING + p * 8
            yb = xb + 4
            if jf & 1:
                xb, yb = yb, xb
            for c in range(4):
                o("    v_perm_b32 v%d, v%d, v%d, s%d" % (T + (2 * c) * 4 + (a ^ (jf >> 1)), yb + c, xb + c, S_SELLO))
                o("    v_perm_b32 v%d, v%d, v%d, s%d" % (T + (2 * c + 1) * 4 + (a ^ (jf >> 1)), yb + c, xb + c, S_SELHI))
            if a == 3:
                round_mfma(s)
        if not ft:
            o("    s_branch L_matend")
            return
        assert ih
        o("; last matrix: reduction, product and stores")
        o("    s_nop 0")
        for dd in range(8):
            o("    ds_write_b128 v%d, v[%d:%d] offset:%d" % (V_Y, ACC + 4 * dd, ACC + 4 * dd + 3, dd * DS))
        o("    s_mov_b32 s%d, 0x%x" % (S_T + 2, 1 << QSH))
        o("    s_waitcnt lgkmcnt(0)")
        tstp(3)
        o("    s_barrier")
        if tst:
            o("    s_memrealtime s[%d:%d]" % (PST[4], PST[4] + 1))
            o("    s_waitcnt lgkmcnt(0)")
        X = T
        for w in range(4):
            for h in range(2):
                r = X + (w * 2 + h) * 4
                o("    ds_read_b128 v[%d:%d], v%d offset:%d" % (r, r + 3, V_VR, w * WS + h * 4 * DS))
        o("    s_waitcnt lgkmcnt(4)")
        for j in range(8):
            o("    v_add_f32 v%d, v%d, v%d" % (X + j, X + j, X + 8 + j))
        o("    s_waitcnt lgkmcnt(2)")
        for j in range(8):
            o("    v_add_f32 v%d, v%d, v%d" % (X + j, X + j, X + 16 + j))
        o("    s_waitcnt lgkmcnt(0)")
        for j in range(8):
            o("    v_add_f32 v%d, v%d, v%d" % (X + j, X + j, X + 24 + j))
        VB = MISC + 4
        for h in range(2):
            o("    v_cvt_pk_bf16_f32 v%d, v%d, v%d" % (VB + 2 * h, X + 4 * h, X + 4 * h + 1))
            o("    v_cvt_pk_bf16_f32 v%d, v%d, v%d" % (VB + 2 * h + 1, X + 4 * h + 2, X + 4 * h + 3))
        o("    s_nop 1")
        for h in range(2):
            o("    v_mfma_f32_16x16x16_bf16 v[%d:%d], v[%d:%d], v[%d:%d], 0" %
              (X + 16 + 4 * h, X + 16 + 4 * h + 3, VB + 2 * h, VB + 2 * h + 1, MISC, MISC + 1))
        if not es:
            o("    buffer_store_dwordx4 v[%d:%d], v%d, s[%d:%d], 0 offen %s" %
              (V_DEF, V_DEF + 3, V_OUT, SRD_O, SRD_O + 3, oflags))
        o("    s_nop 6")
        for i in range(4):
            o("    v_cvt_pk_bf16_f32 v%d, v%d, v%d" % (MISC + 8 + i, X + 16 + 2 * i, X + 16 + 2 * i + 1))
        o("    buffer_store_dwordx4 v[%d:%d], v%d, s[%d:%d], s%d offen %s" %
          (MISC + 8, MISC + 11, V_OUT, SRD_O, SRD_O + 3, S_T + 2, oflags))
        tstp(5)
        o("    s_branch L_fin")

    pstp(3)
    if pro8 and bp:
        o("    s_mov_b32 s%d, 16" % S_CNT)
        if m0:
            o("    s_mov_b32 s%d, %d" % (S_MODE, m0))
        if mfirst:
            assert qm in (0, 1)
            if qm == 1:
                o("    s_bitcmp1_b32 s%d, 0" % S_WAVE)
                o("    s_cbranch_scc1 L_dispatch")
            o("    s_branch L_body_first")
        else:
            o("    s_branch L_dispatch")
    o("L_outer:")
    o("    s_mov_b32 s%d, 16" % S_CNT)
    if bp:
        o("; first iteration of a matrix: both rounds were issued ahead of the previous handler")
        body("post", mpost or mmid, post=True)
    o("; body selection by window mode: 0 mid, 1 hi, 2 lo, 3 last iteration")
    o("L_dispatch:")
    modes = [("mid", mmid)]
    if (ctl and force < 0) or force == 1 or tail:
        modes.append(("hi", mhi))
        o("    s_cmp_eq_u32 s%d, 1" % S_MODE)
        o("    s_cbranch_scc1 L_body_hi")
    if (ctl and force < 0) or force == 2:
        modes.append(("lo", mlo))
        o("    s_cmp_eq_u32 s%d, 2" % S_MODE)
        o("    s_cbranch_scc1 L_body_lo")
    if mm2:
        modes.append(("mi2", mm2))
        o("    s_cmp_eq_u32 s%d, 4" % S_MODE)
        o("    s_cbranch_scc1 L_body_mi2")
    if fin:
        assert ctl
        o("    s_cmp_eq_u32 s%d, 3" % S_MODE)
        o("    s_cbranch_scc1 L_body_fin")
    for mode, m in modes:
        body(mode, m)
        o("    s_branch L_dispatch")
    if mfirst:
        body("first", mfirst, extra=4)
        o("    s_branch L_dispatch")
    if fin:
        body_fin()
    o("L_matend:")
    if ih:
        assert bp and defer and fin and ihp <= 2 and not half and not esplit and hf < 0
        if not ft:
            o("    s_cmp_eq_u32 s%d, 3" % S_MI)
            o("    s_cbranch_scc1 L_final")
        if md:
            assert ft and ih and not half and not pro8 and not esplit
            round_mfma(1)
        o("    s_and_b32 s%d, s%d, 1" % (S_T, S_MI))
        o("    s_mul_i32 s%d, s%d, %d" % (S_T + 1, S_T, 4 * WS))
        o("    v_add_u32 v%d, s%d, v%d" % (V_X, S_T + 1, V_PW))
        o("    s_mov_b32 s%d, s%d" % (S_PMI, S_MI))
        o("    s_add_u32 s%d, s%d, 1" % (S_MI, S_MI))
        o("    s_mov_b32 s%d, 16" % S_CNT)
        o("    s_nop 7")
        for dd in range(8):
            o("    ds_write_b128 v%d, v[%d:%d] offset:%d" % (V_X, ACC + 4 * dd, ACC + 4 * dd + 3, dd * DS))
        o("    s_cmp_eq_u32 s%d, 1" % S_T)
        o("    s_cbranch_scc1 L_body_ihV")
        body("ihK", mih or mmid, kind="K")
        o("    s_branch L_dispatch")
        body("ihV", mih or mmid, kind="V")
        o("    s_branch L_dispatch")
        markf = len(L)
        o("; last matrix: reduction, product and both stores")
        o("L_final:")
        o("    v_add_u32 v%d, %d, v%d" % (V_X, 4 * WS, V_PW))
        o("    s_nop 7")
        o("    s_waitcnt lgkmcnt(0)")
        for dd in range(8):
            o("    ds_write_b128 v%d, v[%d:%d] offset:%d" % (V_X, ACC + 4 * dd, ACC + 4 * dd + 3, dd * DS))
        o("    s_waitcnt lgkmcnt(0)")
        tstp(3)
        o("    s_barrier")
        if tst:
            o("    s_memrealtime s[%d:%d]" % (PST[4], PST[4] + 1))
        v_read(T)
        o("    s_waitcnt lgkmcnt(0)")
        v_prod(T)
        o("    s_nop 7")
        for i in range(4):
            o("    v_cvt_pk_bf16_f32 v%d, v%d, v%d" % (MISC + 8 + i, T + 16 + 2 * i, T + 16 + 2 * i + 1))
        if not es:
            o("    buffer_store_dwordx4 v[%d:%d], v%d, s[%d:%d], 0 offen %s" %
              (V_DEF, V_DEF + 3, V_OUT, SRD_O, SRD_O + 3, oflags))
        o("    s_mov_b32 s%d, 0x%x" % (S_T + 2, 1 << QSH))
        o("    buffer_store_dwordx4 v[%d:%d], v%d, s[%d:%d], s%d offen %s" %
          (MISC + 8, MISC + 11, V_OUT, SRD_O, SRD_O + 3, S_T + 2, oflags))
        tstp(5)
        o("    s_branch L_fin")
        if ft:
            del L[markf:]
    if bp and not ih:
        o("    s_cmp_eq_u32 s%d, 3" % S_MI)
        o("    s_cbranch_scc1 L_nopf")
        step_inc()
        eoff()
        issue_one(8)
        issue_E(1)
        for n in range(9, 16):
            issue_one(n)
        o("L_nopf:")
    mark = len(L)
    o("    s_and_b32 s%d, s%d, 1" % (S_T, S_MI))
    o("    s_mul_i32 s%d, s%d, %d" % (S_T + 1, S_T, 4 * WS))
    o("    v_add_u32 v%d, s%d, v%d" % (V_X, S_T + 1, V_PW))
    o("    s_nop 7")
    if ctl:
        o("    s_waitcnt lgkmcnt(0)")
    for dd in range(8):
        o("    ds_write_b128 v%d, v[%d:%d] offset:%d" % (V_X, ACC + 4 * dd, ACC + 4 * dd + 3, dd * DS))
    o("    s_waitcnt lgkmcnt(0)")
    o("    s_barrier")
    o("    s_cmp_eq_u32 s%d, 1" % S_T)
    o("    s_cbranch_scc1 L_vend")
    o("    s_cmp_lg_u32 s%d, s%d" % (S_WAVE, S_MI))
    o("    s_cbranch_scc1 L_mat_done")
    SUM, TMP, PA = ACC, T, MISC
    o("    v_lshlrev_b32 v%d, 4, v%d" % (V_X, V_LANE))
    for w in range(4):
        dst = SUM if w == 0 else TMP
        for dd in range(8):
            o("    ds_read_b128 v[%d:%d], v%d offset:%d" %
              (dst + 4 * dd, dst + 4 * dd + 3, V_X, LDS_KP + w * WS + dd * DS))
        if w > 0:
            for dd in range(8):
                o("    s_waitcnt lgkmcnt(%d)" % (7 - dd))
                for i in range(4):
                    o("    v_add_f32 v%d, v%d, v%d" % (SUM + 4 * dd + i, SUM + 4 * dd + i, TMP + 4 * dd + i))
    for dd in range(8):
        o("    v_cvt_pk_bf16_f32 v%d, v%d, v%d" % (PA + 2 * dd, SUM + 4 * dd, SUM + 4 * dd + 1))
        o("    v_cvt_pk_bf16_f32 v%d, v%d, v%d" % (PA + 2 * dd + 1, SUM + 4 * dd + 2, SUM + 4 * dd + 3))
    ID = MISC + 16
    o("    v_and_b32 v%d, 15, v%d" % (V_X, V_LANE))
    o("    v_lshrrev_b32 v%d, 4, v%d" % (V_Y, V_LANE))
    o("    v_lshlrev_b32 v%d, 2, v%d" % (V_Y, V_Y))
    o("    v_sub_u32 v%d, v%d, v%d" % (V_X, V_X, V_Y))
    o("    v_mov_b32 v%d, 0" % ID)
    o("    v_mov_b32 v%d, 0" % (ID + 1))
    o("    v_mov_b32 v%d, 0x3f80" % (ID + 2))
    o("    v_mov_b32 v%d, 0x3f800000" % (ID + 3))
    for j, (dst, src) in enumerate(((ID, ID + 2), (ID, ID + 3), (ID + 1, ID + 2), (ID + 1, ID + 3))):
        o("    v_cmp_eq_u32 vcc, %d, v%d" % (j, V_X))
        o("    s_nop 1")
        o("    v_cndmask_b32 v%d, v%d, v%d, vcc" % (dst, dst, src))
    o("    s_nop 1")
    for dd in range(8):
        o("    v_mfma_f32_16x16x16_bf16 v[%d:%d], v[%d:%d], v[%d:%d], 0" %
          (TMP + 4 * dd, TMP + 4 * dd + 3, PA + 2 * dd, PA + 2 * dd + 1, ID, ID + 1))
    o("    s_nop 7")
    PB = SUM
    for s in range(4):
        for j in range(4):
            o("    v_cvt_pk_bf16_f32 v%d, v%d, v%d" %
              (PB + 4 * s + j, TMP + (2 * j) * 4 + s, TMP + (2 * j + 1) * 4 + s))
    SC = SUM + 16
    if qwait:
        o("    s_waitcnt vmcnt(0)")
    if qm == 2:
        assert bp and not noE
        o("    s_waitcnt vmcnt(%d)" % (16 + 2 * NE))
    for s in range(4):
        c = "0" if s == 0 else "v[%d:%d]" % (SC, SC + 3)
        o("    v_mfma_f32_16x16x32_bf16 v[%d:%d], v[%d:%d], a[%d:%d], %s" %
          (SC, SC + 3, PB + 4 * s, PB + 4 * s + 3, A_Q + 4 * s, A_Q + 4 * s + 3, c))
    o("    s_mov_b32 s%d, 0x3db504f3" % (S_T + 2))
    o("    s_mov_b32 s%d, 0x3fb8aa3b" % (S_T + 3))
    o("    s_nop 7")
    W = SUM + 20
    M = SUM + 22

    def round_bf16():
        o("    v_cvt_pk_bf16_f32 v%d, v%d, v%d" % (W, SC, SC + 1))
        o("    v_cvt_pk_bf16_f32 v%d, v%d, v%d" % (W + 1, SC + 2, SC + 3))
        o("    v_lshlrev_b32 v%d, 16, v%d" % (SC, W))
        o("    v_and_b32 v%d, 0xffff0000, v%d" % (SC + 1, W))
        o("    v_lshlrev_b32 v%d, 16, v%d" % (SC + 2, W + 1))
        o("    v_and_b32 v%d, 0xffff0000, v%d" % (SC + 3, W + 1))

    round_bf16()
    for i in range(4):
        o("    v_mul_f32 v%d, s%d, v%d" % (SC + i, S_T + 2, SC + i))
    round_bf16()
    o("    v_max_f32 v%d, v%d, v%d" % (M, SC, SC + 1))
    o("    v_max3_f32 v%d, v%d, v%d, v%d" % (M, SC + 2, SC + 3, M))

    def xlane(op, reg, tmp):
        for sw in ("v_permlane32_swap_b32", "v_permlane16_swap_b32"):
            o("    v_mov_b32 v%d, v%d" % (tmp, reg))
            o("    s_nop 1")
            o("    %s v%d, v%d" % (sw, reg, tmp))
            o("    s_nop 1")
            o("    %s v%d, v%d, v%d" % (op, reg, reg, tmp))

    xlane("v_max_f32", M, M + 1)
    for i in range(4):
        o("    v_sub_f32 v%d, v%d, v%d" % (SC + i, SC + i, M))
    for i in range(4):
        o("    v_mul_f32 v%d, s%d, v%d" % (SC + i, S_T + 3, SC + i))
    for i in range(4):
        o("    v_exp_f32 v%d, v%d" % (SC + i, SC + i))
    o("    s_nop 0")
    o("    v_add_f32 v%d, v%d, v%d" % (M, SC, SC + 1))
    o("    v_add_f32 v%d, v%d, v%d" % (M + 1, SC + 2, SC + 3))
    o("    v_add_f32 v%d, v%d, v%d" % (M, M, M + 1))
    xlane("v_add_f32", M, M + 1)
    o("    v_rcp_f32 v%d, v%d" % (M, M))
    o("    s_nop 0")
    for i in range(4):
        o("    v_mul_f32 v%d, v%d, v%d" % (SC + i, SC + i, M))
    o("    v_cvt_pk_bf16_f32 v%d, v%d, v%d" % (W, SC, SC + 1))
    o("    v_cvt_pk_bf16_f32 v%d, v%d, v%d" % (W + 1, SC + 2, SC + 3))
    o("    v_lshlrev_b32 v%d, 3, v%d" % (V_X, V_LANE))
    o("    ds_write_b64 v%d, v[%d:%d] offset:%d" % (V_X, W, W + 1, LDS_P))
    o("    s_waitcnt lgkmcnt(0)")
    o("    s_branch L_mat_done")

    o("L_vend:")
    PP = MISC
    o("    v_lshlrev_b32 v%d, 3, v%d" % (V_X, V_LANE))
    o("    ds_read_b64 v[%d:%d], v%d offset:%d" % (PP, PP + 1, V_X, LDS_P))
    for w in range(4):
        for h in range(2):
            r = T + (w * 2 + h) * 4
            o("    ds_read_b128 v[%d:%d], v%d offset:%d" % (r, r + 3, V_VR, w * WS + h * 4 * DS))
    o("    s_waitcnt lgkmcnt(4)")
    for j in range(8):
        o("    v_add_f32 v%d, v%d, v%d" % (T + j, T + j, T + 8 + j))
    o("    s_waitcnt lgkmcnt(0)")
    for j in range(8):
        o("    v_add_f32 v%d, v%d, v%d" % (T + 16 + j, T + 16 + j, T + 24 + j))
    for j in range(8):
        o("    v_add_f32 v%d, v%d, v%d" % (T + j, T + j, T + 16 + j))
    VB = MISC + 4
    for h in range(2):
        o("    v_cvt_pk_bf16_f32 v%d, v%d, v%d" % (VB + 2 * h, T + 4 * h, T + 4 * h + 1))
        o("    v_cvt_pk_bf16_f32 v%d, v%d, v%d" % (VB + 2 * h + 1, T + 4 * h + 2, T + 4 * h + 3))
    OO = T + 16
    o("    s_lshr_b32 s%d, s%d, 1" % (S_T + 2, S_MI))
    o("    s_lshl_b32 s%d, s%d, %d" % (S_T + 2, S_T + 2, QSH))
    if hf >= 0:
        o("    s_xor_b32 s%d, s%d, s%d" % (S_T + 2, S_T + 2, S_FL))
    for h in range(2):
        o("    v_mfma_f32_16x16x16_bf16 v[%d:%d], v[%d:%d], v[%d:%d], 0" %
          (OO + 4 * h, OO + 4 * h + 3, VB + 2 * h, VB + 2 * h + 1, PP, PP + 1))
    o("    s_nop 7")
    for i in range(4):
        o("    v_cvt_pk_bf16_f32 v%d, v%d, v%d" % (MISC + 8 + i, OO + 2 * i, OO + 2 * i + 1))
    if noout or defer:
        o("    s_cmp_eq_u32 s%d, 1" % S_MI)
        o("    s_cbranch_scc0 L_store")
        if defer:
            for i in range(4):
                o("    v_mov_b32 v%d, v%d" % (V_DEF + i, MISC + 8 + i))
        o("    s_branch L_mat_done")
        o("L_store:")
        if defer:
            o("    buffer_store_dwordx4 v[%d:%d], v%d, s[%d:%d], %s offen %s" %
              (V_DEF, V_DEF + 3, V_OUT, SRD_O, SRD_O + 3, "s%d" % S_FL if hf >= 0 else "0", oflags))
    o("    buffer_store_dwordx4 v[%d:%d], v%d, s[%d:%d], s%d offen %s" %
      (MISC + 8, MISC + 11, V_OUT, SRD_O, SRD_O + 3, S_T + 2, oflags))

    o("L_mat_done:")
    o("    s_add_u32 s%d, s%d, 1" % (S_MI, S_MI))
    o("    s_cmp_eq_u32 s%d, 4" % S_MI)
    o("    s_cbranch_scc1 L_fin")
    for j in range(32):
        o("    v_mov_b32 v%d, 0" % (ACC + j))
    o("    s_branch L_outer")
    if ih:
        del L[mark:]

    if ctl:
        o("; ---- progress reports (L_rp) and progress line updates (L_ev) ----")
        emit_events()
    o("; ---- load side moves on to the next matrix ----")
    for tag in stubs:
        o("L_sw_%s:" % tag)
        if qm == 2:
            o("    s_cmp_lg_u32 s%d, s%d" % (S_LM, S_WAVE))
            o("    s_cbranch_scc1 L_swq_%s" % tag)
            o("    s_bitcmp1_b32 s%d, 0" % S_WAVE)
            o("    s_cbranch_scc1 L_swq_%s" % tag)
            o("    v_and_b32 v%d, 15, v%d" % (V_X, V_LANE))
            o("    v_lshrrev_b32 v%d, 4, v%d" % (V_Y, V_LANE))
            load_q(V_X, V_Y, V_X, S_T + 6)
            o("L_swq_%s:" % tag)
        o("    s_mov_b32 s%d, s%d" % (S_OFF, S_OFF0))
        if general:
            o("    s_mov_b32 s%d, 0" % S_STP)
        if hf >= 0:
            o("    s_add_u32 s%d, s%d, s%d" % (S_T + 4, SRD_D, S_ADV))
            o("    s_addc_u32 s%d, s%d, s%d" % (S_T + 5, SRD_D + 1, S_ADVH))
        else:
            o("    s_add_u32 s%d, s%d, 0x%x" % (S_T + 4, SRD_D, 1 << mb))
            o("    s_addc_u32 s%d, s%d, 0" % (S_T + 5, SRD_D + 1))
        o("    s_mov_b32 s%d, s%d" % (SRD_D, NXT_D))
        o("    s_mov_b32 s%d, s%d" % (SRD_D + 1, NXT_D + 1))
        o("    s_mov_b32 s%d, s%d" % (NXT_D, S_T + 4))
        o("    s_mov_b32 s%d, s%d" % (NXT_D + 1, S_T + 5))
        o("    s_mov_b32 s%d, s%d" % (S_T + 4, SRD_P))
        o("    s_mov_b32 s%d, s%d" % (S_T + 5, SRD_P + 1))
        o("    s_mov_b32 s%d, s%d" % (SRD_P, NXT_P))
        o("    s_mov_b32 s%d, s%d" % (SRD_P + 1, NXT_P + 1))
        o("    s_mov_b32 s%d, s%d" % (NXT_P, S_T + 4))
        o("    s_mov_b32 s%d, s%d" % (NXT_P + 1, S_T + 5))
        o("    s_add_u32 s%d, s%d, 1" % (S_LM, S_LM))
        o("    s_cmp_eq_u32 s%d, 4" % S_LM)
        o("    s_cselect_b32 s%d, 0, 0x%x" % (SRD_D + 2, DSZ))
        o("    s_cselect_b32 s%d, 0, 0x20000" % (SRD_P + 2))
        o("    s_branch L_swr_%s" % tag)

    o("L_fin:")
    if stamp:
        o("    s_waitcnt vmcnt(0)")
        o("    s_memrealtime s[62:63]")
        o("    s_getreg_b32 s58, hwreg(HW_REG_XCC_ID)")
        o("    s_getreg_b32 s59, hwreg(HW_REG_HW_ID)")
        o("    s_waitcnt lgkmcnt(0)")
        o("    s_lshl_b32 s%d, s2, 2" % S_T)
        o("    s_add_u32 s%d, s%d, s%d" % (S_T, S_T, S_WAVE))
        o("    s_lshl_b32 s%d, s%d, 4" % (S_T, S_T))
        o("    v_mov_b32 v4, s60")
        o("    v_mov_b32 v5, s62")
        o("    v_mov_b32 v6, s58")
        if pstamp:
            o("    s_sub_u32 s82, s82, s60")
        o("    v_mov_b32 v7, s%d" % (82 if pstamp else (S_HI if ctl else 59)))
        o("    v_mov_b32 v2, s%d" % S_T)
        o("    global_store_dwordx4 v2, v[4:7], s[18:19]")
        if pst:
            o("    s_lshl_b32 s%d, s%d, 1" % (S_T + 1, S_T))
            o("    s_add_u32 s%d, s%d, 0x60000" % (S_T + 1, S_T + 1))
            o("    v_mov_b32 v2, s%d" % (S_T + 1))
            for k in range(6):
                o("    s_sub_u32 s%d, s%d, s60" % (PST[k], PST[k]))
                o("    v_mov_b32 v%d, s%d" % (8 + k, PST[k]))
            o("    global_store_dwordx4 v2, v[8:11], s[18:19]")
            o("    global_store_dwordx2 v2, v[12:13], s[18:19] offset:16")
        if trace or rp:
            o("    s_lshl_b32 s%d, s%d, 4" % (S_T, S_T))
            o("    s_add_u32 s%d, s%d, 0x10000" % (S_T, S_T))
            o("    v_lshlrev_b32 v2, 2, v0")
            o("    v_add_u32 v2, s%d, v2" % S_T)
            o("    global_store_dword v2, v%d, s[18:19]" % V_BV)
            if trace == 2 or rp:
                o("    v_add_u32 v2, 0x40000, v2")
                o("    global_store_dword v2, v%d, s[18:19]" % V_TR2)
    o("L_end:")
    o("    s_endpgm")
    nvg = max(accum_offset + na, 264)
    o('.section .rodata,"a"')
    o(".p2align 6")
    o(".amdhsa_kernel %s_kernel" % NAME)
    o("  .amdhsa_next_free_vgpr %d" % nvg)
    o("  .amdhsa_next_free_sgpr %d" % (96 if pst or rp else 88))
    o("  .amdhsa_accum_offset %d" % accum_offset)
    o("  .amdhsa_group_segment_fixed_size 0")
    o("  .amdhsa_kernarg_size 64")
    o("  .amdhsa_user_sgpr_count 2")
    o("  .amdhsa_user_sgpr_kernarg_segment_ptr 1")
    o("  .amdhsa_system_sgpr_workgroup_id_x 1")
    o("  .amdhsa_float_denorm_mode_32 3")
    o(".end_amdhsa_kernel")
    return "\n".join(L) + "\n"


if __name__ == "__main__":
    out = sys.argv[1]
    kw = {}
    for a in sys.argv[2:]:
        k, v = a.split("=")
        if k not in ("flags", "eflags", "oflags", "mlo", "mmid", "mhi", "cal", "aflags", "akind", "mpost", "mfirst", "xm", "jb", "gb", "wb", "sb", "pb", "af", "jx", "mm2", "wsy", "ewf", "mih", "epsl"):
            v = int(v)
        kw[k] = v
    open(out, "w").write(gen(**kw))
```

```python
import sys

NAME = "standalone__low_rank_proj_linformer__sampling"
HEADER = open("cdna_kernels/%s.s.ref" % NAME).read().split("; Override launch")[0]

DOC = """
Linformer attention: kp = E.K, vp = F.V (rank 16), p = softmax(bf16(q.kp^T) * 128^-0.5), out = p.vp.
The kernel is bound by the 1 GiB read of K and V.

Work split: 256 workgroups x 4 waves, one workgroup per CU, two heads per workgroup.
A workgroup streams K(h0), V(h0), K(h1), V(h1); a round covers 128 rows (32 KiB), wave w takes
rows [32w, 32w+32), an iteration is two rounds.  Per round a wave issues 8 dwordx4 loads into a register
ring (two rounds deep), transposes 8x8 blocks with v_perm and accumulates E^T-fragment x data with
8 MFMA 16x16x32.  The four waves meet at a barrier before every load pair, which keeps their DRAM pages common.
At the end of a matrix the four partial sums go to LDS; the reduction, the scores and the softmax (one
wave) or the product p.vp (all waves) run in pieces inside the next iteration, so the load stream never
pauses.  The first head's output stays in registers until the last iteration.
At the start the code and both projection matrices are touched once so that later uses hit the L2.

Load-window balancing: the dies start at different times and get unequal shares of the memory bandwidth,
and the slowest die sets the run time.  The loop body exists three times and differs only in how many
loads it keeps in flight (lo / mid / hi).  Once per iteration each wave compares its clock with a progress
line and picks the body: hi when it lags, lo when it leads.  The first line is the wave's own start time
plus nominal times; it moves towards the mean start time of the grid, and from iteration 14 on it is the
measured grid-wide progress.  A few waves add their clock value to counters in d_debug for this.
The choice changes timing only, never the result, and no wave ever waits on the clock or on another
workgroup.
"""


def gen(flags="nt", eflags="sc1", oflags="", stamp=0, force=-1, ctl=1,
        mlo="5s", mmid="6p", mhi="8p", dhi=1, dlo=1, cal="9,25", lag=8, delta=0, eps=0, ps=0, pc=6,
        tail=0, notime=0, pre=0, noev=0, trace=0,
        doat=1, dold=1, aflags="sc1", akind="atomic", abase=16, wmap=0, amask=0, aval=0,
        ns=256, stag=4, noout=0, defer=0, bp=0, noE=0, mpost="", qwait=0, pstamp=0, fin=0, tsh=0, pst=0, early=0, pf=0, pfw=256, pro8=0, qm=0, m0=0, mfirst="", tw=0, pdec=1, wa=0, rot=0, gp=11, wp=13, xm="", hb=8, hb2=0, jb="", gb="", wb="", sb="", mb=20, pb="", hf=-1, tf=-1, af="", jx="", prb=0, e0=0, eg=0, egs=1, mm2="", m2s=1, wsy="", nom=0, lag0=3, dl8=0, dh8=0, ew=0, ewf="", wskip=0, half=0, hca=2, hcb=6, sl=-1, c0=210, n1=0, ih=0, mih="", ihp=2, sl0=1, rp=0, tst=0, ft=0, es=0, pfs=6, epsl="", ki=0, im=40, kis=1, wba=0, jf=0, md=0, eq=0, egl=0, ap=0, xo=16, of0=None, cs=0, cflags="nt", csf=0):
    LA, RS, ER, P = 4, 2, 2, 2
    cal = [int(x) for x in str(cal).split(",")]
    assert 2 <= len(cal) <= 4
    SLOT = [0, 128, 64, 192]
    if sl >= 0 and not n1:
        SLOT = [136, 128, 64, 192]
    j0 = sl0 if sl >= 0 else cal[0] + lag0
    nsh = ns.bit_length() - 1
    assert ns == 1 << nsh and ns >= 8 * stag
    st2 = stag - 1
    nobar = nocomp = 0
    wsyl = [int(x) for x in str(wsy).split(",")] if wsy != "" else []
    general = (gp, wp, xm, hb, jb, gb, wb, sb) != (11, 13, "", 8, "", "", "", "")
    gbits = [int(x) for x in str(gb).split(",")] if gb else [gp, gp + 1]
    wbits = [int(x) for x in str(wb).split(",")] if wb else [wp, wp + 1]
    if jb:
        jbits = [int(x) for x in str(jb).split(",")]
    elif hb == 8:
        jbits = [8, 9, 10]
    elif hb2:
        jbits = [hb, hb2, 8]
    else:
        jbits = [hb, 8, 9]
    holes = sum(1 << b for b in gbits + wbits + jbits)
    assert bin(holes).count("1") == 7 and min(gbits + wbits) >= 8
    sbits = [b for b in range(8, 20) if not (holes >> b) & 1]
    if sb:
        sbits = [int(x) for x in str(sb).split(",")]
        assert sbits == sorted(sbits) and len(sbits) == 5
        holes = 0xffffff00 & ~sum(1 << b for b in sbits)
    pbits = [int(x) for x in str(pb).split(",")] if pb else [b for b in range(20, 29) if b != mb]
    allb = gbits + wbits + jbits + sbits + [mb] + pbits
    assert sorted(allb) == list(range(8, 29)), sorted(allb)
    probe = max(gbits + wbits + jbits + sbits) >= 20 or mb < 20 or bool(prb)
    headmap = (mb, pbits) != (20, list(range(21, 29)))
    offmask = sum(1 << b for b in gbits + wbits + jbits + sbits) | 0xff
    big_j = [b for b in jbits if b >= 12]
    afl = [int(x) for x in str(af).split(",")] if af else []
    af_s = sum(1 << b for b in afl if b in wbits + sbits)
    af_g = sum(1 << b for b in afl if b in gbits)
    S_OFFB = 87
    jxl = [tuple(int(y) for y in x.split(":")) for x in jx.split(",")] if jx else []
    jx_j = [(tb, sb_) for tb, sb_ in jxl if tb in jbits]
    jx_g = [(tb, sb_) for tb, sb_ in jxl if tb in gbits]
    assert len(jx_j) + len(jx_g) == len(jxl)
    xml = [tuple(int(y) for y in x.split(":")) for x in xm.split(",")] if xm else []
    if general:
        assert wa == 0 and rot == 0 and not early
    L = []
    o = L.append
    DS = 1088
    WS = 8 * DS
    LDS_P, LDS_KP, LDS_VP = 0, 512, 512 + 4 * WS
    lds = 512 + 8 * WS
    LDS_F = lds
    if csf:
        lds += 4096
    o(HEADER.rstrip())
    o("; @launch grid=(256,1,1) block=(256,1,1) lds=%d" % lds)
    for line in DOC.strip("\n").split("\n"):
        o(("; " + line).rstrip())
    o('.amdgcn_target "amdgcn-amd-amdhsa--gfx950"')
    o(".text")
    o(".globl %s_kernel" % NAME)
    o(".p2align 8")
    o(".type %s_kernel,@function" % NAME)
    o("%s_kernel:" % NAME)

    V_LANE, V_OFF, V_EOFF, V_PW, V_VR, V_OUT, V_X, V_Y = 0, 1, 2, 3, 4, 5, 6, 7
    ACC = 8
    T = 40
    MISC = 72
    V_BO, V_BV = MISC + 22, MISC + 23
    RING = 96
    V_DEF = RING + 32 * RS
    V_OFFX = V_DEF + 4
    nv = V_DEF + 4 + ((1 << len(big_j)) - 1)
    V_OFFJ = nv
    if jx_j:
        assert not big_j
        nv += 8
    esplit = jbits[1:] == [8, 9] and jbits[0] > 9 and not prb
    NE = 0 if noE else (2 if esplit else 1)
    V_ER = V_EA = 0
    if esplit:
        nv = (nv + 1) // 2 * 2
        V_ER = nv
        V_EA = (V_ER + 4 * ER + 3) // 4 * 4
        nv = V_EA + 4
    V_S2 = V_T2 = 0
    if ih:
        V_S2 = (nv + 3) // 4 * 4
        V_T2 = V_S2 + 32
        nv = V_T2 + 32
    V_TR2 = nv
    if trace == 2 or rp:
        nv += 4
    assert nv <= 256
    A_Q = 0
    A_E = 16
    na = A_E + 4 * ER
    accum_offset = (nv + 3) // 4 * 4

    S_SELLO, S_SELHI, S_WAVE, S_OFF, S_EOFF, S_CNT, S_MI, S_LM = 20, 21, 22, 23, 24, 25, 26, 27
    S_PROG = 57
    SRD_D, SRD_P = 28, 32
    NXT_D, NXT_P = 36, 38
    SRD_Q, SRD_O = 40, 44
    S_T = 48

    o("    s_cmp_ge_u32 s2, 256")
    o("    s_cbranch_scc1 L_end")
    o("    s_load_dwordx16 s[4:19], s[0:1], 0")
    if stamp:
        o("    s_memrealtime s[60:61]")
    if sl >= 0:
        o("    s_memrealtime s[72:73]")
    PST = [84, 86, 88, 90, 92, 94]

    def pstp(k):
        if pst and not tst:
            o("    s_memrealtime s[%d:%d]" % (PST[k], PST[k] + 1))

    def tstp(k):
        if tst:
            o("    s_memrealtime s[%d:%d]" % (PST[k], PST[k] + 1))

    def code_prefetch():
        if pfw < 256:
            o("    s_cmp_ge_u32 s2, %d" % pfw)
            o("    s_cbranch_scc1 L_nopfc")
        o("    s_getpc_b64 s[%d:%d]" % (S_T + 4, S_T + 5))
        o("L_pc:")
        o("    v_lshlrev_b32 v%d, %d, v%d" % (V_PW, pfs, V_TID))
        if pfs > 6:
            o("    v_cmp_gt_u32 vcc, L_end-L_pc, v%d" % V_PW)
            o("    s_and_saveexec_b64 s[%d:%d], vcc" % (S_T + 6, S_T + 7))
            o("    s_cbranch_execz L_pfx")
            o("    global_load_dword v%d, v%d, s[%d:%d]" % (V_DEF + 3, V_PW, S_T + 4, S_T + 5))
            o("L_pfx:")
            o("    s_mov_b64 exec, -1")
        else:
            o("    v_min_u32 v%d, L_end-L_pc, v%d" % (V_PW, V_PW))
            o("    global_load_dword v%d, v%d, s[%d:%d]" % (V_DEF + 3, V_PW, S_T + 4, S_T + 5))
        if pfw < 256:
            o("L_nopfc:")

    V_TID = 0
    S_TMP0, S_TMP1, S_JC = S_T + 4, S_T + 5, 83
    if pf:
        code_prefetch()
    o("    v_lshrrev_b32 v%d, 6, v0" % V_X)
    o("    v_and_b32 v%d, 63, v0" % V_LANE)
    o("    v_readfirstlane_b32 s%d, v%d" % (S_WAVE, V_X))
    if not early:
        o("    s_mov_b32 s%d, 0x05040100" % S_SELLO)
        o("    s_mov_b32 s%d, 0x07060302" % S_SELHI)
    o("    v_and_b32 v%d, 15, v%d" % (V_X, V_LANE))
    o("    v_lshrrev_b32 v%d, 4, v%d" % (V_Y, V_LANE))
    o("    v_lshlrev_b32 v%d, 4, v%d" % (V_OFF, V_X))
    if gbits[1] == gbits[0] + 1:
        o("    v_lshl_add_u32 v%d, v%d, %d, v%d" % (V_OFF, V_Y, gbits[0], V_OFF))
    else:
        o("    v_and_b32 v%d, 1, v%d" % (V_PW, V_Y))
        o("    v_lshl_add_u32 v%d, v%d, %d, v%d" % (V_OFF, V_PW, gbits[0], V_OFF))
        o("    v_lshrrev_b32 v%d, 1, v%d" % (V_PW, V_Y))
        o("    v_lshl_add_u32 v%d, v%d, %d, v%d" % (V_OFF, V_PW, gbits[1], V_OFF))
    if probe:
        o("    v_lshlrev_b32 v%d, 13, v%d" % (V_EOFF, V_X))
        o("    v_lshl_add_u32 v%d, v%d, 4, v%d" % (V_EOFF, V_Y, V_EOFF))
    elif not early:
        o("    v_lshlrev_b32 v%d, 13, v%d" % (V_EOFF, V_X))
        if gbits[1] == gbits[0] + 1:
            o("    v_lshl_add_u32 v%d, v%d, %d, v%d" % (V_EOFF, V_Y, gbits[0] - 7, V_EOFF))
        else:
            o("    v_and_b32 v%d, 1, v%d" % (V_PW, V_Y))
            o("    v_lshl_add_u32 v%d, v%d, %d, v%d" % (V_EOFF, V_PW, gbits[0] - 7, V_EOFF))
            o("    v_lshrrev_b32 v%d, 1, v%d" % (V_PW, V_Y))
            o("    v_lshl_add_u32 v%d, v%d, %d, v%d" % (V_EOFF, V_PW, gbits[1] - 7, V_EOFF))
    for tb, sb_ in jx_g:
        o("    s_bfe_u32 s%d, s2, 0x%x" % (S_TMP0, 0x10000 | sb_))
        o("    s_lshl_b32 s%d, s%d, %d" % (S_TMP1, S_TMP0, tb))
        o("    v_xor_b32 v%d, s%d, v%d" % (V_OFF, S_TMP1, V_OFF))
        o("    s_lshl_b32 s%d, s%d, %d" % (S_TMP1, S_TMP0, tb - 7))
        o("    v_xor_b32 v%d, s%d, v%d" % (V_EOFF, S_TMP1, V_EOFF))
    if jx_j:
        o("    s_mov_b32 s%d, 0" % S_JC)
        for tb, sb_ in jx_j:
            o("    s_bfe_u32 s%d, s2, 0x%x" % (S_TMP0, 0x10000 | sb_))
            o("    s_lshl_b32 s%d, s%d, %d" % (S_TMP0, S_TMP0, tb))
            o("    s_xor_b32 s%d, s%d, s%d" % (S_JC, S_JC, S_TMP0))
        for i in range(8):
            a_ = sum(1 << b for t, b in enumerate(jbits) if (i >> t) & 1)
            o("    s_xor_b32 s%d, s%d, 0x%x" % (S_TMP0, S_JC, a_))
            o("    v_or_b32 v%d, s%d, v%d" % (V_OFFJ + i, S_TMP0, V_OFF))
    for sel in range(1, 1 << len(big_j)):
        add = sum(1 << b for t, b in enumerate(big_j) if (sel >> t) & 1)
        if af_g and sel & 1:
            o("    v_xor_b32 v%d, 0x%x, v%d" % (V_OFFX + sel - 1, af_g, V_OFF))
            o("    v_add_u32 v%d, 0x%x, v%d" % (V_OFFX + sel - 1, add, V_OFFX + sel - 1))
        else:
            o("    v_add_u32 v%d, 0x%x, v%d" % (V_OFFX + sel - 1, add, V_OFF))
    S_STP = 56
    if wbits[1] == wbits[0] + 1:
        o("    s_lshl_b32 s%d, s%d, %d" % (S_OFF, S_WAVE, wbits[0] if general else 13 + wa))
    else:
        o("    s_and_b32 s%d, s%d, 1" % (S_OFF, S_WAVE))
        o("    s_lshl_b32 s%d, s%d, %d" % (S_OFF, S_OFF, wbits[0]))
        o("    s_lshr_b32 s%d, s%d, 1" % (S_T + 4, S_WAVE))
        o("    s_lshl_b32 s%d, s%d, %d" % (S_T + 4, S_T + 4, wbits[1]))
        o("    s_or_b32 s%d, s%d, s%d" % (S_OFF, S_OFF, S_T + 4))
    if general:
        o("    s_mov_b32 s%d, 0" % S_STP)
        for tb, sb in xml:
            o("    s_bfe_u32 s%d, s2, 0x%x" % (S_T + 4, 0x10000 | sb))
            o("    s_lshl_b32 s%d, s%d, %d" % (S_T + 4, S_T + 4, tb))
            o("    s_xor_b32 s%d, s%d, s%d" % (S_OFF, S_OFF, S_T + 4))
    if rot:
        assert wa == 0
        R = S_T + 4
        if rot == 1:
            o("    s_lshr_b32 s%d, s2, 3" % R)
        elif rot == 2:
            o("    s_mov_b32 s%d, s2" % R)
        elif rot == 3:
            o("    s_lshl_b32 s%d, s2, 2" % R)
        elif rot == 4:
            o("    s_lshr_b32 s%d, s2, 3" % R)
            o("    s_lshl_b32 s%d, s2, 2" % (R + 1))
            o("    s_add_u32 s%d, s%d, s%d" % (R, R, R + 1))
        elif rot == 5:
            o("    s_lshr_b32 s%d, s2, 3" % R)
            o("    s_and_b32 s%d, s%d, 1" % (R, R))
        elif rot == 6:
            o("    s_lshr_b32 s%d, s2, 3" % R)
            o("    s_and_b32 s%d, s%d, 3" % (R, R))
        elif rot == 7:
            o("    s_lshr_b32 s%d, s2, 3" % R)
            o("    s_lshl_b32 s%d, s%d, 3" % (R, R))
        elif rot == 8:
            o("    s_lshr_b32 s%d, s2, 3" % R)
            o("    s_lshl_b32 s%d, s%d, 4" % (R, R))
        o("    s_and_b32 s%d, s%d, 31" % (R, R))
        o("    s_lshl_b32 s%d, s%d, 15" % (R, R))
        o("    s_add_u32 s%d, s%d, s%d" % (S_OFF, S_OFF, R))
    S_EV, S_MODE, S_ACC, S_INC, S_TM, S_NOW, S_THI, S_TLO = 64, 65, 66, 67, 72, 74, 76, 77
    S_C1, S_C2, S_HI, S_OFF0, S_RP, S_OK = 68, 70, 78, 79, 80, 81

    def eoff():
        o("    s_lshr_b32 s%d, s%d, 7" % (S_EOFF, S_OFF))
        if af_s:
            o("    s_xor_b32 s%d, s%d, 0x%x" % (S_OFFB, S_OFF, af_s))
        if probe:
            o("    s_and_b32 s%d, s%d, 0x1fc0" % (S_EOFF, S_EOFF))

    def step_inc():
        if general:
            o("    s_or_b32 s%d, s%d, 0x%x" % (S_STP, S_STP, holes))
            o("    s_add_u32 s%d, s%d, 0x%x" % (S_STP, S_STP, 1 << sbits[0]))
            o("    s_andn2_b32 s%d, s%d, 0x%x" % (S_STP, S_STP, holes))
            o("    s_xor_b32 s%d, s%d, s%d" % (S_OFF, S_STP, S_OFF0))
        elif wa == 0:
            o("    s_add_u32 s%d, s%d, 0x8000" % (S_OFF, S_OFF))
            if rot:
                o("    s_and_b32 s%d, s%d, 0xfffff" % (S_OFF, S_OFF))
        elif wa == 5:
            o("    s_add_u32 s%d, s%d, 0x2000" % (S_OFF, S_OFF))
        else:
            hole = 3 << (13 + wa)
            o("    s_or_b32 s%d, s%d, 0x%x" % (S_OFF, S_OFF, hole))
            o("    s_add_u32 s%d, s%d, 0x2000" % (S_OFF, S_OFF))
            o("    s_andn2_b32 s%d, s%d, 0x%x" % (S_OFF, S_OFF, hole))
            o("    s_or_b32 s%d, s%d, s%d" % (S_OFF, S_OFF, S_OFF0))

    def ctl_setup():
        U = S_T + 6 if early else S_T
        o("    s_mov_b32 s%d, %d" % (S_MODE, {-1: 0, 0: 0, 1: 1, 2: 2}[force]))
        if ctl:
            o("    s_mov_b32 s%d, 0" % S_PROG)
            if ki:
                o("    s_mov_b32 s82, 0")
                o("    s_mov_b32 s83, 0")
            o("    s_mov_b32 s%d, 0" % S_HI)
            if sl >= 0:
                T1n = 16 * nom
                o("    s_mov_b32 s%d, %d" % (S_ACC, 64 * c0))
                o("    s_mov_b32 s%d, %d" % (S_INC, 4 * T1n))
                o("    s_mov_b32 s%d, 0" % S_NOW)
                o("    s_mov_b32 s%d, %d" % (S_THI, (T1n * (dh8 or 8 * dhi)) >> 3))
                o("    s_mov_b32 s%d, %d" % (S_TLO, (-T1n * (dl8 or 8 * dlo)) >> 3))
                assert not mm2
            else:
                o("    s_mov_b32 s%d, 0" % S_ACC)
                o("    s_mov_b32 s%d, 0" % S_INC)
                o("    s_mov_b32 s%d, 0" % S_TM)
                o("    s_mov_b32 s%d, 0" % S_NOW)
                o("    s_mov_b32 s%d, 0x7fffffff" % S_THI)
                if mm2:
                    o("    s_mov_b32 s82, 0x7fffffff")
                o("    s_mov_b32 s%d, 0x80000000" % S_TLO)
            o("    s_lshr_b32 s%d, s2, 3" % U)
            o("    s_and_b32 s%d, s%d, %d" % (U, U, stag - 1))
            o("    s_mov_b32 s%d, 0x7fffffff" % S_RP)
            o("    s_mov_b32 s%d, 0" % (U + 1))
            for k, c in enumerate(cal):
                if sl >= 0 and k == 0 and n1:
                    continue
                o("    s_cmp_eq_u32 s%d, %d" % (S_WAVE, (k + 1) & 3))
                o("    s_cselect_b32 s%d, %d, s%d" % (S_RP, c, S_RP))
                o("    s_cselect_b32 s%d, %d, s%d" % (U + 1, SLOT[k], U + 1))
            o("    v_mov_b32 v%d, s%d" % (V_BO, U + 1))
            o("    s_cmp_lg_u32 s%d, 0x7fffffff" % S_RP)
            o("    s_cselect_b32 s%d, s%d, 0" % (U, U))
            o("    s_add_u32 s%d, s%d, s%d" % (S_RP, S_RP, U))
            if ns < 256:
                o("    s_cmp_lt_u32 s2, %d" % ns)
                o("    s_cselect_b32 s%d, s%d, 0x7fffffff" % (S_RP, S_RP))
            if amask:
                o("    s_and_b32 s%d, s2, %d" % (U, amask))
                o("    s_cmp_eq_u32 s%d, %d" % (U, aval))
                o("    s_cselect_b32 s%d, s%d, 0x7fffffff" % (S_RP, S_RP))
            o("    s_mov_b32 s%d, %d" % (S_EV, j0 if nom else cal[1] + lag))
            assert sl < 0 or nom
            o("    s_mov_b32 s%d, 0" % S_OK)
            for r in range(S_C1, S_C1 + 4):
                o("    s_mov_b32 s%d, 0" % r)
        o("    s_mov_b32 s%d, 0" % S_LM)
        o("    s_mov_b32 s%d, 0" % S_MI)

    def srd_rest():
        qsz = 8192 if mb <= 20 or probe else (1 << (mb - 8)) + 4096
        o("    s_mov_b32 s%d, %d" % (SRD_Q + 2, qsz))
        o("    s_mov_b32 s%d, 0x20000" % (SRD_Q + 3))
        o("    s_mov_b32 s%d, %d" % (SRD_O + 2, qsz))
        o("    s_mov_b32 s%d, 0x20000" % (SRD_O + 3))

    if not early:
        o("    s_mov_b32 s%d, s%d" % (S_OFF0, S_OFF))
        ctl_setup()
        eoff()
    S_PAIR = S_T + 2
    if wmap == 0:
        o("    s_mov_b32 s%d, s2" % S_PAIR)
    elif wmap == 1:
        o("    s_and_b32 s%d, s2, 7" % S_PAIR)
        o("    s_lshl_b32 s%d, s%d, 5" % (S_PAIR, S_PAIR))
        o("    s_lshr_b32 s%d, s2, 3" % (S_T + 3))
        o("    s_or_b32 s%d, s%d, s%d" % (S_PAIR, S_PAIR, S_T + 3))
    elif wmap == 2:
        o("    s_lshr_b32 s%d, s2, 3" % (S_T + 3))
        o("    s_and_b32 s%d, s%d, 7" % (S_T + 3, S_T + 3))
        o("    s_xor_b32 s%d, s2, s%d" % (S_PAIR, S_T + 3))
    elif wmap == 3:
        o("    s_and_b32 s%d, s2, 7" % S_PAIR)
        o("    s_lshl_b32 s%d, s%d, 5" % (S_PAIR, S_PAIR))
        o("    s_lshr_b32 s%d, s2, 3" % (S_T + 3))
        o("    s_or_b32 s%d, s%d, s%d" % (S_PAIR, S_PAIR, S_T + 3))
        o("    s_and_b32 s%d, s%d, 7" % (S_T + 3, S_T + 3))
        o("    s_lshl_b32 s%d, s%d, 5" % (S_T + 3, S_T + 3))
        o("    s_xor_b32 s%d, s%d, s%d" % (S_PAIR, S_PAIR, S_T + 3))
    elif wmap == 4:
        o("    s_and_b32 s%d, s2, 7" % S_PAIR)
        o("    s_lshr_b32 s%d, s2, 3" % (S_T + 3))
        o("    s_lshl_b32 s%d, s%d, 2" % (S_T + 4, S_PAIR))
        o("    s_add_u32 s%d, s%d, s%d" % (S_T + 3, S_T + 3, S_T + 4))
        o("    s_and_b32 s%d, s%d, 31" % (S_T + 3, S_T + 3))
        o("    s_lshl_b32 s%d, s%d, 5" % (S_PAIR, S_PAIR))
        o("    s_or_b32 s%d, s%d, s%d" % (S_PAIR, S_PAIR, S_T + 3))
    elif wmap == 5:
        o("    s_brev_b32 s%d, s2" % S_PAIR)
        o("    s_lshr_b32 s%d, s%d, 24" % (S_PAIR, S_PAIR))
    elif wmap == 6:
        o("    s_bfe_u32 s%d, s2, 0x20001" % S_PAIR)
        o("    s_lshl_b32 s%d, s%d, 6" % (S_PAIR, S_PAIR))
        o("    s_lshr_b32 s%d, s2, 3" % (S_T + 3))
        o("    s_lshl_b32 s%d, s%d, 1" % (S_T + 3, S_T + 3))
        o("    s_or_b32 s%d, s%d, s%d" % (S_PAIR, S_PAIR, S_T + 3))
        o("    s_and_b32 s%d, s2, 1" % (S_T + 3))
        o("    s_or_b32 s%d, s%d, s%d" % (S_PAIR, S_PAIR, S_T + 3))
    elif wmap == 7:
        o("    s_and_b32 s%d, s2, 7" % S_PAIR)
        o("    s_lshl_b32 s%d, s%d, 3" % (S_PAIR, S_PAIR))
        o("    s_bfe_u32 s%d, s2, 0x30003" % (S_T + 3))
        o("    s_or_b32 s%d, s%d, s%d" % (S_PAIR, S_PAIR, S_T + 3))
        o("    s_lshr_b32 s%d, s2, 6" % (S_T + 3))
        o("    s_lshl_b32 s%d, s%d, 6" % (S_T + 3, S_T + 3))
        o("    s_or_b32 s%d, s%d, s%d" % (S_PAIR, S_PAIR, S_T + 3))
    if headmap:
        o("    s_mov_b32 s%d, 0" % S_T)
        for i, b in enumerate(pbits):
            o("    s_bfe_u32 s%d, s%d, 0x%x" % (S_T + 1, S_PAIR, 0x10000 | i))
            o("    s_lshl_b32 s%d, s%d, %d" % (S_T + 1, S_T + 1, b))
            o("    s_or_b32 s%d, s%d, s%d" % (S_T, S_T, S_T + 1))
    else:
        o("    s_lshl_b32 s%d, s%d, 21" % (S_T, S_PAIR))
    S_ADV, S_ADVH, S_FL = 84, 85, 86
    if hf >= 0:
        assert not pst and not early and qm == 0
        if hf == 99:
            o("    s_mov_b32 s%d, 1" % S_FL)
        else:
            o("    s_bfe_u32 s%d, s2, 0x%x" % (S_FL, 0x10000 | hf))
        o("    s_mov_b32 s%d, 0x%x" % (S_ADV, 1 << mb))
        o("    s_cmp_eq_u32 s%d, 1" % S_FL)
        o("    s_cselect_b32 s%d, 0x%x, s%d" % (S_ADV, (-(1 << mb)) & 0xffffffff, S_ADV))
        o("    s_cselect_b32 s%d, -1, 0" % S_ADVH)
    DSZ = (offmask + 1) if probe else 0x100000
    QSH = 12 if probe else mb - 8
    o("    s_mov_b32 s%d, 0x%x" % (SRD_D + 2, DSZ))
    o("    s_mov_b32 s%d, 0x20000" % (SRD_D + 3))
    if not early:
        if headmap and not probe:
            o("    s_lshr_b32 s%d, s%d, 8" % (S_T + 1, S_T))
        else:
            o("    s_lshl_b32 s%d, s%d, 13" % (S_T + 1, S_PAIR))
        o("    s_mov_b32 s%d, 0x20000" % (SRD_P + 2))
        o("    s_mov_b32 s%d, 0x20000" % (SRD_P + 3))
        srd_rest()
    pstp(0)
    o("    s_waitcnt lgkmcnt(0)")
    if pstamp:
        o("    s_memrealtime s[82:83]")
    pstp(1)
    if hf >= 0:
        o("    s_lshl_b32 s%d, s%d, %d" % (S_T + 4, S_FL, mb))
        o("    s_or_b32 s%d, s%d, s%d" % (S_T, S_T, S_T + 4))
        o("    s_lshl_b32 s%d, s%d, %d" % (S_FL, S_FL, QSH))
    if tf >= 0:
        if tf == 99:
            o("    s_cmp_eq_u32 s2, s2")
        else:
            o("    s_bitcmp1_b32 s2, %d" % tf)
        o("    s_cselect_b32 s%d, s8, s6" % (S_T + 4))
        o("    s_cselect_b32 s%d, s9, s7" % (S_T + 5))
        o("    s_cselect_b32 s8, s6, s8")
        o("    s_cselect_b32 s9, s7, s9")
        o("    s_mov_b32 s6, s%d" % (S_T + 4))
        o("    s_mov_b32 s7, s%d" % (S_T + 5))
    o("    s_add_u32 s%d, s6, s%d" % (SRD_D, S_T))
    o("    s_addc_u32 s%d, s7, 0" % (SRD_D + 1))
    if not early:
        o("    s_mov_b32 s%d, s10" % SRD_P)
        o("    s_mov_b32 s%d, s11" % (SRD_P + 1))

    def issue_E(step):
        if noE:
            return
        if esplit:
            r = V_ER + (step % ER) * 4
            for t in range(2):
                o("    buffer_load_dwordx2 v[%d:%d], v%d, s[%d:%d], s%d offen offset:%d %s" %
                  (r + 2 * t, r + 2 * t + 1, V_EOFF, SRD_P, SRD_P + 3, S_EOFF, t << (jbits[0] - 7), eflags))
            return
        r = A_E + (step % ER) * 4
        o("    buffer_load_dwordx4 a[%d:%d], v%d, s[%d:%d], s%d offen %s" %
          (r, r + 3, V_EOFF, SRD_P, SRD_P + 3, S_EOFF, eflags))

    def issue_one(n):
        q, h = divmod(n, 2)
        a = q % 4
        slot = q % (4 * RS)
        i = (2 * a + h) ^ jf
        r = RING + (slot * 2 + h) * 4
        imm, sel = 0, 0
        alt = bool(afl) and any((i >> t) & 1 and b == big_j[0] for t, b in enumerate(jbits))
        for t, b in enumerate(jbits):
            bit = (i >> t) & 1
            if alt and b in afl:
                bit ^= 1
            if bit:
                if b >= 12:
                    sel |= 1 << big_j.index(b)
                else:
                    imm += 1 << b
        if jx_j:
            o("    buffer_load_dwordx4 v[%d:%d], v%d, s[%d:%d], s%d offen %s" %
              (r, r + 3, V_OFFJ + i, SRD_D, SRD_D + 3, S_OFF, flags))
            return
        o("    buffer_load_dwordx4 v[%d:%d], v%d, s[%d:%d], s%d offen offset:%d %s" %
          (r, r + 3, V_OFFX + sel - 1 if sel else V_OFF, SRD_D, SRD_D + 3,
           S_OFFB if alt and af_s else S_OFF, imm, flags))

    def issue_pair(q):
        issue_one(2 * q)
        issue_one(2 * q + 1)

    stubs = []
    events = []

    if not early and not e0:
        issue_E(0)
    for q in range(LA):
        issue_pair(q)
        if not early and e0 == q + 1:
            issue_E(0)
    if ap:
        o("    v_mov_b32 v%d, 0" % V_TR2)
        if ap == 1:
            for k in range(8):
                o("    s_waitcnt vmcnt(%d)" % (7 - k))
                o("    s_memrealtime s[92:93]")
                o("    s_waitcnt lgkmcnt(0)")
                o("    v_writelane_b32 v%d, s92, %d" % (V_TR2, k))
    if early:
        o("    v_lshlrev_b32 v%d, 13, v%d" % (V_EOFF, V_X))
        o("    v_lshl_add_u32 v%d, v%d, 4, v%d" % (V_EOFF, V_Y, V_EOFF))
        eoff()
        o("    s_mov_b32 s%d, s10" % SRD_P)
        o("    s_mov_b32 s%d, s11" % (SRD_P + 1))
        o("    s_mov_b32 s%d, 0x20000" % (SRD_P + 2))
        o("    s_mov_b32 s%d, 0x20000" % (SRD_P + 3))
        issue_E(0)
        o("    s_mov_b32 s%d, s%d" % (S_OFF0, S_OFF))
    def second_batch(lo, hi):
        if lo == 8:
            step_inc()
            eoff()
        for n in range(lo, hi):
            issue_one(n)
            if n == (11 if eq else 8):
                issue_E(1)
        if ap == 2 and hi == 16:
            for k in range(16):
                o("    s_waitcnt vmcnt(%d)" % (15 - k + (1 if k < 8 else 0)))
                o("    s_memrealtime s[92:93]")
                o("    s_waitcnt lgkmcnt(0)")
                o("    v_writelane_b32 v%d, s92, %d" % (V_TR2, k))

    assert 8 <= xo <= 16 and (xo == 16 or (bp and not pro8 and not early))
    if bp and not pro8 and xo > 8:
        second_batch(8, xo)
    pstp(2)
    if early:
        o("    s_mov_b32 s%d, 0x05040100" % S_SELLO)
        o("    s_mov_b32 s%d, 0x07060302" % S_SELHI)
        o("    s_lshl_b32 s%d, s%d, 13" % (S_T + 1, S_PAIR))
        srd_rest()
        ctl_setup()
    o("    s_add_u32 s%d, s8, s%d" % (NXT_D, S_T))
    o("    s_addc_u32 s%d, s9, 0" % (NXT_D + 1))
    o("    s_mov_b32 s%d, s12" % NXT_P)
    o("    s_mov_b32 s%d, s13" % (NXT_P + 1))
    o("    s_add_u32 s%d, s4, s%d" % (SRD_Q, S_T + 1))
    o("    s_addc_u32 s%d, s5, 0" % (SRD_Q + 1))
    o("    s_add_u32 s%d, s14, s%d" % (SRD_O, S_T + 1))
    o("    s_addc_u32 s%d, s15, 0" % (SRD_O + 1))
    def load_q(vx, vy, va, st):
        o("    v_lshlrev_b32 v%d, 8, v%d" % (va, vx))
        o("    v_lshl_add_u32 v%d, v%d, 6, v%d" % (va, vy, va))
        o("    s_lshr_b32 s%d, s%d, 1" % (st, S_WAVE))
        o("    s_lshl_b32 s%d, s%d, %d" % (st, st, QSH))
        if hf >= 0:
            o("    s_xor_b32 s%d, s%d, s%d" % (st, st, S_FL))
        for s in range(4):
            o("    buffer_load_dwordx4 a[%d:%d], v%d, s[%d:%d], s%d offen offset:%d" %
              (A_Q + 4 * s, A_Q + 4 * s + 3, va, SRD_Q, SRD_Q + 3, st, 16 * s))

    if qm == 0:
        load_q(V_X, V_Y, V_PW, S_T + 2)
    elif qm == 1:
        o("    s_bitcmp1_b32 s%d, 0" % S_WAVE)
        o("    s_cbranch_scc1 L_noq")
        load_q(V_X, V_Y, V_PW, S_T + 2)
        o("L_noq:")
    def warm_proj():
        o("    s_bfe_u32 s%d, s2, 0x50003" % (S_T + 2))
        o("    s_lshl_b32 s%d, s%d, 2" % (S_T + 2, S_T + 2))
        o("    s_add_u32 s%d, s%d, s%d" % (S_T + 2, S_T + 2, S_WAVE))
        o("    s_lshl_b32 s%d, s%d, 10" % (S_T + 2, S_T + 2))
        o("    v_lshlrev_b32 v%d, 4, v%d" % (V_PW, V_LANE))
        o("    v_add_u32 v%d, s%d, v%d" % (V_PW, S_T + 2, V_PW))
        if ew & 1:
            o("    global_load_dwordx4 v[%d:%d], v%d, s[10:11] %s" % (V_DEF, V_DEF + 3, V_PW, ewf))
        if ew & 2:
            o("    global_load_dwordx4 v[%d:%d], v%d, s[12:13] %s" % (V_DEF, V_DEF + 3, V_PW, ewf))

    if sl >= 0:
        o("    s_cmp_lt_u32 s2, %d" % ns)
        o("    s_cbranch_scc0 L_nosr")
        o("    s_cmp_eq_u32 s%d, 1" % S_WAVE)
        o("    s_cbranch_scc0 L_nosr")
        o("    v_mov_b32 v%d, s%d" % (V_BV - 3, S_TM))
        o("    v_mov_b32 v%d, 0x100" % (V_BV - 2))
        o("    v_mov_b32 v%d, 0" % (V_BV - 4))
        o("    s_mov_b64 exec, 1")
        o("    global_atomic_add_x2 v%d, v[%d:%d], s[%d:%d] %s" % (V_BV - 4, V_BV - 3, V_BV - 2, abase, abase + 1, aflags))
        o("    s_mov_b64 exec, -1")
        o("L_nosr:")
    if ew:
        assert defer and qm != 2
        warm_proj()
    if xo < 16:
        second_batch(xo, 16)
    if tw:
        assert defer
        o("    v_and_b32 v%d, 3, v%d" % (V_PW, V_LANE))
        o("    v_lshlrev_b32 v%d, 19, v%d" % (V_PW, V_PW))
        o("    s_cmp_eq_u32 s%d, 1" % S_WAVE)
        o("    s_cbranch_scc0 L_tw1")
        o("    global_load_dword v%d, v%d, s[%d:%d]" % (V_DEF, V_PW, NXT_D, NXT_D + 1))
        o("L_tw1:")
        o("    s_cmp_eq_u32 s%d, 3" % S_WAVE)
        o("    s_cbranch_scc0 L_tw3")
        o("    v_mov_b32 v%d, 0" % V_PW)
        o("    buffer_load_dword v%d, v%d, s[%d:%d], 0 offen" % (V_DEF, V_PW, SRD_O, SRD_O + 3))
        o("    global_load_dword v%d, v%d, s[12:13]" % (V_DEF + 1, V_PW))
        o("L_tw3:")
    o("    v_lshlrev_b32 v%d, 8, v%d" % (V_OUT, V_X))
    o("    v_lshl_add_u32 v%d, v%d, 4, v%d" % (V_OUT, V_Y, V_OUT))
    o("    s_lshl_b32 s%d, s%d, 6" % (S_T + 2, S_WAVE))
    o("    v_add_u32 v%d, s%d, v%d" % (V_OUT, S_T + 2, V_OUT))
    o("    v_and_b32 v%d, 3, v%d" % (V_VR, V_X))
    o("    v_mul_u32_u24 v%d, %d, v%d" % (V_VR, DS, V_VR))
    o("    v_lshrrev_b32 v%d, 2, v%d" % (V_X, V_X))
    o("    v_lshl_add_u32 v%d, v%d, 4, v%d" % (V_X, V_Y, V_X))
    o("    v_lshl_add_u32 v%d, v%d, 4, v%d" % (V_VR, V_X, V_VR))
    o("    s_lshl_b32 s%d, s%d, 6" % (S_T + 2, S_WAVE))
    o("    s_add_u32 s%d, s%d, %d" % (S_T + 2, S_T + 2, LDS_VP))
    o("    v_add_u32 v%d, s%d, v%d" % (V_VR, S_T + 2, V_VR))
    o("    v_lshlrev_b32 v%d, 4, v%d" % (V_X, V_LANE))
    o("    s_mul_i32 s%d, s%d, %d" % (S_T + 2, S_WAVE, WS))
    o("    s_add_u32 s%d, s%d, %d" % (S_T + 2, S_T + 2, LDS_KP))
    o("    v_add_u32 v%d, s%d, v%d" % (V_PW, S_T + 2, V_X))
    for j in range(32):
        o("    v_mov_b32 v%d, 0" % (ACC + j))
    if rp:
        o("    s_mov_b32 s90, %d" % (8 * ap))
        if not ap:
            o("    v_mov_b32 v%d, 0" % V_TR2)


    def allowed(n, req, e_done):
        cnt = n - 1 - req
        for qq in range(0, n // 2 + 1):
            if md:
                pos = 2 * qq + (3 if eq else 1)
                if qq % 4 == 0 and req <= pos < n:
                    cnt += NE
            elif qq % 4 == 0 and 2 * qq >= req and (qq < n // 2 or e_done):
                cnt += NE
        return cnt

    def wait_of(m, p, h, extra=0):
        q = p + LA
        n = 2 * q + h
        N, gr = int(m[:-1]), m[-1]
        if gr == "q":
            assert eq and md and N <= 8
            if h == 1 or p % 2:
                return None
            return allowed(n + 8000, max(n - N + 3, 2 * p + 3) + 8000, False)
        if gr == "p":
            if h == 1:
                return None
            req = n - N + 1
        else:
            req = n - N
        if h == 0:
            req = max(req, 2 * p + 1)
        elif req <= 2 * p + 1:
            return None
        big = 8000
        return allowed(n + big, req + big, h == 1) + (extra if req <= 7 else 0)

    def decide(tag):
        T0 = S_T + 6
        o("    s_waitcnt lgkmcnt(0)")
        if not noev:
            o("    s_cmp_eq_u32 s%d, s%d" % (S_PROG, S_RP))
            o("    s_cbranch_scc1 L_rp_%s" % tag)
            o("L_rpr_%s:" % tag)
            o("    s_cmp_eq_u32 s%d, s%d" % (S_PROG, S_EV))
            o("    s_cbranch_scc1 L_ev_%s" % tag)
        o("L_evr_%s:" % tag)
        if trace:
            o("    s_mov_b32 m0, s%d" % S_PROG)
            o("    s_nop 0")
            o("    v_writelane_b32 v%d, s%d, m0" % (V_BV, S_NOW))
        o("    s_sub_u32 s%d, s%d, s%d" % (T0, S_NOW, S_TM))
        o("    s_lshl_b32 s%d, s%d, 6" % (T0, T0))
        o("    s_sub_u32 s%d, s%d, s%d" % (T0, T0, S_ACC))
        if trace == 2:
            o("    v_writelane_b32 v%d, s%d, m0" % (V_TR2, T0))
        o("    s_add_u32 s%d, s%d, s%d" % (S_ACC, S_ACC, S_INC))
        o("    s_add_u32 s%d, s%d, 1" % (S_PROG, S_PROG))
        if ki:
            assert not mm2 and not jx
            o("    s_mul_i32 s%d, s%d, s83" % (T0 + 1, T0))
            o("    s_ashr_i32 s%d, s%d, 8" % (T0 + 1, T0 + 1))
            o("    s_add_i32 s82, s82, s%d" % (T0 + 1))
            o("    s_min_i32 s82, s82, %d" % (64 * im))
            o("    s_max_i32 s82, s82, %d" % (-64 * im))
            o("    s_add_i32 s%d, s%d, s82" % (T0, T0))
        if force < 0 and tag == "post" and pdec != 1:
            if pdec == 0:
                o("    s_mov_b32 s%d, 0" % S_MODE)
        elif force < 0:
            if eg:
                o("    s_cmp_eq_u32 s%d, %d" % (S_PROG, 64 - eg))
                o("    s_cselect_b32 s%d, %d, 0" % (T0 + 1, egs))
                o("    s_ashr_i32 s%d, s%d, s%d" % (S_THI, S_THI, T0 + 1))
                if egl:
                    o("    s_mul_i32 s%d, s%d, %d" % (T0 + 1, S_THI, egl))
                    o("    s_ashr_i32 s%d, s%d, 2" % (T0 + 1, T0 + 1))
                    o("    s_cmp_eq_u32 s%d, %d" % (S_PROG, 64 - eg))
                    o("    s_cselect_b32 s%d, s%d, s%d" % (S_TLO, T0 + 1, S_TLO))
                if mm2:
                    o("    s_ashr_i32 s82, s82, s%d" % (T0 + 1))
            if mm2:
                o("    s_cmp_gt_i32 s%d, s82" % T0)
                o("    s_cselect_b32 s%d, 4, 0" % S_MODE)
                o("    s_cmp_gt_i32 s%d, s%d" % (T0, S_THI))
                o("    s_cselect_b32 s%d, 1, s%d" % (S_MODE, S_MODE))
            else:
                o("    s_cmp_gt_i32 s%d, s%d" % (T0, S_THI))
                o("    s_cselect_b32 s%d, 1, 0" % S_MODE)
            o("    s_cmp_lt_i32 s%d, s%d" % (T0, S_TLO))
            o("    s_cselect_b32 s%d, 2, s%d" % (S_MODE, S_MODE))
        if tail:
            o("    s_cmp_ge_u32 s%d, %d" % (S_PROG, 64 - tail))
            o("    s_cselect_b32 s%d, 1, s%d" % (S_MODE, S_MODE))
        if fin:
            o("    s_cmp_eq_u32 s%d, %d" % (S_PROG, 64 - fin))
            o("    s_cselect_b32 s%d, 3, s%d" % (S_MODE, S_MODE))
        if stamp:
            o("    s_and_b32 s%d, s%d, 1" % (T0, S_MODE))
            o("    s_add_u32 s%d, s%d, s%d" % (S_HI, S_HI, T0))
            o("    s_and_b32 s%d, s%d, 2" % (T0, S_MODE))
            o("    s_lshl_b32 s%d, s%d, 7" % (T0, T0))
            o("    s_add_u32 s%d, s%d, s%d" % (S_HI, S_HI, T0))
        events.append(tag)

    def decide_half(tag):
        T0 = S_T + 6
        o("    s_waitcnt lgkmcnt(0)")
        o("    s_sub_u32 s%d, s%d, s%d" % (T0, S_NOW, S_TM))
        o("    s_lshl_b32 s%d, s%d, 6" % (T0, T0))
        o("    s_sub_u32 s%d, s%d, s%d" % (T0, T0, S_ACC))
        o("    s_ashr_i32 s%d, s%d, 1" % (T0 + 1, S_INC))
        o("    s_add_u32 s%d, s%d, s%d" % (T0, T0, T0 + 1))
        if mm2:
            o("    s_cmp_gt_i32 s%d, s82" % T0)
            o("    s_cselect_b32 s%d, 4, 0" % S_MODE)
            o("    s_cmp_gt_i32 s%d, s%d" % (T0, S_THI))
            o("    s_cselect_b32 s%d, 1, s%d" % (S_MODE, S_MODE))
        else:
            o("    s_cmp_gt_i32 s%d, s%d" % (T0, S_THI))
            o("    s_cselect_b32 s%d, 1, 0" % S_MODE)
        o("    s_cmp_lt_i32 s%d, s%d" % (T0, S_TLO))
        o("    s_cselect_b32 s%d, 2, s%d" % (S_MODE, S_MODE))
        if stamp:
            o("    s_and_b32 s%d, s%d, 1" % (T0, S_MODE))
            o("    s_add_u32 s%d, s%d, s%d" % (S_HI, S_HI, T0))
            o("    s_and_b32 s%d, s%d, 2" % (T0, S_MODE))
            o("    s_lshl_b32 s%d, s%d, 7" % (T0, T0))
            o("    s_add_u32 s%d, s%d, s%d" % (S_HI, S_HI, T0))

    def emit_events():
        T0, T1 = S_T + 6, S_T + 7
        for tag in events:
            if noev:
                continue
            o("L_rp_%s:" % tag)
            o("    v_mov_b32 v%d, s%d" % (V_BV - 3, S_NOW))
            o("    v_mov_b32 v%d, 0x100" % (V_BV - 2))
            o("    s_mov_b64 exec, 1")
            if doat and akind == "atomic":
                o("    global_atomic_add_x2 v%d, v[%d:%d], s[%d:%d] %s" % (V_BO, V_BV - 3, V_BV - 2, abase, abase + 1, aflags))
            elif doat and akind == "store":
                o("    global_store_dwordx2 v%d, v[%d:%d], s[%d:%d] %s" % (V_BO, V_BV - 3, V_BV - 2, abase, abase + 1, aflags))
            elif doat and akind == "load":
                o("    global_load_dwordx2 v[%d:%d], v%d, s[%d:%d] %s" % (V_BV - 3, V_BV - 2, V_BO, abase, abase + 1, aflags))
            o("    s_mov_b64 exec, -1")
            o("    s_branch L_rpr_%s" % tag)
            o("L_ev_%s:" % tag)
            if nom:
                assert j0 + 1 < cal[1] + lag
                o("    s_cmp_eq_u32 s%d, %d" % (S_EV, j0))
                o("    s_cbranch_scc1 L_evl0_%s" % tag)
                o("    s_cmp_eq_u32 s%d, %d" % (S_EV, j0 + 1))
                o("    s_cbranch_scc1 L_evc0_%s" % tag)
            for k in range(1, len(cal)):
                o("    s_cmp_eq_u32 s%d, %d" % (S_EV, cal[k] + lag))
                o("    s_cbranch_scc1 L_evl%d_%s" % (k, tag))
                o("    s_cmp_eq_u32 s%d, %d" % (S_EV, cal[k] + lag + 1))
                o("    s_cbranch_scc1 L_evc%d_%s" % (k, tag))
            o("    s_branch L_evr_%s" % tag)
            if nom:
                jr = j0
                o("L_evl0_%s:" % tag)
                o("    s_load_dwordx2 s[%d:%d], s[16:17], %d" % (S_C1, S_C1 + 1, 0 if sl >= 0 else SLOT[0]))
                o("    s_mov_b32 s%d, %d" % (S_EV, jr + 1))
                o("    s_branch L_evr_%s" % tag)
                o("L_evc0_%s:" % tag)
                o("    s_mov_b32 s%d, %d" % (S_EV, cal[1] + lag))
                o("    s_lshr_b64 s[%d:%d], s[%d:%d], %d" % (S_C1, S_C1 + 1, S_C1, S_C1 + 1, nsh))
                o("    s_cmp_lg_u32 s%d, 256" % (S_C1 + 1))
                o("    s_cbranch_scc1 L_evr_%s" % tag)
                if stamp:
                    o("    s_add_u32 s%d, s%d, 0x10000" % (S_HI, S_HI))
                T1n = 16 * nom
                if sl >= 0:
                    o("    s_sub_u32 s%d, s%d, s%d" % (T0, S_TM, S_C1))
                    o("    s_mul_i32 s%d, s%d, %d" % (T0, T0, sl))
                    o("    s_sub_u32 s%d, s%d, s%d" % (S_INC, S_INC, T0))
                else:
                    o("    s_mov_b32 s%d, s%d" % (S_TM, S_C1))
                    o("    s_mov_b32 s%d, %d" % (S_INC, 4 * T1n))
                    o("    s_mov_b32 s%d, %d" % (S_ACC, T1n * (4 * (jr + 1) - (4 * cal[0] + 2 * st2) + delta)))
                    if dl8 or dh8:
                        o("    s_mov_b32 s%d, %d" % (S_THI, (T1n * (dh8 or 8 * dhi)) >> 3))
                        o("    s_mov_b32 s%d, %d" % (S_TLO, (-T1n * dl8) >> 3))
                    else:
                        o("    s_mov_b32 s%d, %d" % (S_THI, (T1n * dhi) >> tsh))
                        o("    s_mov_b32 s%d, %d" % (S_TLO, (-T1n * dlo) >> tsh))
                    if mm2:
                        o("    s_mov_b32 s82, %d" % ((T1n * dhi) >> (tsh + m2s)))
                o("    s_branch L_evr_%s" % tag)
            for k in range(1, len(cal)):
                jr = cal[k] + lag
                span = 16 if (k == 1 and n1) else cal[k] - cal[k - 1]
                assert span in (8, 16)
                o("L_evl%d_%s:" % (k, tag))
                if k == 1 and dold and not n1:
                    o("    s_load_dwordx2 s[%d:%d], s[16:17], %d" % (S_C1, S_C1 + 1, SLOT[0]))
                if dold:
                    o("    s_load_dwordx2 s[%d:%d], s[16:17], %d" % (S_C2, S_C2 + 1, SLOT[k]))
                o("    s_mov_b32 s%d, %d" % (S_EV, jr + 1))
                o("    s_branch L_evr_%s" % tag)
                o("L_evc%d_%s:" % (k, tag))
                o("    s_mov_b32 s%d, %s" % (S_EV, "0x7fffffff" if k == len(cal) - 1 else str(cal[k + 1] + lag)))
                if k == 1 and not n1:
                    o("    s_lshr_b64 s[%d:%d], s[%d:%d], %d" % (S_C1, S_C1 + 1, S_C1, S_C1 + 1, nsh))
                o("    s_lshr_b64 s[%d:%d], s[%d:%d], %d" % (S_C2, S_C2 + 1, S_C2, S_C2 + 1, nsh))
                if k == 1 and n1:
                    o("    s_mov_b32 s%d, s%d" % (T0, S_C2 + 1))
                    o("    s_mov_b32 s%d, %d" % (T1, 16 * n1))
                else:
                    o("    s_and_b32 s%d, s%d, s%d" % (T0, S_C1 + 1, S_C2 + 1))
                    o("    s_sub_u32 s%d, s%d, s%d" % (T1, S_C2, S_C1))
                o("    s_mov_b32 s%d, s%d" % (S_C1, S_C2))
                o("    s_mov_b32 s%d, s%d" % (S_C1 + 1, S_C2 + 1))
                o("    s_cmp_lg_u32 s%d, 256" % T0)
                o("    s_cbranch_scc1 L_evr_%s" % tag)
                if stamp:
                    o("    s_add_u32 s%d, s%d, 0x10000" % (S_HI, S_HI))
                if span == 8:
                    o("    s_lshl_b32 s%d, s%d, 1" % (T1, T1))
                o("    s_mov_b32 s%d, s%d" % (S_TM, S_C1))
                if ki and k == kis:
                    o("    s_mov_b32 s83, %d" % ki)
                o("    s_lshl_b32 s%d, s%d, 2" % (S_INC, T1))
                o("    s_mul_i32 s%d, s%d, %d" % (S_ACC, T1, 4 * (jr + 1) - (4 * cal[k] + 2 * st2) + delta))
                if dl8 or dh8:
                    o("    s_mul_i32 s%d, s%d, %d" % (S_THI, T1, dh8 or 8 * dhi))
                    o("    s_mul_i32 s%d, s%d, %d" % (S_TLO, T1, -dl8))
                    o("    s_ashr_i32 s%d, s%d, 3" % (S_THI, S_THI))
                    o("    s_ashr_i32 s%d, s%d, 3" % (S_TLO, S_TLO))
                else:
                    o("    s_mul_i32 s%d, s%d, %d" % (S_THI, T1, dhi))
                    o("    s_mul_i32 s%d, s%d, %d" % (S_TLO, T1, -dlo))
                if tsh:
                    o("    s_ashr_i32 s%d, s%d, %d" % (S_THI, S_THI, tsh))
                    o("    s_ashr_i32 s%d, s%d, %d" % (S_TLO, S_TLO, tsh))
                if mm2:
                    o("    s_ashr_i32 s82, s%d, %d" % (S_THI, m2s))
                epk = int(str(epsl).split(",")[k - 1]) if epsl != "" else eps
                if epk:
                    o("    s_mul_i32 s%d, s%d, %d" % (T0, T1, epk))
                    o("    s_ashr_i32 s%d, s%d, 6" % (T0, T0))
                    o("    s_sub_u32 s%d, s%d, s%d" % (S_INC, S_INC, T0))
                o("    s_branch L_evr_%s" % tag)

    def round_mfma(s, zero=False):
        if esplit:
            r = V_ER + (s % ER) * 4
            for t in range(2):
                o("    v_perm_b32 v%d, v%d, v%d, s%d" % (V_EA + 2 * t, r + 2 + t, r + t, S_SELLO))
                o("    v_perm_b32 v%d, v%d, v%d, s%d" % (V_EA + 2 * t + 1, r + 2 + t, r + t, S_SELHI))
            e = "v[%d:%d]" % (V_EA, V_EA + 3)
        else:
            e = "a[%d:%d]" % (A_E + (s % ER) * 4, A_E + (s % ER) * 4 + 3)
        o("    s_nop 1")
        for dd in range(8):
            acc = ACC + dd * 4
            o("    v_mfma_f32_16x16x32_bf16 v[%d:%d], %s, v[%d:%d], %s" %
              (acc, acc + 3, e, T + dd * 4, T + dd * 4 + 3, "0" if zero else "v[%d:%d]" % (acc, acc + 3)))

    def xlane(op, reg, tmp):
        for sw in ("v_permlane32_swap_b32", "v_permlane16_swap_b32"):
            o("    v_mov_b32 v%d, v%d" % (tmp, reg))
            o("    s_nop 1")
            o("    %s v%d, v%d" % (sw, reg, tmp))
            o("    s_nop 1")
            o("    %s v%d, v%d, v%d" % (op, reg, reg, tmp))

    def k_read(dst, w):
        for dd in range(8):
            o("    ds_read_b128 v[%d:%d], v%d offset:%d" %
              (dst + 4 * dd, dst + 4 * dd + 3, V_X, LDS_KP + w * WS + dd * DS))

    def k_add(SUM, TMP):
        for j in range(32):
            o("    v_add_f32 v%d, v%d, v%d" % (SUM + j, SUM + j, TMP + j))

    def k_transpose(SUM, TMP):
        PA = MISC
        for dd in range(8):
            o("    v_cvt_pk_bf16_f32 v%d, v%d, v%d" % (PA + 2 * dd, SUM + 4 * dd, SUM + 4 * dd + 1))
            o("    v_cvt_pk_bf16_f32 v%d, v%d, v%d" % (PA + 2 * dd + 1, SUM + 4 * dd + 2, SUM + 4 * dd + 3))
        ID = MISC + 16
        o("    v_and_b32 v%d, 15, v%d" % (V_X, V_LANE))
        o("    v_lshrrev_b32 v%d, 4, v%d" % (V_Y, V_LANE))
        o("    v_lshlrev_b32 v%d, 2, v%d" % (V_Y, V_Y))
        o("    v_sub_u32 v%d, v%d, v%d" % (V_X, V_X, V_Y))
        o("    v_mov_b32 v%d, 0" % ID)
        o("    v_mov_b32 v%d, 0" % (ID + 1))
        o("    v_mov_b32 v%d, 0x3f80" % (ID + 2))
        o("    v_mov_b32 v%d, 0x3f800000" % (ID + 3))
        for j, (dst, src) in enumerate(((ID, ID + 2), (ID, ID + 3), (ID + 1, ID + 2), (ID + 1, ID + 3))):
            o("    v_cmp_eq_u32 vcc, %d, v%d" % (j, V_X))
            o("    s_nop 1")
            o("    v_cndmask_b32 v%d, v%d, v%d, vcc" % (dst, dst, src))
        o("    s_nop 1")
        for dd in range(8):
            o("    v_mfma_f32_16x16x16_bf16 v[%d:%d], v[%d:%d], v[%d:%d], 0" %
              (TMP + 4 * dd, TMP + 4 * dd + 3, PA + 2 * dd, PA + 2 * dd + 1, ID, ID + 1))

    def k_scores(SUM, TMP):
        PB = SUM
        o("    s_nop 7")
        for s_ in range(4):
            for j in range(4):
                o("    v_cvt_pk_bf16_f32 v%d, v%d, v%d" %
                  (PB + 4 * s_ + j, TMP + (2 * j) * 4 + s_, TMP + (2 * j + 1) * 4 + s_))
        SC = SUM + 16
        o("    s_nop 1")
        for s_ in range(4):
            c = "0" if s_ == 0 else "v[%d:%d]" % (SC, SC + 3)
            o("    v_mfma_f32_16x16x32_bf16 v[%d:%d], v[%d:%d], a[%d:%d], %s" %
              (SC, SC + 3, PB + 4 * s_, PB + 4 * s_ + 3, A_Q + 4 * s_, A_Q + 4 * s_ + 3, c))

    def k_softmax(SUM):
        SC, W, M = SUM + 16, SUM + 20, SUM + 22
        o("    s_mov_b32 s%d, 0x3db504f3" % (S_T + 2))
        o("    s_mov_b32 s%d, 0x3fb8aa3b" % (S_T + 3))
        o("    s_nop 7")

        def rb():
            o("    v_cvt_pk_bf16_f32 v%d, v%d, v%d" % (W, SC, SC + 1))
            o("    v_cvt_pk_bf16_f32 v%d, v%d, v%d" % (W + 1, SC + 2, SC + 3))
            o("    v_lshlrev_b32 v%d, 16, v%d" % (SC, W))
            o("    v_and_b32 v%d, 0xffff0000, v%d" % (SC + 1, W))
            o("    v_lshlrev_b32 v%d, 16, v%d" % (SC + 2, W + 1))
            o("    v_and_b32 v%d, 0xffff0000, v%d" % (SC + 3, W + 1))

        rb()
        for i in range(4):
            o("    v_mul_f32 v%d, s%d, v%d" % (SC + i, S_T + 2, SC + i))
        rb()
        o("    v_max_f32 v%d, v%d, v%d" % (M, SC, SC + 1))
        o("    v_max3_f32 v%d, v%d, v%d, v%d" % (M, SC + 2, SC + 3, M))
        xlane("v_max_f32", M, M + 1)
        for i in range(4):
            o("    v_sub_f32 v%d, v%d, v%d" % (SC + i, SC + i, M))
        for i in range(4):
            o("    v_mul_f32 v%d, s%d, v%d" % (SC + i, S_T + 3, SC + i))
        for i in range(4):
            o("    v_exp_f32 v%d, v%d" % (SC + i, SC + i))
        o("    s_nop 0")
        o("    v_add_f32 v%d, v%d, v%d" % (M, SC, SC + 1))
        o("    v_add_f32 v%d, v%d, v%d" % (M + 1, SC + 2, SC + 3))
        o("    v_add_f32 v%d, v%d, v%d" % (M, M, M + 1))
        xlane("v_add_f32", M, M + 1)
        o("    v_rcp_f32 v%d, v%d" % (M, M))
        o("    s_nop 0")
        for i in range(4):
            o("    v_mul_f32 v%d, v%d, v%d" % (SC + i, SC + i, M))
        o("    v_cvt_pk_bf16_f32 v%d, v%d, v%d" % (W, SC, SC + 1))
        o("    v_cvt_pk_bf16_f32 v%d, v%d, v%d" % (W + 1, SC + 2, SC + 3))
        o("    v_lshlrev_b32 v%d, 3, v%d" % (V_X, V_LANE))
        o("    ds_write_b64 v%d, v[%d:%d] offset:%d" % (V_X, W, W + 1, LDS_P))

    def v_read(X):
        o("    v_lshlrev_b32 v%d, 3, v%d" % (V_X, V_LANE))
        o("    ds_read_b64 v[%d:%d], v%d offset:%d" % (MISC, MISC + 1, V_X, LDS_P))
        for w in range(4):
            for h in range(2):
                r = X + (w * 2 + h) * 4
                o("    ds_read_b128 v[%d:%d], v%d offset:%d" % (r, r + 3, V_VR, w * WS + h * 4 * DS))

    def v_prod(X):
        for j in range(8):
            o("    v_add_f32 v%d, v%d, v%d" % (X + j, X + j, X + 8 + j))
        for j in range(8):
            o("    v_add_f32 v%d, v%d, v%d" % (X + 16 + j, X + 16 + j, X + 24 + j))
        for j in range(8):
            o("    v_add_f32 v%d, v%d, v%d" % (X + j, X + j, X + 16 + j))
        VB = MISC + 4
        for h in range(2):
            o("    v_cvt_pk_bf16_f32 v%d, v%d, v%d" % (VB + 2 * h, X + 4 * h, X + 4 * h + 1))
            o("    v_cvt_pk_bf16_f32 v%d, v%d, v%d" % (VB + 2 * h + 1, X + 4 * h + 2, X + 4 * h + 3))
        o("    s_nop 1")
        for h in range(2):
            o("    v_mfma_f32_16x16x16_bf16 v[%d:%d], v[%d:%d], v[%d:%d], 0" %
              (X + 16 + 4 * h, X + 16 + 4 * h + 3, VB + 2 * h, VB + 2 * h + 1, MISC, MISC + 1))

    def ramp_stamp(tag):
        o("    s_cmp_ge_u32 s90, %d" % (63 + rp))
        o("    s_cbranch_scc1 L_rs_%s" % tag)
        o("    s_memrealtime s[92:93]")
        o("    s_sub_u32 s91, s90, %d" % (rp - 1))
        o("    s_cmp_lt_i32 s91, 0")
        o("    s_cselect_b32 s91, 0, s91")
        o("    s_mov_b32 m0, s91")
        o("    s_waitcnt lgkmcnt(0)")
        o("    v_writelane_b32 v%d, s92, m0" % V_TR2)
        o("L_rs_%s:" % tag)
        o("    s_add_u32 s90, s90, 1")

    def ih_piece(kind, p):
        k = p - ihp
        if kind == "K" and 0 <= k < 6:
            o("    s_cmp_lg_u32 s%d, s%d" % (S_WAVE, S_PMI))
            o("    s_cbranch_scc1 L_ihs%d" % p)
            if k == 0:
                o("    v_lshlrev_b32 v%d, 4, v%d" % (V_X, V_LANE))
                k_read(V_S2, 0)
                k_read(V_T2, 1)
            elif k in (1, 2):
                o("    s_waitcnt lgkmcnt(0)")
                k_add(V_S2, V_T2)
                k_read(V_T2, k + 1)
            elif k == 3:
                o("    s_waitcnt lgkmcnt(0)")
                k_add(V_S2, V_T2)
                k_transpose(V_S2, V_T2)
            elif k == 4:
                k_scores(V_S2, V_T2)
            else:
                k_softmax(V_S2)
            o("L_ihs%d:" % p)
        if kind == "V":
            if k == 0:
                v_read(V_T2)
            elif k == 1:
                o("    s_waitcnt lgkmcnt(0)")
                v_prod(V_T2)
            elif k == 2:
                o("    s_nop 7")
                for i in range(4):
                    o("    v_cvt_pk_bf16_f32 v%d, v%d, v%d" % (V_DEF + i, V_T2 + 16 + 2 * i, V_T2 + 16 + 2 * i + 1))

    S_PMI = 63

    def body(mode, m, post=False, extra=0, kind=""):
        o("L_body_%s:" % mode)
        if kind == "V" and csf:
            o("    v_lshlrev_b32 v%d, 4, v%d" % (V_Y, V_LANE))
            o("    s_lshl_b32 s%d, s%d, 10" % (S_T + 1, S_WAVE))
            o("    s_add_u32 s%d, s%d, %d" % (S_T + 1, S_T + 1, LDS_F))
            o("    v_add_u32 v%d, s%d, v%d" % (V_Y, S_T + 1, V_Y))
            o("    ds_write_b128 v%d, a[%d:%d]" % (V_Y, A_E + 4, A_E + 7))
        for p in range(8):
            s, a = divmod(p, 4)
            q = p + LA
            if half and p == 4 and not post:
                for code, other in ((0, "mid"), (1, "hi"), (2, "lo"), (4, "mi2")):
                    if other != mode and other != "mid" and (other != "mi2" or mm2):
                        o("    s_cmp_eq_u32 s%d, %d" % (S_MODE, code))
                        o("    s_cbranch_scc1 L_bodyB_%s" % other)
                if mode != "mid":
                    o("    s_cmp_eq_u32 s%d, 0" % S_MODE)
                    o("    s_cbranch_scc1 L_bodyB_mid")
                o("L_bodyB_%s:" % mode)
            if p == 0 and not post:
                step_inc()
                eoff()
            if p == 4:
                step_inc()
                if not post and not kind:
                    o("    s_cmp_eq_u32 s%d, 1" % S_CNT)
                    o("    s_cbranch_scc1 L_sw_%s" % mode)
                    o("L_swr_%s:" % mode)
                    stubs.append(mode)
                eoff()
            if kind and p == ihp:
                o("    s_waitcnt lgkmcnt(0)")
                if p not in wsyl:
                    o("    s_barrier")
            if p in wsyl and not post and not (wba and not (kind and p == ihp)):
                if wskip:
                    o("    s_cmp_ge_u32 s%d, %d" % (S_CNT, 16 - wskip))
                    o("    s_cbranch_scc1 L_nb%d_%s" % (p, mode))
                    o("    s_barrier")
                    o("L_nb%d_%s:" % (p, mode))
                else:
                    o("    s_barrier")
            if ctl and p == pc and pre:
                decide(mode)
                if ps == pc and not notime:
                    o("    s_memrealtime s[%d:%d]" % (S_NOW, S_NOW + 1))
            if post and p < 4:
                younger = 15 - (2 * p + 1) + NE
                o("    s_waitcnt vmcnt(%d)" % younger)
                if rp:
                    ramp_stamp("%s_%d" % (mode, p))
                if pst and not pro8 and p in (0, 3):
                    o("    s_cmp_eq_u32 s%d, 0" % S_MI)
                    o("    s_cbranch_scc0 L_nopst%d" % p)
                    pstp(4 if p == 0 else 5)
                    o("L_nopst%d:" % p)
            else:
                for h in range(2):
                    w = wait_of(m, p, h, extra)
                    if w is not None:
                        o("    s_waitcnt vmcnt(%d)" % w)
                    if wba and h == 0 and p in wsyl and not post and not (kind and p == ihp):
                        o("    s_barrier")
                    if rp and h == 0:
                        ramp_stamp("%s_%d" % (mode, p))
                    if h == 0 and q % 4 == 0 and not md:
                        issue_one(2 * q)
                        issue_E(q // 4)
                    elif m[-1] == "q":
                        if h == 0 and p % 2 == 0:
                            for n in range(2 * q, 2 * q + 4):
                                issue_one(n)
                    else:
                        issue_one(2 * q + h)
                if pst and pro8 and p in (0, 3):
                    o("    s_cmp_eq_u32 s%d, 0" % S_PROG)
                    o("    s_cbranch_scc0 L_nopst%d_%s" % (p, mode))
                    pstp(4 if p == 0 else 5)
                    o("L_nopst%d_%s:" % (p, mode))
            if half:
                if p == 4 or (p == 0 and not post):
                    o("    s_memrealtime s[%d:%d]" % (S_NOW, S_NOW + 1))
                if p == hca and not post:
                    decide_half(mode)
                if p == hcb:
                    decide(mode)
            else:
                if ctl and p == ps and ps != pc and not notime:
                    o("    s_memrealtime s[%d:%d]" % (S_NOW, S_NOW + 1))
                if ctl and p == pc and not pre:
                    decide(mode)
                    if ps == pc and not notime:
                        o("    s_memrealtime s[%d:%d]" % (S_NOW, S_NOW + 1))
            if md and a == 0:
                if p == 4:
                    round_mfma(0, zero=bool(kind))
                elif not post and not kind:
                    round_mfma(1)
                if not (post and p < 4) and (not eq or m[-1] == "q"):
                    issue_E(q // 4)
            if eq and a == 1 and m[-1] != "q" and not (post and p < 4):
                issue_E(q // 4)
            if kind:
                ih_piece(kind, p)
            slot = p % (4 * RS)
            xb = RING + slot * 8
            yb = xb + 4
            if jf & 1:
                xb, yb = yb, xb
            for c in range(4):
                o("    v_perm_b32 v%d, v%d, v%d, s%d" % (T + (2 * c) * 4 + (a ^ (jf >> 1)), yb + c, xb + c, S_SELLO))
                o("    v_perm_b32 v%d, v%d, v%d, s%d" % (T + (2 * c + 1) * 4 + (a ^ (jf >> 1)), yb + c, xb + c, S_SELHI))
            if a == 3 and not md:
                round_mfma(s, zero=bool(kind) and s == 0)
        o("    s_sub_u32 s%d, s%d, 1" % (S_CNT, S_CNT))
        if not post and not kind:
            o("    s_cmp_eq_u32 s%d, 0" % S_CNT)
            o("    s_cbranch_scc1 L_matend")

    def body_fin_cs():
        assert ft and ih and md and es and not eq and not jf and NE == 1
        assert (gbits, wbits, jbits) == ([11, 12], [13, 14], [8, 9, 10])
        FB, AB, V_CB, V_CR, X, RB = V_S2, V_S2 + 16, V_S2 + 24, V_S2 + 25, V_T2, RING + 32
        SB = S_T
        o("L_body_fin:")
        tstp(0)
        o("    v_lshlrev_b32 v%d, 3, v%d" % (V_X, V_LANE))
        o("    ds_read_b64 v[%d:%d], v%d offset:%d" % (MISC, MISC + 1, V_X, LDS_P))
        o("    buffer_store_dwordx4 v[%d:%d], v%d, s[%d:%d], 0 offen %s" %
          (V_DEF, V_DEF + 3, V_OUT, SRD_O, SRD_O + 3, oflags if of0 is None else of0))
        step_inc()
        o("    s_andn2_b32 s%d, s%d, 0x6000" % (SB, S_OFF))
        for k in range(1, 4):
            o("    s_or_b32 s%d, s%d, 0x%x" % (SB + k, SB, k << 13))
        o("    v_and_b32 v%d, 15, v%d" % (V_X, V_LANE))
        o("    v_lshrrev_b32 v%d, 4, v%d" % (V_Y, V_LANE))
        o("; lane offset of the column-split loads: g*2048 + wave*64 + m*4")
        o("    s_lshl_b32 s%d, s%d, 6" % (SB + 4, S_WAVE))
        o("    v_lshlrev_b32 v%d, 2, v%d" % (V_CB, V_X))
        o("    v_lshl_add_u32 v%d, v%d, 11, v%d" % (V_CB, V_Y, V_CB))
        o("    v_add_u32 v%d, s%d, v%d" % (V_CB, SB + 4, V_CB))

        def loads(k):
            for j in range(8):
                o("    buffer_load_dword v%d, v%d, s[%d:%d], s%d offen offset:%d %s" %
                  (RB + 8 * k + j, V_CB, SRD_D, SRD_D + 3, SB + k, j << 8, cflags))

        def perms_a(p):
            xb = RING + p * 8
            for c in range(4):
                o("    v_perm_b32 v%d, v%d, v%d, s%d" % (T + (2 * c) * 4 + p, xb + 4 + c, xb + c, S_SELLO))
                o("    v_perm_b32 v%d, v%d, v%d, s%d" % (T + (2 * c + 1) * 4 + p, xb + 4 + c, xb + c, S_SELHI))

        def step_b(k):
            o("    s_waitcnt vmcnt(%d)" % (8 * (3 - k)))
            if k == 3:
                tstp(2)
            for c, sel in enumerate((S_SELLO, S_SELHI)):
                for t in range(4):
                    x = RB + 8 * k + 2 * t
                    o("    v_perm_b32 v%d, v%d, v%d, s%d" % (T + 8 * k + 4 * c + t, x + 1, x, sel))
            o("    s_nop 1")
            for c in range(2):
                acc = AB + 4 * c
                o("    v_mfma_f32_16x16x32_bf16 v[%d:%d], v[%d:%d], v[%d:%d], %s" %
                  (acc, acc + 3, FB + 4 * k, FB + 4 * k + 3, T + 8 * k + 4 * c, T + 8 * k + 4 * c + 3,
                   "0" if k == 0 else "v[%d:%d]" % (acc, acc + 3)))

        NF = 0 if csf else 4
        for k in range(4):
            if csf:
                if k == 0:
                    o("    v_lshlrev_b32 v%d, 4, v%d" % (V_CR + 1, V_LANE))
                    o("    v_add_u32 v%d, %d, v%d" % (V_CR + 1, LDS_F, V_CR + 1))
                o("    ds_read_b128 v[%d:%d], v%d offset:%d" % (FB + 4 * k, FB + 4 * k + 3, V_CR + 1, 1024 * k))
            else:
                o("    s_lshr_b32 s%d, s%d, 7" % (SB + 4, SB + k))
                o("    buffer_load_dwordx4 v[%d:%d], v%d, s[%d:%d], s%d offen %s" %
                  (FB + 4 * k, FB + 4 * k + 3, V_EOFF, SRD_P, SRD_P + 3, SB + 4, eflags))
        for k in range(4 if cs == 2 else 2 if cs == 3 else 1):
            loads(k)
        round_mfma(1)
        o("    v_and_b32 v%d, 3, v%d" % (V_CR, V_X))
        o("    v_mul_u32_u24 v%d, %d, v%d" % (V_CR, 2 * DS, V_CR))
        o("    v_lshrrev_b32 v%d, 2, v%d" % (V_X, V_X))
        o("    v_lshl_add_u32 v%d, v%d, 4, v%d" % (V_X, V_Y, V_X))
        o("    v_lshl_add_u32 v%d, v%d, 4, v%d" % (V_CR, V_X, V_CR))
        o("    s_lshl_b32 s%d, s%d, 6" % (SB + 4, S_WAVE))
        o("    s_add_u32 s%d, s%d, %d" % (SB + 4, SB + 4, LDS_VP))
        o("    v_add_u32 v%d, s%d, v%d" % (V_CR, SB + 4, V_CR))
        o("    v_add_u32 v%d, %d, v%d" % (V_Y, 4 * WS, V_PW))
        for p in range(4):
            issued = 4 if cs == 2 else min(4, p + 2) if cs == 3 else p + 1
            o("    s_waitcnt vmcnt(%d)" % (6 - 2 * p + NF + 8 * issued))
            if p == 0:
                tstp(1)
            perms_a(p)
            if issued < 4:
                loads(issued)
        round_mfma(0)
        o("    s_nop 0")
        for dd in range(8):
            o("    ds_write_b128 v%d, v[%d:%d] offset:%d" % (V_Y, ACC + 4 * dd, ACC + 4 * dd + 3, dd * DS))
        o("    s_waitcnt lgkmcnt(0)")
        tstp(3)
        o("    s_barrier")
        for w in range(4):
            for c in range(2):
                r = X + (w * 2 + c) * 4
                o("    ds_read_b128 v[%d:%d], v%d offset:%d" % (r, r + 3, V_CR, w * WS + c * DS))
        step_b(0)
        step_b(1)
        o("    s_waitcnt lgkmcnt(0)")
        tstp(4)
        for j in range(8):
            o("    v_add_f32 v%d, v%d, v%d" % (X + j, X + j, X + 8 + j))
        for j in range(8):
            o("    v_add_f32 v%d, v%d, v%d" % (X + 16 + j, X + 16 + j, X + 24 + j))
        for j in range(8):
            o("    v_add_f32 v%d, v%d, v%d" % (X + j, X + j, X + 16 + j))
        for j in range(8):
            o("    v_add_f32 v%d, v%d, v%d" % (AB + j, AB + j, X + j))
        step_b(2)
        step_b(3)
        VB = MISC + 4
        o("    s_mov_b32 s%d, 0x%x" % (S_T + 2, 1 << QSH))
        o("    s_nop 5")
        for c in range(2):
            o("    v_cvt_pk_bf16_f32 v%d, v%d, v%d" % (VB + 2 * c, AB + 4 * c, AB + 4 * c + 1))
            o("    v_cvt_pk_bf16_f32 v%d, v%d, v%d" % (VB + 2 * c + 1, AB + 4 * c + 2, AB + 4 * c + 3))
        o("    s_nop 1")
        for c in range(2):
            o("    v_mfma_f32_16x16x16_bf16 v[%d:%d], v[%d:%d], v[%d:%d], 0" %
              (X + 4 * c, X + 4 * c + 3, VB + 2 * c, VB + 2 * c + 1, MISC, MISC + 1))
        o("    s_nop 7")
        for i in range(4):
            o("    v_cvt_pk_bf16_f32 v%d, v%d, v%d" % (MISC + 8 + i, X + i, X + 4 + i))
        o("    buffer_store_dwordx4 v[%d:%d], v%d, s[%d:%d], s%d offen %s" %
          (MISC + 8, MISC + 11, V_OUT, SRD_O, SRD_O + 3, S_T + 2, oflags))
        tstp(5)
        o("    s_branch L_fin")

    def body_fin():
        if cs:
            return body_fin_cs()
        o("L_body_fin:")
        tstp(0)
        if ft:
            o("    v_lshlrev_b32 v%d, 3, v%d" % (V_X, V_LANE))
            o("    ds_read_b64 v[%d:%d], v%d offset:%d" % (MISC, MISC + 1, V_X, LDS_P))
            o("    v_add_u32 v%d, %d, v%d" % (V_Y, 4 * WS, V_PW))
        if es:
            o("    buffer_store_dwordx4 v[%d:%d], v%d, s[%d:%d], 0 offen %s" %
              (V_DEF, V_DEF + 3, V_OUT, SRD_O, SRD_O + 3, oflags if of0 is None else of0))
        step_inc()
        eoff()
        issue_one(8)
        if not md:
            issue_E(1)
        for n in range(9, 16):
            issue_one(n)
        if md:
            round_mfma(1)
            issue_E(1)
        for p in range(8):
            s, a = divmod(p, 4)
            younger = 15 - (2 * p + 1) + (NE if p < 4 else 0)
            o("    s_waitcnt vmcnt(%d)" % younger)
            if p == 0:
                tstp(1)
            if p == 7:
                tstp(2)
            xb = RING + p * 8
            yb = xb + 4
            if jf & 1:
                xb, yb = yb, xb
            for c in range(4):
                o("    v_perm_b32 v%d, v%d, v%d, s%d" % (T + (2 * c) * 4 + (a ^ (jf >> 1)), yb + c, xb + c, S_SELLO))
                o("    v_perm_b32 v%d, v%d, v%d, s%d" % (T + (2 * c + 1) * 4 + (a ^ (jf >> 1)), yb + c, xb + c, S_SELHI))
            if a == 3:
                round_mfma(s)
        if not ft:
            o("    s_branch L_matend")
            return
        assert ih
        o("; last matrix: reduction, product and stores")
        o("    s_nop 0")
        for dd in range(8):
            o("    ds_write_b128 v%d, v[%d:%d] offset:%d" % (V_Y, ACC + 4 * dd, ACC + 4 * dd + 3, dd * DS))
        o("    s_mov_b32 s%d, 0x%x" % (S_T + 2, 1 << QSH))
        o("    s_waitcnt lgkmcnt(0)")
        tstp(3)
        o("    s_barrier")
        if tst:
            o("    s_memrealtime s[%d:%d]" % (PST[4], PST[4] + 1))
            o("    s_waitcnt lgkmcnt(0)")
        X = T
        for w in range(4):
            for h in range(2):
                r = X + (w * 2 + h) * 4
                o("    ds_read_b128 v[%d:%d], v%d offset:%d" % (r, r + 3, V_VR, w * WS + h * 4 * DS))
        o("    s_waitcnt lgkmcnt(4)")
        for j in range(8):
            o("    v_add_f32 v%d, v%d, v%d" % (X + j, X + j, X + 8 + j))
        o("    s_waitcnt lgkmcnt(2)")
        for j in range(8):
            o("    v_add_f32 v%d, v%d, v%d" % (X + j, X + j, X + 16 + j))
        o("    s_waitcnt lgkmcnt(0)")
        for j in range(8):
            o("    v_add_f32 v%d, v%d, v%d" % (X + j, X + j, X + 24 + j))
        VB = MISC + 4
        for h in range(2):
            o("    v_cvt_pk_bf16_f32 v%d, v%d, v%d" % (VB + 2 * h, X + 4 * h, X + 4 * h + 1))
            o("    v_cvt_pk_bf16_f32 v%d, v%d, v%d" % (VB + 2 * h + 1, X + 4 * h + 2, X + 4 * h + 3))
        o("    s_nop 1")
        for h in range(2):
            o("    v_mfma_f32_16x16x16_bf16 v[%d:%d], v[%d:%d], v[%d:%d], 0" %
              (X + 16 + 4 * h, X + 16 + 4 * h + 3, VB + 2 * h, VB + 2 * h + 1, MISC, MISC + 1))
        if not es:
            o("    buffer_store_dwordx4 v[%d:%d], v%d, s[%d:%d], 0 offen %s" %
              (V_DEF, V_DEF + 3, V_OUT, SRD_O, SRD_O + 3, oflags))
        o("    s_nop 6")
        for i in range(4):
            o("    v_cvt_pk_bf16_f32 v%d, v%d, v%d" % (MISC + 8 + i, X + 16 + 2 * i, X + 16 + 2 * i + 1))
        o("    buffer_store_dwordx4 v[%d:%d], v%d, s[%d:%d], s%d offen %s" %
          (MISC + 8, MISC + 11, V_OUT, SRD_O, SRD_O + 3, S_T + 2, oflags))
        tstp(5)
        o("    s_branch L_fin")

    pstp(3)
    if pro8 and bp:
        o("    s_mov_b32 s%d, 16" % S_CNT)
        if m0:
            o("    s_mov_b32 s%d, %d" % (S_MODE, m0))
        if mfirst:
            assert qm in (0, 1)
            if qm == 1:
                o("    s_bitcmp1_b32 s%d, 0" % S_WAVE)
                o("    s_cbranch_scc1 L_dispatch")
            o("    s_branch L_body_first")
        else:
            o("    s_branch L_dispatch")
    o("L_outer:")
    o("    s_mov_b32 s%d, 16" % S_CNT)
    if bp:
        o("; first iteration of a matrix: both rounds were issued ahead of the previous handler")
        body("post", mpost or mmid, post=True)
    o("; body selection by window mode: 0 mid, 1 hi, 2 lo, 3 last iteration")
    o("L_dispatch:")
    modes = [("mid", mmid)]
    if (ctl and force < 0) or force == 1 or tail:
        modes.append(("hi", mhi))
        o("    s_cmp_eq_u32 s%d, 1" % S_MODE)
        o("    s_cbranch_scc1 L_body_hi")
    if (ctl and force < 0) or force == 2:
        modes.append(("lo", mlo))
        o("    s_cmp_eq_u32 s%d, 2" % S_MODE)
        o("    s_cbranch_scc1 L_body_lo")
    if mm2:
        modes.append(("mi2", mm2))
        o("    s_cmp_eq_u32 s%d, 4" % S_MODE)
        o("    s_cbranch_scc1 L_body_mi2")
    if fin:
        assert ctl
        o("    s_cmp_eq_u32 s%d, 3" % S_MODE)
        o("    s_cbranch_scc1 L_body_fin")
    for mode, m in modes:
        body(mode, m)
        o("    s_branch L_dispatch")
    if mfirst:
        body("first", mfirst, extra=4)
        o("    s_branch L_dispatch")
    if fin:
        body_fin()
    o("L_matend:")
    if ih:
        assert bp and defer and fin and ihp <= 2 and not half and not esplit and hf < 0
        if not ft:
            o("    s_cmp_eq_u32 s%d, 3" % S_MI)
            o("    s_cbranch_scc1 L_final")
        if md:
            assert ft and ih and not half and not pro8 and not esplit
            round_mfma(1)
        o("    s_and_b32 s%d, s%d, 1" % (S_T, S_MI))
        o("    s_mul_i32 s%d, s%d, %d" % (S_T + 1, S_T, 4 * WS))
        o("    v_add_u32 v%d, s%d, v%d" % (V_X, S_T + 1, V_PW))
        o("    s_mov_b32 s%d, s%d" % (S_PMI, S_MI))
        o("    s_add_u32 s%d, s%d, 1" % (S_MI, S_MI))
        o("    s_mov_b32 s%d, 16" % S_CNT)
        o("    s_nop 7")
        for dd in range(8):
            o("    ds_write_b128 v%d, v[%d:%d] offset:%d" % (V_X, ACC + 4 * dd, ACC + 4 * dd + 3, dd * DS))
        o("    s_cmp_eq_u32 s%d, 1" % S_T)
        o("    s_cbranch_scc1 L_body_ihV")
        body("ihK", mih or mmid, kind="K")
        o("    s_branch L_dispatch")
        body("ihV", mih or mmid, kind="V")
        o("    s_branch L_dispatch")
        markf = len(L)
        o("; last matrix: reduction, product and both stores")
        o("L_final:")
        o("    v_add_u32 v%d, %d, v%d" % (V_X, 4 * WS, V_PW))
        o("    s_nop 7")
        o("    s_waitcnt lgkmcnt(0)")
        for dd in range(8):
            o("    ds_write_b128 v%d, v[%d:%d] offset:%d" % (V_X, ACC + 4 * dd, ACC + 4 * dd + 3, dd * DS))
        o("    s_waitcnt lgkmcnt(0)")
        tstp(3)
        o("    s_barrier")
        if tst:
            o("    s_memrealtime s[%d:%d]" % (PST[4], PST[4] + 1))
        v_read(T)
        o("    s_waitcnt lgkmcnt(0)")
        v_prod(T)
        o("    s_nop 7")
        for i in range(4):
            o("    v_cvt_pk_bf16_f32 v%d, v%d, v%d" % (MISC + 8 + i, T + 16 + 2 * i, T + 16 + 2 * i + 1))
        if not es:
            o("    buffer_store_dwordx4 v[%d:%d], v%d, s[%d:%d], 0 offen %s" %
              (V_DEF, V_DEF + 3, V_OUT, SRD_O, SRD_O + 3, oflags))
        o("    s_mov_b32 s%d, 0x%x" % (S_T + 2, 1 << QSH))
        o("    buffer_store_dwordx4 v[%d:%d], v%d, s[%d:%d], s%d offen %s" %
          (MISC + 8, MISC + 11, V_OUT, SRD_O, SRD_O + 3, S_T + 2, oflags))
        tstp(5)
        o("    s_branch L_fin")
        if ft:
            del L[markf:]
    if bp and not ih:
        o("    s_cmp_eq_u32 s%d, 3" % S_MI)
        o("    s_cbranch_scc1 L_nopf")
        step_inc()
        eoff()
        issue_one(8)
        issue_E(1)
        for n in range(9, 16):
            issue_one(n)
        o("L_nopf:")
    mark = len(L)
    o("    s_and_b32 s%d, s%d, 1" % (S_T, S_MI))
    o("    s_mul_i32 s%d, s%d, %d" % (S_T + 1, S_T, 4 * WS))
    o("    v_add_u32 v%d, s%d, v%d" % (V_X, S_T + 1, V_PW))
    o("    s_nop 7")
    if ctl:
        o("    s_waitcnt lgkmcnt(0)")
    for dd in range(8):
        o("    ds_write_b128 v%d, v[%d:%d] offset:%d" % (V_X, ACC + 4 * dd, ACC + 4 * dd + 3, dd * DS))
    o("    s_waitcnt lgkmcnt(0)")
    o("    s_barrier")
    o("    s_cmp_eq_u32 s%d, 1" % S_T)
    o("    s_cbranch_scc1 L_vend")
    o("    s_cmp_lg_u32 s%d, s%d" % (S_WAVE, S_MI))
    o("    s_cbranch_scc1 L_mat_done")
    SUM, TMP, PA = ACC, T, MISC
    o("    v_lshlrev_b32 v%d, 4, v%d" % (V_X, V_LANE))
    for w in range(4):
        dst = SUM if w == 0 else TMP
        for dd in range(8):
            o("    ds_read_b128 v[%d:%d], v%d offset:%d" %
              (dst + 4 * dd, dst + 4 * dd + 3, V_X, LDS_KP + w * WS + dd * DS))
        if w > 0:
            for dd in range(8):
                o("    s_waitcnt lgkmcnt(%d)" % (7 - dd))
                for i in range(4):
                    o("    v_add_f32 v%d, v%d, v%d" % (SUM + 4 * dd + i, SUM + 4 * dd + i, TMP + 4 * dd + i))
    for dd in range(8):
        o("    v_cvt_pk_bf16_f32 v%d, v%d, v%d" % (PA + 2 * dd, SUM + 4 * dd, SUM + 4 * dd + 1))
        o("    v_cvt_pk_bf16_f32 v%d, v%d, v%d" % (PA + 2 * dd + 1, SUM + 4 * dd + 2, SUM + 4 * dd + 3))
    ID = MISC + 16
    o("    v_and_b32 v%d, 15, v%d" % (V_X, V_LANE))
    o("    v_lshrrev_b32 v%d, 4, v%d" % (V_Y, V_LANE))
    o("    v_lshlrev_b32 v%d, 2, v%d" % (V_Y, V_Y))
    o("    v_sub_u32 v%d, v%d, v%d" % (V_X, V_X, V_Y))
    o("    v_mov_b32 v%d, 0" % ID)
    o("    v_mov_b32 v%d, 0" % (ID + 1))
    o("    v_mov_b32 v%d, 0x3f80" % (ID + 2))
    o("    v_mov_b32 v%d, 0x3f800000" % (ID + 3))
    for j, (dst, src) in enumerate(((ID, ID + 2), (ID, ID + 3), (ID + 1, ID + 2), (ID + 1, ID + 3))):
        o("    v_cmp_eq_u32 vcc, %d, v%d" % (j, V_X))
        o("    s_nop 1")
        o("    v_cndmask_b32 v%d, v%d, v%d, vcc" % (dst, dst, src))
    o("    s_nop 1")
    for dd in range(8):
        o("    v_mfma_f32_16x16x16_bf16 v[%d:%d], v[%d:%d], v[%d:%d], 0" %
          (TMP + 4 * dd, TMP + 4 * dd + 3, PA + 2 * dd, PA + 2 * dd + 1, ID, ID + 1))
    o("    s_nop 7")
    PB = SUM
    for s in range(4):
        for j in range(4):
            o("    v_cvt_pk_bf16_f32 v%d, v%d, v%d" %
              (PB + 4 * s + j, TMP + (2 * j) * 4 + s, TMP + (2 * j + 1) * 4 + s))
    SC = SUM + 16
    if qwait:
        o("    s_waitcnt vmcnt(0)")
    if qm == 2:
        assert bp and not noE
        o("    s_waitcnt vmcnt(%d)" % (16 + 2 * NE))
    for s in range(4):
        c = "0" if s == 0 else "v[%d:%d]" % (SC, SC + 3)
        o("    v_mfma_f32_16x16x32_bf16 v[%d:%d], v[%d:%d], a[%d:%d], %s" %
          (SC, SC + 3, PB + 4 * s, PB + 4 * s + 3, A_Q + 4 * s, A_Q + 4 * s + 3, c))
    o("    s_mov_b32 s%d, 0x3db504f3" % (S_T + 2))
    o("    s_mov_b32 s%d, 0x3fb8aa3b" % (S_T + 3))
    o("    s_nop 7")
    W = SUM + 20
    M = SUM + 22

    def round_bf16():
        o("    v_cvt_pk_bf16_f32 v%d, v%d, v%d" % (W, SC, SC + 1))
        o("    v_cvt_pk_bf16_f32 v%d, v%d, v%d" % (W + 1, SC + 2, SC + 3))
        o("    v_lshlrev_b32 v%d, 16, v%d" % (SC, W))
        o("    v_and_b32 v%d, 0xffff0000, v%d" % (SC + 1, W))
        o("    v_lshlrev_b32 v%d, 16, v%d" % (SC + 2, W + 1))
        o("    v_and_b32 v%d, 0xffff0000, v%d" % (SC + 3, W + 1))

    round_bf16()
    for i in range(4):
        o("    v_mul_f32 v%d, s%d, v%d" % (SC + i, S_T + 2, SC + i))
    round_bf16()
    o("    v_max_f32 v%d, v%d, v%d" % (M, SC, SC + 1))
    o("    v_max3_f32 v%d, v%d, v%d, v%d" % (M, SC + 2, SC + 3, M))

    def xlane(op, reg, tmp):
        for sw in ("v_permlane32_swap_b32", "v_permlane16_swap_b32"):
            o("    v_mov_b32 v%d, v%d" % (tmp, reg))
            o("    s_nop 1")
            o("    %s v%d, v%d" % (sw, reg, tmp))
            o("    s_nop 1")
            o("    %s v%d, v%d, v%d" % (op, reg, reg, tmp))

    xlane("v_max_f32", M, M + 1)
    for i in range(4):
        o("    v_sub_f32 v%d, v%d, v%d" % (SC + i, SC + i, M))
    for i in range(4):
        o("    v_mul_f32 v%d, s%d, v%d" % (SC + i, S_T + 3, SC + i))
    for i in range(4):
        o("    v_exp_f32 v%d, v%d" % (SC + i, SC + i))
    o("    s_nop 0")
    o("    v_add_f32 v%d, v%d, v%d" % (M, SC, SC + 1))
    o("    v_add_f32 v%d, v%d, v%d" % (M + 1, SC + 2, SC + 3))
    o("    v_add_f32 v%d, v%d, v%d" % (M, M, M + 1))
    xlane("v_add_f32", M, M + 1)
    o("    v_rcp_f32 v%d, v%d" % (M, M))
    o("    s_nop 0")
    for i in range(4):
        o("    v_mul_f32 v%d, v%d, v%d" % (SC + i, SC + i, M))
    o("    v_cvt_pk_bf16_f32 v%d, v%d, v%d" % (W, SC, SC + 1))
    o("    v_cvt_pk_bf16_f32 v%d, v%d, v%d" % (W + 1, SC + 2, SC + 3))
    o("    v_lshlrev_b32 v%d, 3, v%d" % (V_X, V_LANE))
    o("    ds_write_b64 v%d, v[%d:%d] offset:%d" % (V_X, W, W + 1, LDS_P))
    o("    s_waitcnt lgkmcnt(0)")
    o("    s_branch L_mat_done")

    o("L_vend:")
    PP = MISC
    o("    v_lshlrev_b32 v%d, 3, v%d" % (V_X, V_LANE))
    o("    ds_read_b64 v[%d:%d], v%d offset:%d" % (PP, PP + 1, V_X, LDS_P))
    for w in range(4):
        for h in range(2):
            r = T + (w * 2 + h) * 4
            o("    ds_read_b128 v[%d:%d], v%d offset:%d" % (r, r + 3, V_VR, w * WS + h * 4 * DS))
    o("    s_waitcnt lgkmcnt(4)")
    for j in range(8):
        o("    v_add_f32 v%d, v%d, v%d" % (T + j, T + j, T + 8 + j))
    o("    s_waitcnt lgkmcnt(0)")
    for j in range(8):
        o("    v_add_f32 v%d, v%d, v%d" % (T + 16 + j, T + 16 + j, T + 24 + j))
    for j in range(8):
        o("    v_add_f32 v%d, v%d, v%d" % (T + j, T + j, T + 16 + j))
    VB = MISC + 4
    for h in range(2):
        o("    v_cvt_pk_bf16_f32 v%d, v%d, v%d" % (VB + 2 * h, T + 4 * h, T + 4 * h + 1))
        o("    v_cvt_pk_bf16_f32 v%d, v%d, v%d" % (VB + 2 * h + 1, T + 4 * h + 2, T + 4 * h + 3))
    OO = T + 16
    o("    s_lshr_b32 s%d, s%d, 1" % (S_T + 2, S_MI))
    o("    s_lshl_b32 s%d, s%d, %d" % (S_T + 2, S_T + 2, QSH))
    if hf >= 0:
        o("    s_xor_b32 s%d, s%d, s%d" % (S_T + 2, S_T + 2, S_FL))
    for h in range(2):
        o("    v_mfma_f32_16x16x16_bf16 v[%d:%d], v[%d:%d], v[%d:%d], 0" %
          (OO + 4 * h, OO + 4 * h + 3, VB + 2 * h, VB + 2 * h + 1, PP, PP + 1))
    o("    s_nop 7")
    for i in range(4):
        o("    v_cvt_pk_bf16_f32 v%d, v%d, v%d" % (MISC + 8 + i, OO + 2 * i, OO + 2 * i + 1))
    if noout or defer:
        o("    s_cmp_eq_u32 s%d, 1" % S_MI)
        o("    s_cbranch_scc0 L_store")
        if defer:
            for i in range(4):
                o("    v_mov_b32 v%d, v%d" % (V_DEF + i, MISC + 8 + i))
        o("    s_branch L_mat_done")
        o("L_store:")
        if defer:
            o("    buffer_store_dwordx4 v[%d:%d], v%d, s[%d:%d], %s offen %s" %
              (V_DEF, V_DEF + 3, V_OUT, SRD_O, SRD_O + 3, "s%d" % S_FL if hf >= 0 else "0", oflags))
    o("    buffer_store_dwordx4 v[%d:%d], v%d, s[%d:%d], s%d offen %s" %
      (MISC + 8, MISC + 11, V_OUT, SRD_O, SRD_O + 3, S_T + 2, oflags))

    o("L_mat_done:")
    o("    s_add_u32 s%d, s%d, 1" % (S_MI, S_MI))
    o("    s_cmp_eq_u32 s%d, 4" % S_MI)
    o("    s_cbranch_scc1 L_fin")
    for j in range(32):
        o("    v_mov_b32 v%d, 0" % (ACC + j))
    o("    s_branch L_outer")
    if ih:
        del L[mark:]

    if ctl:
        o("; ---- progress reports (L_rp) and progress line updates (L_ev) ----")
        emit_events()
    o("; ---- load side moves on to the next matrix ----")
    for tag in stubs:
        o("L_sw_%s:" % tag)
        if qm == 2:
            o("    s_cmp_lg_u32 s%d, s%d" % (S_LM, S_WAVE))
            o("    s_cbranch_scc1 L_swq_%s" % tag)
            o("    s_bitcmp1_b32 s%d, 0" % S_WAVE)
            o("    s_cbranch_scc1 L_swq_%s" % tag)
            o("    v_and_b32 v%d, 15, v%d" % (V_X, V_LANE))
            o("    v_lshrrev_b32 v%d, 4, v%d" % (V_Y, V_LANE))
            load_q(V_X, V_Y, V_X, S_T + 6)
            o("L_swq_%s:" % tag)
        o("    s_mov_b32 s%d, s%d" % (S_OFF, S_OFF0))
        if general:
            o("    s_mov_b32 s%d, 0" % S_STP)
        if hf >= 0:
            o("    s_add_u32 s%d, s%d, s%d" % (S_T + 4, SRD_D, S_ADV))
            o("    s_addc_u32 s%d, s%d, s%d" % (S_T + 5, SRD_D + 1, S_ADVH))
        else:
            o("    s_add_u32 s%d, s%d, 0x%x" % (S_T + 4, SRD_D, 1 << mb))
            o("    s_addc_u32 s%d, s%d, 0" % (S_T + 5, SRD_D + 1))
        o("    s_mov_b32 s%d, s%d" % (SRD_D, NXT_D))
        o("    s_mov_b32 s%d, s%d" % (SRD_D + 1, NXT_D + 1))
        o("    s_mov_b32 s%d, s%d" % (NXT_D, S_T + 4))
        o("    s_mov_b32 s%d, s%d" % (NXT_D + 1, S_T + 5))
        o("    s_mov_b32 s%d, s%d" % (S_T + 4, SRD_P))
        o("    s_mov_b32 s%d, s%d" % (S_T + 5, SRD_P + 1))
        o("    s_mov_b32 s%d, s%d" % (SRD_P, NXT_P))
        o("    s_mov_b32 s%d, s%d" % (SRD_P + 1, NXT_P + 1))
        o("    s_mov_b32 s%d, s%d" % (NXT_P, S_T + 4))
        o("    s_mov_b32 s%d, s%d" % (NXT_P + 1, S_T + 5))
        o("    s_add_u32 s%d, s%d, 1" % (S_LM, S_LM))
        o("    s_cmp_eq_u32 s%d, 4" % S_LM)
        o("    s_cselect_b32 s%d, 0, 0x%x" % (SRD_D + 2, DSZ))
        o("    s_cselect_b32 s%d, 0, 0x20000" % (SRD_P + 2))
        o("    s_branch L_swr_%s" % tag)

    o("L_fin:")
    if stamp:
        o("    s_waitcnt vmcnt(0)")
        o("    s_memrealtime s[62:63]")
        o("    s_getreg_b32 s58, hwreg(HW_REG_XCC_ID)")
        o("    s_getreg_b32 s59, hwreg(HW_REG_HW_ID)")
        o("    s_waitcnt lgkmcnt(0)")
        o("    s_lshl_b32 s%d, s2, 2" % S_T)
        o("    s_add_u32 s%d, s%d, s%d" % (S_T, S_T, S_WAVE))
        o("    s_lshl_b32 s%d, s%d, 4" % (S_T, S_T))
        o("    v_mov_b32 v4, s60")
        o("    v_mov_b32 v5, s62")
        o("    v_mov_b32 v6, s58")
        if pstamp:
            o("    s_sub_u32 s82, s82, s60")
        o("    v_mov_b32 v7, s%d" % (82 if pstamp else (S_HI if ctl else 59)))
        o("    v_mov_b32 v2, s%d" % S_T)
        o("    global_store_dwordx4 v2, v[4:7], s[18:19]")
        if pst:
            o("    s_lshl_b32 s%d, s%d, 1" % (S_T + 1, S_T))
            o("    s_add_u32 s%d, s%d, 0x60000" % (S_T + 1, S_T + 1))
            o("    v_mov_b32 v2, s%d" % (S_T + 1))
            for k in range(6):
                o("    s_sub_u32 s%d, s%d, s60" % (PST[k], PST[k]))
                o("    v_mov_b32 v%d, s%d" % (8 + k, PST[k]))
            o("    global_store_dwordx4 v2, v[8:11], s[18:19]")
            o("    global_store_dwordx2 v2, v[12:13], s[18:19] offset:16")
        if trace or rp:
            o("    s_lshl_b32 s%d, s%d, 4" % (S_T, S_T))
            o("    s_add_u32 s%d, s%d, 0x10000" % (S_T, S_T))
            o("    v_lshlrev_b32 v2, 2, v0")
            o("    v_add_u32 v2, s%d, v2" % S_T)
            o("    global_store_dword v2, v%d, s[18:19]" % V_BV)
            if trace == 2 or rp:
                o("    v_add_u32 v2, 0x40000, v2")
                o("    global_store_dword v2, v%d, s[18:19]" % V_TR2)
    o("L_end:")
    o("    s_endpgm")
    nvg = max(accum_offset + na, 264)
    o('.section .rodata,"a"')
    o(".p2align 6")
    o(".amdhsa_kernel %s_kernel" % NAME)
    o("  .amdhsa_next_free_vgpr %d" % nvg)
    o("  .amdhsa_next_free_sgpr %d" % (96 if pst or rp else 88))
    o("  .amdhsa_accum_offset %d" % accum_offset)
    o("  .amdhsa_group_segment_fixed_size 0")
    o("  .amdhsa_kernarg_size 64")
    o("  .amdhsa_user_sgpr_count 2")
    o("  .amdhsa_user_sgpr_kernarg_segment_ptr 1")
    o("  .amdhsa_system_sgpr_workgroup_id_x 1")
    o("  .amdhsa_float_denorm_mode_32 3")
    o(".end_amdhsa_kernel")
    return "\n".join(L) + "\n"


if __name__ == "__main__":
    out = sys.argv[1]
    kw = {}
    for a in sys.argv[2:]:
        k, v = a.split("=")
        if k not in ("flags", "eflags", "oflags", "mlo", "mmid", "mhi", "cal", "aflags", "akind", "mpost", "mfirst", "xm", "jb", "gb", "wb", "sb", "pb", "af", "jx", "mm2", "wsy", "ewf", "mih", "epsl", "of0", "cflags"):
            v = int(v)
        else:
            v = v.replace("+", " ")
        kw[k] = v
    open(out, "w").write(gen(**kw))
```

```python
import sys

NAME = "standalone__low_rank_proj_linformer__sampling"
HEADER = open("cdna_kernels/%s.s.ref" % NAME).read().split("; Override launch")[0]

DOC = """
Linformer attention: kp = E.K, vp = F.V (rank 16), p = softmax(bf16(q.kp^T) * 128^-0.5), out = p.vp.
The kernel is bound by the 1 GiB read of K and V.

Work split: 256 workgroups x 4 waves, one workgroup per CU, two heads per workgroup.
A workgroup streams K(h0), V(h0), K(h1), V(h1); a round covers 128 rows (32 KiB), wave w takes
rows [32w, 32w+32), an iteration is two rounds.  Per round a wave issues 8 dwordx4 loads into a register
ring (two rounds deep), transposes 8x8 blocks with v_perm and accumulates E^T-fragment x data with
8 MFMA 16x16x32.  The four waves meet at a barrier before every load pair, which keeps their DRAM pages common.
At the end of a matrix the four partial sums go to LDS; the reduction, the scores and the softmax (one
wave) or the product p.vp (all waves) run in pieces inside the next iteration, so the load stream never
pauses.  The first head's output stays in registers until the last iteration.
The very last round is split by columns instead of rows (wave w: columns [32w, 32w+32), dword loads): the
sums of the earlier rounds are exchanged while it is in flight and no exchange follows it.
At the start the code and both projection matrices are touched once so that later uses hit the L2.

Load-window balancing: the dies start at different times and get unequal shares of the memory bandwidth,
and the slowest die sets the run time.  The loop body exists three times and differs only in how many
loads it keeps in flight (lo / mid / hi).  Once per iteration each wave compares its clock with a progress
line and picks the body: hi when it lags, lo when it leads.  The first line is the wave's own start time
plus nominal times; it moves towards the mean start time of the grid, and from iteration 14 on it is the
measured grid-wide progress.  A few waves add their clock value to counters in d_debug for this.
The choice changes timing only, never the result, and no wave ever waits on the clock or on another
workgroup.
"""


def gen(flags="nt", eflags="sc1", oflags="", stamp=0, force=-1, ctl=1,
        mlo="5s", mmid="6p", mhi="8p", dhi=1, dlo=1, cal="9,25", lag=8, delta=0, eps=0, ps=0, pc=6,
        tail=0, notime=0, pre=0, noev=0, trace=0,
        doat=1, dold=1, aflags="sc1", akind="atomic", abase=16, wmap=0, amask=0, aval=0,
        ns=256, stag=4, noout=0, defer=0, bp=0, noE=0, mpost="", qwait=0, pstamp=0, fin=0, tsh=0, pst=0, early=0, pf=0, pfw=256, pro8=0, qm=0, m0=0, mfirst="", tw=0, pdec=1, wa=0, rot=0, gp=11, wp=13, xm="", hb=8, hb2=0, jb="", gb="", wb="", sb="", mb=20, pb="", hf=-1, tf=-1, af="", jx="", prb=0, e0=0, eg=0, egs=1, mm2="", m2s=1, wsy="", nom=0, lag0=3, dl8=0, dh8=0, ew=0, ewf="", wskip=0, half=0, hca=2, hcb=6, sl=-1, c0=210, n1=0, ih=0, mih="", ihp=2, sl0=1, rp=0, tst=0, ft=0, es=0, pfs=6, epsl="", ki=0, im=40, kis=1, wba=0, jf=0, md=0, eq=0, egl=0, ap=0, xo=16, of0=None, cs=0, cflags="nt", csf=0, csb=0):
    LA, RS, ER, P = 4, 2, 2, 2
    cal = [int(x) for x in str(cal).split(",")]
    assert 2 <= len(cal) <= 4
    SLOT = [0, 128, 64, 192]
    if sl >= 0 and not n1:
        SLOT = [136, 128, 64, 192]
    j0 = sl0 if sl >= 0 else cal[0] + lag0
    nsh = ns.bit_length() - 1
    assert ns == 1 << nsh and ns >= 8 * stag
    st2 = stag - 1
    nobar = nocomp = 0
    wsyl = [int(x) for x in str(wsy).split(",")] if wsy != "" else []
    general = (gp, wp, xm, hb, jb, gb, wb, sb) != (11, 13, "", 8, "", "", "", "")
    gbits = [int(x) for x in str(gb).split(",")] if gb else [gp, gp + 1]
    wbits = [int(x) for x in str(wb).split(",")] if wb else [wp, wp + 1]
    if jb:
        jbits = [int(x) for x in str(jb).split(",")]
    elif hb == 8:
        jbits = [8, 9, 10]
    elif hb2:
        jbits = [hb, hb2, 8]
    else:
        jbits = [hb, 8, 9]
    holes = sum(1 << b for b in gbits + wbits + jbits)
    assert bin(holes).count("1") == 7 and min(gbits + wbits) >= 8
    sbits = [b for b in range(8, 20) if not (holes >> b) & 1]
    if sb:
        sbits = [int(x) for x in str(sb).split(",")]
        assert sbits == sorted(sbits) and len(sbits) == 5
        holes = 0xffffff00 & ~sum(1 << b for b in sbits)
    pbits = [int(x) for x in str(pb).split(",")] if pb else [b for b in range(20, 29) if b != mb]
    allb = gbits + wbits + jbits + sbits + [mb] + pbits
    assert sorted(allb) == list(range(8, 29)), sorted(allb)
    probe = max(gbits + wbits + jbits + sbits) >= 20 or mb < 20 or bool(prb)
    headmap = (mb, pbits) != (20, list(range(21, 29)))
    offmask = sum(1 << b for b in gbits + wbits + jbits + sbits) | 0xff
    big_j = [b for b in jbits if b >= 12]
    afl = [int(x) for x in str(af).split(",")] if af else []
    af_s = sum(1 << b for b in afl if b in wbits + sbits)
    af_g = sum(1 << b for b in afl if b in gbits)
    S_OFFB = 87
    jxl = [tuple(int(y) for y in x.split(":")) for x in jx.split(",")] if jx else []
    jx_j = [(tb, sb_) for tb, sb_ in jxl if tb in jbits]
    jx_g = [(tb, sb_) for tb, sb_ in jxl if tb in gbits]
    assert len(jx_j) + len(jx_g) == len(jxl)
    xml = [tuple(int(y) for y in x.split(":")) for x in xm.split(",")] if xm else []
    if general:
        assert wa == 0 and rot == 0 and not early
    L = []
    o = L.append
    DS = 1088
    WS = 8 * DS
    LDS_P, LDS_KP, LDS_VP = 0, 512, 512 + 4 * WS
    lds = 512 + 8 * WS
    LDS_F = lds
    if csf:
        lds += 4096
    o(HEADER.rstrip())
    o("; @launch grid=(256,1,1) block=(256,1,1) lds=%d" % lds)
    for line in DOC.strip("\n").split("\n"):
        o(("; " + line).rstrip())
    o('.amdgcn_target "amdgcn-amd-amdhsa--gfx950"')
    o(".text")
    o(".globl %s_kernel" % NAME)
    o(".p2align 8")
    o(".type %s_kernel,@function" % NAME)
    o("%s_kernel:" % NAME)

    V_LANE, V_OFF, V_EOFF, V_PW, V_VR, V_OUT, V_X, V_Y = 0, 1, 2, 3, 4, 5, 6, 7
    ACC = 8
    T = 40
    MISC = 72
    V_BO, V_BV = MISC + 22, MISC + 23
    RING = 96
    V_DEF = RING + 32 * RS
    V_OFFX = V_DEF + 4
    nv = V_DEF + 4 + ((1 << len(big_j)) - 1)
    V_OFFJ = nv
    if jx_j:
        assert not big_j
        nv += 8
    esplit = jbits[1:] == [8, 9] and jbits[0] > 9 and not prb
    NE = 0 if noE else (2 if esplit else 1)
    V_ER = V_EA = 0
    if esplit:
        nv = (nv + 1) // 2 * 2
        V_ER = nv
        V_EA = (V_ER + 4 * ER + 3) // 4 * 4
        nv = V_EA + 4
    V_S2 = V_T2 = 0
    if ih:
        V_S2 = (nv + 3) // 4 * 4
        V_T2 = V_S2 + 32
        nv = V_T2 + 32
    V_TR2 = nv
    if trace == 2 or rp:
        nv += 4
    assert nv <= 256
    A_Q = 0
    A_E = 16
    na = A_E + 4 * ER
    accum_offset = (nv + 3) // 4 * 4

    S_SELLO, S_SELHI, S_WAVE, S_OFF, S_EOFF, S_CNT, S_MI, S_LM = 20, 21, 22, 23, 24, 25, 26, 27
    S_PROG = 57
    SRD_D, SRD_P = 28, 32
    NXT_D, NXT_P = 36, 38
    SRD_Q, SRD_O = 40, 44
    S_T = 48

    o("    s_cmp_ge_u32 s2, 256")
    o("    s_cbranch_scc1 L_end")
    o("    s_load_dwordx16 s[4:19], s[0:1], 0")
    if stamp:
        o("    s_memrealtime s[60:61]")
    if sl >= 0:
        o("    s_memrealtime s[72:73]")
    PST = [84, 86, 88, 90, 92, 94]

    def pstp(k):
        if pst and not tst:
            o("    s_memrealtime s[%d:%d]" % (PST[k], PST[k] + 1))

    def tstp(k):
        if tst:
            o("    s_memrealtime s[%d:%d]" % (PST[k], PST[k] + 1))

    def code_prefetch():
        if pfw < 256:
            o("    s_cmp_ge_u32 s2, %d" % pfw)
            o("    s_cbranch_scc1 L_nopfc")
        o("    s_getpc_b64 s[%d:%d]" % (S_T + 4, S_T + 5))
        o("L_pc:")
        o("    v_lshlrev_b32 v%d, %d, v%d" % (V_PW, pfs, V_TID))
        if pfs > 6:
            o("    v_cmp_gt_u32 vcc, L_end-L_pc, v%d" % V_PW)
            o("    s_and_saveexec_b64 s[%d:%d], vcc" % (S_T + 6, S_T + 7))
            o("    s_cbranch_execz L_pfx")
            o("    global_load_dword v%d, v%d, s[%d:%d]" % (V_DEF + 3, V_PW, S_T + 4, S_T + 5))
            o("L_pfx:")
            o("    s_mov_b64 exec, -1")
        else:
            o("    v_min_u32 v%d, L_end-L_pc, v%d" % (V_PW, V_PW))
            o("    global_load_dword v%d, v%d, s[%d:%d]" % (V_DEF + 3, V_PW, S_T + 4, S_T + 5))
        if pfw < 256:
            o("L_nopfc:")

    V_TID = 0
    S_TMP0, S_TMP1, S_JC = S_T + 4, S_T + 5, 83
    if pf:
        code_prefetch()
    o("    v_lshrrev_b32 v%d, 6, v0" % V_X)
    o("    v_and_b32 v%d, 63, v0" % V_LANE)
    o("    v_readfirstlane_b32 s%d, v%d" % (S_WAVE, V_X))
    if not early:
        o("    s_mov_b32 s%d, 0x05040100" % S_SELLO)
        o("    s_mov_b32 s%d, 0x07060302" % S_SELHI)
    o("    v_and_b32 v%d, 15, v%d" % (V_X, V_LANE))
    o("    v_lshrrev_b32 v%d, 4, v%d" % (V_Y, V_LANE))
    o("    v_lshlrev_b32 v%d, 4, v%d" % (V_OFF, V_X))
    if gbits[1] == gbits[0] + 1:
        o("    v_lshl_add_u32 v%d, v%d, %d, v%d" % (V_OFF, V_Y, gbits[0], V_OFF))
    else:
        o("    v_and_b32 v%d, 1, v%d" % (V_PW, V_Y))
        o("    v_lshl_add_u32 v%d, v%d, %d, v%d" % (V_OFF, V_PW, gbits[0], V_OFF))
        o("    v_lshrrev_b32 v%d, 1, v%d" % (V_PW, V_Y))
        o("    v_lshl_add_u32 v%d, v%d, %d, v%d" % (V_OFF, V_PW, gbits[1], V_OFF))
    if probe:
        o("    v_lshlrev_b32 v%d, 13, v%d" % (V_EOFF, V_X))
        o("    v_lshl_add_u32 v%d, v%d, 4, v%d" % (V_EOFF, V_Y, V_EOFF))
    elif not early:
        o("    v_lshlrev_b32 v%d, 13, v%d" % (V_EOFF, V_X))
        if gbits[1] == gbits[0] + 1:
            o("    v_lshl_add_u32 v%d, v%d, %d, v%d" % (V_EOFF, V_Y, gbits[0] - 7, V_EOFF))
        else:
            o("    v_and_b32 v%d, 1, v%d" % (V_PW, V_Y))
            o("    v_lshl_add_u32 v%d, v%d, %d, v%d" % (V_EOFF, V_PW, gbits[0] - 7, V_EOFF))
            o("    v_lshrrev_b32 v%d, 1, v%d" % (V_PW, V_Y))
            o("    v_lshl_add_u32 v%d, v%d, %d, v%d" % (V_EOFF, V_PW, gbits[1] - 7, V_EOFF))
    for tb, sb_ in jx_g:
        o("    s_bfe_u32 s%d, s2, 0x%x" % (S_TMP0, 0x10000 | sb_))
        o("    s_lshl_b32 s%d, s%d, %d" % (S_TMP1, S_TMP0, tb))
        o("    v_xor_b32 v%d, s%d, v%d" % (V_OFF, S_TMP1, V_OFF))
        o("    s_lshl_b32 s%d, s%d, %d" % (S_TMP1, S_TMP0, tb - 7))
        o("    v_xor_b32 v%d, s%d, v%d" % (V_EOFF, S_TMP1, V_EOFF))
    if jx_j:
        o("    s_mov_b32 s%d, 0" % S_JC)
        for tb, sb_ in jx_j:
            o("    s_bfe_u32 s%d, s2, 0x%x" % (S_TMP0, 0x10000 | sb_))
            o("    s_lshl_b32 s%d, s%d, %d" % (S_TMP0, S_TMP0, tb))
            o("    s_xor_b32 s%d, s%d, s%d" % (S_JC, S_JC, S_TMP0))
        for i in range(8):
            a_ = sum(1 << b for t, b in enumerate(jbits) if (i >> t) & 1)
            o("    s_xor_b32 s%d, s%d, 0x%x" % (S_TMP0, S_JC, a_))
            o("    v_or_b32 v%d, s%d, v%d" % (V_OFFJ + i, S_TMP0, V_OFF))
    for sel in range(1, 1 << len(big_j)):
        add = sum(1 << b for t, b in enumerate(big_j) if (sel >> t) & 1)
        if af_g and sel & 1:
            o("    v_xor_b32 v%d, 0x%x, v%d" % (V_OFFX + sel - 1, af_g, V_OFF))
            o("    v_add_u32 v%d, 0x%x, v%d" % (V_OFFX + sel - 1, add, V_OFFX + sel - 1))
        else:
            o("    v_add_u32 v%d, 0x%x, v%d" % (V_OFFX + sel - 1, add, V_OFF))
    S_STP = 56
    if wbits[1] == wbits[0] + 1:
        o("    s_lshl_b32 s%d, s%d, %d" % (S_OFF, S_WAVE, wbits[0] if general else 13 + wa))
    else:
        o("    s_and_b32 s%d, s%d, 1" % (S_OFF, S_WAVE))
        o("    s_lshl_b32 s%d, s%d, %d" % (S_OFF, S_OFF, wbits[0]))
        o("    s_lshr_b32 s%d, s%d, 1" % (S_T + 4, S_WAVE))
        o("    s_lshl_b32 s%d, s%d, %d" % (S_T + 4, S_T + 4, wbits[1]))
        o("    s_or_b32 s%d, s%d, s%d" % (S_OFF, S_OFF, S_T + 4))
    if general:
        o("    s_mov_b32 s%d, 0" % S_STP)
        for tb, sb in xml:
            o("    s_bfe_u32 s%d, s2, 0x%x" % (S_T + 4, 0x10000 | sb))
            o("    s_lshl_b32 s%d, s%d, %d" % (S_T + 4, S_T + 4, tb))
            o("    s_xor_b32 s%d, s%d, s%d" % (S_OFF, S_OFF, S_T + 4))
    if rot:
        assert wa == 0
        R = S_T + 4
        if rot == 1:
            o("    s_lshr_b32 s%d, s2, 3" % R)
        elif rot == 2:
            o("    s_mov_b32 s%d, s2" % R)
        elif rot == 3:
            o("    s_lshl_b32 s%d, s2, 2" % R)
        elif rot == 4:
            o("    s_lshr_b32 s%d, s2, 3" % R)
            o("    s_lshl_b32 s%d, s2, 2" % (R + 1))
            o("    s_add_u32 s%d, s%d, s%d" % (R, R, R + 1))
        elif rot == 5:
            o("    s_lshr_b32 s%d, s2, 3" % R)
            o("    s_and_b32 s%d, s%d, 1" % (R, R))
        elif rot == 6:
            o("    s_lshr_b32 s%d, s2, 3" % R)
            o("    s_and_b32 s%d, s%d, 3" % (R, R))
        elif rot == 7:
            o("    s_lshr_b32 s%d, s2, 3" % R)
            o("    s_lshl_b32 s%d, s%d, 3" % (R, R))
        elif rot == 8:
            o("    s_lshr_b32 s%d, s2, 3" % R)
            o("    s_lshl_b32 s%d, s%d, 4" % (R, R))
        o("    s_and_b32 s%d, s%d, 31" % (R, R))
        o("    s_lshl_b32 s%d, s%d, 15" % (R, R))
        o("    s_add_u32 s%d, s%d, s%d" % (S_OFF, S_OFF, R))
    S_EV, S_MODE, S_ACC, S_INC, S_TM, S_NOW, S_THI, S_TLO = 64, 65, 66, 67, 72, 74, 76, 77
    S_C1, S_C2, S_HI, S_OFF0, S_RP, S_OK = 68, 70, 78, 79, 80, 81

    def eoff():
        o("    s_lshr_b32 s%d, s%d, 7" % (S_EOFF, S_OFF))
        if af_s:
            o("    s_xor_b32 s%d, s%d, 0x%x" % (S_OFFB, S_OFF, af_s))
        if probe:
            o("    s_and_b32 s%d, s%d, 0x1fc0" % (S_EOFF, S_EOFF))

    def step_inc():
        if general:
            o("    s_or_b32 s%d, s%d, 0x%x" % (S_STP, S_STP, holes))
            o("    s_add_u32 s%d, s%d, 0x%x" % (S_STP, S_STP, 1 << sbits[0]))
            o("    s_andn2_b32 s%d, s%d, 0x%x" % (S_STP, S_STP, holes))
            o("    s_xor_b32 s%d, s%d, s%d" % (S_OFF, S_STP, S_OFF0))
        elif wa == 0:
            o("    s_add_u32 s%d, s%d, 0x8000" % (S_OFF, S_OFF))
            if rot:
                o("    s_and_b32 s%d, s%d, 0xfffff" % (S_OFF, S_OFF))
        elif wa == 5:
            o("    s_add_u32 s%d, s%d, 0x2000" % (S_OFF, S_OFF))
        else:
            hole = 3 << (13 + wa)
            o("    s_or_b32 s%d, s%d, 0x%x" % (S_OFF, S_OFF, hole))
            o("    s_add_u32 s%d, s%d, 0x2000" % (S_OFF, S_OFF))
            o("    s_andn2_b32 s%d, s%d, 0x%x" % (S_OFF, S_OFF, hole))
            o("    s_or_b32 s%d, s%d, s%d" % (S_OFF, S_OFF, S_OFF0))

    def ctl_setup():
        U = S_T + 6 if early else S_T
        o("    s_mov_b32 s%d, %d" % (S_MODE, {-1: 0, 0: 0, 1: 1, 2: 2}[force]))
        if ctl:
            o("    s_mov_b32 s%d, 0" % S_PROG)
            if ki:
                o("    s_mov_b32 s82, 0")
                o("    s_mov_b32 s83, 0")
            o("    s_mov_b32 s%d, 0" % S_HI)
            if sl >= 0:
                T1n = 16 * nom
                o("    s_mov_b32 s%d, %d" % (S_ACC, 64 * c0))
                o("    s_mov_b32 s%d, %d" % (S_INC, 4 * T1n))
                o("    s_mov_b32 s%d, 0" % S_NOW)
                o("    s_mov_b32 s%d, %d" % (S_THI, (T1n * (dh8 or 8 * dhi)) >> 3))
                o("    s_mov_b32 s%d, %d" % (S_TLO, (-T1n * (dl8 or 8 * dlo)) >> 3))
                assert not mm2
            else:
                o("    s_mov_b32 s%d, 0" % S_ACC)
                o("    s_mov_b32 s%d, 0" % S_INC)
                o("    s_mov_b32 s%d, 0" % S_TM)
                o("    s_mov_b32 s%d, 0" % S_NOW)
                o("    s_mov_b32 s%d, 0x7fffffff" % S_THI)
                if mm2:
                    o("    s_mov_b32 s82, 0x7fffffff")
                o("    s_mov_b32 s%d, 0x80000000" % S_TLO)
            o("    s_lshr_b32 s%d, s2, 3" % U)
            o("    s_and_b32 s%d, s%d, %d" % (U, U, stag - 1))
            o("    s_mov_b32 s%d, 0x7fffffff" % S_RP)
            o("    s_mov_b32 s%d, 0" % (U + 1))
            for k, c in enumerate(cal):
                if sl >= 0 and k == 0 and n1:
                    continue
                o("    s_cmp_eq_u32 s%d, %d" % (S_WAVE, (k + 1) & 3))
                o("    s_cselect_b32 s%d, %d, s%d" % (S_RP, c, S_RP))
                o("    s_cselect_b32 s%d, %d, s%d" % (U + 1, SLOT[k], U + 1))
            o("    v_mov_b32 v%d, s%d" % (V_BO, U + 1))
            o("    s_cmp_lg_u32 s%d, 0x7fffffff" % S_RP)
            o("    s_cselect_b32 s%d, s%d, 0" % (U, U))
            o("    s_add_u32 s%d, s%d, s%d" % (S_RP, S_RP, U))
            if ns < 256:
                o("    s_cmp_lt_u32 s2, %d" % ns)
                o("    s_cselect_b32 s%d, s%d, 0x7fffffff" % (S_RP, S_RP))
            if amask:
                o("    s_and_b32 s%d, s2, %d" % (U, amask))
                o("    s_cmp_eq_u32 s%d, %d" % (U, aval))
                o("    s_cselect_b32 s%d, s%d, 0x7fffffff" % (S_RP, S_RP))
            o("    s_mov_b32 s%d, %d" % (S_EV, j0 if nom else cal[1] + lag))
            assert sl < 0 or nom
            o("    s_mov_b32 s%d, 0" % S_OK)
            for r in range(S_C1, S_C1 + 4):
                o("    s_mov_b32 s%d, 0" % r)
        o("    s_mov_b32 s%d, 0" % S_LM)
        o("    s_mov_b32 s%d, 0" % S_MI)

    def srd_rest():
        qsz = 8192 if mb <= 20 or probe else (1 << (mb - 8)) + 4096
        o("    s_mov_b32 s%d, %d" % (SRD_Q + 2, qsz))
        o("    s_mov_b32 s%d, 0x20000" % (SRD_Q + 3))
        o("    s_mov_b32 s%d, %d" % (SRD_O + 2, qsz))
        o("    s_mov_b32 s%d, 0x20000" % (SRD_O + 3))

    if not early:
        o("    s_mov_b32 s%d, s%d" % (S_OFF0, S_OFF))
        ctl_setup()
        eoff()
    S_PAIR = S_T + 2
    if wmap == 0:
        o("    s_mov_b32 s%d, s2" % S_PAIR)
    elif wmap == 1:
        o("    s_and_b32 s%d, s2, 7" % S_PAIR)
        o("    s_lshl_b32 s%d, s%d, 5" % (S_PAIR, S_PAIR))
        o("    s_lshr_b32 s%d, s2, 3" % (S_T + 3))
        o("    s_or_b32 s%d, s%d, s%d" % (S_PAIR, S_PAIR, S_T + 3))
    elif wmap == 2:
        o("    s_lshr_b32 s%d, s2, 3" % (S_T + 3))
        o("    s_and_b32 s%d, s%d, 7" % (S_T + 3, S_T + 3))
        o("    s_xor_b32 s%d, s2, s%d" % (S_PAIR, S_T + 3))
    elif wmap == 3:
        o("    s_and_b32 s%d, s2, 7" % S_PAIR)
        o("    s_lshl_b32 s%d, s%d, 5" % (S_PAIR, S_PAIR))
        o("    s_lshr_b32 s%d, s2, 3" % (S_T + 3))
        o("    s_or_b32 s%d, s%d, s%d" % (S_PAIR, S_PAIR, S_T + 3))
        o("    s_and_b32 s%d, s%d, 7" % (S_T + 3, S_T + 3))
        o("    s_lshl_b32 s%d, s%d, 5" % (S_T + 3, S_T + 3))
        o("    s_xor_b32 s%d, s%d, s%d" % (S_PAIR, S_PAIR, S_T + 3))
    elif wmap == 4:
        o("    s_and_b32 s%d, s2, 7" % S_PAIR)
        o("    s_lshr_b32 s%d, s2, 3" % (S_T + 3))
        o("    s_lshl_b32 s%d, s%d, 2" % (S_T + 4, S_PAIR))
        o("    s_add_u32 s%d, s%d, s%d" % (S_T + 3, S_T + 3, S_T + 4))
        o("    s_and_b32 s%d, s%d, 31" % (S_T + 3, S_T + 3))
        o("    s_lshl_b32 s%d, s%d, 5" % (S_PAIR, S_PAIR))
        o("    s_or_b32 s%d, s%d, s%d" % (S_PAIR, S_PAIR, S_T + 3))
    elif wmap == 5:
        o("    s_brev_b32 s%d, s2" % S_PAIR)
        o("    s_lshr_b32 s%d, s%d, 24" % (S_PAIR, S_PAIR))
    elif wmap == 6:
        o("    s_bfe_u32 s%d, s2, 0x20001" % S_PAIR)
        o("    s_lshl_b32 s%d, s%d, 6" % (S_PAIR, S_PAIR))
        o("    s_lshr_b32 s%d, s2, 3" % (S_T + 3))
        o("    s_lshl_b32 s%d, s%d, 1" % (S_T + 3, S_T + 3))
        o("    s_or_b32 s%d, s%d, s%d" % (S_PAIR, S_PAIR, S_T + 3))
        o("    s_and_b32 s%d, s2, 1" % (S_T + 3))
        o("    s_or_b32 s%d, s%d, s%d" % (S_PAIR, S_PAIR, S_T + 3))
    elif wmap == 7:
        o("    s_and_b32 s%d, s2, 7" % S_PAIR)
        o("    s_lshl_b32 s%d, s%d, 3" % (S_PAIR, S_PAIR))
        o("    s_bfe_u32 s%d, s2, 0x30003" % (S_T + 3))
        o("    s_or_b32 s%d, s%d, s%d" % (S_PAIR, S_PAIR, S_T + 3))
        o("    s_lshr_b32 s%d, s2, 6" % (S_T + 3))
        o("    s_lshl_b32 s%d, s%d, 6" % (S_T + 3, S_T + 3))
        o("    s_or_b32 s%d, s%d, s%d" % (S_PAIR, S_PAIR, S_T + 3))
    if headmap:
        o("    s_mov_b32 s%d, 0" % S_T)
        for i, b in enumerate(pbits):
            o("    s_bfe_u32 s%d, s%d, 0x%x" % (S_T + 1, S_PAIR, 0x10000 | i))
            o("    s_lshl_b32 s%d, s%d, %d" % (S_T + 1, S_T + 1, b))
            o("    s_or_b32 s%d, s%d, s%d" % (S_T, S_T, S_T + 1))
    else:
        o("    s_lshl_b32 s%d, s%d, 21" % (S_T, S_PAIR))
    S_ADV, S_ADVH, S_FL = 84, 85, 86
    if hf >= 0:
        assert not pst and not early and qm == 0
        if hf == 99:
            o("    s_mov_b32 s%d, 1" % S_FL)
        else:
            o("    s_bfe_u32 s%d, s2, 0x%x" % (S_FL, 0x10000 | hf))
        o("    s_mov_b32 s%d, 0x%x" % (S_ADV, 1 << mb))
        o("    s_cmp_eq_u32 s%d, 1" % S_FL)
        o("    s_cselect_b32 s%d, 0x%x, s%d" % (S_ADV, (-(1 << mb)) & 0xffffffff, S_ADV))
        o("    s_cselect_b32 s%d, -1, 0" % S_ADVH)
    DSZ = (offmask + 1) if probe else 0x100000
    QSH = 12 if probe else mb - 8
    o("    s_mov_b32 s%d, 0x%x" % (SRD_D + 2, DSZ))
    o("    s_mov_b32 s%d, 0x20000" % (SRD_D + 3))
    if not early:
        if headmap and not probe:
            o("    s_lshr_b32 s%d, s%d, 8" % (S_T + 1, S_T))
        else:
            o("    s_lshl_b32 s%d, s%d, 13" % (S_T + 1, S_PAIR))
        o("    s_mov_b32 s%d, 0x20000" % (SRD_P + 2))
        o("    s_mov_b32 s%d, 0x20000" % (SRD_P + 3))
        srd_rest()
    pstp(0)
    o("    s_waitcnt lgkmcnt(0)")
    if pstamp:
        o("    s_memrealtime s[82:83]")
    pstp(1)
    if hf >= 0:
        o("    s_lshl_b32 s%d, s%d, %d" % (S_T + 4, S_FL, mb))
        o("    s_or_b32 s%d, s%d, s%d" % (S_T, S_T, S_T + 4))
        o("    s_lshl_b32 s%d, s%d, %d" % (S_FL, S_FL, QSH))
    if tf >= 0:
        if tf == 99:
            o("    s_cmp_eq_u32 s2, s2")
        else:
            o("    s_bitcmp1_b32 s2, %d" % tf)
        o("    s_cselect_b32 s%d, s8, s6" % (S_T + 4))
        o("    s_cselect_b32 s%d, s9, s7" % (S_T + 5))
        o("    s_cselect_b32 s8, s6, s8")
        o("    s_cselect_b32 s9, s7, s9")
        o("    s_mov_b32 s6, s%d" % (S_T + 4))
        o("    s_mov_b32 s7, s%d" % (S_T + 5))
    o("    s_add_u32 s%d, s6, s%d" % (SRD_D, S_T))
    o("    s_addc_u32 s%d, s7, 0" % (SRD_D + 1))
    if not early:
        o("    s_mov_b32 s%d, s10" % SRD_P)
        o("    s_mov_b32 s%d, s11" % (SRD_P + 1))

    def issue_E(step):
        if noE:
            return
        if esplit:
            r = V_ER + (step % ER) * 4
            for t in range(2):
                o("    buffer_load_dwordx2 v[%d:%d], v%d, s[%d:%d], s%d offen offset:%d %s" %
                  (r + 2 * t, r + 2 * t + 1, V_EOFF, SRD_P, SRD_P + 3, S_EOFF, t << (jbits[0] - 7), eflags))
            return
        r = A_E + (step % ER) * 4
        o("    buffer_load_dwordx4 a[%d:%d], v%d, s[%d:%d], s%d offen %s" %
          (r, r + 3, V_EOFF, SRD_P, SRD_P + 3, S_EOFF, eflags))

    def issue_one(n):
        q, h = divmod(n, 2)
        a = q % 4
        slot = q % (4 * RS)
        i = (2 * a + h) ^ jf
        r = RING + (slot * 2 + h) * 4
        imm, sel = 0, 0
        alt = bool(afl) and any((i >> t) & 1 and b == big_j[0] for t, b in enumerate(jbits))
        for t, b in enumerate(jbits):
            bit = (i >> t) & 1
            if alt and b in afl:
                bit ^= 1
            if bit:
                if b >= 12:
                    sel |= 1 << big_j.index(b)
                else:
                    imm += 1 << b
        if jx_j:
            o("    buffer_load_dwordx4 v[%d:%d], v%d, s[%d:%d], s%d offen %s" %
              (r, r + 3, V_OFFJ + i, SRD_D, SRD_D + 3, S_OFF, flags))
            return
        o("    buffer_load_dwordx4 v[%d:%d], v%d, s[%d:%d], s%d offen offset:%d %s" %
          (r, r + 3, V_OFFX + sel - 1 if sel else V_OFF, SRD_D, SRD_D + 3,
           S_OFFB if alt and af_s else S_OFF, imm, flags))

    def issue_pair(q):
        issue_one(2 * q)
        issue_one(2 * q + 1)

    stubs = []
    events = []

    if not early and not e0:
        issue_E(0)
    for q in range(LA):
        issue_pair(q)
        if not early and e0 == q + 1:
            issue_E(0)
    if ap:
        o("    v_mov_b32 v%d, 0" % V_TR2)
        if ap == 1:
            for k in range(8):
                o("    s_waitcnt vmcnt(%d)" % (7 - k))
                o("    s_memrealtime s[92:93]")
                o("    s_waitcnt lgkmcnt(0)")
                o("    v_writelane_b32 v%d, s92, %d" % (V_TR2, k))
    if early:
        o("    v_lshlrev_b32 v%d, 13, v%d" % (V_EOFF, V_X))
        o("    v_lshl_add_u32 v%d, v%d, 4, v%d" % (V_EOFF, V_Y, V_EOFF))
        eoff()
        o("    s_mov_b32 s%d, s10" % SRD_P)
        o("    s_mov_b32 s%d, s11" % (SRD_P + 1))
        o("    s_mov_b32 s%d, 0x20000" % (SRD_P + 2))
        o("    s_mov_b32 s%d, 0x20000" % (SRD_P + 3))
        issue_E(0)
        o("    s_mov_b32 s%d, s%d" % (S_OFF0, S_OFF))
    def second_batch(lo, hi):
        if lo == 8:
            step_inc()
            eoff()
        for n in range(lo, hi):
            issue_one(n)
            if n == (11 if eq else 8):
                issue_E(1)
        if ap == 2 and hi == 16:
            for k in range(16):
                o("    s_waitcnt vmcnt(%d)" % (15 - k + (1 if k < 8 else 0)))
                o("    s_memrealtime s[92:93]")
                o("    s_waitcnt lgkmcnt(0)")
                o("    v_writelane_b32 v%d, s92, %d" % (V_TR2, k))

    assert 8 <= xo <= 16 and (xo == 16 or (bp and not pro8 and not early))
    if bp and not pro8 and xo > 8:
        second_batch(8, xo)
    pstp(2)
    if early:
        o("    s_mov_b32 s%d, 0x05040100" % S_SELLO)
        o("    s_mov_b32 s%d, 0x07060302" % S_SELHI)
        o("    s_lshl_b32 s%d, s%d, 13" % (S_T + 1, S_PAIR))
        srd_rest()
        ctl_setup()
    o("    s_add_u32 s%d, s8, s%d" % (NXT_D, S_T))
    o("    s_addc_u32 s%d, s9, 0" % (NXT_D + 1))
    o("    s_mov_b32 s%d, s12" % NXT_P)
    o("    s_mov_b32 s%d, s13" % (NXT_P + 1))
    o("    s_add_u32 s%d, s4, s%d" % (SRD_Q, S_T + 1))
    o("    s_addc_u32 s%d, s5, 0" % (SRD_Q + 1))
    o("    s_add_u32 s%d, s14, s%d" % (SRD_O, S_T + 1))
    o("    s_addc_u32 s%d, s15, 0" % (SRD_O + 1))
    def load_q(vx, vy, va, st):
        o("    v_lshlrev_b32 v%d, 8, v%d" % (va, vx))
        o("    v_lshl_add_u32 v%d, v%d, 6, v%d" % (va, vy, va))
        o("    s_lshr_b32 s%d, s%d, 1" % (st, S_WAVE))
        o("    s_lshl_b32 s%d, s%d, %d" % (st, st, QSH))
        if hf >= 0:
            o("    s_xor_b32 s%d, s%d, s%d" % (st, st, S_FL))
        for s in range(4):
            o("    buffer_load_dwordx4 a[%d:%d], v%d, s[%d:%d], s%d offen offset:%d" %
              (A_Q + 4 * s, A_Q + 4 * s + 3, va, SRD_Q, SRD_Q + 3, st, 16 * s))

    if qm == 0:
        load_q(V_X, V_Y, V_PW, S_T + 2)
    elif qm == 1:
        o("    s_bitcmp1_b32 s%d, 0" % S_WAVE)
        o("    s_cbranch_scc1 L_noq")
        load_q(V_X, V_Y, V_PW, S_T + 2)
        o("L_noq:")
    def warm_proj():
        o("    s_bfe_u32 s%d, s2, 0x50003" % (S_T + 2))
        o("    s_lshl_b32 s%d, s%d, 2" % (S_T + 2, S_T + 2))
        o("    s_add_u32 s%d, s%d, s%d" % (S_T + 2, S_T + 2, S_WAVE))
        o("    s_lshl_b32 s%d, s%d, 10" % (S_T + 2, S_T + 2))
        o("    v_lshlrev_b32 v%d, 4, v%d" % (V_PW, V_LANE))
        o("    v_add_u32 v%d, s%d, v%d" % (V_PW, S_T + 2, V_PW))
        if ew & 1:
            o("    global_load_dwordx4 v[%d:%d], v%d, s[10:11] %s" % (V_DEF, V_DEF + 3, V_PW, ewf))
        if ew & 2:
            o("    global_load_dwordx4 v[%d:%d], v%d, s[12:13] %s" % (V_DEF, V_DEF + 3, V_PW, ewf))

    if sl >= 0:
        o("    s_cmp_lt_u32 s2, %d" % ns)
        o("    s_cbranch_scc0 L_nosr")
        o("    s_cmp_eq_u32 s%d, 1" % S_WAVE)
        o("    s_cbranch_scc0 L_nosr")
        o("    v_mov_b32 v%d, s%d" % (V_BV - 3, S_TM))
        o("    v_mov_b32 v%d, 0x100" % (V_BV - 2))
        o("    v_mov_b32 v%d, 0" % (V_BV - 4))
        o("    s_mov_b64 exec, 1")
        o("    global_atomic_add_x2 v%d, v[%d:%d], s[%d:%d] %s" % (V_BV - 4, V_BV - 3, V_BV - 2, abase, abase + 1, aflags))
        o("    s_mov_b64 exec, -1")
        o("L_nosr:")
    if ew:
        assert defer and qm != 2
        warm_proj()
    if xo < 16:
        second_batch(xo, 16)
    if tw:
        assert defer
        o("    v_and_b32 v%d, 3, v%d" % (V_PW, V_LANE))
        o("    v_lshlrev_b32 v%d, 19, v%d" % (V_PW, V_PW))
        o("    s_cmp_eq_u32 s%d, 1" % S_WAVE)
        o("    s_cbranch_scc0 L_tw1")
        o("    global_load_dword v%d, v%d, s[%d:%d]" % (V_DEF, V_PW, NXT_D, NXT_D + 1))
        o("L_tw1:")
        o("    s_cmp_eq_u32 s%d, 3" % S_WAVE)
        o("    s_cbranch_scc0 L_tw3")
        o("    v_mov_b32 v%d, 0" % V_PW)
        o("    buffer_load_dword v%d, v%d, s[%d:%d], 0 offen" % (V_DEF, V_PW, SRD_O, SRD_O + 3))
        o("    global_load_dword v%d, v%d, s[12:13]" % (V_DEF + 1, V_PW))
        o("L_tw3:")
    o("    v_lshlrev_b32 v%d, 8, v%d" % (V_OUT, V_X))
    o("    v_lshl_add_u32 v%d, v%d, 4, v%d" % (V_OUT, V_Y, V_OUT))
    o("    s_lshl_b32 s%d, s%d, 6" % (S_T + 2, S_WAVE))
    o("    v_add_u32 v%d, s%d, v%d" % (V_OUT, S_T + 2, V_OUT))
    o("    v_and_b32 v%d, 3, v%d" % (V_VR, V_X))
    o("    v_mul_u32_u24 v%d, %d, v%d" % (V_VR, DS, V_VR))
    o("    v_lshrrev_b32 v%d, 2, v%d" % (V_X, V_X))
    o("    v_lshl_add_u32 v%d, v%d, 4, v%d" % (V_X, V_Y, V_X))
    o("    v_lshl_add_u32 v%d, v%d, 4, v%d" % (V_VR, V_X, V_VR))
    o("    s_lshl_b32 s%d, s%d, 6" % (S_T + 2, S_WAVE))
    o("    s_add_u32 s%d, s%d, %d" % (S_T + 2, S_T + 2, LDS_VP))
    o("    v_add_u32 v%d, s%d, v%d" % (V_VR, S_T + 2, V_VR))
    o("    v_lshlrev_b32 v%d, 4, v%d" % (V_X, V_LANE))
    o("    s_mul_i32 s%d, s%d, %d" % (S_T + 2, S_WAVE, WS))
    o("    s_add_u32 s%d, s%d, %d" % (S_T + 2, S_T + 2, LDS_KP))
    o("    v_add_u32 v%d, s%d, v%d" % (V_PW, S_T + 2, V_X))
    for j in range(32):
        o("    v_mov_b32 v%d, 0" % (ACC + j))
    if rp:
        o("    s_mov_b32 s90, %d" % (8 * ap))
        if not ap:
            o("    v_mov_b32 v%d, 0" % V_TR2)


    def allowed(n, req, e_done):
        cnt = n - 1 - req
        for qq in range(0, n // 2 + 1):
            if md:
                pos = 2 * qq + (3 if eq else 1)
                if qq % 4 == 0 and req <= pos < n:
                    cnt += NE
            elif qq % 4 == 0 and 2 * qq >= req and (qq < n // 2 or e_done):
                cnt += NE
        return cnt

    def wait_of(m, p, h, extra=0):
        q = p + LA
        n = 2 * q + h
        N, gr = int(m[:-1]), m[-1]
        if gr == "q":
            assert eq and md and N <= 8
            if h == 1 or p % 2:
                return None
            return allowed(n + 8000, max(n - N + 3, 2 * p + 3) + 8000, False)
        if gr == "p":
            if h == 1:
                return None
            req = n - N + 1
        else:
            req = n - N
        if h == 0:
            req = max(req, 2 * p + 1)
        elif req <= 2 * p + 1:
            return None
        big = 8000
        return allowed(n + big, req + big, h == 1) + (extra if req <= 7 else 0)

    def decide(tag):
        T0 = S_T + 6
        o("    s_waitcnt lgkmcnt(0)")
        if not noev:
            o("    s_cmp_eq_u32 s%d, s%d" % (S_PROG, S_RP))
            o("    s_cbranch_scc1 L_rp_%s" % tag)
            o("L_rpr_%s:" % tag)
            o("    s_cmp_eq_u32 s%d, s%d" % (S_PROG, S_EV))
            o("    s_cbranch_scc1 L_ev_%s" % tag)
        o("L_evr_%s:" % tag)
        if trace:
            o("    s_mov_b32 m0, s%d" % S_PROG)
            o("    s_nop 0")
            o("    v_writelane_b32 v%d, s%d, m0" % (V_BV, S_NOW))
        o("    s_sub_u32 s%d, s%d, s%d" % (T0, S_NOW, S_TM))
        o("    s_lshl_b32 s%d, s%d, 6" % (T0, T0))
        o("    s_sub_u32 s%d, s%d, s%d" % (T0, T0, S_ACC))
        if trace == 2:
            o("    v_writelane_b32 v%d, s%d, m0" % (V_TR2, T0))
        o("    s_add_u32 s%d, s%d, s%d" % (S_ACC, S_ACC, S_INC))
        o("    s_add_u32 s%d, s%d, 1" % (S_PROG, S_PROG))
        if ki:
            assert not mm2 and not jx
            o("    s_mul_i32 s%d, s%d, s83" % (T0 + 1, T0))
            o("    s_ashr_i32 s%d, s%d, 8" % (T0 + 1, T0 + 1))
            o("    s_add_i32 s82, s82, s%d" % (T0 + 1))
            o("    s_min_i32 s82, s82, %d" % (64 * im))
            o("    s_max_i32 s82, s82, %d" % (-64 * im))
            o("    s_add_i32 s%d, s%d, s82" % (T0, T0))
        if force < 0 and tag == "post" and pdec != 1:
            if pdec == 0:
                o("    s_mov_b32 s%d, 0" % S_MODE)
        elif force < 0:
            if eg:
                o("    s_cmp_eq_u32 s%d, %d" % (S_PROG, 64 - eg))
                o("    s_cselect_b32 s%d, %d, 0" % (T0 + 1, egs))
                o("    s_ashr_i32 s%d, s%d, s%d" % (S_THI, S_THI, T0 + 1))
                if egl:
                    o("    s_mul_i32 s%d, s%d, %d" % (T0 + 1, S_THI, egl))
                    o("    s_ashr_i32 s%d, s%d, 2" % (T0 + 1, T0 + 1))
                    o("    s_cmp_eq_u32 s%d, %d" % (S_PROG, 64 - eg))
                    o("    s_cselect_b32 s%d, s%d, s%d" % (S_TLO, T0 + 1, S_TLO))
                if mm2:
                    o("    s_ashr_i32 s82, s82, s%d" % (T0 + 1))
            if mm2:
                o("    s_cmp_gt_i32 s%d, s82" % T0)
                o("    s_cselect_b32 s%d, 4, 0" % S_MODE)
                o("    s_cmp_gt_i32 s%d, s%d" % (T0, S_THI))
                o("    s_cselect_b32 s%d, 1, s%d" % (S_MODE, S_MODE))
            else:
                o("    s_cmp_gt_i32 s%d, s%d" % (T0, S_THI))
                o("    s_cselect_b32 s%d, 1, 0" % S_MODE)
            o("    s_cmp_lt_i32 s%d, s%d" % (T0, S_TLO))
            o("    s_cselect_b32 s%d, 2, s%d" % (S_MODE, S_MODE))
        if tail:
            o("    s_cmp_ge_u32 s%d, %d" % (S_PROG, 64 - tail))
            o("    s_cselect_b32 s%d, 1, s%d" % (S_MODE, S_MODE))
        if fin:
            o("    s_cmp_eq_u32 s%d, %d" % (S_PROG, 64 - fin))
            o("    s_cselect_b32 s%d, 3, s%d" % (S_MODE, S_MODE))
        if stamp:
            o("    s_and_b32 s%d, s%d, 1" % (T0, S_MODE))
            o("    s_add_u32 s%d, s%d, s%d" % (S_HI, S_HI, T0))
            o("    s_and_b32 s%d, s%d, 2" % (T0, S_MODE))
            o("    s_lshl_b32 s%d, s%d, 7" % (T0, T0))
            o("    s_add_u32 s%d, s%d, s%d" % (S_HI, S_HI, T0))
        events.append(tag)

    def decide_half(tag):
        T0 = S_T + 6
        o("    s_waitcnt lgkmcnt(0)")
        o("    s_sub_u32 s%d, s%d, s%d" % (T0, S_NOW, S_TM))
        o("    s_lshl_b32 s%d, s%d, 6" % (T0, T0))
        o("    s_sub_u32 s%d, s%d, s%d" % (T0, T0, S_ACC))
        o("    s_ashr_i32 s%d, s%d, 1" % (T0 + 1, S_INC))
        o("    s_add_u32 s%d, s%d, s%d" % (T0, T0, T0 + 1))
        if mm2:
            o("    s_cmp_gt_i32 s%d, s82" % T0)
            o("    s_cselect_b32 s%d, 4, 0" % S_MODE)
            o("    s_cmp_gt_i32 s%d, s%d" % (T0, S_THI))
            o("    s_cselect_b32 s%d, 1, s%d" % (S_MODE, S_MODE))
        else:
            o("    s_cmp_gt_i32 s%d, s%d" % (T0, S_THI))
            o("    s_cselect_b32 s%d, 1, 0" % S_MODE)
        o("    s_cmp_lt_i32 s%d, s%d" % (T0, S_TLO))
        o("    s_cselect_b32 s%d, 2, s%d" % (S_MODE, S_MODE))
        if stamp:
            o("    s_and_b32 s%d, s%d, 1" % (T0, S_MODE))
            o("    s_add_u32 s%d, s%d, s%d" % (S_HI, S_HI, T0))
            o("    s_and_b32 s%d, s%d, 2" % (T0, S_MODE))
            o("    s_lshl_b32 s%d, s%d, 7" % (T0, T0))
            o("    s_add_u32 s%d, s%d, s%d" % (S_HI, S_HI, T0))

    def emit_events():
        T0, T1 = S_T + 6, S_T + 7
        for tag in events:
            if noev:
                continue
            o("L_rp_%s:" % tag)
            o("    v_mov_b32 v%d, s%d" % (V_BV - 3, S_NOW))
            o("    v_mov_b32 v%d, 0x100" % (V_BV - 2))
            o("    s_mov_b64 exec, 1")
            if doat and akind == "atomic":
                o("    global_atomic_add_x2 v%d, v[%d:%d], s[%d:%d] %s" % (V_BO, V_BV - 3, V_BV - 2, abase, abase + 1, aflags))
            elif doat and akind == "store":
                o("    global_store_dwordx2 v%d, v[%d:%d], s[%d:%d] %s" % (V_BO, V_BV - 3, V_BV - 2, abase, abase + 1, aflags))
            elif doat and akind == "load":
                o("    global_load_dwordx2 v[%d:%d], v%d, s[%d:%d] %s" % (V_BV - 3, V_BV - 2, V_BO, abase, abase + 1, aflags))
            o("    s_mov_b64 exec, -1")
            o("    s_branch L_rpr_%s" % tag)
            o("L_ev_%s:" % tag)
            if nom:
                assert j0 + 1 < cal[1] + lag
                o("    s_cmp_eq_u32 s%d, %d" % (S_EV, j0))
                o("    s_cbranch_scc1 L_evl0_%s" % tag)
                o("    s_cmp_eq_u32 s%d, %d" % (S_EV, j0 + 1))
                o("    s_cbranch_scc1 L_evc0_%s" % tag)
            for k in range(1, len(cal)):
                o("    s_cmp_eq_u32 s%d, %d" % (S_EV, cal[k] + lag))
                o("    s_cbranch_scc1 L_evl%d_%s" % (k, tag))
                o("    s_cmp_eq_u32 s%d, %d" % (S_EV, cal[k] + lag + 1))
                o("    s_cbranch_scc1 L_evc%d_%s" % (k, tag))
            o("    s_branch L_evr_%s" % tag)
            if nom:
                jr = j0
                o("L_evl0_%s:" % tag)
                o("    s_load_dwordx2 s[%d:%d], s[16:17], %d" % (S_C1, S_C1 + 1, 0 if sl >= 0 else SLOT[0]))
                o("    s_mov_b32 s%d, %d" % (S_EV, jr + 1))
                o("    s_branch L_evr_%s" % tag)
                o("L_evc0_%s:" % tag)
                o("    s_mov_b32 s%d, %d" % (S_EV, cal[1] + lag))
                o("    s_lshr_b64 s[%d:%d], s[%d:%d], %d" % (S_C1, S_C1 + 1, S_C1, S_C1 + 1, nsh))
                o("    s_cmp_lg_u32 s%d, 256" % (S_C1 + 1))
                o("    s_cbranch_scc1 L_evr_%s" % tag)
                if stamp:
                    o("    s_add_u32 s%d, s%d, 0x10000" % (S_HI, S_HI))
                T1n = 16 * nom
                if sl >= 0:
                    o("    s_sub_u32 s%d, s%d, s%d" % (T0, S_TM, S_C1))
                    o("    s_mul_i32 s%d, s%d, %d" % (T0, T0, sl))
                    o("    s_sub_u32 s%d, s%d, s%d" % (S_INC, S_INC, T0))
                else:
                    o("    s_mov_b32 s%d, s%d" % (S_TM, S_C1))
                    o("    s_mov_b32 s%d, %d" % (S_INC, 4 * T1n))
                    o("    s_mov_b32 s%d, %d" % (S_ACC, T1n * (4 * (jr + 1) - (4 * cal[0] + 2 * st2) + delta)))
                    if dl8 or dh8:
                        o("    s_mov_b32 s%d, %d" % (S_THI, (T1n * (dh8 or 8 * dhi)) >> 3))
                        o("    s_mov_b32 s%d, %d" % (S_TLO, (-T1n * dl8) >> 3))
                    else:
                        o("    s_mov_b32 s%d, %d" % (S_THI, (T1n * dhi) >> tsh))
                        o("    s_mov_b32 s%d, %d" % (S_TLO, (-T1n * dlo) >> tsh))
                    if mm2:
                        o("    s_mov_b32 s82, %d" % ((T1n * dhi) >> (tsh + m2s)))
                o("    s_branch L_evr_%s" % tag)
            for k in range(1, len(cal)):
                jr = cal[k] + lag
                span = 16 if (k == 1 and n1) else cal[k] - cal[k - 1]
                assert span in (8, 16)
                o("L_evl%d_%s:" % (k, tag))
                if k == 1 and dold and not n1:
                    o("    s_load_dwordx2 s[%d:%d], s[16:17], %d" % (S_C1, S_C1 + 1, SLOT[0]))
                if dold:
                    o("    s_load_dwordx2 s[%d:%d], s[16:17], %d" % (S_C2, S_C2 + 1, SLOT[k]))
                o("    s_mov_b32 s%d, %d" % (S_EV, jr + 1))
                o("    s_branch L_evr_%s" % tag)
                o("L_evc%d_%s:" % (k, tag))
                o("    s_mov_b32 s%d, %s" % (S_EV, "0x7fffffff" if k == len(cal) - 1 else str(cal[k + 1] + lag)))
                if k == 1 and not n1:
                    o("    s_lshr_b64 s[%d:%d], s[%d:%d], %d" % (S_C1, S_C1 + 1, S_C1, S_C1 + 1, nsh))
                o("    s_lshr_b64 s[%d:%d], s[%d:%d], %d" % (S_C2, S_C2 + 1, S_C2, S_C2 + 1, nsh))
                if k == 1 and n1:
                    o("    s_mov_b32 s%d, s%d" % (T0, S_C2 + 1))
                    o("    s_mov_b32 s%d, %d" % (T1, 16 * n1))
                else:
                    o("    s_and_b32 s%d, s%d, s%d" % (T0, S_C1 + 1, S_C2 + 1))
                    o("    s_sub_u32 s%d, s%d, s%d" % (T1, S_C2, S_C1))
                o("    s_mov_b32 s%d, s%d" % (S_C1, S_C2))
                o("    s_mov_b32 s%d, s%d" % (S_C1 + 1, S_C2 + 1))
                o("    s_cmp_lg_u32 s%d, 256" % T0)
                o("    s_cbranch_scc1 L_evr_%s" % tag)
                if stamp:
                    o("    s_add_u32 s%d, s%d, 0x10000" % (S_HI, S_HI))
                if span == 8:
                    o("    s_lshl_b32 s%d, s%d, 1" % (T1, T1))
                o("    s_mov_b32 s%d, s%d" % (S_TM, S_C1))
                if ki and k == kis:
                    o("    s_mov_b32 s83, %d" % ki)
                o("    s_lshl_b32 s%d, s%d, 2" % (S_INC, T1))
                o("    s_mul_i32 s%d, s%d, %d" % (S_ACC, T1, 4 * (jr + 1) - (4 * cal[k] + 2 * st2) + delta))
                if dl8 or dh8:
                    o("    s_mul_i32 s%d, s%d, %d" % (S_THI, T1, dh8 or 8 * dhi))
                    o("    s_mul_i32 s%d, s%d, %d" % (S_TLO, T1, -dl8))
                    o("    s_ashr_i32 s%d, s%d, 3" % (S_THI, S_THI))
                    o("    s_ashr_i32 s%d, s%d, 3" % (S_TLO, S_TLO))
                else:
                    o("    s_mul_i32 s%d, s%d, %d" % (S_THI, T1, dhi))
                    o("    s_mul_i32 s%d, s%d, %d" % (S_TLO, T1, -dlo))
                if tsh:
                    o("    s_ashr_i32 s%d, s%d, %d" % (S_THI, S_THI, tsh))
                    o("    s_ashr_i32 s%d, s%d, %d" % (S_TLO, S_TLO, tsh))
                if mm2:
                    o("    s_ashr_i32 s82, s%d, %d" % (S_THI, m2s))
                epk = int(str(epsl).split(",")[k - 1]) if epsl != "" else eps
                if epk:
                    o("    s_mul_i32 s%d, s%d, %d" % (T0, T1, epk))
                    o("    s_ashr_i32 s%d, s%d, 6" % (T0, T0))
                    o("    s_sub_u32 s%d, s%d, s%d" % (S_INC, S_INC, T0))
                o("    s_branch L_evr_%s" % tag)

    def round_mfma(s, zero=False):
        if esplit:
            r = V_ER + (s % ER) * 4
            for t in range(2):
                o("    v_perm_b32 v%d, v%d, v%d, s%d" % (V_EA + 2 * t, r + 2 + t, r + t, S_SELLO))
                o("    v_perm_b32 v%d, v%d, v%d, s%d" % (V_EA + 2 * t + 1, r + 2 + t, r + t, S_SELHI))
            e = "v[%d:%d]" % (V_EA, V_EA + 3)
        else:
            e = "a[%d:%d]" % (A_E + (s % ER) * 4, A_E + (s % ER) * 4 + 3)
        o("    s_nop 1")
        for dd in range(8):
            acc = ACC + dd * 4
            o("    v_mfma_f32_16x16x32_bf16 v[%d:%d], %s, v[%d:%d], %s" %
              (acc, acc + 3, e, T + dd * 4, T + dd * 4 + 3, "0" if zero else "v[%d:%d]" % (acc, acc + 3)))

    def xlane(op, reg, tmp):
        for sw in ("v_permlane32_swap_b32", "v_permlane16_swap_b32"):
            o("    v_mov_b32 v%d, v%d" % (tmp, reg))
            o("    s_nop 1")
            o("    %s v%d, v%d" % (sw, reg, tmp))
            o("    s_nop 1")
            o("    %s v%d, v%d, v%d" % (op, reg, reg, tmp))

    def k_read(dst, w):
        for dd in range(8):
            o("    ds_read_b128 v[%d:%d], v%d offset:%d" %
              (dst + 4 * dd, dst + 4 * dd + 3, V_X, LDS_KP + w * WS + dd * DS))

    def k_add(SUM, TMP):
        for j in range(32):
            o("    v_add_f32 v%d, v%d, v%d" % (SUM + j, SUM + j, TMP + j))

    def k_transpose(SUM, TMP):
        PA = MISC
        for dd in range(8):
            o("    v_cvt_pk_bf16_f32 v%d, v%d, v%d" % (PA + 2 * dd, SUM + 4 * dd, SUM + 4 * dd + 1))
            o("    v_cvt_pk_bf16_f32 v%d, v%d, v%d" % (PA + 2 * dd + 1, SUM + 4 * dd + 2, SUM + 4 * dd + 3))
        ID = MISC + 16
        o("    v_and_b32 v%d, 15, v%d" % (V_X, V_LANE))
        o("    v_lshrrev_b32 v%d, 4, v%d" % (V_Y, V_LANE))
        o("    v_lshlrev_b32 v%d, 2, v%d" % (V_Y, V_Y))
        o("    v_sub_u32 v%d, v%d, v%d" % (V_X, V_X, V_Y))
        o("    v_mov_b32 v%d, 0" % ID)
        o("    v_mov_b32 v%d, 0" % (ID + 1))
        o("    v_mov_b32 v%d, 0x3f80" % (ID + 2))
        o("    v_mov_b32 v%d, 0x3f800000" % (ID + 3))
        for j, (dst, src) in enumerate(((ID, ID + 2), (ID, ID + 3), (ID + 1, ID + 2), (ID + 1, ID + 3))):
            o("    v_cmp_eq_u32 vcc, %d, v%d" % (j, V_X))
            o("    s_nop 1")
            o("    v_cndmask_b32 v%d, v%d, v%d, vcc" % (dst, dst, src))
        o("    s_nop 1")
        for dd in range(8):
            o("    v_mfma_f32_16x16x16_bf16 v[%d:%d], v[%d:%d], v[%d:%d], 0" %
              (TMP + 4 * dd, TMP + 4 * dd + 3, PA + 2 * dd, PA + 2 * dd + 1, ID, ID + 1))

    def k_scores(SUM, TMP):
        PB = SUM
        o("    s_nop 7")
        for s_ in range(4):
            for j in range(4):
                o("    v_cvt_pk_bf16_f32 v%d, v%d, v%d" %
                  (PB + 4 * s_ + j, TMP + (2 * j) * 4 + s_, TMP + (2 * j + 1) * 4 + s_))
        SC = SUM + 16
        o("    s_nop 1")
        for s_ in range(4):
            c = "0" if s_ == 0 else "v[%d:%d]" % (SC, SC + 3)
            o("    v_mfma_f32_16x16x32_bf16 v[%d:%d], v[%d:%d], a[%d:%d], %s" %
              (SC, SC + 3, PB + 4 * s_, PB + 4 * s_ + 3, A_Q + 4 * s_, A_Q + 4 * s_ + 3, c))

    def k_softmax(SUM):
        SC, W, M = SUM + 16, SUM + 20, SUM + 22
        o("    s_mov_b32 s%d, 0x3db504f3" % (S_T + 2))
        o("    s_mov_b32 s%d, 0x3fb8aa3b" % (S_T + 3))
        o("    s_nop 7")

        def rb():
            o("    v_cvt_pk_bf16_f32 v%d, v%d, v%d" % (W, SC, SC + 1))
            o("    v_cvt_pk_bf16_f32 v%d, v%d, v%d" % (W + 1, SC + 2, SC + 3))
            o("    v_lshlrev_b32 v%d, 16, v%d" % (SC, W))
            o("    v_and_b32 v%d, 0xffff0000, v%d" % (SC + 1, W))
            o("    v_lshlrev_b32 v%d, 16, v%d" % (SC + 2, W + 1))
            o("    v_and_b32 v%d, 0xffff0000, v%d" % (SC + 3, W + 1))

        rb()
        for i in range(4):
            o("    v_mul_f32 v%d, s%d, v%d" % (SC + i, S_T + 2, SC + i))
        rb()
        o("    v_max_f32 v%d, v%d, v%d" % (M, SC, SC + 1))
        o("    v_max3_f32 v%d, v%d, v%d, v%d" % (M, SC + 2, SC + 3, M))
        xlane("v_max_f32", M, M + 1)
        for i in range(4):
            o("    v_sub_f32 v%d, v%d, v%d" % (SC + i, SC + i, M))
        for i in range(4):
            o("    v_mul_f32 v%d, s%d, v%d" % (SC + i, S_T + 3, SC + i))
        for i in range(4):
            o("    v_exp_f32 v%d, v%d" % (SC + i, SC + i))
        o("    s_nop 0")
        o("    v_add_f32 v%d, v%d, v%d" % (M, SC, SC + 1))
        o("    v_add_f32 v%d, v%d, v%d" % (M + 1, SC + 2, SC + 3))
        o("    v_add_f32 v%d, v%d, v%d" % (M, M, M + 1))
        xlane("v_add_f32", M, M + 1)
        o("    v_rcp_f32 v%d, v%d" % (M, M))
        o("    s_nop 0")
        for i in range(4):
            o("    v_mul_f32 v%d, v%d, v%d" % (SC + i, SC + i, M))
        o("    v_cvt_pk_bf16_f32 v%d, v%d, v%d" % (W, SC, SC + 1))
        o("    v_cvt_pk_bf16_f32 v%d, v%d, v%d" % (W + 1, SC + 2, SC + 3))
        o("    v_lshlrev_b32 v%d, 3, v%d" % (V_X, V_LANE))
        o("    ds_write_b64 v%d, v[%d:%d] offset:%d" % (V_X, W, W + 1, LDS_P))

    def v_read(X):
        o("    v_lshlrev_b32 v%d, 3, v%d" % (V_X, V_LANE))
        o("    ds_read_b64 v[%d:%d], v%d offset:%d" % (MISC, MISC + 1, V_X, LDS_P))
        for w in range(4):
            for h in range(2):
                r = X + (w * 2 + h) * 4
                o("    ds_read_b128 v[%d:%d], v%d offset:%d" % (r, r + 3, V_VR, w * WS + h * 4 * DS))

    def v_prod(X):
        for j in range(8):
            o("    v_add_f32 v%d, v%d, v%d" % (X + j, X + j, X + 8 + j))
        for j in range(8):
            o("    v_add_f32 v%d, v%d, v%d" % (X + 16 + j, X + 16 + j, X + 24 + j))
        for j in range(8):
            o("    v_add_f32 v%d, v%d, v%d" % (X + j, X + j, X + 16 + j))
        VB = MISC + 4
        for h in range(2):
            o("    v_cvt_pk_bf16_f32 v%d, v%d, v%d" % (VB + 2 * h, X + 4 * h, X + 4 * h + 1))
            o("    v_cvt_pk_bf16_f32 v%d, v%d, v%d" % (VB + 2 * h + 1, X + 4 * h + 2, X + 4 * h + 3))
        o("    s_nop 1")
        for h in range(2):
            o("    v_mfma_f32_16x16x16_bf16 v[%d:%d], v[%d:%d], v[%d:%d], 0" %
              (X + 16 + 4 * h, X + 16 + 4 * h + 3, VB + 2 * h, VB + 2 * h + 1, MISC, MISC + 1))

    def ramp_stamp(tag):
        o("    s_cmp_ge_u32 s90, %d" % (63 + rp))
        o("    s_cbranch_scc1 L_rs_%s" % tag)
        o("    s_memrealtime s[92:93]")
        o("    s_sub_u32 s91, s90, %d" % (rp - 1))
        o("    s_cmp_lt_i32 s91, 0")
        o("    s_cselect_b32 s91, 0, s91")
        o("    s_mov_b32 m0, s91")
        o("    s_waitcnt lgkmcnt(0)")
        o("    v_writelane_b32 v%d, s92, m0" % V_TR2)
        o("L_rs_%s:" % tag)
        o("    s_add_u32 s90, s90, 1")

    def ih_piece(kind, p):
        k = p - ihp
        if kind == "K" and 0 <= k < 6:
            o("    s_cmp_lg_u32 s%d, s%d" % (S_WAVE, S_PMI))
            o("    s_cbranch_scc1 L_ihs%d" % p)
            if k == 0:
                o("    v_lshlrev_b32 v%d, 4, v%d" % (V_X, V_LANE))
                k_read(V_S2, 0)
                k_read(V_T2, 1)
            elif k in (1, 2):
                o("    s_waitcnt lgkmcnt(0)")
                k_add(V_S2, V_T2)
                k_read(V_T2, k + 1)
            elif k == 3:
                o("    s_waitcnt lgkmcnt(0)")
                k_add(V_S2, V_T2)
                k_transpose(V_S2, V_T2)
            elif k == 4:
                k_scores(V_S2, V_T2)
            else:
                k_softmax(V_S2)
            o("L_ihs%d:" % p)
        if kind == "V":
            if k == 0:
                v_read(V_T2)
            elif k == 1:
                o("    s_waitcnt lgkmcnt(0)")
                v_prod(V_T2)
            elif k == 2:
                o("    s_nop 7")
                for i in range(4):
                    o("    v_cvt_pk_bf16_f32 v%d, v%d, v%d" % (V_DEF + i, V_T2 + 16 + 2 * i, V_T2 + 16 + 2 * i + 1))

    S_PMI = 63

    def body(mode, m, post=False, extra=0, kind=""):
        o("L_body_%s:" % mode)
        if kind == "V" and csf:
            o("    v_lshlrev_b32 v%d, 4, v%d" % (V_Y, V_LANE))
            o("    s_lshl_b32 s%d, s%d, 10" % (S_T + 1, S_WAVE))
            o("    s_add_u32 s%d, s%d, %d" % (S_T + 1, S_T + 1, LDS_F))
            o("    v_add_u32 v%d, s%d, v%d" % (V_Y, S_T + 1, V_Y))
            o("    ds_write_b128 v%d, a[%d:%d]" % (V_Y, A_E + 4, A_E + 7))
        for p in range(8):
            s, a = divmod(p, 4)
            q = p + LA
            if half and p == 4 and not post:
                for code, other in ((0, "mid"), (1, "hi"), (2, "lo"), (4, "mi2")):
                    if other != mode and other != "mid" and (other != "mi2" or mm2):
                        o("    s_cmp_eq_u32 s%d, %d" % (S_MODE, code))
                        o("    s_cbranch_scc1 L_bodyB_%s" % other)
                if mode != "mid":
                    o("    s_cmp_eq_u32 s%d, 0" % S_MODE)
                    o("    s_cbranch_scc1 L_bodyB_mid")
                o("L_bodyB_%s:" % mode)
            if p == 0 and not post:
                step_inc()
                eoff()
            if p == 4:
                step_inc()
                if not post and not kind:
                    o("    s_cmp_eq_u32 s%d, 1" % S_CNT)
                    o("    s_cbranch_scc1 L_sw_%s" % mode)
                    o("L_swr_%s:" % mode)
                    stubs.append(mode)
                eoff()
            if kind and p == ihp:
                o("    s_waitcnt lgkmcnt(0)")
                if p not in wsyl:
                    o("    s_barrier")
            if p in wsyl and not post and not (wba and not (kind and p == ihp)):
                if wskip:
                    o("    s_cmp_ge_u32 s%d, %d" % (S_CNT, 16 - wskip))
                    o("    s_cbranch_scc1 L_nb%d_%s" % (p, mode))
                    o("    s_barrier")
                    o("L_nb%d_%s:" % (p, mode))
                else:
                    o("    s_barrier")
            if ctl and p == pc and pre:
                decide(mode)
                if ps == pc and not notime:
                    o("    s_memrealtime s[%d:%d]" % (S_NOW, S_NOW + 1))
            if post and p < 4:
                younger = 15 - (2 * p + 1) + NE
                o("    s_waitcnt vmcnt(%d)" % younger)
                if rp:
                    ramp_stamp("%s_%d" % (mode, p))
                if pst and not pro8 and p in (0, 3):
                    o("    s_cmp_eq_u32 s%d, 0" % S_MI)
                    o("    s_cbranch_scc0 L_nopst%d" % p)
                    pstp(4 if p == 0 else 5)
                    o("L_nopst%d:" % p)
            else:
                for h in range(2):
                    w = wait_of(m, p, h, extra)
                    if w is not None:
                        o("    s_waitcnt vmcnt(%d)" % w)
                    if wba and h == 0 and p in wsyl and not post and not (kind and p == ihp):
                        o("    s_barrier")
                    if rp and h == 0:
                        ramp_stamp("%s_%d" % (mode, p))
                    if h == 0 and q % 4 == 0 and not md:
                        issue_one(2 * q)
                        issue_E(q // 4)
                    elif m[-1] == "q":
                        if h == 0 and p % 2 == 0:
                            for n in range(2 * q, 2 * q + 4):
                                issue_one(n)
                    else:
                        issue_one(2 * q + h)
                if pst and pro8 and p in (0, 3):
                    o("    s_cmp_eq_u32 s%d, 0" % S_PROG)
                    o("    s_cbranch_scc0 L_nopst%d_%s" % (p, mode))
                    pstp(4 if p == 0 else 5)
                    o("L_nopst%d_%s:" % (p, mode))
            if half:
                if p == 4 or (p == 0 and not post):
                    o("    s_memrealtime s[%d:%d]" % (S_NOW, S_NOW + 1))
                if p == hca and not post:
                    decide_half(mode)
                if p == hcb:
                    decide(mode)
            else:
                if ctl and p == ps and ps != pc and not notime:
                    o("    s_memrealtime s[%d:%d]" % (S_NOW, S_NOW + 1))
                if ctl and p == pc and not pre:
                    decide(mode)
                    if ps == pc and not notime:
                        o("    s_memrealtime s[%d:%d]" % (S_NOW, S_NOW + 1))
            if md and a == 0:
                if p == 4:
                    round_mfma(0, zero=bool(kind))
                elif not post and not kind:
                    round_mfma(1)
                if not (post and p < 4) and (not eq or m[-1] == "q"):
                    issue_E(q // 4)
            if eq and a == 1 and m[-1] != "q" and not (post and p < 4):
                issue_E(q // 4)
            if kind:
                ih_piece(kind, p)
            slot = p % (4 * RS)
            xb = RING + slot * 8
            yb = xb + 4
            if jf & 1:
                xb, yb = yb, xb
            for c in range(4):
                o("    v_perm_b32 v%d, v%d, v%d, s%d" % (T + (2 * c) * 4 + (a ^ (jf >> 1)), yb + c, xb + c, S_SELLO))
                o("    v_perm_b32 v%d, v%d, v%d, s%d" % (T + (2 * c + 1) * 4 + (a ^ (jf >> 1)), yb + c, xb + c, S_SELHI))
            if a == 3 and not md:
                round_mfma(s, zero=bool(kind) and s == 0)
        o("    s_sub_u32 s%d, s%d, 1" % (S_CNT, S_CNT))
        if not post and not kind:
            o("    s_cmp_eq_u32 s%d, 0" % S_CNT)
            o("    s_cbranch_scc1 L_matend")

    def body_fin_cs():
        assert ft and ih and md and es and not eq and not jf and NE == 1
        assert (gbits, wbits, jbits) == ([11, 12], [13, 14], [8, 9, 10])
        FB, AB, V_CB, V_CR, X, RB = V_S2, V_S2 + 16, V_S2 + 24, V_S2 + 25, V_T2, RING + 32
        SB = S_T
        o("L_body_fin:")
        tstp(0)
        o("    v_lshlrev_b32 v%d, 3, v%d" % (V_X, V_LANE))
        o("    ds_read_b64 v[%d:%d], v%d offset:%d" % (MISC, MISC + 1, V_X, LDS_P))
        o("    buffer_store_dwordx4 v[%d:%d], v%d, s[%d:%d], 0 offen %s" %
          (V_DEF, V_DEF + 3, V_OUT, SRD_O, SRD_O + 3, oflags if of0 is None else of0))
        step_inc()
        o("    s_andn2_b32 s%d, s%d, 0x6000" % (SB, S_OFF))
        for k in range(1, 4):
            o("    s_or_b32 s%d, s%d, 0x%x" % (SB + k, SB, k << 13))
        o("    v_and_b32 v%d, 15, v%d" % (V_X, V_LANE))
        o("    v_lshrrev_b32 v%d, 4, v%d" % (V_Y, V_LANE))
        o("; lane offset of the column-split loads: g*2048 + wave*64 + m*4")
        o("    s_lshl_b32 s%d, s%d, 6" % (SB + 4, S_WAVE))
        o("    v_lshlrev_b32 v%d, 2, v%d" % (V_CB, V_X))
        o("    v_lshl_add_u32 v%d, v%d, 11, v%d" % (V_CB, V_Y, V_CB))
        o("    v_add_u32 v%d, s%d, v%d" % (V_CB, SB + 4, V_CB))

        def loads(k):
            for j in range(8):
                o("    buffer_load_dword v%d, v%d, s[%d:%d], s%d offen offset:%d %s" %
                  (RB + 8 * k + j, V_CB, SRD_D, SRD_D + 3, SB + k, j << 8, cflags))

        def perms_a(p):
            xb = RING + p * 8
            for c in range(4):
                o("    v_perm_b32 v%d, v%d, v%d, s%d" % (T + (2 * c) * 4 + p, xb + 4 + c, xb + c, S_SELLO))
                o("    v_perm_b32 v%d, v%d, v%d, s%d" % (T + (2 * c + 1) * 4 + p, xb + 4 + c, xb + c, S_SELHI))

        def step_b(k):
            o("    s_waitcnt vmcnt(%d)" % (8 * (3 - k)))
            if k == 3:
                tstp(2)
            for c, sel in enumerate((S_SELLO, S_SELHI)):
                for t in range(4):
                    x = RB + 8 * k + 2 * t
                    o("    v_perm_b32 v%d, v%d, v%d, s%d" % (T + 8 * k + 4 * c + t, x + 1, x, sel))
            o("    s_nop 1")
            for c in range(2):
                acc = AB + 4 * c
                o("    v_mfma_f32_16x16x32_bf16 v[%d:%d], v[%d:%d], v[%d:%d], %s" %
                  (acc, acc + 3, FB + 4 * k, FB + 4 * k + 3, T + 8 * k + 4 * c, T + 8 * k + 4 * c + 3,
                   "0" if k == 0 else "v[%d:%d]" % (acc, acc + 3)))

        NF = 0 if csf else 4
        for k in range(4):
            if csf:
                if k == 0:
                    o("    v_lshlrev_b32 v%d, 4, v%d" % (V_CR + 1, V_LANE))
                    o("    v_add_u32 v%d, %d, v%d" % (V_CR + 1, LDS_F, V_CR + 1))
                o("    ds_read_b128 v[%d:%d], v%d offset:%d" % (FB + 4 * k, FB + 4 * k + 3, V_CR + 1, 1024 * k))
            else:
                o("    s_lshr_b32 s%d, s%d, 7" % (SB + 4, SB + k))
                o("    buffer_load_dwordx4 v[%d:%d], v%d, s[%d:%d], s%d offen %s" %
                  (FB + 4 * k, FB + 4 * k + 3, V_EOFF, SRD_P, SRD_P + 3, SB + 4, eflags))
        up = {1: 1, 2: 4, 3: 2, 5: 3}[cs]
        if csb & 1:
            o("    s_barrier")
        for k in range(up):
            loads(k)
            if csb & 4 and k == 0:
                round_mfma(1)
        if not csb & 4:
            round_mfma(1)
        o("    v_and_b32 v%d, 3, v%d" % (V_CR, V_X))
        o("    v_mul_u32_u24 v%d, %d, v%d" % (V_CR, 2 * DS, V_CR))
        o("    v_lshrrev_b32 v%d, 2, v%d" % (V_X, V_X))
        o("    v_lshl_add_u32 v%d, v%d, 4, v%d" % (V_X, V_Y, V_X))
        o("    v_lshl_add_u32 v%d, v%d, 4, v%d" % (V_CR, V_X, V_CR))
        o("    s_lshl_b32 s%d, s%d, 6" % (SB + 4, S_WAVE))
        o("    s_add_u32 s%d, s%d, %d" % (SB + 4, SB + 4, LDS_VP))
        o("    v_add_u32 v%d, s%d, v%d" % (V_CR, SB + 4, V_CR))
        o("    v_add_u32 v%d, %d, v%d" % (V_Y, 4 * WS, V_PW))
        for p in range(4):
            issued = min(4, p + up)
            o("    s_waitcnt vmcnt(%d)" % (6 - 2 * p + NF + 8 * issued))
            if p == 0:
                tstp(1)
            perms_a(p)
            if issued < 4:
                if csb & 2:
                    o("    s_barrier")
                loads(issued)
        round_mfma(0)
        o("    s_nop 0")
        for dd in range(8):
            o("    ds_write_b128 v%d, v[%d:%d] offset:%d" % (V_Y, ACC + 4 * dd, ACC + 4 * dd + 3, dd * DS))
        o("    s_waitcnt lgkmcnt(0)")
        tstp(3)
        o("    s_barrier")
        for w in range(4):
            for c in range(2):
                r = X + (w * 2 + c) * 4
                o("    ds_read_b128 v[%d:%d], v%d offset:%d" % (r, r + 3, V_CR, w * WS + c * DS))
        step_b(0)
        step_b(1)
        o("    s_waitcnt lgkmcnt(0)")
        tstp(4)
        for j in range(8):
            o("    v_add_f32 v%d, v%d, v%d" % (X + j, X + j, X + 8 + j))
        for j in range(8):
            o("    v_add_f32 v%d, v%d, v%d" % (X + 16 + j, X + 16 + j, X + 24 + j))
        for j in range(8):
            o("    v_add_f32 v%d, v%d, v%d" % (X + j, X + j, X + 16 + j))
        for j in range(8):
            o("    v_add_f32 v%d, v%d, v%d" % (AB + j, AB + j, X + j))
        step_b(2)
        step_b(3)
        VB = MISC + 4
        o("    s_mov_b32 s%d, 0x%x" % (S_T + 2, 1 << QSH))
        o("    s_nop 5")
        for c in range(2):
            o("    v_cvt_pk_bf16_f32 v%d, v%d, v%d" % (VB + 2 * c, AB + 4 * c, AB + 4 * c + 1))
            o("    v_cvt_pk_bf16_f32 v%d, v%d, v%d" % (VB + 2 * c + 1, AB + 4 * c + 2, AB + 4 * c + 3))
        o("    s_nop 1")
        for c in range(2):
            o("    v_mfma_f32_16x16x16_bf16 v[%d:%d], v[%d:%d], v[%d:%d], 0" %
              (X + 4 * c, X + 4 * c + 3, VB + 2 * c, VB + 2 * c + 1, MISC, MISC + 1))
        o("    s_nop 7")
        for i in range(4):
            o("    v_cvt_pk_bf16_f32 v%d, v%d, v%d" % (MISC + 8 + i, X + i, X + 4 + i))
        o("    buffer_store_dwordx4 v[%d:%d], v%d, s[%d:%d], s%d offen %s" %
          (MISC + 8, MISC + 11, V_OUT, SRD_O, SRD_O + 3, S_T + 2, oflags))
        tstp(5)
        o("    s_branch L_fin")

    def body_fin():
        if cs:
            return body_fin_cs()
        o("L_body_fin:")
        tstp(0)
        if ft:
            o("    v_lshlrev_b32 v%d, 3, v%d" % (V_X, V_LANE))
            o("    ds_read_b64 v[%d:%d], v%d offset:%d" % (MISC, MISC + 1, V_X, LDS_P))
            o("    v_add_u32 v%d, %d, v%d" % (V_Y, 4 * WS, V_PW))
        if es:
            o("    buffer_store_dwordx4 v[%d:%d], v%d, s[%d:%d], 0 offen %s" %
              (V_DEF, V_DEF + 3, V_OUT, SRD_O, SRD_O + 3, oflags if of0 is None else of0))
        step_inc()
        eoff()
        issue_one(8)
        if not md:
            issue_E(1)
        for n in range(9, 16):
            issue_one(n)
        if md:
            round_mfma(1)
            issue_E(1)
        for p in range(8):
            s, a = divmod(p, 4)
            younger = 15 - (2 * p + 1) + (NE if p < 4 else 0)
            o("    s_waitcnt vmcnt(%d)" % younger)
            if p == 0:
                tstp(1)
            if p == 7:
                tstp(2)
            xb = RING + p * 8
            yb = xb + 4
            if jf & 1:
                xb, yb = yb, xb
            for c in range(4):
                o("    v_perm_b32 v%d, v%d, v%d, s%d" % (T + (2 * c) * 4 + (a ^ (jf >> 1)), yb + c, xb + c, S_SELLO))
                o("    v_perm_b32 v%d, v%d, v%d, s%d" % (T + (2 * c + 1) * 4 + (a ^ (jf >> 1)), yb + c, xb + c, S_SELHI))
            if a == 3:
                round_mfma(s)
        if not ft:
            o("    s_branch L_matend")
            return
        assert ih
        o("; last matrix: reduction, product and stores")
        o("    s_nop 0")
        for dd in range(8):
            o("    ds_write_b128 v%d, v[%d:%d] offset:%d" % (V_Y, ACC + 4 * dd, ACC + 4 * dd + 3, dd * DS))
        o("    s_mov_b32 s%d, 0x%x" % (S_T + 2, 1 << QSH))
        o("    s_waitcnt lgkmcnt(0)")
        tstp(3)
        o("    s_barrier")
        if tst:
            o("    s_memrealtime s[%d:%d]" % (PST[4], PST[4] + 1))
            o("    s_waitcnt lgkmcnt(0)")
        X = T
        for w in range(4):
            for h in range(2):
                r = X + (w * 2 + h) * 4
                o("    ds_read_b128 v[%d:%d], v%d offset:%d" % (r, r + 3, V_VR, w * WS + h * 4 * DS))
        o("    s_waitcnt lgkmcnt(4)")
        for j in range(8):
            o("    v_add_f32 v%d, v%d, v%d" % (X + j, X + j, X + 8 + j))
        o("    s_waitcnt lgkmcnt(2)")
        for j in range(8):
            o("    v_add_f32 v%d, v%d, v%d" % (X + j, X + j, X + 16 + j))
        o("    s_waitcnt lgkmcnt(0)")
        for j in range(8):
            o("    v_add_f32 v%d, v%d, v%d" % (X + j, X + j, X + 24 + j))
        VB = MISC + 4
        for h in range(2):
            o("    v_cvt_pk_bf16_f32 v%d, v%d, v%d" % (VB + 2 * h, X + 4 * h, X + 4 * h + 1))
            o("    v_cvt_pk_bf16_f32 v%d, v%d, v%d" % (VB + 2 * h + 1, X + 4 * h + 2, X + 4 * h + 3))
        o("    s_nop 1")
        for h in range(2):
            o("    v_mfma_f32_16x16x16_bf16 v[%d:%d], v[%d:%d], v[%d:%d], 0" %
              (X + 16 + 4 * h, X + 16 + 4 * h + 3, VB + 2 * h, VB + 2 * h + 1, MISC, MISC + 1))
        if not es:
            o("    buffer_store_dwordx4 v[%d:%d], v%d, s[%d:%d], 0 offen %s" %
              (V_DEF, V_DEF + 3, V_OUT, SRD_O, SRD_O + 3, oflags))
        o("    s_nop 6")
        for i in range(4):
            o("    v_cvt_pk_bf16_f32 v%d, v%d, v%d" % (MISC + 8 + i, X + 16 + 2 * i, X + 16 + 2 * i + 1))
        o("    buffer_store_dwordx4 v[%d:%d], v%d, s[%d:%d], s%d offen %s" %
          (MISC + 8, MISC + 11, V_OUT, SRD_O, SRD_O + 3, S_T + 2, oflags))
        tstp(5)
        o("    s_branch L_fin")

    pstp(3)
    if pro8 and bp:
        o("    s_mov_b32 s%d, 16" % S_CNT)
        if m0:
            o("    s_mov_b32 s%d, %d" % (S_MODE, m0))
        if mfirst:
            assert qm in (0, 1)
            if qm == 1:
                o("    s_bitcmp1_b32 s%d, 0" % S_WAVE)
                o("    s_cbranch_scc1 L_dispatch")
            o("    s_branch L_body_first")
        else:
            o("    s_branch L_dispatch")
    o("L_outer:")
    o("    s_mov_b32 s%d, 16" % S_CNT)
    if bp:
        o("; first iteration of a matrix: both rounds were issued ahead of the previous handler")
        body("post", mpost or mmid, post=True)
    o("; body selection by window mode: 0 mid, 1 hi, 2 lo, 3 last iteration")
    o("L_dispatch:")
    modes = [("mid", mmid)]
    if (ctl and force < 0) or force == 1 or tail:
        modes.append(("hi", mhi))
        o("    s_cmp_eq_u32 s%d, 1" % S_MODE)
        o("    s_cbranch_scc1 L_body_hi")
    if (ctl and force < 0) or force == 2:
        modes.append(("lo", mlo))
        o("    s_cmp_eq_u32 s%d, 2" % S_MODE)
        o("    s_cbranch_scc1 L_body_lo")
    if mm2:
        modes.append(("mi2", mm2))
        o("    s_cmp_eq_u32 s%d, 4" % S_MODE)
        o("    s_cbranch_scc1 L_body_mi2")
    if fin:
        assert ctl
        o("    s_cmp_eq_u32 s%d, 3" % S_MODE)
        o("    s_cbranch_scc1 L_body_fin")
    for mode, m in modes:
        body(mode, m)
        o("    s_branch L_dispatch")
    if mfirst:
        body("first", mfirst, extra=4)
        o("    s_branch L_dispatch")
    if fin:
        body_fin()
    o("L_matend:")
    if ih:
        assert bp and defer and fin and ihp <= 2 and not half and not esplit and hf < 0
        if not ft:
            o("    s_cmp_eq_u32 s%d, 3" % S_MI)
            o("    s_cbranch_scc1 L_final")
        if md:
            assert ft and ih and not half and not pro8 and not esplit
            round_mfma(1)
        o("    s_and_b32 s%d, s%d, 1" % (S_T, S_MI))
        o("    s_mul_i32 s%d, s%d, %d" % (S_T + 1, S_T, 4 * WS))
        o("    v_add_u32 v%d, s%d, v%d" % (V_X, S_T + 1, V_PW))
        o("    s_mov_b32 s%d, s%d" % (S_PMI, S_MI))
        o("    s_add_u32 s%d, s%d, 1" % (S_MI, S_MI))
        o("    s_mov_b32 s%d, 16" % S_CNT)
        o("    s_nop 7")
        for dd in range(8):
            o("    ds_write_b128 v%d, v[%d:%d] offset:%d" % (V_X, ACC + 4 * dd, ACC + 4 * dd + 3, dd * DS))
        o("    s_cmp_eq_u32 s%d, 1" % S_T)
        o("    s_cbranch_scc1 L_body_ihV")
        body("ihK", mih or mmid, kind="K")
        o("    s_branch L_dispatch")
        body("ihV", mih or mmid, kind="V")
        o("    s_branch L_dispatch")
        markf = len(L)
        o("; last matrix: reduction, product and both stores")
        o("L_final:")
        o("    v_add_u32 v%d, %d, v%d" % (V_X, 4 * WS, V_PW))
        o("    s_nop 7")
        o("    s_waitcnt lgkmcnt(0)")
        for dd in range(8):
            o("    ds_write_b128 v%d, v[%d:%d] offset:%d" % (V_X, ACC + 4 * dd, ACC + 4 * dd + 3, dd * DS))
        o("    s_waitcnt lgkmcnt(0)")
        tstp(3)
        o("    s_barrier")
        if tst:
            o("    s_memrealtime s[%d:%d]" % (PST[4], PST[4] + 1))
        v_read(T)
        o("    s_waitcnt lgkmcnt(0)")
        v_prod(T)
        o("    s_nop 7")
        for i in range(4):
            o("    v_cvt_pk_bf16_f32 v%d, v%d, v%d" % (MISC + 8 + i, T + 16 + 2 * i, T + 16 + 2 * i + 1))
        if not es:
            o("    buffer_store_dwordx4 v[%d:%d], v%d, s[%d:%d], 0 offen %s" %
              (V_DEF, V_DEF + 3, V_OUT, SRD_O, SRD_O + 3, oflags))
        o("    s_mov_b32 s%d, 0x%x" % (S_T + 2, 1 << QSH))
        o("    buffer_store_dwordx4 v[%d:%d], v%d, s[%d:%d], s%d offen %s" %
          (MISC + 8, MISC + 11, V_OUT, SRD_O, SRD_O + 3, S_T + 2, oflags))
        tstp(5)
        o("    s_branch L_fin")
        if ft:
            del L[markf:]
    if bp and not ih:
        o("    s_cmp_eq_u32 s%d, 3" % S_MI)
        o("    s_cbranch_scc1 L_nopf")
        step_inc()
        eoff()
        issue_one(8)
        issue_E(1)
        for n in range(9, 16):
            issue_one(n)
        o("L_nopf:")
    mark = len(L)
    o("    s_and_b32 s%d, s%d, 1" % (S_T, S_MI))
    o("    s_mul_i32 s%d, s%d, %d" % (S_T + 1, S_T, 4 * WS))
    o("    v_add_u32 v%d, s%d, v%d" % (V_X, S_T + 1, V_PW))
    o("    s_nop 7")
    if ctl:
        o("    s_waitcnt lgkmcnt(0)")
    for dd in range(8):
        o("    ds_write_b128 v%d, v[%d:%d] offset:%d" % (V_X, ACC + 4 * dd, ACC + 4 * dd + 3, dd * DS))
    o("    s_waitcnt lgkmcnt(0)")
    o("    s_barrier")
    o("    s_cmp_eq_u32 s%d, 1" % S_T)
    o("    s_cbranch_scc1 L_vend")
    o("    s_cmp_lg_u32 s%d, s%d" % (S_WAVE, S_MI))
    o("    s_cbranch_scc1 L_mat_done")
    SUM, TMP, PA = ACC, T, MISC
    o("    v_lshlrev_b32 v%d, 4, v%d" % (V_X, V_LANE))
    for w in range(4):
        dst = SUM if w == 0 else TMP
        for dd in range(8):
            o("    ds_read_b128 v[%d:%d], v%d offset:%d" %
              (dst + 4 * dd, dst + 4 * dd + 3, V_X, LDS_KP + w * WS + dd * DS))
        if w > 0:
            for dd in range(8):
                o("    s_waitcnt lgkmcnt(%d)" % (7 - dd))
                for i in range(4):
                    o("    v_add_f32 v%d, v%d, v%d" % (SUM + 4 * dd + i, SUM + 4 * dd + i, TMP + 4 * dd + i))
    for dd in range(8):
        o("    v_cvt_pk_bf16_f32 v%d, v%d, v%d" % (PA + 2 * dd, SUM + 4 * dd, SUM + 4 * dd + 1))
        o("    v_cvt_pk_bf16_f32 v%d, v%d, v%d" % (PA + 2 * dd + 1, SUM + 4 * dd + 2, SUM + 4 * dd + 3))
    ID = MISC + 16
    o("    v_and_b32 v%d, 15, v%d" % (V_X, V_LANE))
    o("    v_lshrrev_b32 v%d, 4, v%d" % (V_Y, V_LANE))
    o("    v_lshlrev_b32 v%d, 2, v%d" % (V_Y, V_Y))
    o("    v_sub_u32 v%d, v%d, v%d" % (V_X, V_X, V_Y))
    o("    v_mov_b32 v%d, 0" % ID)
    o("    v_mov_b32 v%d, 0" % (ID + 1))
    o("    v_mov_b32 v%d, 0x3f80" % (ID + 2))
    o("    v_mov_b32 v%d, 0x3f800000" % (ID + 3))
    for j, (dst, src) in enumerate(((ID, ID + 2), (ID, ID + 3), (ID + 1, ID + 2), (ID + 1, ID + 3))):
        o("    v_cmp_eq_u32 vcc, %d, v%d" % (j, V_X))
        o("    s_nop 1")
        o("    v_cndmask_b32 v%d, v%d, v%d, vcc" % (dst, dst, src))
    o("    s_nop 1")
    for dd in range(8):
        o("    v_mfma_f32_16x16x16_bf16 v[%d:%d], v[%d:%d], v[%d:%d], 0" %
          (TMP + 4 * dd, TMP + 4 * dd + 3, PA + 2 * dd, PA + 2 * dd + 1, ID, ID + 1))
    o("    s_nop 7")
    PB = SUM
    for s in range(4):
        for j in range(4):
            o("    v_cvt_pk_bf16_f32 v%d, v%d, v%d" %
              (PB + 4 * s + j, TMP + (2 * j) * 4 + s, TMP + (2 * j + 1) * 4 + s))
    SC = SUM + 16
    if qwait:
        o("    s_waitcnt vmcnt(0)")
    if qm == 2:
        assert bp and not noE
        o("    s_waitcnt vmcnt(%d)" % (16 + 2 * NE))
    for s in range(4):
        c = "0" if s == 0 else "v[%d:%d]" % (SC, SC + 3)
        o("    v_mfma_f32_16x16x32_bf16 v[%d:%d], v[%d:%d], a[%d:%d], %s" %
          (SC, SC + 3, PB + 4 * s, PB + 4 * s + 3, A_Q + 4 * s, A_Q + 4 * s + 3, c))
    o("    s_mov_b32 s%d, 0x3db504f3" % (S_T + 2))
    o("    s_mov_b32 s%d, 0x3fb8aa3b" % (S_T + 3))
    o("    s_nop 7")
    W = SUM + 20
    M = SUM + 22

    def round_bf16():
        o("    v_cvt_pk_bf16_f32 v%d, v%d, v%d" % (W, SC, SC + 1))
        o("    v_cvt_pk_bf16_f32 v%d, v%d, v%d" % (W + 1, SC + 2, SC + 3))
        o("    v_lshlrev_b32 v%d, 16, v%d" % (SC, W))
        o("    v_and_b32 v%d, 0xffff0000, v%d" % (SC + 1, W))
        o("    v_lshlrev_b32 v%d, 16, v%d" % (SC + 2, W + 1))
        o("    v_and_b32 v%d, 0xffff0000, v%d" % (SC + 3, W + 1))

    round_bf16()
    for i in range(4):
        o("    v_mul_f32 v%d, s%d, v%d" % (SC + i, S_T + 2, SC + i))
    round_bf16()
    o("    v_max_f32 v%d, v%d, v%d" % (M, SC, SC + 1))
    o("    v_max3_f32 v%d, v%d, v%d, v%d" % (M, SC + 2, SC + 3, M))

    def xlane(op, reg, tmp):
        for sw in ("v_permlane32_swap_b32", "v_permlane16_swap_b32"):
            o("    v_mov_b32 v%d, v%d" % (tmp, reg))
            o("    s_nop 1")
            o("    %s v%d, v%d" % (sw, reg, tmp))
            o("    s_nop 1")
            o("    %s v%d, v%d, v%d" % (op, reg, reg, tmp))

    xlane("v_max_f32", M, M + 1)
    for i in range(4):
        o("    v_sub_f32 v%d, v%d, v%d" % (SC + i, SC + i, M))
    for i in range(4):
        o("    v_mul_f32 v%d, s%d, v%d" % (SC + i, S_T + 3, SC + i))
    for i in range(4):
        o("    v_exp_f32 v%d, v%d" % (SC + i, SC + i))
    o("    s_nop 0")
    o("    v_add_f32 v%d, v%d, v%d" % (M, SC, SC + 1))
    o("    v_add_f32 v%d, v%d, v%d" % (M + 1, SC + 2, SC + 3))
    o("    v_add_f32 v%d, v%d, v%d" % (M, M, M + 1))
    xlane("v_add_f32", M, M + 1)
    o("    v_rcp_f32 v%d, v%d" % (M, M))
    o("    s_nop 0")
    for i in range(4):
        o("    v_mul_f32 v%d, v%d, v%d" % (SC + i, SC + i, M))
    o("    v_cvt_pk_bf16_f32 v%d, v%d, v%d" % (W, SC, SC + 1))
    o("    v_cvt_pk_bf16_f32 v%d, v%d, v%d" % (W + 1, SC + 2, SC + 3))
    o("    v_lshlrev_b32 v%d, 3, v%d" % (V_X, V_LANE))
    o("    ds_write_b64 v%d, v[%d:%d] offset:%d" % (V_X, W, W + 1, LDS_P))
    o("    s_waitcnt lgkmcnt(0)")
    o("    s_branch L_mat_done")

    o("L_vend:")
    PP = MISC
    o("    v_lshlrev_b32 v%d, 3, v%d" % (V_X, V_LANE))
    o("    ds_read_b64 v[%d:%d], v%d offset:%d" % (PP, PP + 1, V_X, LDS_P))
    for w in range(4):
        for h in range(2):
            r = T + (w * 2 + h) * 4
            o("    ds_read_b128 v[%d:%d], v%d offset:%d" % (r, r + 3, V_VR, w * WS + h * 4 * DS))
    o("    s_waitcnt lgkmcnt(4)")
    for j in range(8):
        o("    v_add_f32 v%d, v%d, v%d" % (T + j, T + j, T + 8 + j))
    o("    s_waitcnt lgkmcnt(0)")
    for j in range(8):
        o("    v_add_f32 v%d, v%d, v%d" % (T + 16 + j, T + 16 + j, T + 24 + j))
    for j in range(8):
        o("    v_add_f32 v%d, v%d, v%d" % (T + j, T + j, T + 16 + j))
    VB = MISC + 4
    for h in range(2):
        o("    v_cvt_pk_bf16_f32 v%d, v%d, v%d" % (VB + 2 * h, T + 4 * h, T + 4 * h + 1))
        o("    v_cvt_pk_bf16_f32 v%d, v%d, v%d" % (VB + 2 * h + 1, T + 4 * h + 2, T + 4 * h + 3))
    OO = T + 16
    o("    s_lshr_b32 s%d, s%d, 1" % (S_T + 2, S_MI))
    o("    s_lshl_b32 s%d, s%d, %d" % (S_T + 2, S_T + 2, QSH))
    if hf >= 0:
        o("    s_xor_b32 s%d, s%d, s%d" % (S_T + 2, S_T + 2, S_FL))
    for h in range(2):
        o("    v_mfma_f32_16x16x16_bf16 v[%d:%d], v[%d:%d], v[%d:%d], 0" %
          (OO + 4 * h, OO + 4 * h + 3, VB + 2 * h, VB + 2 * h + 1, PP, PP + 1))
    o("    s_nop 7")
    for i in range(4):
        o("    v_cvt_pk_bf16_f32 v%d, v%d, v%d" % (MISC + 8 + i, OO + 2 * i, OO + 2 * i + 1))
    if noout or defer:
        o("    s_cmp_eq_u32 s%d, 1" % S_MI)
        o("    s_cbranch_scc0 L_store")
        if defer:
            for i in range(4):
                o("    v_mov_b32 v%d, v%d" % (V_DEF + i, MISC + 8 + i))
        o("    s_branch L_mat_done")
        o("L_store:")
        if defer:
            o("    buffer_store_dwordx4 v[%d:%d], v%d, s[%d:%d], %s offen %s" %
              (V_DEF, V_DEF + 3, V_OUT, SRD_O, SRD_O + 3, "s%d" % S_FL if hf >= 0 else "0", oflags))
    o("    buffer_store_dwordx4 v[%d:%d], v%d, s[%d:%d], s%d offen %s" %
      (MISC + 8, MISC + 11, V_OUT, SRD_O, SRD_O + 3, S_T + 2, oflags))

    o("L_mat_done:")
    o("    s_add_u32 s%d, s%d, 1" % (S_MI, S_MI))
    o("    s_cmp_eq_u32 s%d, 4" % S_MI)
    o("    s_cbranch_scc1 L_fin")
    for j in range(32):
        o("    v_mov_b32 v%d, 0" % (ACC + j))
    o("    s_branch L_outer")
    if ih:
        del L[mark:]

    if ctl:
        o("; ---- progress reports (L_rp) and progress line updates (L_ev) ----")
        emit_events()
    o("; ---- load side moves on to the next matrix ----")
    for tag in stubs:
        o("L_sw_%s:" % tag)
        if qm == 2:
            o("    s_cmp_lg_u32 s%d, s%d" % (S_LM, S_WAVE))
            o("    s_cbranch_scc1 L_swq_%s" % tag)
            o("    s_bitcmp1_b32 s%d, 0" % S_WAVE)
            o("    s_cbranch_scc1 L_swq_%s" % tag)
            o("    v_and_b32 v%d, 15, v%d" % (V_X, V_LANE))
            o("    v_lshrrev_b32 v%d, 4, v%d" % (V_Y, V_LANE))
            load_q(V_X, V_Y, V_X, S_T + 6)
            o("L_swq_%s:" % tag)
        o("    s_mov_b32 s%d, s%d" % (S_OFF, S_OFF0))
        if general:
            o("    s_mov_b32 s%d, 0" % S_STP)
        if hf >= 0:
            o("    s_add_u32 s%d, s%d, s%d" % (S_T + 4, SRD_D, S_ADV))
            o("    s_addc_u32 s%d, s%d, s%d" % (S_T + 5, SRD_D + 1, S_ADVH))
        else:
            o("    s_add_u32 s%d, s%d, 0x%x" % (S_T + 4, SRD_D, 1 << mb))
            o("    s_addc_u32 s%d, s%d, 0" % (S_T + 5, SRD_D + 1))
        o("    s_mov_b32 s%d, s%d" % (SRD_D, NXT_D))
        o("    s_mov_b32 s%d, s%d" % (SRD_D + 1, NXT_D + 1))
        o("    s_mov_b32 s%d, s%d" % (NXT_D, S_T + 4))
        o("    s_mov_b32 s%d, s%d" % (NXT_D + 1, S_T + 5))
        o("    s_mov_b32 s%d, s%d" % (S_T + 4, SRD_P))
        o("    s_mov_b32 s%d, s%d" % (S_T + 5, SRD_P + 1))
        o("    s_mov_b32 s%d, s%d" % (SRD_P, NXT_P))
        o("    s_mov_b32 s%d, s%d" % (SRD_P + 1, NXT_P + 1))
        o("    s_mov_b32 s%d, s%d" % (NXT_P, S_T + 4))
        o("    s_mov_b32 s%d, s%d" % (NXT_P + 1, S_T + 5))
        o("    s_add_u32 s%d, s%d, 1" % (S_LM, S_LM))
        o("    s_cmp_eq_u32 s%d, 4" % S_LM)
        o("    s_cselect_b32 s%d, 0, 0x%x" % (SRD_D + 2, DSZ))
        o("    s_cselect_b32 s%d, 0, 0x20000" % (SRD_P + 2))
        o("    s_branch L_swr_%s" % tag)

    o("L_fin:")
    if stamp:
        o("    s_waitcnt vmcnt(0)")
        o("    s_memrealtime s[62:63]")
        o("    s_getreg_b32 s58, hwreg(HW_REG_XCC_ID)")
        o("    s_getreg_b32 s59, hwreg(HW_REG_HW_ID)")
        o("    s_waitcnt lgkmcnt(0)")
        o("    s_lshl_b32 s%d, s2, 2" % S_T)
        o("    s_add_u32 s%d, s%d, s%d" % (S_T, S_T, S_WAVE))
        o("    s_lshl_b32 s%d, s%d, 4" % (S_T, S_T))
        o("    v_mov_b32 v4, s60")
        o("    v_mov_b32 v5, s62")
        o("    v_mov_b32 v6, s58")
        if pstamp:
            o("    s_sub_u32 s82, s82, s60")
        o("    v_mov_b32 v7, s%d" % (82 if pstamp else (S_HI if ctl else 59)))
        o("    v_mov_b32 v2, s%d" % S_T)
        o("    global_store_dwordx4 v2, v[4:7], s[18:19]")
        if pst:
            o("    s_lshl_b32 s%d, s%d, 1" % (S_T + 1, S_T))
            o("    s_add_u32 s%d, s%d, 0x60000" % (S_T + 1, S_T + 1))
            o("    v_mov_b32 v2, s%d" % (S_T + 1))
            for k in range(6):
                o("    s_sub_u32 s%d, s%d, s60" % (PST[k], PST[k]))
                o("    v_mov_b32 v%d, s%d" % (8 + k, PST[k]))
            o("    global_store_dwordx4 v2, v[8:11], s[18:19]")
            o("    global_store_dwordx2 v2, v[12:13], s[18:19] offset:16")
        if trace or rp:
            o("    s_lshl_b32 s%d, s%d, 4" % (S_T, S_T))
            o("    s_add_u32 s%d, s%d, 0x10000" % (S_T, S_T))
            o("    v_lshlrev_b32 v2, 2, v0")
            o("    v_add_u32 v2, s%d, v2" % S_T)
            o("    global_store_dword v2, v%d, s[18:19]" % V_BV)
            if trace == 2 or rp:
                o("    v_add_u32 v2, 0x40000, v2")
                o("    global_store_dword v2, v%d, s[18:19]" % V_TR2)
    o("L_end:")
    o("    s_endpgm")
    nvg = max(accum_offset + na, 264)
    o('.section .rodata,"a"')
    o(".p2align 6")
    o(".amdhsa_kernel %s_kernel" % NAME)
    o("  .amdhsa_next_free_vgpr %d" % nvg)
    o("  .amdhsa_next_free_sgpr %d" % (96 if pst or rp else 88))
    o("  .amdhsa_accum_offset %d" % accum_offset)
    o("  .amdhsa_group_segment_fixed_size 0")
    o("  .amdhsa_kernarg_size 64")
    o("  .amdhsa_user_sgpr_count 2")
    o("  .amdhsa_user_sgpr_kernarg_segment_ptr 1")
    o("  .amdhsa_system_sgpr_workgroup_id_x 1")
    o("  .amdhsa_float_denorm_mode_32 3")
    o(".end_amdhsa_kernel")
    return "\n".join(L) + "\n"


if __name__ == "__main__":
    out = sys.argv[1]
    kw = {}
    for a in sys.argv[2:]:
        k, v = a.split("=")
        if k not in ("flags", "eflags", "oflags", "mlo", "mmid", "mhi", "cal", "aflags", "akind", "mpost", "mfirst", "xm", "jb", "gb", "wb", "sb", "pb", "af", "jx", "mm2", "wsy", "ewf", "mih", "epsl", "of0", "cflags"):
            v = int(v)
        else:
            v = v.replace("+", " ")
        kw[k] = v
    open(out, "w").write(gen(**kw))
```
